```python
import torch

def _softmax(x, axis=-1):
    return torch.softmax(x, dim=axis)
def _gelu(x):
    return torch.nn.functional.gelu(x, approximate="tanh")
def _silu(x):
    return torch.nn.functional.silu(x)
def _sigmoid(x):
    return torch.sigmoid(x)
def _layernorm(x, axis=-1, eps=1e-5):
    m = x.mean(dim=axis, keepdim=True)
    v = x.var(dim=axis, keepdim=True, unbiased=False)
    return (x - m) / torch.sqrt(v + eps)
def _scatter_add(tgt, idx, src, axis=0):
    return tgt.clone().index_add_(axis, idx, src)
def _segment_sum(src, seg, n):
    out = torch.zeros((n,) + src.shape[1:], dtype=src.dtype)
    return out.index_add_(0, seg, src)
def _pad(x, pw):
    flat = tuple(v for pair in reversed(pw) for v in pair)
    return torch.nn.functional.pad(x, flat)

kernel_name = 'gated_mix__ssm_conv_h3__mixer_s_mlp__prompt'

def setup_inputs():

    _w = (lambda a: (lambda t: t.to(torch.bfloat16) if t.is_floating_point() else t)(torch.as_tensor(a)))
    def _A_setup():
        B, S, D = 1, 2048, 512
        ks = 4
        return {
            "q": _w((lambda *s: torch.randn(*s, dtype=torch.bfloat16) * 0.05)(B, S, D)),
            "k": _w((lambda *s: torch.randn(*s, dtype=torch.bfloat16) * 1.6)(B, S, D)),
            "v": _w((lambda *s: torch.randn(*s, dtype=torch.bfloat16) * 1.6)(B, S, D)),
            "shift_k": _w((lambda *s: torch.randn(*s, dtype=torch.bfloat16) * 1.6)(D, ks) * 0.5),
            "ssm_k": _w((lambda *s: torch.randn(*s, dtype=torch.bfloat16) * 3.2)(D, S) * (1.0 / S ** 0.5)),
            "ssm_D": _w((lambda *s: torch.randn(*s, dtype=torch.bfloat16) * 1.6)(D)),
        }
    _A_in = _A_setup()

    def _B_setup():
        B, S, D, F = 1, 2048, 512, 1792
        return {
            "x":  _w((lambda *s: torch.randn(*s, dtype=torch.bfloat16) * 0.05)(B, S, D)),
            "w1": _w((lambda *s: torch.randn(*s, dtype=torch.bfloat16) * 3.2)(D, D) * (D ** -0.5)),
            "w2": _w((lambda *s: torch.randn(*s, dtype=torch.bfloat16) * 3.2)(D, D) * (D ** -0.5)),
            "w3": _w((lambda *s: torch.randn(*s, dtype=torch.bfloat16) * 3.2)(D, F) * (D ** -0.5)),
            "w4": _w((lambda *s: torch.randn(*s, dtype=torch.bfloat16) * 1.6)(F, D) * (F ** -0.5)),
        }
    _B_in = _B_setup()

    return {
        "A_q": _A_in["q"],
        "A_k": _A_in["k"],
        "A_v": _A_in["v"],
        "A_shift_k": _A_in["shift_k"],
        "A_ssm_k": _A_in["ssm_k"],
        "A_ssm_D": _A_in["ssm_D"],
        "B_x": _B_in["x"],
        "B_w1": _B_in["w1"],
        "B_w2": _B_in["w2"],
        "B_w3": _B_in["w3"],
        "B_w4": _B_in["w4"],
        "gate_w": _w((lambda *s: torch.randn(*s, dtype=torch.bfloat16) * 0.05)(512) * 16.0),
    }

def reference(A_q, A_k, A_v, A_shift_k, A_ssm_k, A_ssm_D, B_x, B_w1, B_w2, B_w3, B_w4, gate_w):
    def _A_ref(q, k, v, shift_k, ssm_k, ssm_D):
        B, S, D = q.shape
        ks = shift_k.shape[-1]
        k_pad = _pad(k, ((0, 0), (ks - 1, 0), (0, 0)))
        k_shift = torch.zeros_like(k)
        for t in range(ks):
            k_shift = k_shift + k_pad[:, t:t + S, :] * shift_k[:, ks - 1 - t][None, None, :]
        kv = k_shift * v
        L = 2 * S
        kv_pad = _pad(kv, ((0, 0), (0, S), (0, 0)))
        kf_pad = _pad(ssm_k, ((0, 0), (0, S)))
        kv_f = (lambda x, axes=(-2,-1): torch.fft.rfft2(x.float(), dim=axes))(kv_pad[:, None, :, :], axes=(1, 2))
        kf_f = (lambda x, axes=(-2,-1): torch.fft.rfft2(x.float(), dim=axes))(kf_pad[:, None, :], axes=(1, 2))
        kf_f = (lambda x, *d: x.permute(*d))(kf_f, 1, 2, 0)
        y_f = kv_f * kf_f[None, :, :, :]
        y = (lambda x, s, axes=(-2,-1): torch.fft.irfft2(x, s=s, dim=axes).to(torch.bfloat16))(y_f, (1, L), axes=(1, 2))[:, 0, :S, :]
        y = y + kv * ssm_D[None, None, :]
        return q * y

    def _B_ref(x, w1, w2, w3, w4):
        B, S, D = x.shape
        h = _gelu(_layernorm(x, axis=-1) @ w1)
        c = D // 4
        g0 = _pad(h[:, :, 0*c:1*c], ((0, 0), (1, 0), (0, 0)))[:, :S, :]
        g1 = _pad(h[:, :, 1*c:2*c], ((0, 0), (0, 1), (0, 0)))[:, 1:, :]
        g2 = _pad(h[:, :, 2*c:3*c], ((0, 0), (2, 0), (0, 0)))[:, :S, :]
        g3 = _pad(h[:, :, 3*c:   ], ((0, 0), (0, 2), (0, 0)))[:, 2:, :]
        hs = torch.concatenate([g0, g1, g2, g3], axis=-1) @ w2
        x1 = x + hs
        h2 = _gelu(_layernorm(x1, axis=-1) @ w3) @ w4
        return x1 + h2

    x = A_q
    g = _sigmoid((x * gate_w).sum(-1, keepdims=True))
    a = _A_ref(x, A_k, A_v, A_shift_k, A_ssm_k, A_ssm_D)
    b = _B_ref(x, B_w1, B_w2, B_w3, B_w4)
    return g * a + (1 - g) * b
```

```python
KNAME = "gated_mix__ssm_conv_h3__mixer_s_mlp__prompt_kernel"

ARG = dict(q=0, k=8, v=16, shift_k=24, ssm_k=32, ssm_D=40, x_unused=48, w1=56, w2=64, w3=72, w4=80,
           gate_w=88, out=96, dbg=104, ws=112)
NBYTES = dict(q=2097152, k=2097152, v=2097152, shift_k=4096, ssm_k=2097152, ssm_D=1024, w1=524288,
              w2=524288, w3=1835008, w4=1835008, gate_w=1024, out=2097152, dbg=256, ws=268435456)


class Asm:
    def __init__(self):
        self.lines = []
        self.nlabel = 0

    def __call__(self, text):
        for ln in text.split("\n"):
            ln = ln.strip()
            if ln:
                self.lines.append(ln if ln.endswith(":") else "    " + ln)

    def label(self, stem="L"):
        self.nlabel += 1
        return f"{stem}_{self.nlabel}"

    def text(self):
        return "\n".join(self.lines) + "\n"


def kernel_head(name):
    return (f".globl {name}\n.p2align 8\n.type {name},@function\n{name}:\n")


def kernel_desc(name, vgpr=256, accum=256, sgpr=102):
    return f""".amdhsa_kernel {name}
  .amdhsa_next_free_vgpr {vgpr}
  .amdhsa_next_free_sgpr {sgpr}
  .amdhsa_accum_offset {accum}
  .amdhsa_group_segment_fixed_size 0
  .amdhsa_kernarg_size 120
  .amdhsa_user_sgpr_count 2
  .amdhsa_user_sgpr_kernarg_segment_ptr 1
  .amdhsa_system_sgpr_workgroup_id_x 1
  .amdhsa_float_denorm_mode_32 3
.end_amdhsa_kernel
"""


def file_text(launches, kernels):
    out = []
    single = len(launches) == 1 and launches[0][0] == KNAME
    for name, grid, block, lds in launches:
        if single:
            out.append(f"; @launch grid=({grid},1,1) block=({block},1,1) lds={lds}")
        else:
            out.append(f"; @launch kernel={name} grid=({grid},1,1) block=({block},1,1) lds={lds}")
    out.append('.amdgcn_target "amdgcn-amd-amdhsa--gfx950"')
    out.append(".text")
    for name, body, *_ in kernels:
        out.append(kernel_head(name) + body)
    out.append('.section .rodata,"a"')
    for name, body, vgpr, accum, sgpr in kernels:
        out.append(".p2align 6")
        out.append(kernel_desc(name, vgpr, accum, sgpr))
    return "\n".join(out)


def srd(a, dst, src, nbytes):
    if dst != src:
        a(f"s_mov_b32 s{dst}, s{src}")
        a(f"s_mov_b32 s{dst+1}, s{src+1}")
    a(f"s_mov_b32 s{dst+2}, {nbytes}")
    a(f"s_mov_b32 s{dst+3}, 0x00020000")
```

```python
import re

REG = re.compile(r"^(-?)(?:abs\()?([vas])(?:\[(\d+):(\d+)\]|(\d+))\)?$")
TRANS = ("v_exp_f32", "v_log_f32", "v_rcp_f32", "v_rsq_f32", "v_sqrt_f32", "v_sin_f32", "v_cos_f32")
NO_DST_S = ("s_cmp", "s_waitcnt", "s_barrier", "s_nop", "s_cbranch", "s_branch", "s_endpgm", "s_setprio",
            "s_sleep", "s_bitcmp")


def regs_of(tok):
    tok = tok.strip()
    if tok in ("vcc", "vcc_lo", "vcc_hi"):
        return {("x", "vcc")}
    if tok == "m0":
        return {("x", "m0")}
    if tok in ("exec", "exec_lo", "exec_hi"):
        return {("x", "exec")}
    m = REG.match(tok)
    if not m:
        return set()
    k = m.group(2)
    if m.group(3) is not None:
        return {(k, i) for i in range(int(m.group(3)), int(m.group(4)) + 1)}
    return {(k, int(m.group(5)))}


class Ins:
    __slots__ = ("text", "op", "kind", "wr", "rd", "A", "B", "C", "passes", "data", "states", "lds")

    def __init__(self, text):
        self.text = text
        body = text.split(";")[0].strip()
        self.wr, self.rd = set(), set()
        self.A = self.B = self.C = self.data = set()
        self.passes = 0
        self.states = 1
        self.lds = False
        if body.endswith(":") or body.startswith(".") or not body:
            self.op, self.kind, self.states = body, "label", 0
            return
        parts = body.split(None, 1)
        op = self.op = parts[0]
        rest = parts[1] if len(parts) > 1 else ""
        toks = [t.strip() for t in re.split(r",(?![^\[]*\])", rest)] if rest else []
        if toks:
            last = toks[-1].split()
            mods = last[1:]
            toks[-1] = last[0] if last else ""
        else:
            mods = []
        R = [regs_of(t) for t in toks]
        allr = lambda xs: set().union(*xs) if xs else set()
        if op.startswith("v_mfma"):
            self.kind = "mfma"
            self.wr, self.A, self.B, self.C = R[0], R[1], R[2], R[3]
            self.rd = self.A | self.B | self.C
            self.passes = 8 if "32x32x16" in op else 4
        elif op.startswith("v_"):
            self.kind = "valu"
            self.wr = set(R[0])
            self.rd = allr(R[1:])
            if op.startswith("v_permlane") and "swap" in op:
                self.wr = R[0] | R[1]
                self.rd = R[0] | R[1]
            elif op.startswith(("v_fmac", "v_dot2c")):
                self.rd |= R[0]
                self.C = set(R[0])
                self.A = allr(R[1:])
            elif op.startswith("v_dot2"):
                self.C = set(R[3])
                self.A = R[1] | R[2]
            elif op.endswith("_dpp"):
                self.rd |= R[0]
        elif op.startswith("ds_"):
            self.kind = "ds"
            if op.startswith(("ds_read", "ds_bpermute", "ds_permute", "ds_swizzle")):
                self.wr, self.rd = R[0], allr(R[1:])
            else:
                self.rd = allr(R)
        elif op.startswith(("buffer_", "global_")):
            self.kind = "vmem"
            self.lds = "lds" in mods or "_lds_" in op
            if "load" in op and not self.lds:
                self.wr, self.rd = R[0], allr(R[1:])
            else:
                self.rd = allr(R)
                if self.lds:
                    self.rd |= {("x", "m0")}
                if "store" in op and ("x3" in op or "x4" in op):
                    self.data = R[0] if op.startswith("buffer_") else R[1]
        elif op.startswith("s_"):
            self.kind = "salu"
            if op == "s_nop":
                self.states = int(toks[0], 0) + 1
            elif not op.startswith(NO_DST_S):
                self.wr, self.rd = R[0], allr(R[1:])
            else:
                self.rd = allr(R)
        else:
            raise ValueError("cannot parse: " + text)


def need(p, c):
    n = 0
    isv = lambda s: {r for r in s if r[0] in "va"}
    iss = lambda s: {r for r in s if r[0] == "s" or r == ("x", "vcc")}
    if p.kind == "valu":
        pw = isv(p.wr)
        if c.kind == "mfma" and pw & c.rd:
            n = max(n, 2)
        if c.kind == "valu":
            if p.op.startswith(TRANS) and not c.op.startswith(TRANS) and pw & c.rd:
                n = max(n, 1)
            if (c.op.startswith("v_permlane") or c.op.endswith("_dpp")) and pw & c.rd:
                n = max(n, 2)
            if c.op.startswith(("v_readfirstlane", "v_readlane")) and pw & c.rd:
                n = max(n, 1)
            if iss(p.wr) & c.rd:
                n = max(n, 4 if c.op.startswith(("v_readlane", "v_writelane")) else 2)
        if p.op.startswith("v_dot2") and pw & (c.rd | c.wr):
            same = c.kind == "valu" and c.op == p.op
            if not (same and not (pw & c.A)):
                n = max(n, 3)
        if c.kind == "vmem" and iss(p.wr) & c.rd:
            n = max(n, 5)
        if c.kind == "salu" and iss(p.wr) & c.rd and not c.op.startswith("s_cbranch"):
            n = max(n, 2)
    elif p.kind == "mfma":
        if c.kind == "mfma":
            if p.wr & (c.A | c.B):
                n = max(n, p.passes + 4)
            if p.wr & c.C and not (p.wr == c.C and p.passes == c.passes):
                n = max(n, p.passes + 2)
            if p.wr & c.wr and not (p.wr == c.wr and p.passes == c.passes):
                n = max(n, p.passes + 2)
        elif c.kind in ("valu", "ds", "vmem"):
            if p.wr & (c.rd | c.wr):
                n = max(n, p.passes + 4)
            if c.kind == "valu" and p.C & c.wr:
                n = max(n, p.passes - 1)
    elif p.kind == "vmem":
        if p.data & c.wr:
            n = max(n, 2)
    elif p.kind == "salu":
        if ("x", "m0") in p.wr and c.kind == "vmem" and c.lds:
            n = max(n, 1)
    return n


def pad_hazards(lines):
    out = []
    window = []
    nops = 0
    for text in lines:
        c = Ins(text)
        if c.kind == "label":
            out.append(text)
            continue
        dist, lack = 0, 0
        for p in reversed(window):
            lack = max(lack, need(p, c) - dist)
            dist += p.states
            if dist >= 20:
                break
        while lack > 0:
            k = min(lack, 16)
            nop = Ins(f"s_nop {k-1}")
            out.append("    " + nop.text)
            window.append(nop)
            lack -= k
            nops += 1
        out.append(text)
        window.append(c)
        if len(window) > 40:
            del window[:-24]
    return out, nops


class Pool:
    def __init__(self, kind, lo, hi):
        self.kind, self.free = kind, set(range(lo, hi))
        self.high = lo

    def alloc(self, n, align=None, at=None):
        if at is not None:
            assert all(at + i in self.free for i in range(n)), f"{self.kind}{at}+{n} busy"
            base = at
        else:
            align = align or (2 if n >= 2 else 1)
            base = next((b for b in sorted(self.free) if b % align == 0 and all(b + i in self.free for i in range(n))), None)
            assert base is not None, f"out of {self.kind} registers for {n}"
        for i in range(n):
            self.free.discard(base + i)
        self.high = max(self.high, base + n)
        return Reg(self, base, n)


class Reg:
    def __init__(self, pool, base, n):
        self.pool, self.base, self.n = pool, base, n

    def __str__(self):
        return self.r(0, self.n)

    def r(self, i, n=1):
        assert 0 <= i and i + n <= self.n, (i, n, self.n)
        k = self.pool.kind
        return f"{k}{self.base+i}" if n == 1 else f"{k}[{self.base+i}:{self.base+i+n-1}]"

    def __getitem__(self, i):
        return self.r(i)

    def free(self):
        for i in range(self.n):
            assert self.base + i not in self.pool.free
            self.pool.free.add(self.base + i)


class Gen:
    def __init__(self):
        self.lines = []
        self.vmq, self.lgq = [], []
        self.smem = False
        self.nlabel = 0
        self.V = Pool("v", 1, 256)
        self.A = Pool("a", 0, 256)
        self.S = Pool("s", 3, 102)

    def __call__(self, text):
        for ln in text.split("\n"):
            ln = ln.strip()
            if ln:
                self.lines.append(ln if ln.endswith(":") else "    " + ln)

    def label(self, stem="L"):
        self.nlabel += 1
        return f"{stem}_{self.nlabel}"

    def vm(self, text, tag=None):
        self(text)
        self.vmq.append(tag)

    def ds(self, text, tag=None):
        self(text)
        self.lgq.append(tag)

    @staticmethod
    def _after(q, tag):
        idx = [i for i, t in enumerate(q) if t == tag]
        return None if not idx else len(q) - 1 - idx[-1]

    def wait(self, vm=None, lg=None):
        parts = []
        if vm is not None:
            n = 0 if vm == "*" else self._after(self.vmq, vm)
            if n is not None and (self.vmq or vm == "*"):
                n = min(n, 63)
                parts.append(f"vmcnt({n})")
                self.vmq = self.vmq[len(self.vmq) - n:] if n else []
        if lg is not None:
            n = 0 if lg == "*" else self._after(self.lgq, lg)
            if n is not None and self.smem:
                n = 0
            if n is not None and (self.lgq or self.smem or lg == "*"):
                n = min(n, 15)
                parts.append(f"lgkmcnt({n})")
                self.lgq = self.lgq[len(self.lgq) - n:] if n else []
                if n == 0:
                    self.smem = False
        if parts:
            self("s_waitcnt " + " ".join(parts))

    def settle(self):
        self("s_nop 15")

    def text(self):
        lines, nops = pad_hazards(self.lines)
        self.nops = nops
        return "\n".join(lines) + "\n"
```

```python
import sys
from asmlib import ARG, NBYTES, KNAME, file_text
from kgen import Gen, Reg

F_H, F_X1, F_HA, F_HB, F_U, F_Y = 0, 4096, 8192, 12288, 16384, 20480
FLAG_BYTES = 24576
STATS = 0x8000
HBUF, X1BUF, UBUF, YBUF, H2BUF = 0x100000, 0x300000, 0x500000, 0x700000, 0x900000
STAMPS = 0x2000000
OOB = 0x40000000

LA, LB, LC = 0, 65536, 131072
C_K, C_V, C_Q = LC, LC + 9216, LC + 17408
C_H, C_U = LC, LC + 8448
HP, UP = 4224, 1152
C_Y, C_BASE, C_OMG = LC, LC + 8192, LC + 24576
A_N = LA + 32768
NP = 8448
LDS_BYTES = 163840

GELU_C0 = -2.302208198144325
GELU_C1 = GELU_C0 * 0.044715
LOG2E = 1.4426950408889634

TILES = ([7, 6, 2], [5, 4, 3, 1, 0])


def fbits(x):
    import struct
    return "0x%08x" % struct.unpack("<I", struct.pack("<f", x))[0]


class Opt:
    stamps = False
    nt_once = "nt"
    out_pol = "sc1"
    rot = True
    code_pf = True
    code_bytes = 49152


def build(o=Opt):
    g = Gen()
    V, A, S = g.V, g.A, g.S
    names = ["q", "w1", "w2", "w3", "w4", "k", "v", "ssm_k", "out", "ws", "dbg", "shift_k", "ssm_D", "gate_w"]
    R = {n: S.alloc(4, align=4) for n in names}
    sW, sJ, sP, sPP, sX = (S.alloc(1) for _ in range(5))
    sT = S.alloc(6, align=2)
    sOnes, sLo1, sHi1, sMask, sTmo = (S.alloc(1) for _ in range(5))
    sStamp = S.alloc(2, align=2)
    vStamp = V.alloc(1) if o.stamps else None
    nstamp = [0]
    stamp_names = []

    def stamp(name, real=False):
        if not o.stamps:
            return
        g(f"s_mem{'real' if real else ''}time {sStamp}")
        g.smem = True
        g.wait(lg="*")
        g(f"v_writelane_b32 {vStamp}, {sStamp[0]}, {nstamp[0]}")
        nstamp[0] += 1
        stamp_names.append(name)

    def flag_set(soff):
        g("s_mov_b64 exec, 1")
        g.vm(f"buffer_store_dword {vOne}, off, {R['ws']}, {soff} sc1", "flag")
        g("s_mov_b64 exec, -1")

    def poll(srd, vaddr, soff, nlanes):
        lp = g.label("poll")
        t = V.alloc(1)
        mask = (1 << nlanes) - 1
        if nlanes <= 6:
            g(f"s_mov_b64 exec, {mask}")
        else:
            g(f"s_mov_b32 exec_lo, 0x{mask & 0xffffffff:x}\ns_mov_b32 exec_hi, 0x{mask >> 32:x}")
        g(f"{lp}:")
        g.vm(f"buffer_load_dword {t}, {vaddr}, {srd}, {soff} offen sc1")
        g(f"s_sub_u32 {sTmo}, {sTmo}, 1")
        g(f"s_cbranch_scc1 {lp}_x")
        g.wait(vm="*")
        g(f"v_cmp_eq_u32 vcc, 0, {t}")
        g(f"s_cbranch_vccnz {lp}")
        g(f"{lp}_x:")
        g(f"s_waitcnt vmcnt(0)")
        g(f"s_max_i32 {sTmo}, {sTmo}, 0")
        g("s_mov_b64 exec, -1")
        t.free()

    def round_bf16(r):
        g(f"v_cvt_pk_bf16_f32 {r}, {r}, {r}")
        g(f"v_and_b32 {r}, {sMask}, {r}")

    def ln_stats(s1, s2, negmu, rstd):
        g(f"v_mul_f32 {negmu}, {fbits(-1.0/512)}, {s1}")
        g(f"v_mul_f32 {s2}, {fbits(1.0/512)}, {s2}")
        g(f"v_fma_f32 {s2}, -{negmu}, {negmu}, {s2}")
        g(f"v_max_f32 {s2}, 0, {s2}")
        round_bf16(s2)
        round_bf16(negmu)
        g(f"v_add_f32 {s2}, {fbits(1e-5)}, {s2}")
        round_bf16(s2)
        g(f"v_sqrt_f32 {s2}, {s2}")
        round_bf16(s2)
        g(f"v_rcp_f32 {rstd}, {s2}")

    def center(src, dst, negmu, tmp):
        for b in range(0, len(src), 4):
            for i in range(4):
                g(f"v_dot2_f32_bf16 {tmp[2*i]}, {src[b+i]}, {sLo1}, {negmu}")
                g(f"v_dot2_f32_bf16 {tmp[2*i+1]}, {src[b+i]}, {sHi1}, {negmu}")
            for i in range(4):
                g(f"v_cvt_pk_bf16_f32 {dst[b+i]}, {tmp[2*i]}, {tmp[2*i+1]}")
            yield

    def gelu(acc, n, rstd2, out, tmp):
        for b in range(0, n, 4):
            x, t = tmp.r(0, 4), tmp.r(4, 4)
            for i in (0, 2):
                g(f"v_pk_mul_f32 {tmp.r(i,2)}, {acc.r(b+i,2)}, {rstd2} op_sel_hi:[1,0]")
            for i in (0, 2):
                g(f"v_pk_mul_f32 {tmp.r(4+i,2)}, {tmp.r(i,2)}, {tmp.r(i,2)}")
            for i in (0, 2):
                g(f"v_pk_fma_f32 {tmp.r(4+i,2)}, {tmp.r(4+i,2)}, {vGC}, {vGC} op_sel:[0,0,1] op_sel_hi:[1,0,1]")
            yield
            for i in (0, 2):
                g(f"v_pk_mul_f32 {tmp.r(4+i,2)}, {tmp.r(4+i,2)}, {tmp.r(i,2)}")
            for i in range(2):
                g(f"v_exp_f32 {tmp[4+i]}, {tmp[4+i]}")
            yield
            for i in range(2, 4):
                g(f"v_exp_f32 {tmp[4+i]}, {tmp[4+i]}")
            for i in (0, 2):
                g(f"v_pk_add_f32 {tmp.r(4+i,2)}, {tmp.r(4+i,2)}, 1.0 op_sel_hi:[1,0]")
            yield
            for i in range(3):
                g(f"v_rcp_f32 {tmp[4+i]}, {tmp[4+i]}")
            yield
            g(f"v_rcp_f32 {tmp[7]}, {tmp[7]}")
            for i in (0, 2):
                g(f"v_pk_mul_f32 {tmp.r(i,2)}, {tmp.r(i,2)}, {tmp.r(4+i,2)}")
            for i in (0, 2):
                g(f"v_cvt_pk_bf16_f32 {out[(b+i)//2]}, {tmp[i]}, {tmp[i+1]}")
            yield

    def run(it):
        for _ in it:
            pass

    def step(it, n=1):
        for _ in range(n):
            next(it, None)

    g("s_cmp_ge_u32 s2, 256\ns_cbranch_scc1 L_end")
    for n in names:
        g(f"s_load_dwordx2 {R[n].r(0,2)}, s[0:1], {ARG[n]}")
    g.smem = True
    vOne = V.alloc(1)
    vGC = V.alloc(2)
    vL16 = V.alloc(1)
    t0, t1, t2, t3 = (V.alloc(1) for _ in range(4))
    if o.code_pf:
        pc = V.alloc(2)
        per = o.code_bytes // 32
        assert per <= 2048
        g(f"s_getpc_b64 {sT.r(0,2)}")
        g(f"s_lshr_b32 {sT[2]}, s2, 3\ns_mul_i32 {sT[2]}, {sT[2]}, {per}")
        g(f"v_lshl_add_u32 {t0}, v0, 3, {sT[2]}")
        g(f"v_min_u32 {t0}, L_end-L_pc, {t0}")
        g("L_pc:")
        g(f"v_mov_b32 {pc[1]}, {sT[1]}")
        g(f"v_add_co_u32 {pc[0]}, vcc, {sT[0]}, {t0}")
        g(f"s_nop 1\nv_addc_co_u32 {pc[1]}, vcc, 0, {pc[1]}, vcc")
        g.vm(f"global_load_dword {t1}, {pc}, off", "pf")
        pc.free()
    g(f"v_lshrrev_b32 {t0}, 6, v0\nv_and_b32 v0, 63, v0\nv_readfirstlane_b32 {sW}, {t0}")
    g(f"s_and_b32 {sX}, s2, 7\ns_lshr_b32 {sT[0]}, s2, 3\ns_and_b32 {sJ}, {sT[0]}, 7\ns_lshr_b32 {sPP}, {sT[0]}, 3")
    g(f"s_lshl_b32 {sP}, {sX}, 2\ns_add_u32 {sP}, {sP}, {sPP}")
    for n in names:
        g(f"s_mov_b32 {R[n][2]}, {NBYTES[n]}\ns_mov_b32 {R[n][3]}, 0x00020000")
    g(f"s_mov_b32 {sOnes}, 0x3f803f80\ns_mov_b32 {sLo1}, 0x00003f80\ns_mov_b32 {sHi1}, 0x3f800000")
    g(f"s_mov_b32 {sMask}, 0xffff0000\ns_mov_b32 {sTmo}, 0x40000")
    g(f"v_mov_b32 {vOne}, 1\nv_mov_b32 {vGC[0]}, {fbits(GELU_C1)}\nv_mov_b32 {vGC[1]}, {fbits(GELU_C0)}")
    g(f"v_lshlrev_b32 {vL16}, 4, v0")
    if o.stamps:
        g(f"v_mov_b32 {vStamp}, 0")
    sRow, sM, sOff = S.alloc(1), S.alloc(1), S.alloc(1)
    g(f"s_lshr_b32 {sT[0]}, {sJ}, 2\ns_add_u32 {sT[0]}, {sT[0]}, 1\ns_sub_u32 {sT[1]}, 0, {sT[0]}")
    g(f"s_bitcmp1_b32 {sJ}, 1\ns_cselect_b32 {sT[0]}, {sT[0]}, {sT[1]}")
    g(f"s_lshl_b32 {sRow}, {sP}, 2\ns_add_u32 {sRow}, {sRow}, {sW}\ns_lshl_b32 {sRow}, {sRow}, 4")
    g(f"s_add_u32 {sRow}, {sRow}, {sT[0]}\ns_lshl_b32 {sRow}, {sRow}, 10")
    g(f"s_lshl_b32 {sT[0]}, {sJ}, 1" if o.rot else f"s_mov_b32 {sT[0]}, 0")
    g(f"s_mul_i32 {sT[1]}, {sT[0]}, 0x410\nv_xor_b32 {t2}, {sT[1]}, {vL16}")
    sLdsW = S.alloc(1)
    g(f"s_lshl_b32 {sLdsW}, {sW}, 14\ns_lshl_b32 {sT[0]}, {sT[0]}, 10\ns_add_u32 {sM}, {sLdsW}, {sT[0]}")
    g.wait(lg="*")
    stamp("start_real", real=True)
    stamp("start")
    lead1, lead2 = g.label("lead"), g.label("lead")
    z = V.alloc(4, align=4)
    g(f"v_mov_b32 {z[0]}, 0\nv_mov_b32 {z[1]}, 0\nv_mov_b32 {z[2]}, 0\nv_mov_b32 {z[3]}, 0")
    g(f"s_cmp_lg_u32 s2, 0\ns_cbranch_scc1 {lead1}")
    g(f"s_mul_i32 {sT[0]}, {sW}, {FLAG_BYTES//4}")
    for i in range(FLAG_BYTES // 4096):
        if i == 4:
            g(f"s_add_u32 {sT[0]}, {sT[0]}, 4096")
        g(f"buffer_store_dwordx4 {z}, {vL16}, {R['ws']}, {sT[0]} offen offset:{(i%4)*1024} sc1")
    g(f"{lead1}:")
    for n in range(16):
        t = (t0, t3)[n & 1]
        g(f"v_xor_b32 {t}, {n*0x410}, {t2}\ns_xor_b32 m0, {sM}, {n << 10}\nv_add_u32 {t}, {sRow}, {t}")
        g.vm(f"buffer_load_dwordx4 {t}, {R['q']}, 0 offen lds", "x")
    vW1a, vW1b, vW2 = V.alloc(1), V.alloc(1), V.alloc(1)
    g(f"v_lshrrev_b32 {t0}, 3, v0\nv_and_b32 {t3}, 7, v0")
    g(f"v_lshrrev_b32 {t2}, 4, v0\nv_lshlrev_b32 {t2}, 1, {t2}\nv_xor_b32 {vW2}, {t2}, {t3}")
    g(f"v_and_b32 {t2}, 2, {t2}\nv_xor_b32 {vW1a}, {t2}, {t3}")
    g(f"v_lshlrev_b32 {t0}, 10, {t0}")
    g(f"v_lshl_add_u32 {vW2}, {vW2}, 4, {t0}\nv_lshl_add_u32 {vW1a}, {vW1a}, 4, {t0}\nv_xor_b32 {vW1b}, 64, {vW1a}")
    sCol = S.alloc(1)
    sRotW = S.alloc(1)
    g(f"s_lshl_b32 {sCol}, {sJ}, 7")
    if o.rot:
        g(f"s_and_b32 {sT[0]}, {sX}, 1\ns_lshl_b32 {sT[1]}, {sPP}, 1\ns_add_u32 {sRotW}, {sT[0]}, {sT[1]}\ns_lshl_b32 {sRotW}, {sRotW}, 1")
    else:
        g(f"s_mov_b32 {sRotW}, 0")
    g(f"s_lshl_b32 {sT[0]}, {sRotW}, 13\ns_lshl_b32 {sT[1]}, {sW}, 17\ns_add_u32 {sOff}, {sT[0]}, {sT[1]}\ns_add_u32 {sOff}, {sOff}, {sCol}")
    g(f"s_lshl_b32 {sT[0]}, {sRotW}, 10\ns_add_u32 {sM}, {sLdsW}, {sT[0]}\ns_add_u32 {sM}, {sM}, {LB}")
    for n in range(16):
        g(f"s_xor_b32 m0, {sM}, {n << 10}\ns_xor_b32 {sT[0]}, {sOff}, {n << 13}")
        g.vm(f"buffer_load_dwordx4 {(vW1a, vW1b)[n & 1]}, {R['w1']}, {sT[0]} offen lds", "w1")
    vW1a.free(); vW1b.free()
    g(f"s_cmp_lg_u32 s2, 0\ns_cbranch_scc1 {lead2}")
    g(f"s_waitcnt vmcnt(32)\ns_lshl_b32 {sT[0]}, {sW}, 2\ns_mov_b64 exec, 1")
    g(f"buffer_store_dword {vOne}, off, {R['dbg']}, {sT[0]} sc1\ns_mov_b64 exec, -1")
    g(f"{lead2}:")
    z.free()

    sPan = S.alloc(1)
    g(f"s_lshl_b32 {sPan}, {sP}, 16\ns_add_u32 {sPan}, {sPan}, {sCol}")
    kskip = g.label("kskip")
    g(f"s_cmp_lg_u32 {sW}, 0\ns_cbranch_scc1 {kskip}")
    g(f"s_sub_u32 {sT[0]}, {sPan}, 8192\nv_add_u32 {t0}, {sT[0]}, {vW2}\ns_mov_b32 m0, {C_K}\ns_nop 0")
    g(f"buffer_load_dwordx4 {t0}, {R['k']}, 0 offen {o.nt_once} lds")
    g(f"{kskip}:")
    g(f"s_lshl_b32 {sT[0]}, {sW}, 14\ns_add_u32 {sT[0]}, {sT[0]}, {sPan}\ns_add_u32 {sT[1]}, {sT[0]}, 8192")
    g(f"s_lshl_b32 {sT[2]}, {sW}, 11\ns_add_u32 m0, {sT[2]}, {C_K + 1024}\ns_nop 0")
    g.vm(f"buffer_load_dwordx4 {vW2}, {R['k']}, {sT[0]} offen {o.nt_once} lds", "kv")
    g(f"s_add_u32 m0, {sT[2]}, {C_K + 2048}\ns_nop 0")
    g.vm(f"buffer_load_dwordx4 {vW2}, {R['k']}, {sT[1]} offen {o.nt_once} lds", "kv")
    g(f"v_lshrrev_b32 {t0}, 3, v0\nv_lshlrev_b32 {t0}, 10, {t0}\nv_and_b32 {t3}, 7, v0")
    g(f"v_lshrrev_b32 {t2}, 5, v0\nv_lshlrev_b32 {t2}, 1, {t2}\nv_xor_b32 {t2}, {t2}, {t3}\nv_lshl_add_u32 {t2}, {t2}, 4, {t0}")
    g(f"s_add_u32 m0, {sT[2]}, {C_V}\ns_nop 0")
    g.vm(f"buffer_load_dwordx4 {t2}, {R['v']}, {sT[0]} offen {o.nt_once} lds", "kv")
    g(f"v_xor_b32 {t2}, 64, {t2}\ns_add_u32 m0, {sT[2]}, {C_V + 1024}\ns_nop 0")
    g.vm(f"buffer_load_dwordx4 {t2}, {R['v']}, {sT[1]} offen {o.nt_once} lds", "kv")
    g(f"v_lshrrev_b32 {t2}, 4, v0\nv_xor_b32 {t2}, {t2}, {t3}\nv_lshl_add_u32 {t2}, {t2}, 4, {t0}")
    g(f"s_add_u32 m0, {sT[2]}, {C_Q}\ns_nop 0")
    g.vm(f"buffer_load_dwordx4 {t2}, {R['q']}, {sT[0]} offen lds", "kv")
    g(f"v_xor_b32 {t2}, 64, {t2}\ns_add_u32 m0, {sT[2]}, {C_Q + 1024}\ns_nop 0")
    g.vm(f"buffer_load_dwordx4 {t2}, {R['q']}, {sT[1]} offen lds", "kv")
    vC, vKq = V.alloc(1), V.alloc(1)
    g(f"v_and_b32 {vC}, 15, v0\nv_lshrrev_b32 {vKq}, 4, v0")
    shk = V.alloc(2)
    gw = V.alloc(8)
    vD = V.alloc(1)
    g(f"v_lshlrev_b32 {t0}, 3, {vC}\ns_lshl_b32 {sT[0]}, {sJ}, 9\ns_lshl_b32 {sT[1]}, {sW}, 7\ns_add_u32 {sT[0]}, {sT[0]}, {sT[1]}")
    g.vm(f"buffer_load_dwordx2 {shk}, {t0}, {R['shift_k']}, {sT[0]} offen", "kv")
    g(f"v_lshlrev_b32 {t3}, 3, {vKq}")
    for T in range(4):
        g.vm(f"buffer_load_dwordx2 {gw.r(2*T,2)}, {t3}, {R['gate_w']}, {sCol} offen offset:{32*T}", "kv")
    sCh = S.alloc(1)
    g(f"s_lshl_b32 {sCh}, {sJ}, 5\ns_add_u32 {sCh}, {sCh}, {sP}\ns_lshl_b32 {sCh}, {sCh}, 1\ns_lshr_b32 {sT[0]}, {sW}, 1\ns_add_u32 {sCh}, {sCh}, {sT[0]}")
    g(f"s_lshl_b32 {sT[0]}, {sCh}, 1\nv_mov_b32 {vD}, 0")
    g.vm(f"buffer_load_short_d16_hi {vD}, off, {R['ssm_D']}, {sT[0]}", "kv")
    stamp("issued")
    for n in ("w1", "k", "v", "q", "shift_k", "ssm_D", "gate_w"):
        R[n].free()
    sRow.free()

    xf = V.alloc(64, align=4)
    xa = V.alloc(4)
    for b in range(4):
        g(f"v_add_u32 {t0}, {4*b}, {vKq}\nv_xor_b32 {t0}, {t0}, {vC}\nv_lshlrev_b32 {t0}, 4, {t0}")
        g(f"v_lshl_add_u32 {t0}, {vC}, 10, {t0}\nv_add_u32 {xa[b]}, {sLdsW}, {t0}")
    g.wait(vm="x")
    stamp("x_in")
    for ks in range(16):
        g.ds(f"ds_read_b128 {xf.r(4*ks,4)}, {xa[ks & 3]} offset:{LA + 256*(ks >> 2)}", f"x{ks}")
    xa.free()
    st = V.alloc(4)
    for i in range(4):
        g(f"v_mov_b32 {st[i]}, 0")
    g(f"s_lshl_b32 {sT[0]}, {sW}, 4\ns_xor_b32 {sT[0]}, {sT[0]}, {sRotW}\ns_lshl_b32 {sM}, {sT[0]}, 10")
    if o.rot:
        g(f"s_lshl_b32 {sT[1]}, {sJ}, 3\ns_xor_b32 {sT[0]}, {sT[0]}, {sT[1]}")
    g(f"s_lshl_b32 {sOff}, {sT[0]}, 13\ns_add_u32 {sOff}, {sOff}, {sCol}")

    def w2_dma():
        for n in range(16):
            g(f"s_xor_b32 m0, {sM}, {n << 10}\ns_xor_b32 {sT[0]}, {sOff}, {n << 13}")
            g.vm(f"buffer_load_dwordx4 {vW2}, {R['w2']}, {sT[0]} offen lds", "w2")
            yield
    w2it = w2_dma()
    for ks in range(16):
        g.wait(lg=f"x{ks}")
        for i in range(4):
            g(f"v_dot2c_f32_bf16 {st[i & 1]}, {sOnes}, {xf[4*ks+i]}")
            g(f"v_dot2c_f32_bf16 {st[2 + (i & 1)]}, {xf[4*ks+i]}, {xf[4*ks+i]}")
    g(f"v_add_f32 {st[0]}, {st[0]}, {st[1]}\nv_add_f32 {st[2]}, {st[2]}, {st[3]}")
    for sw in ("32", "16"):
        g(f"v_mov_b32 {st[1]}, {st[0]}\nv_mov_b32 {st[3]}, {st[2]}")
        g(f"v_permlane{sw}_swap_b32 {st[0]}, {st[1]}\nv_permlane{sw}_swap_b32 {st[2]}, {st[3]}")
        g(f"v_add_f32 {st[0]}, {st[0]}, {st[1]}\nv_add_f32 {st[2]}, {st[2]}, {st[3]}")
    rs = V.alloc(2)
    ln_stats(st[0], st[2], st[1], rs[0])
    tmp = V.alloc(8)
    regs = [xf[i] for i in range(64)]
    for _ in center(regs, regs, st[1], tmp):
        step(w2it)
    run(w2it)
    st.free(); R["w2"].free(); sM.free(); sOff.free(); sRotW.free(); vW2.free()
    vR4 = V.alloc(1)
    vC8 = V.alloc(1)
    g(f"v_bfe_u32 {vR4}, v0, 2, 2\nv_and_b32 {vC8}, 3, v0\nv_lshlrev_b32 {vC8}, 3, {vC8}")
    wa = V.alloc(4)
    g(f"v_lshl_add_u32 {t0}, {vKq}, 3, {vR4}\nv_lshl_add_u32 {t0}, {t0}, 7, {vC8}")
    g(f"v_lshrrev_b32 {t2}, 1, {vR4}\nv_and_b32 {t3}, 1, {vKq}\nv_lshl_or_b32 {t2}, {t3}, 1, {t2}")
    g(f"v_lshl_add_u32 {t0}, {t2}, 5, {t0}\nv_add_u32 {wa[0]}, {LB}, {t0}")
    for T in range(1, 4):
        g(f"v_xor_b32 {wa[T]}, {32*T}, {wa[0]}")
    wf = V.alloc(32, at=160)
    acc = V.alloc(16, at=192)

    def gemm16(tok, e2off, pre=None, bg=None):
        def reads(ks):
            for T in range(4):
                for e2 in range(2):
                    g.ds(f"ds_read_b64_tr_b16 {wf.r(16*(ks & 1) + 4*T + 2*e2, 2)}, {wa[T]} offset:{ks*4096 + e2*e2off}", f"w{ks}_{T}")
                yield
        run(reads(0))
        for ks in range(16):
            nxt = reads(ks + 1) if ks < 15 else iter(())
            if pre:
                pre(ks)
            for T in range(4):
                g.wait(lg=f"w{ks}_{T}")
                g(f"v_mfma_f32_16x16x32_bf16 {acc.r(4*T,4)}, {wf.r(16*(ks & 1) + 4*T, 4)}, {tok.r(4*ks,4)}, {acc.r(4*T,4) if ks else 0}")
                step(nxt)
            if bg:
                bg(ks)

    g.wait(vm="w1")
    g("s_barrier")
    stamp("w1_in")
    gemm16(xf, 512)
    g.wait(vm="kv")
    g("s_barrier")
    stamp("g1_mfma")
    hp = V.alloc(8, align=4)
    run(gelu(acc, 16, rs, hp, tmp))
    sHo = S.alloc(1)
    g(f"s_lshl_b32 {sHo}, {sP}, 16\ns_add_u32 {sHo}, {sHo}, {sLdsW}\ns_add_u32 {sHo}, {sHo}, {HBUF}")
    g(f"s_lshl_b32 {sT[0]}, {sJ}, 11\ns_add_u32 {sT[0]}, {sT[0]}, {sHo}")
    for gg in range(2):
        g.vm(f"buffer_store_dwordx4 {hp.r(4*gg,4)}, {vL16}, {R['ws']}, {sT[0]} offen offset:{gg*1024} sc1", "hst")
    vL4 = V.alloc(1)
    g(f"v_lshlrev_b32 {vL4}, 2, v0")
    poll(R["dbg"], vL4, 0, 4)
    sFg = S.alloc(1)
    g(f"s_lshl_b32 {sFg}, {sP}, 7\ns_lshl_b32 {sT[0]}, {sW}, 5\ns_add_u32 {sFg}, {sFg}, {sT[0]}")
    g(f"s_lshl_b32 {sT[0]}, {sJ}, 2\ns_add_u32 {sT[0]}, {sT[0]}, {sFg}")
    flag_set(sT[0])
    hp.free(); rs.free()
    stamp("h_out")

    sL = S.alloc(1)
    sW3, sRot3, sW4, sG4, sRot4, sIdle = (S.alloc(1) for _ in range(6))
    g(f"s_lshr_b32 {sT[0]}, {sJ}, 1\ns_mul_i32 {sL}, {sT[0]}, 7\ns_and_b32 {sT[1]}, {sJ}, 1\ns_lshl_b32 {sT[2]}, {sT[1]}, 2")
    g(f"s_add_u32 {sT[2]}, {sT[2]}, {sW}\ns_add_u32 {sL}, {sL}, {sT[2]}")
    g(f"s_cmp_eq_u32 {sT[2]}, 7\ns_cselect_b32 {sIdle}, {OOB}, 0")
    g(f"s_lshl_b32 {sW3}, {sL}, 7\ns_add_u32 {sW3}, {sW3}, {sIdle}")
    if o.rot:
        g(f"s_lshl_b32 {sT[0]}, {sPP}, 2\ns_lshr_b32 {sT[1]}, {sX}, 1\ns_add_u32 {sRot3}, {sT[0]}, {sT[1]}")
        g(f"s_lshl_b32 {sT[0]}, {sJ}, 1\ns_xor_b32 {sRot3}, {sRot3}, {sT[0]}")
        g(f"s_mul_i32 {sT[0]}, {sPP}, 28\ns_mul_i32 {sT[1]}, {sX}, 3\ns_mul_i32 {sT[2]}, {sJ}, 14")
        g(f"s_add_u32 {sT[0]}, {sT[0]}, {sT[1]}\ns_add_u32 {sT[0]}, {sT[0]}, {sT[2]}\ns_lshr_b32 {sRot4}, {sT[0]}, 3")
        g(f"s_cmp_ge_u32 {sRot4}, 14\ns_cselect_b32 {sT[0]}, 14, 0\ns_sub_u32 {sRot4}, {sRot4}, {sT[0]}")
    else:
        g(f"s_mov_b32 {sRot3}, 0\ns_mov_b32 {sRot4}, 0")
    g(f"s_mul_i32 {sW4}, {sW}, {448*1024}\ns_add_u32 {sW4}, {sW4}, {sCol}\ns_mov_b32 {sG4}, {sRot4}")
    d3, d4, ra = V.alloc(4), V.alloc(4), V.alloc(2)
    g(f"v_lshrrev_b32 {t0}, 3, v0\nv_and_b32 {t3}, 7, v0\nv_and_b32 {t2}, 1, {vKq}\nv_lshlrev_b32 {t2}, 2, {t2}")
    g(f"v_xor_b32 {t3}, {t2}, {t3}\nv_lshlrev_b32 {t3}, 4, {t3}")
    g(f"v_mul_u32_u24 {d3[0]}, 3584, {t0}\nv_add_u32 {d3[0]}, {d3[0]}, {t3}\nv_lshl_add_u32 {d4[0]}, {t0}, 10, {t3}")
    for i in range(1, 4):
        g(f"v_add_u32 {d3[i]}, {i*(8*3584-1024)}, {d3[0]}\nv_add_u32 {d4[i]}, {i*7168}, {d4[0]}")
    g(f"v_lshrrev_b32 {t0}, 5, v0\nv_lshl_add_u32 {t0}, {t0}, 2, {vR4}\nv_lshl_add_u32 {t0}, {t0}, 7, {vC8}")
    g(f"v_and_b32 {t2}, 1, {vKq}\nv_lshl_add_u32 {t0}, {t2}, 5, {t0}\nv_lshrrev_b32 {t2}, 1, {vR4}\nv_lshl_add_u32 {t0}, {t2}, 6, {t0}")
    g(f"s_add_u32 {sT[0]}, {sLdsW}, {LB}\nv_add_u32 {ra[0]}, {sT[0]}, {t0}\nv_xor_b32 {ra[1]}, 64, {ra[0]}")
    sRing = S.alloc(1)
    sSt = S.alloc(1)
    g(f"s_add_u32 {sRing}, {sLdsW}, {LB}")
    w3r = A.alloc(256)
    w4v = Reg(V, 160, 96)

    def w4home(n, ft):
        return w4v.r(8*n + 4*ft, 4) if n < 12 else f"a[{8*(n-12) + 4*ft}:{8*(n-12) + 4*ft + 3}]"

    def half(reg4, e2):
        k, rng = reg4[0], reg4[2:-1].split(":")
        lo = int(rng[0]) + 2 * e2
        return f"{k}[{lo}:{lo+1}]"

    class Stage:
        issued = 0
        read = 0
        busy = False

        @classmethod
        def dma(cls):
            n = cls.issued
            assert n - cls.read < 4 and n < 30
            if n >= 4:
                g.wait(lg=f"sr{n-4}")
            g(f"s_add_u32 m0, {sRing}, {(n & 3)*4096}")
            if n < 16:
                g(f"s_xor_b32 {sSt}, {sRot3}, {n}\ns_mul_i32 {sSt}, {sSt}, {32*3584}\ns_add_u32 {sSt}, {sSt}, {sW3}")
            else:
                g(f"s_lshl_b32 {sSt}, {sG4}, 15\ns_add_u32 {sSt}, {sSt}, {sW4}")
                g(f"s_add_u32 {sG4}, {sG4}, 1\ns_cmp_eq_u32 {sG4}, 14\ns_cselect_b32 {sG4}, 0, {sG4}")
            cls.issued += 1
            for i in range(4):
                d, r = (d3, R["w3"]) if n < 16 else (d4, R["w4"])
                g.vm(f"buffer_load_dwordx4 {d[i]}, {r}, {sSt} offen offset:{i*1024} lds", f"sd{n}")
                cls.busy = i < 3
                yield

        @classmethod
        def rd(cls):
            n = cls.read
            assert n < cls.issued
            g.wait(vm=f"sd{n}")
            cls.read += 1
            for u in range(2):
                for ft in range(2):
                    for e2 in range(2):
                        if n < 16:
                            dst = w3r.r(16*n + 8*u + 4*ft + 2*e2, 2)
                            off = e2 * 2048 + u * 1024
                        else:
                            dst = half(w4home(2*(n-16) + u, ft), e2)
                            off = u * 2048 + e2 * 1024
                        g.ds(f"ds_read_b64_tr_b16 {dst}, {ra[ft]} offset:{(n & 3)*4096 + off}", f"sr{n}")
                    cls.busy = (u, ft) != (1, 1)
                    yield

    def stage_until(n_read, ahead=True, max_issue=30):
        assert not Stage.busy
        while Stage.read < n_read:
            while Stage.issued - Stage.read < 4 and Stage.issued < max_issue:
                yield from Stage.dma()
            yield from Stage.rd()
        while ahead and Stage.issued - Stage.read < 4 and Stage.issued < max_issue:
            yield from Stage.dma()

    run(stage_until(0))

    qp = V.alloc(8, align=4)
    g(f"v_lshrrev_b32 {t0}, 1, {vC}\nv_lshrrev_b32 {t2}, 1, {vKq}\nv_xor_b32 {t0}, {t0}, {t2}\nv_lshlrev_b32 {t0}, 4, {t0}")
    g(f"v_lshl_add_u32 {t0}, {vC}, 7, {t0}\nv_and_b32 {t2}, 1, {vKq}\nv_lshl_add_u32 {t0}, {t2}, 3, {t0}")
    sQ = S.alloc(1)
    g(f"s_lshl_b32 {sQ}, {sW}, 11\ns_add_u32 {sQ}, {sQ}, {C_Q}")
    for T in range(4):
        g(f"v_xor_b32 {t2}, {32*T}, {t0}\nv_add_u32 {t2}, {sQ}, {t2}")
        g.ds(f"ds_read_b64 {qp.r(2*T,2)}, {t2}", "q")
    ka = V.alloc(3)
    for m in range(2):
        g(f"v_sub_u32 {t0}, {vKq}, {vR4}\nv_add_u32 {t0}, {8 + 4*m}, {t0}\nv_bfe_u32 {t2}, {t0}, 1, 2\nv_xor_b32 {t2}, {sW}, {t2}")
        g(f"v_lshl_add_u32 {t2}, {t2}, 5, {vC8}\nv_lshl_add_u32 {t2}, {t0}, 7, {t2}\nv_add_u32 {ka[m]}, {C_K}, {t2}")
    g(f"v_lshl_add_u32 {t0}, {vR4}, 2, {vKq}\nv_xor_b32 {t2}, {sW}, {vR4}\nv_lshl_add_u32 {t2}, {t2}, 5, {vC8}")
    g(f"v_lshl_add_u32 {t2}, {t0}, 7, {t2}\nv_add_u32 {ka[2]}, {C_V}, {t2}")
    kk = xf
    for m0 in range(0, 16, 4):
        g.ds(f"ds_read_b64_tr_b16 {kk.r(32 + m0//2, 2)}, {ka[2]} offset:{m0*512}", f"k{m0}")
        for m in range(m0, m0 + 4):
            g.ds(f"ds_read_b64_tr_b16 {kk.r(2*m, 2)}, {ka[m & 1]} offset:{(m >> 1)*1024}", f"k{m0}")
        if m0 == 8:
            g.wait(lg="k0")
    ka.free()
    up = V.alloc(8, align=4)
    for m0 in range(0, 16, 4):
        g.wait(lg=f"k{m0}")
        for m in range(m0, m0 + 4):
            g(f"v_dot2_f32_bf16 {kk[40+m]}, {kk[2*m]}, {shk[0]}, 0")
        for m in range(m0, m0 + 4):
            g(f"v_dot2_f32_bf16 {kk[40+m]}, {kk[2*m+1]}, {shk[1]}, {kk[40+m]}")
        for i in range(2):
            g(f"v_lshlrev_b32 {tmp[2*i]}, 16, {kk[32 + m0//2 + i]}\nv_and_b32 {tmp[2*i+1]}, {sMask}, {kk[32 + m0//2 + i]}")
        for i in range(2):
            g(f"v_pk_mul_f32 {tmp.r(2*i,2)}, {tmp.r(2*i,2)}, {kk.r(40 + m0 + 2*i, 2)}")
        for i in range(2):
            g(f"v_cvt_pk_bf16_f32 {up[m0//2 + i]}, {tmp[2*i]}, {tmp[2*i+1]}")
    shk.free()
    g(f"v_and_b32 {t0}, 7, {vC}\nv_lshlrev_b32 {t2}, 1, {vKq}\nv_xor_b32 {t0}, {t0}, {t2}\nv_lshlrev_b32 {t0}, 4, {t0}")
    g(f"v_lshl_add_u32 {t0}, {vC}, 7, {t0}\nv_add_u32 {t0}, {sQ}, {t0}\nv_xor_b32 {t2}, 16, {t0}")
    g.ds(f"ds_write_b128 {t0}, {up.r(0,4)}", "uw")
    g.ds(f"ds_write_b128 {t2}, {up.r(4,4)}", "uw")
    g(f"v_lshrrev_b32 {t0}, 3, v0\nv_and_b32 {t3}, 7, v0\nv_xor_b32 {t2}, {t0}, {t3}\nv_lshlrev_b32 {t2}, 4, {t2}")
    g(f"v_lshl_add_u32 {t2}, {t0}, 7, {t2}\nv_add_u32 {t2}, {sQ}, {t2}")
    g.wait(lg="uw")
    g.ds(f"ds_read_b128 {up.r(0,4)}, {t2}", "ur")
    g.ds(f"ds_read_b128 {up.r(4,4)}, {t2} offset:1024", "ur")
    vT4k = V.alloc(1)
    g(f"v_lshlrev_b32 {t3}, 4, {t3}\nv_lshl_add_u32 {vT4k}, {t0}, 12, {t3}")
    sTr = S.alloc(1)
    g(f"s_lshl_b32 {sT[0]}, {sJ}, 18\ns_lshl_b32 {sT[1]}, {sW}, 16\ns_add_u32 {sTr}, {sT[0]}, {sT[1]}\ns_lshl_b32 {sT[0]}, {sP}, 7\ns_add_u32 {sTr}, {sTr}, {sT[0]}")
    g(f"s_add_u32 {sT[0]}, {sTr}, {UBUF}\ns_add_u32 {sT[1]}, {sTr}, {UBUF + 32768}")
    gs = V.alloc(4)
    g(f"v_mov_b32 {gs[1]}, 0\nv_mov_b32 {gs[3]}, 0")
    for i in range(8):
        g(f"v_dot2c_f32_bf16 {gs[1]}, {qp[i]}, {gw[i]}")
    gw.free()
    g.wait(lg="ur")
    g.vm(f"buffer_store_dwordx4 {up.r(0,4)}, {vT4k}, {R['ws']}, {sT[0]} offen sc1", "ust")
    g.vm(f"buffer_store_dwordx4 {up.r(4,4)}, {vT4k}, {R['ws']}, {sT[1]} offen sc1", "ust")
    run(stage_until(2))
    g.wait(vm="ust")
    g(f"s_lshl_b32 {sT[0]}, {sJ}, 9\ns_lshl_b32 {sT[1]}, {sW}, 7\ns_add_u32 {sT[0]}, {sT[0]}, {sT[1]}\ns_lshl_b32 {sT[1]}, {sP}, 2")
    g(f"s_add_u32 {sT[0]}, {sT[0]}, {sT[1]}\ns_add_u32 {sT[0]}, {sT[0]}, {F_U}")
    flag_set(sT[0])
    up.free()
    g.wait(vm="w2")
    g("s_barrier")
    stamp("u_out")

    g(f"v_mov_b32 {tmp[0]}, 0\nv_mov_b32 {tmp[1]}, 0")
    g(f"s_lshr_b32 {sT[0]}, {sW}, 1\ns_mul_i32 {sT[1]}, {sT[0]}, {HP}\ns_and_b32 {sT[2]}, {sW}, 1")
    sCH, sCU = S.alloc(1), S.alloc(1)
    g(f"s_add_u32 {sCH}, {sT[1]}, {C_H}\ns_mul_i32 {sCU}, {sT[0]}, {4*UP}\ns_add_u32 {sCU}, {sCU}, {C_U}")
    g(f"v_mul_u32_u24 {t0}, {UP}, {vKq}\nv_lshl_add_u32 {t0}, {vC}, 3, {t0}\nv_add_u32 {t0}, {sCU}, {t0}")
    g.ds(f"ds_write_b64 {t0}, {tmp.r(0,2)}")
    g(f"v_add_u32 {t0}, {sCH}, {vC8}")
    g.ds(f"ds_write_b64 {t0}, {tmp.r(0,2)}")
    g(f"s_lshl_b32 {sT[2]}, {sT[2]}, 11\ns_lshl_b32 {sT[1]}, {sCh}, 12\ns_add_u32 {sT[1]}, {sT[1]}, {sT[2]}")
    g(f"s_add_u32 {sT[2]}, {sT[2]}, {sCH}\ns_add_u32 m0, {sT[2]}, 32\ns_nop 0")
    for i in range(2):
        g.vm(f"buffer_load_dwordx4 {vL16}, {R['ssm_k']}, {sT[1]} offen offset:{i*1024} {o.nt_once} lds", "cin")

    g(f"v_lshl_add_u32 {t0}, {vKq}, 2, {vR4}\nv_bfe_u32 {t2}, {t0}, 1, 2\nv_lshl_add_u32 {t0}, {t0}, 7, {vC8}")
    g(f"v_lshl_add_u32 {wa[0]}, {t2}, 5, {t0}")
    for T in range(1, 4):
        g(f"v_xor_b32 {wa[T]}, {32*T}, {wa[0]}")
    poll(R["ws"], vL4, sFg, 8)
    stamp("h_flag")
    g(f"s_lshl_b32 {sT[1]}, {sJ}, 11" if o.rot else f"s_mov_b32 {sT[1]}, 0")
    g(f"s_add_u32 {sT[1]}, {sT[1]}, {sHo}")
    for ks in range(16):
        if ks & 1 == 0:
            g(f"s_xor_b32 {sT[0]}, {sT[1]}, {ks << 10}")
        g.vm(f"buffer_load_dwordx4 {xf.r(4*ks,4)}, {vL16}, {R['ws']}, {sT[0]} offen offset:{(ks & 1)*1024} sc1", f"h{ks}")
    bgit = stage_until(5)
    gemm16(xf, 2048, pre=lambda ks: g.wait(vm=f"h{ks}"), bg=lambda ks: step(bgit, 2) if ks >= 8 else None)
    stamp("g2_mfma")
    wa.free(); wf.free()
    x1p = V.alloc(8, align=4)
    for T in range(0, 4, 2):
        for i in range(4):
            g(f"v_dot2_f32_bf16 {tmp[2*i]}, {qp[2*T+i]}, {sLo1}, {acc[4*T+2*i]}")
            g(f"v_dot2_f32_bf16 {tmp[2*i+1]}, {qp[2*T+i]}, {sHi1}, {acc[4*T+2*i+1]}")
        for i in range(4):
            g(f"v_cvt_pk_bf16_f32 {x1p[2*T+i]}, {tmp[2*i]}, {tmp[2*i+1]}")
    acc.free()
    g(f"v_lshlrev_b32 {t0}, 9, {vKq}\nv_lshl_add_u32 {t0}, {vC}, 4, {t0}")
    sX1 = S.alloc(1)
    g(f"s_lshl_b32 {sX1}, {sP}, 16\ns_add_u32 {sX1}, {sX1}, {X1BUF}")
    g(f"s_lshr_b32 {sT[0]}, {sW}, 1\ns_lshl_b32 {sT[0]}, {sT[0]}, 15\ns_and_b32 {sT[1]}, {sW}, 1\ns_lshl_b32 {sT[1]}, {sT[1]}, 8")
    g(f"s_add_u32 {sT[0]}, {sT[0]}, {sT[1]}\ns_lshl_b32 {sT[1]}, {sJ}, 12\ns_add_u32 {sT[0]}, {sT[0]}, {sT[1]}\ns_add_u32 {sT[0]}, {sT[0]}, {sX1}")
    for gg in range(2):
        g.vm(f"buffer_store_dwordx4 {x1p.r(4*gg,4)}, {t0}, {R['ws']}, {sT[0]} offen offset:{gg*2048} sc1", "xst")
    g(f"v_mov_b32 {gs[0]}, 0\nv_mov_b32 {gs[2]}, 0")
    for i in range(8):
        g(f"v_dot2c_f32_bf16 {gs[0]}, {sOnes}, {x1p[i]}")
        g(f"v_dot2c_f32_bf16 {gs[2]}, {x1p[i]}, {x1p[i]}")
    g(f"v_permlane32_swap_b32 {gs[0]}, {gs[2]}\nv_permlane32_swap_b32 {gs[1]}, {gs[3]}")
    g(f"v_add_f32 {gs[0]}, {gs[0]}, {gs[2]}\nv_add_f32 {gs[1]}, {gs[1]}, {gs[3]}")
    g(f"v_permlane16_swap_b32 {gs[0]}, {gs[1]}\nv_add_f32 {gs[0]}, {gs[0]}, {gs[1]}")
    sSto = S.alloc(1)
    g(f"s_lshl_b32 {sSto}, {sP}, 13\ns_add_u32 {sSto}, {sSto}, {STATS}")
    g(f"s_lshl_b32 {sT[0]}, {sJ}, 10\ns_lshl_b32 {sT[1]}, {sW}, 8\ns_add_u32 {sT[0]}, {sT[0]}, {sT[1]}\ns_add_u32 {sT[0]}, {sT[0]}, {sSto}")
    g.vm(f"buffer_store_dword {gs[0]}, {vL4}, {R['ws']}, {sT[0]} offen sc1", "xst")
    g(f"s_lshl_b32 {sT[2]}, {sJ}, 9\ns_lshr_b32 {sT[1]}, {sP}, 3\ns_lshl_b32 {sT[1]}, {sT[1]}, 7\ns_add_u32 {sT[2]}, {sT[2]}, {sT[1]}\ns_add_u32 {sT[2]}, {sT[2]}, {F_U}")
    poll(R["ws"], vL4, sT[2], 32)
    g(f"s_lshl_b32 {sT[0]}, {sJ}, 2\ns_add_u32 {sT[0]}, {sT[0]}, {sFg}\ns_add_u32 {sT[0]}, {sT[0]}, {F_X1}")
    flag_set(sT[0])
    gs.free()
    stamp("x1_out")

    g(f"v_lshrrev_b32 {t0}, 1, v0\nv_and_b32 {t2}, 1, v0\nv_lshlrev_b32 {t2}, 4, {t2}\nv_lshl_add_u32 {t0}, {t0}, 7, {t2}")
    g(f"s_and_b32 {sT[2]}, {sW}, 1\ns_lshl_b32 {sT[0]}, {sCh}, 12\ns_lshl_b32 {sT[1]}, {sT[2]}, 6\ns_add_u32 {sT[0]}, {sT[0]}, {sT[1]}\ns_add_u32 {sT[0]}, {sT[0]}, {UBUF}")
    g(f"s_mul_i32 {sT[2]}, {sT[2]}, {2*UP}\ns_add_u32 {sT[2]}, {sT[2]}, {sCU}\ns_add_u32 m0, {sT[2]}, 128\ns_add_u32 {sT[1]}, {sT[0]}, 32")
    g.vm(f"buffer_load_dwordx4 {t0}, {R['ws']}, {sT[0]} offen sc1 lds", "cin")
    g(f"s_add_u32 m0, {sT[2]}, {128 + UP}\ns_nop 0")
    g.vm(f"buffer_load_dwordx4 {t0}, {R['ws']}, {sT[1]} offen sc1 lds", "cin")
    aA, aB, aN, aU, aY = (V.alloc(1) for _ in range(5))
    g(f"v_lshlrev_b32 {t0}, 6, {vKq}\nv_add_u32 {t0}, {t0}, {vC8}\nv_lshlrev_b32 {t2}, 3, {vR4}\nv_sub_u32 {t0}, {t0}, {t2}")
    g(f"s_add_u32 {sT[0]}, {sCH}, 32\nv_add_u32 {aA}, {sT[0]}, {t0}")
    g(f"v_lshlrev_b32 {t0}, 3, {vC}\nv_lshlrev_b32 {t2}, 4, {vKq}\nv_sub_u32 {t0}, {t0}, {t2}\ns_add_u32 {sT[0]}, {sCU}, 56\nv_add_u32 {aB}, {sT[0]}, {t0}")
    g(f"v_lshl_add_u32 {t0}, {vC}, 2, {vKq}\ns_lshr_b32 {sT[0]}, {sW}, 1\ns_mul_i32 {sT[0]}, {sT[0]}, {NP}\ns_add_u32 {sT[0]}, {sT[0]}, {A_N}")
    g(f"v_lshl_add_u32 {aN}, {t0}, 4, {sT[0]}\ns_add_u32 {sT[1]}, {sCU}, 128\nv_lshl_add_u32 {aU}, {t0}, 1, {sT[1]}")
    g(f"v_lshrrev_b32 {t0}, 2, {vC}\nv_lshlrev_b32 {t0}, 7, {t0}\nv_lshl_add_u32 {t0}, {vKq}, 5, {t0}\nv_add_u32 {aY}, {t0}, {vC8}")
    g.wait(vm="cin", lg="*")
    g("s_barrier")
    stamp("u_in")
    cA = xf
    cB = V.alloc(16, align=4)
    w4v = V.alloc(96, at=160)
    pq = w4v
    sY = S.alloc(1)
    g(f"s_lshl_b32 {sY}, {sCh}, 12\ns_add_u32 {sY}, {sY}, {YBUF}")
    g(f"v_mov_b32 {tmp[0]}, 0\nv_mov_b32 {tmp[1]}, 0\nv_mov_b32 {tmp[2]}, 0\nv_mov_b32 {tmp[3]}, 0\nv_mov_b32 {t0}, {sT[0]}")
    g.ds(f"ds_write_b128 {t0}, {tmp.r(0,4)}")
    lodd, ljoin = g.label("odd"), g.label("join")
    g(f"s_bitcmp1_b32 {sW}, 0\ns_cbranch_scc1 {lodd}")
    saved = (list(g.vmq), list(g.lgq), Stage.issued, Stage.read)
    final = None
    for par in range(2):
        if par:
            g(f"{lodd}:")
            g.vmq, g.lgq, Stage.issued, Stage.read = list(saved[0]), list(saved[1]), saved[2], saved[3]
        tiles = TILES[par]
        top = max(tiles)
        for m in range(2 * top + 1, -1, -1):
            for e2 in range(2):
                g.ds(f"ds_read_b64_tr_b16 {cA.r(4*m + 2*e2, 2)}, {aA} offset:{256*m + 32 - 32*e2}", f"A{m}")
        for ti in range(len(tiles)):
            for r in (4, 5, 10, 11):
                g(f"v_mov_b32 {pq[12*ti + r]}, 0")
        seq = [(d, mp) for d in (0, 1, 2, 3) for mp in range(-1, 2 * top + 1)]

        def bread(i):
            d, mp = seq[i]
            for e2 in range(2):
                g.ds(f"ds_read_b64 {cB.r(4*(i & 3) + 2*e2, 2)}, {aB} offset:{d*UP + 64*(mp+1) + 8*e2}", f"B{i}")
        for i in range(2):
            bread(i)
        bgit = stage_until(12)
        started = set()
        cnt = 0
        for i, (d, mp) in enumerate(seq):
            if i + 2 < len(seq):
                bread(i + 2)
            g.wait(lg=f"B{i}")
            for ti, jb in enumerate(tiles):
                m = 2 * jb - mp
                if m < 0:
                    continue
                c = pq.r(12*ti + 6*(d & 1) + (d & 2), 4)
                first = d < 2 and (d, ti) not in started
                started.add((d, ti))
                g(f"v_mfma_f32_16x16x32_bf16 {c}, {cA.r(4*m,4)}, {cB.r(4*(i & 3),4)}, {0 if first else c}")
                cnt += 1
                if cnt % 2 == 0:
                    step(bgit)
        run(bgit)
        for ti, jb in enumerate(tiles):
            b = 12 * ti
            g(f"v_add_f32 {pq[b+1]}, {pq[b+1]}, {pq[b+6]}\nv_add_f32 {pq[b+2]}, {pq[b+2]}, {pq[b+7]}\nv_add_f32 {pq[b+3]}, {pq[b+3]}, {pq[b+8]}")
            g(f"v_add_f32 {pq[b+4]}, {pq[b+4]}, {pq[b+9]}\nv_add_f32 {pq[b+5]}, {pq[b+5]}, {pq[b+10]}\nv_mov_b32 {pq[b+6]}, {pq[b+11]}")
            g.ds(f"ds_write_b128 {aN}, {pq.r(b+4,4)} offset:{1024*jb + 16}")
            for m in range(4):
                g.ds(f"ds_read_u16_d16_hi {pq[b+8+m]}, {aU} offset:{m*UP + 128*jb}")
        g.wait(lg="*")
        g("s_barrier")
        for ti, jb in enumerate(tiles):
            b = 12 * ti
            g.ds(f"ds_read_b128 {pq.r(b+4,4)}, {aN} offset:{1024*jb}", f"N{ti}")
            for m in range(4):
                g(f"v_fmac_f32 {pq[b+m]}, {vD}, {pq[b+8+m]}")
        for ti, jb in enumerate(tiles):
            b = 12 * ti
            g.wait(lg=f"N{ti}")
            for m in range(3):
                g(f"v_add_f32 {pq[b+m]}, {pq[b+m]}, {pq[b+4+m]}")
            g(f"v_cvt_pk_bf16_f32 {pq[b]}, {pq[b]}, {pq[b+1]}\nv_cvt_pk_bf16_f32 {pq[b+1]}, {pq[b+2]}, {pq[b+3]}")
            g.vm(f"buffer_store_dwordx2 {pq.r(b,2)}, {aY}, {R['ws']}, {sY} offen offset:{512*jb} sc1", "yst")
        state = (Stage.issued, Stage.read)
        assert final is None or final == state
        final = state
        if not par:
            g(f"s_branch {ljoin}")
    g(f"{ljoin}:")
    g.vmq = g.vmq[:-2]
    for r in (aA, aB, aN, aU, aY, cB, vD):
        r.free()
    stamp("conv")

    sFp = S.alloc(1)
    g(f"s_lshl_b32 {sFp}, {sP}, 7\ns_add_u32 {sT[2]}, {sFp}, {F_X1}")
    poll(R["ws"], vL4, sT[2], 32)
    g(f"s_lshl_b32 {sT[0]}, {sJ}, 9\ns_lshl_b32 {sT[1]}, {sP}, 4\ns_add_u32 {sT[0]}, {sT[0]}, {sT[1]}\ns_lshl_b32 {sT[1]}, {sW}, 2")
    g(f"s_add_u32 {sT[0]}, {sT[0]}, {sT[1]}\ns_add_u32 {sT[0]}, {sT[0]}, {F_Y}")
    flag_set(sT[0])
    stamp("x1_flag")
    sv = Reg(V, w4v.base + 64, 16)
    nb = w4v
    g(f"v_and_b32 {t0}, 1, {vKq}\nv_lshlrev_b32 {t0}, 8, {t0}\nv_lshrrev_b32 {t2}, 5, v0\nv_lshl_add_u32 {t0}, {t2}, 7, {t0}\nv_lshl_add_u32 {t0}, {vC}, 2, {t0}")
    g(f"s_add_u32 {sT[3]}, {sSto}, 4096")
    g(f"s_lshl_b32 {sT[2]}, {sW}, 2\ns_xor_b32 {sT[2]}, {sT[2]}, {sRot3}\ns_lshl_b32 {sT[2]}, {sT[2]}, 11\ns_add_u32 {sT[2]}, {sT[2]}, {sX1}")
    for th in range(2):
        for jj in range(8):
            g.vm(f"buffer_load_dword {sv[8*th+jj]}, {t0}, {R['ws']}, {(sSto, sT[3])[jj >> 2]} offen offset:{(jj & 3)*1024 + th*512} sc1", f"s{th}")
        for i in range(8):
            if i & 1 == 0:
                g(f"s_xor_b32 {sT[0]}, {sT[2]}, {(i >> 1) << 11 | th << 15}")
            g.vm(f"buffer_load_dwordx4 {nb.r(32*th + 4*i, 4)}, {vL16}, {R['ws']}, {sT[0]} offen offset:{(i & 1)*1024} sc1", f"n{th}_{i}")
    rs3 = V.alloc(4)
    vXw = V.alloc(1)
    g(f"s_lshl_b32 {sT[0]}, {sW}, 13\nv_add_u32 {vXw}, {sT[0]}, {vL16}")

    def norm(th):
        g.wait(vm=f"s{th}")
        b = 8 * th
        for w in (4, 2, 1):
            for i in range(w):
                g(f"v_add_f32 {sv[b+i]}, {sv[b+i]}, {sv[b+i+w]}")
        g(f"v_mov_b32 {sv[b+1]}, {sv[b]}\nv_permlane32_swap_b32 {sv[b]}, {sv[b+1]}")
        yield
        ln_stats(sv[b], sv[b+1], sv[b+2], rs3[2*th])
        yield
        for i in range(8):
            g.wait(vm=f"n{th}_{i}")
            regs = [nb[32*th + 4*i + q] for q in range(4)]
            yield from center(regs, regs, sv[b+2], tmp)
            g.ds(f"ds_write_b128 {vXw}, {nb.r(32*th + 4*i, 4)} offset:{LA + th*32768 + i*1024}", f"xw{th}")
            yield

    run(norm(0))
    run(stage_until(16, ahead=False))
    g.wait(lg="*")
    g("s_barrier")
    stamp("xn0")
    accs = [Reg(V, xf.base, 32), Reg(V, xf.base + 32, 32)]
    tf = V.alloc(16, align=4)
    hq = V.alloc(16, align=4)
    sH2 = S.alloc(1)
    sHst = S.alloc(1)
    g(f"s_mul_i32 {sH2}, {sP}, 229376\ns_add_u32 {sH2}, {sH2}, {H2BUF}")
    g(f"s_lshl_b32 {sHst}, {sL}, 12\ns_add_u32 {sHst}, {sHst}, {sH2}\ns_add_u32 {sHst}, {sHst}, {sIdle}")
    sFl = S.alloc(1)
    g(f"s_lshr_b32 {sT[0]}, {sJ}, 1\ns_add_u32 {sT[0]}, {sT[0]}, 28\ns_cmp_eq_u32 {sIdle}, 0\ns_cselect_b32 {sFl}, {sL}, {sT[0]}")
    g(f"s_lshl_b32 {sFl}, {sFl}, 2\ns_add_u32 {sFl}, {sFl}, {sFp}")

    def h_out(th):
        yield from gelu(accs[th], 32, rs3.r(2*th, 2), hq, tmp)
        g(f"s_add_u32 {sT[0]}, {sHst}, {th*112*1024}")
        for f in range(4):
            g.vm(f"buffer_store_dwordx4 {hq.r(4*f,4)}, {vL16}, {R['ws']}, {sT[0]} offen offset:{f*1024} sc1", f"Hst{th}")
            yield

    def g3_pass(th, bgs):
        def tread(ks):
            g.ds(f"ds_read_b128 {tf.r(4*(ks & 3), 4)}, {vL16} offset:{LA + th*32768 + ks*1024}", f"t{ks}")
        for ks in range(2):
            tread(ks)
        for ks in range(32):
            if ks + 2 < 32:
                tread(ks + 2)
            g.wait(lg=f"t{ks}")
            for ft in range(2):
                c = accs[th].r(16*ft, 16)
                g(f"v_mfma_f32_32x32x16_bf16 {c}, {w3r.r(8*ks + 4*ft, 4)}, {tf.r(4*(ks & 3), 4)}, {c if ks else 0}")
                bgs(2*ks + ft)

    n1 = norm(1)
    st0 = stage_until(16, max_issue=20)

    def bg0(i):
        step(n1)
        if i >= 20 and i % 2 == 0:
            step(st0)
    g3_pass(0, bg0)
    run(n1)
    run(st0)
    g.wait(lg="xw1")
    g("s_barrier")
    stamp("g3a")
    ho = h_out(0)
    st1 = stage_until(22, max_issue=26)

    def bg1(i):
        if i >= 1:
            step(ho)
        step(st1)
    g3_pass(1, bg1)
    run(ho)
    g.wait(vm="Hst0")
    g(f"s_add_u32 {sT[0]}, {sFl}, {F_HA}")
    flag_set(sT[0])
    run(st1)
    stamp("g3b")
    run(h_out(1))
    run(stage_until(26))
    g.wait(vm="Hst1")
    g(f"s_add_u32 {sT[0]}, {sFl}, {F_HB}")
    flag_set(sT[0])
    stamp("H_out")
    tf.free(); hq.free(); rs3.free(); vXw.free()
    sv = V.alloc(16)

    g(f"s_lshr_b32 {sT[0]}, {sP}, 2\ns_mov_b32 {sT[1]}, 0x3b\ns_lshr_b32 {sT[1]}, {sT[1]}, {sT[0]}\ns_and_b32 {sT[1]}, {sT[1]}, 1\ns_lshl_b32 {sT[1]}, {sT[1]}, 2")
    g(f"s_lshl_b32 {sT[0]}, {sJ}, 9\ns_add_u32 {sT[1]}, {sT[1]}, {sT[0]}\ns_lshl_b32 {sT[0]}, {sW}, 7\ns_add_u32 {sT[1]}, {sT[1]}, {sT[0]}\ns_add_u32 {sT[2]}, {sT[1]}, {F_Y}")
    g(f"v_lshlrev_b32 {t0}, 3, v0")
    poll(R["ws"], t0, sT[2], 16)
    g(f"s_add_u32 {sT[0]}, {sTr}, {YBUF}\ns_add_u32 {sT[1]}, {sTr}, {YBUF + 32768}\ns_lshl_b32 {sT[2]}, {sW}, 11\ns_add_u32 m0, {sT[2]}, {C_Y}\ns_nop 0")
    g.vm(f"buffer_load_dwordx4 {vT4k}, {R['ws']}, {sT[0]} offen sc1 lds", "y")
    g(f"s_add_u32 m0, {sT[2]}, {C_Y + 1024}\ns_nop 0")
    g.vm(f"buffer_load_dwordx4 {vT4k}, {R['ws']}, {sT[1]} offen sc1 lds", "y")
    g(f"v_lshlrev_b32 {t0}, 11, {vKq}\nv_lshl_add_u32 {t0}, {vC}, 2, {t0}\ns_lshl_b32 {sT[0]}, {sW}, 8\ns_add_u32 {sT[0]}, {sT[0]}, {sSto}")
    g.vm(f"buffer_load_dword {sv[0]}, {t0}, {R['ws']}, {sT[0]} offen offset:64 sc1", "y")
    g.vm(f"buffer_load_dword {sv[1]}, {t0}, {R['ws']}, {sT[0]} offen offset:1088 sc1", "y")
    run(stage_until(30))
    g.wait(vm="y")
    g("s_barrier")
    g(f"v_add_f32 {sv[0]}, {sv[0]}, {sv[1]}")
    for sw in ("32", "16"):
        g(f"v_mov_b32 {sv[1]}, {sv[0]}\nv_permlane{sw}_swap_b32 {sv[0]}, {sv[1]}\nv_add_f32 {sv[0]}, {sv[0]}, {sv[1]}")
    round_bf16(sv[0])
    g(f"v_mul_f32 {sv[0]}, {fbits(-LOG2E)}, {sv[0]}\nv_exp_f32 {sv[0]}, {sv[0]}\nv_add_f32 {sv[0]}, 1.0, {sv[0]}\nv_rcp_f32 {sv[0]}, {sv[0]}")
    round_bf16(sv[0])
    g(f"v_sub_f32 {sv[2]}, 1.0, {sv[0]}")
    round_bf16(sv[2])
    g(f"v_lshl_add_u32 {t0}, {vKq}, 2, {vR4}\nv_lshlrev_b32 {t0}, 7, {t0}\nv_lshl_add_u32 {t0}, {vC8}, 2, {t0}\ns_lshl_b32 {sT[0]}, {sW}, 3\ns_add_u32 {sT[0]}, {sT[0]}, {C_Y}\nv_add_u32 {t0}, {sT[0]}, {t0}")
    for T in range(4):
        g.ds(f"ds_read_b64_tr_b16 {sv.r(8 + 2*T, 2)}, {t0} offset:{T*2048}", f"y{T}")
    g(f"s_lshl_b32 {sT[0]}, {sW}, 6\ns_add_u32 {sT[0]}, {sT[0]}, {C_OMG}\nv_lshl_add_u32 {t2}, {vC}, 2, {sT[0]}")
    g.ds(f"ds_write_b32 {t2}, {sv[2]}")
    g(f"v_xor_b32 {t0}, {vKq}, {vC}\nv_lshlrev_b32 {t0}, 4, {t0}\nv_lshl_add_u32 {t0}, {vC}, 8, {t0}\ns_lshl_b32 {sT[0]}, {sW}, 12\ns_add_u32 {sT[0]}, {sT[0]}, {C_BASE}\nv_add_u32 {t0}, {sT[0]}, {t0}")
    bq = V.alloc(12, align=4)
    for T in range(4):
        g.wait(lg=f"y{T}")
        for i in range(2):
            for src, d in ((sv[8 + 2*T + i], 0), (qp[2*T + i], 4), (x1p[2*T + i], 8)):
                g(f"v_lshlrev_b32 {bq[d + 2*i]}, 16, {src}\nv_and_b32 {bq[d + 2*i + 1]}, {sMask}, {src}")
        for i in (0, 2):
            g(f"v_pk_mul_f32 {bq.r(i,2)}, {bq.r(i,2)}, {bq.r(4+i,2)}")
            g(f"v_pk_mul_f32 {bq.r(8+i,2)}, {bq.r(8+i,2)}, {sv.r(2,2)} op_sel_hi:[1,0]")
        for i in (0, 2):
            g(f"v_pk_fma_f32 {tmp.r(4*(T & 1) + i, 2)}, {bq.r(i,2)}, {sv.r(0,2)}, {bq.r(8+i,2)} op_sel_hi:[1,0,1]")
        g(f"v_xor_b32 {t2}, {64*T}, {t0}")
        g.ds(f"ds_write_b128 {t2}, {tmp.r(4*(T & 1), 4)}", f"bw{T}")
        if T >= 1:
            g.wait(lg=f"bw{T-1}")
    bq.free(); qp.free(); x1p.free()
    stamp("base")

    w3r.free()
    w4a = A.alloc(128, at=0)
    hb = A.alloc(128, at=128)
    sHl = S.alloc(1)
    g(f"s_mul_i32 {sHl}, {sW}, {28*1024}\ns_add_u32 {sHl}, {sHl}, {sH2}")
    vPw, vPr, vOut = V.alloc(1), V.alloc(1), V.alloc(1)
    g(f"v_and_b32 {t0}, 31, v0\nv_lshrrev_b32 {t2}, 5, v0\nv_xor_b32 {t2}, {t2}, {vC}\nv_lshlrev_b32 {t2}, 4, {t2}\nv_lshl_add_u32 {t0}, {t0}, 8, {t2}")
    g(f"s_lshl_b32 {sT[0]}, {sW}, 13\nv_add_u32 {vPw}, {sT[0]}, {t0}")
    g(f"v_lshrrev_b32 {t0}, 3, v0\ns_lshl_b32 {sT[0]}, {sW}, 3\nv_add_u32 {t0}, {sT[0]}, {t0}\nv_and_b32 {t2}, 7, v0")
    g(f"v_lshlrev_b32 {t3}, 4, {t2}\nv_lshl_add_u32 {vOut}, {t0}, 10, {t3}")
    g(f"v_lshlrev_b32 {t2}, 1, {t2}\nv_and_b32 {t3}, 15, {t0}\nv_xor_b32 {t2}, {t2}, {t3}\nv_lshlrev_b32 {t2}, 4, {t2}\nv_lshl_add_u32 {vPr}, {t0}, 8, {t2}")
    vOm = V.alloc(1)
    g(f"v_lshlrev_b32 {vOm}, 2, {t0}")

    class Fin:
        @staticmethod
        def r(i, n=1):
            return accs[0].r(i, n) if i < 32 else tmp.r(i - 32, n)

        def __getitem__(self, i):
            return self.r(i)
    fin = Fin()

    def h_loads(th):
        g(f"s_mul_i32 {sT[2]}, {sW}, 28\ns_add_u32 {sT[2]}, {sT[2]}, {sFp}\ns_add_u32 {sT[2]}, {sT[2]}, {(F_HA, F_HB)[th]}")
        poll(R["ws"], vL4, sT[2], 7)
        g(f"s_mov_b32 {sG4}, {sRot4}")
        for n in range(28):
            if n & 1 == 0:
                g(f"s_lshl_b32 {sSt}, {sG4}, 11\ns_add_u32 {sSt}, {sSt}, {sHl}")
                if th:
                    g(f"s_add_u32 {sSt}, {sSt}, {112*1024}")
                g(f"s_add_u32 {sG4}, {sG4}, 1\ns_cmp_eq_u32 {sG4}, 14\ns_cselect_b32 {sG4}, 0, {sG4}")
            g.vm(f"buffer_load_dwordx4 {hb.r(4*n,4)}, {vL16}, {R['ws']}, {sSt} offen offset:{(n & 1)*1024} sc1", f"H{n}")
            yield

    def partial_out(th):
        for ft in range(2):
            for q in range(4):
                g(f"v_xor_b32 {t2}, {128*ft + 32*q}, {vPw}")
                g.ds(f"ds_write_b128 {t2}, {accs[th].r(16*ft + 4*q, 4)} offset:{LA + th*32768}", f"pw{th}")
                yield

    def final(th):
        g(f"v_xor_b32 {t0}, 16, {vPr}")
        for x, ad in enumerate((vPr, t0)):
            for w in range(4):
                g.ds(f"ds_read_b128 {fin.r(16*x + 4*w, 4)}, {ad} offset:{LA + th*32768 + w*8192}", f"f{x}")
        yield
        g(f"v_add_u32 {t2}, {C_BASE + th*8192}, {vPr}\nv_add_u32 {t3}, {C_BASE + th*8192}, {t0}")
        g.ds(f"ds_read_b128 {fin.r(32,4)}, {t2}", "fb")
        g.ds(f"ds_read_b128 {fin.r(36,4)}, {t3}", "fb")
        g(f"v_add_u32 {t2}, {C_OMG + th*128}, {vOm}")
        g.ds(f"ds_read_b32 {sv[0]}, {t2}", "fb")
        yield
        for x in range(2):
            g.wait(lg=f"f{x}")
            b = 16 * x
            for i in (0, 2):
                g(f"v_pk_add_f32 {fin.r(b+i,2)}, {fin.r(b+i,2)}, {fin.r(b+4+i,2)}")
                g(f"v_pk_add_f32 {fin.r(b+8+i,2)}, {fin.r(b+8+i,2)}, {fin.r(b+12+i,2)}")
            for i in (0, 2):
                g(f"v_pk_add_f32 {fin.r(b+i,2)}, {fin.r(b+i,2)}, {fin.r(b+8+i,2)}")
            yield
        g.wait(lg="fb")
        for x in range(2):
            for i in (0, 2):
                g(f"v_pk_fma_f32 {fin.r(16*x+i,2)}, {fin.r(16*x+i,2)}, {sv.r(0,2)}, {fin.r(32+4*x+i,2)} op_sel_hi:[1,0,1]")
        for x in range(2):
            for i in range(2):
                g(f"v_cvt_pk_bf16_f32 {fin[4 + 2*x + i]}, {fin[16*x + 2*i]}, {fin[16*x + 2*i + 1]}")
        g(f"s_add_u32 {sT[0]}, {sPan}, {th*32768}")
        g.vm(f"buffer_store_dwordx4 {fin.r(4,4)}, {vOut}, {R['out']}, {sT[0]} offen {o.out_pol}", "out")
        yield

    g.wait(lg="*")
    for th in range(2):
        run(h_loads(th))
        stamp(f"H{th}_issued")
        bg = iter(())
        if th:
            bg = final(0)
        for n in range(28):
            g.wait(vm=f"H{n}")
            for ft in range(2):
                c = accs[th].r(16*ft, 16)
                g(f"v_mfma_f32_32x32x16_bf16 {c}, {w4home(n, ft)}, {hb.r(4*n,4)}, {c if n else 0}")
            if n >= 2:
                step(bg)
        run(bg)
        stamp(f"g4_{th}")
        run(partial_out(th))
        g.wait(lg="*")
        g("s_barrier")
    run(final(1))
    stamp("end")
    stamp("end_real", real=True)
    if o.stamps:
        g(f"s_lshl_b32 {sT[0]}, s2, 2\ns_add_u32 {sT[0]}, {sT[0]}, {sW}\ns_lshl_b32 {sT[0]}, {sT[0]}, 8\ns_add_u32 {sT[0]}, {sT[0]}, {STAMPS}")
        g(f"buffer_store_dword {vStamp}, {vL4}, {R['ws']}, {sT[0]} offen")
    g("L_end:\ns_endpgm")
    body = g.text()
    info = dict(nops=g.nops, vhigh=V.high, shigh=S.high, stamps=stamp_names, lines=len(g.lines))
    return file_text([(KNAME, 256, 256, LDS_BYTES)], [(KNAME, body, 512, 256, 102)]), info


HEADER = open("gated_mix__ssm_conv_h3__mixer_s_mlp__prompt.s.ref").read().split("; Override launch")[0] \
    if __import__("os").path.exists("gated_mix__ssm_conv_h3__mixer_s_mlp__prompt.s.ref") else ""

if __name__ == "__main__":
    out = sys.argv[1] if len(sys.argv) > 1 else "k.s"
    for kv in sys.argv[2:]:
        k, v = kv.split("=")
        cur = getattr(Opt, k)
        setattr(Opt, k, type(cur)(int(v)) if isinstance(cur, (bool, int)) else v)
    text, info = build(Opt)
    open(out, "w").write(HEADER + text)
    print(info)
```

```python
import sys
from asmlib import ARG, NBYTES, KNAME, file_text
from kgen import Gen, Reg

F_H, F_X1, F_HA, F_HB, F_U, F_Y = 0, 4096, 8192, 12288, 16384, 20480
FLAG_BYTES = 24576
STATS = 0x8000
HBUF, X1BUF, UBUF, YBUF, H2BUF = 0x100000, 0x300000, 0x500000, 0x700000, 0x900000
STAMPS = 0x2000000
OOB = 0x40000000

LA, LB, LC = 0, 65536, 131072
C_K, C_V, C_Q = LC, LC + 9216, LC + 17408
C_H, C_U = LC, LC + 8448
HP, UP = 4224, 1152
C_Y, C_BASE, C_OMG = LC, LC + 8192, LC + 24576
A_N = LA + 32768
NP = 8448
LDS_BYTES = 163840

GELU_C0 = -2.302208198144325
GELU_C1 = GELU_C0 * 0.044715
LOG2E = 1.4426950408889634

TILES = ([7, 6, 2], [5, 4, 3, 1, 0])


def fbits(x):
    import struct
    return "0x%08x" % struct.unpack("<I", struct.pack("<f", x))[0]


class Opt:
    stamps = False
    nt_once = "nt"
    out_pol = "sc1"
    rot = True
    code_pf = True
    code_bytes = 49152
    amp = ""


def build(o=Opt):
    g = Gen()
    V, A, S = g.V, g.A, g.S
    names = ["q", "w1", "w2", "w3", "w4", "k", "v", "ssm_k", "out", "ws", "dbg", "shift_k", "ssm_D", "gate_w"]
    R = {n: S.alloc(4, align=4) for n in names}
    sW, sJ, sP, sPP, sX = (S.alloc(1) for _ in range(5))
    sT = S.alloc(6, align=2)
    sOnes, sLo1, sHi1, sMask, sTmo = (S.alloc(1) for _ in range(5))
    sStamp = S.alloc(2, align=2)
    vStamp = V.alloc(1) if o.stamps else None
    nstamp = [0]
    stamp_names = []

    amp = o.amp.split(",") if o.amp else None
    sAmp = S.alloc(4, align=2) if amp else None

    def stamp(name, real=False):
        if amp and name in amp[:2]:
            g(f"s_memrealtime {sAmp.r(2*amp.index(name), 2)}")
            g.smem = True
            g.wait(lg="*")
        if not o.stamps:
            return
        g(f"s_mem{'real' if real else ''}time {sStamp}")
        g.smem = True
        g.wait(lg="*")
        g(f"v_writelane_b32 {vStamp}, {sStamp[0]}, {nstamp[0]}")
        nstamp[0] += 1
        stamp_names.append(name)

    def flag_set(soff):
        g("s_mov_b64 exec, 1")
        g.vm(f"buffer_store_dword {vOne}, off, {R['ws']}, {soff} sc1", "flag")
        g("s_mov_b64 exec, -1")

    def poll(srd, vaddr, soff, nlanes):
        lp = g.label("poll")
        t = V.alloc(1)
        mask = (1 << nlanes) - 1
        if nlanes <= 6:
            g(f"s_mov_b64 exec, {mask}")
        else:
            g(f"s_mov_b32 exec_lo, 0x{mask & 0xffffffff:x}\ns_mov_b32 exec_hi, 0x{mask >> 32:x}")
        g(f"{lp}:")
        g.vm(f"buffer_load_dword {t}, {vaddr}, {srd}, {soff} offen sc1")
        g(f"s_sub_u32 {sTmo}, {sTmo}, 1")
        g(f"s_cbranch_scc1 {lp}_x")
        g.wait(vm="*")
        g(f"v_cmp_eq_u32 vcc, 0, {t}")
        g(f"s_cbranch_vccnz {lp}")
        g(f"{lp}_x:")
        g(f"s_waitcnt vmcnt(0)")
        g(f"s_max_i32 {sTmo}, {sTmo}, 0")
        g("s_mov_b64 exec, -1")
        t.free()

    def round_bf16(r):
        g(f"v_cvt_pk_bf16_f32 {r}, {r}, {r}")
        g(f"v_and_b32 {r}, {sMask}, {r}")

    def ln_stats(s1, s2, negmu, rstd):
        g(f"v_mul_f32 {negmu}, {fbits(-1.0/512)}, {s1}")
        g(f"v_mul_f32 {s2}, {fbits(1.0/512)}, {s2}")
        g(f"v_fma_f32 {s2}, -{negmu}, {negmu}, {s2}")
        g(f"v_max_f32 {s2}, 0, {s2}")
        round_bf16(s2)
        round_bf16(negmu)
        g(f"v_add_f32 {s2}, {fbits(1e-5)}, {s2}")
        round_bf16(s2)
        g(f"v_sqrt_f32 {s2}, {s2}")
        round_bf16(s2)
        g(f"v_rcp_f32 {rstd}, {s2}")

    def center(src, dst, negmu, tmp):
        for b in range(0, len(src), 4):
            for i in range(4):
                g(f"v_dot2_f32_bf16 {tmp[2*i]}, {src[b+i]}, {sLo1}, {negmu}")
                g(f"v_dot2_f32_bf16 {tmp[2*i+1]}, {src[b+i]}, {sHi1}, {negmu}")
            for i in range(4):
                g(f"v_cvt_pk_bf16_f32 {dst[b+i]}, {tmp[2*i]}, {tmp[2*i+1]}")
            yield

    def gelu(acc, n, rstd2, out, tmp):
        for b in range(0, n, 4):
            x, t = tmp.r(0, 4), tmp.r(4, 4)
            for i in (0, 2):
                g(f"v_pk_mul_f32 {tmp.r(i,2)}, {acc.r(b+i,2)}, {rstd2} op_sel_hi:[1,0]")
            for i in (0, 2):
                g(f"v_pk_mul_f32 {tmp.r(4+i,2)}, {tmp.r(i,2)}, {tmp.r(i,2)}")
            for i in (0, 2):
                g(f"v_pk_fma_f32 {tmp.r(4+i,2)}, {tmp.r(4+i,2)}, {vGC}, {vGC} op_sel:[0,0,1] op_sel_hi:[1,0,1]")
            yield
            for i in (0, 2):
                g(f"v_pk_mul_f32 {tmp.r(4+i,2)}, {tmp.r(4+i,2)}, {tmp.r(i,2)}")
            for i in range(2):
                g(f"v_exp_f32 {tmp[4+i]}, {tmp[4+i]}")
            yield
            for i in range(2, 4):
                g(f"v_exp_f32 {tmp[4+i]}, {tmp[4+i]}")
            for i in (0, 2):
                g(f"v_pk_add_f32 {tmp.r(4+i,2)}, {tmp.r(4+i,2)}, 1.0 op_sel_hi:[1,0]")
            yield
            for i in range(3):
                g(f"v_rcp_f32 {tmp[4+i]}, {tmp[4+i]}")
            yield
            g(f"v_rcp_f32 {tmp[7]}, {tmp[7]}")
            for i in (0, 2):
                g(f"v_pk_mul_f32 {tmp.r(i,2)}, {tmp.r(i,2)}, {tmp.r(4+i,2)}")
            for i in (0, 2):
                g(f"v_cvt_pk_bf16_f32 {out[(b+i)//2]}, {tmp[i]}, {tmp[i+1]}")
            yield

    def run(it):
        for _ in it:
            pass

    def step(it, n=1):
        for _ in range(n):
            next(it, None)

    g("s_cmp_ge_u32 s2, 256\ns_cbranch_scc1 L_end")
    for n in names:
        g(f"s_load_dwordx2 {R[n].r(0,2)}, s[0:1], {ARG[n]}")
    g.smem = True
    vOne = V.alloc(1)
    vGC = V.alloc(2)
    vL16 = V.alloc(1)
    t0, t1, t2, t3 = (V.alloc(1) for _ in range(4))
    if o.code_pf:
        pc = V.alloc(2)
        per = o.code_bytes // 32
        assert per <= 2048
        g(f"s_getpc_b64 {sT.r(0,2)}")
        g(f"s_lshr_b32 {sT[2]}, s2, 3\ns_mul_i32 {sT[2]}, {sT[2]}, {per}")
        g(f"v_lshl_add_u32 {t0}, v0, 3, {sT[2]}")
        g(f"v_min_u32 {t0}, L_end-L_pc, {t0}")
        g("L_pc:")
        g(f"v_mov_b32 {pc[1]}, {sT[1]}")
        g(f"v_add_co_u32 {pc[0]}, vcc, {sT[0]}, {t0}")
        g(f"s_nop 1\nv_addc_co_u32 {pc[1]}, vcc, 0, {pc[1]}, vcc")
        g.vm(f"global_load_dword {t1}, {pc}, off", "pf")
        pc.free()
    g(f"v_lshrrev_b32 {t0}, 6, v0\nv_and_b32 v0, 63, v0\nv_readfirstlane_b32 {sW}, {t0}")
    g(f"s_and_b32 {sX}, s2, 7\ns_lshr_b32 {sT[0]}, s2, 3\ns_and_b32 {sJ}, {sT[0]}, 7\ns_lshr_b32 {sPP}, {sT[0]}, 3")
    g(f"s_lshl_b32 {sP}, {sX}, 2\ns_add_u32 {sP}, {sP}, {sPP}")
    for n in names:
        g(f"s_mov_b32 {R[n][2]}, {NBYTES[n]}\ns_mov_b32 {R[n][3]}, 0x00020000")
    g(f"s_mov_b32 {sOnes}, 0x3f803f80\ns_mov_b32 {sLo1}, 0x00003f80\ns_mov_b32 {sHi1}, 0x3f800000")
    g(f"s_mov_b32 {sMask}, 0xffff0000\ns_mov_b32 {sTmo}, 0x40000")
    g(f"v_mov_b32 {vOne}, 1\nv_mov_b32 {vGC[0]}, {fbits(GELU_C1)}\nv_mov_b32 {vGC[1]}, {fbits(GELU_C0)}")
    g(f"v_lshlrev_b32 {vL16}, 4, v0")
    if o.stamps:
        g(f"v_mov_b32 {vStamp}, 0")
    sRow, sM, sOff = S.alloc(1), S.alloc(1), S.alloc(1)
    g(f"s_lshr_b32 {sT[0]}, {sJ}, 2\ns_add_u32 {sT[0]}, {sT[0]}, 1\ns_sub_u32 {sT[1]}, 0, {sT[0]}")
    g(f"s_bitcmp1_b32 {sJ}, 1\ns_cselect_b32 {sT[0]}, {sT[0]}, {sT[1]}")
    g(f"s_lshl_b32 {sRow}, {sP}, 2\ns_add_u32 {sRow}, {sRow}, {sW}\ns_lshl_b32 {sRow}, {sRow}, 4")
    g(f"s_add_u32 {sRow}, {sRow}, {sT[0]}\ns_lshl_b32 {sRow}, {sRow}, 10")
    g(f"s_lshl_b32 {sT[0]}, {sJ}, 1" if o.rot else f"s_mov_b32 {sT[0]}, 0")
    g(f"s_mul_i32 {sT[1]}, {sT[0]}, 0x410\nv_xor_b32 {t2}, {sT[1]}, {vL16}")
    sLdsW = S.alloc(1)
    g(f"s_lshl_b32 {sLdsW}, {sW}, 14\ns_lshl_b32 {sT[0]}, {sT[0]}, 10\ns_add_u32 {sM}, {sLdsW}, {sT[0]}")
    g.wait(lg="*")
    stamp("start_real", real=True)
    stamp("start")
    lead1, lead2 = g.label("lead"), g.label("lead")
    z = V.alloc(4, align=4)
    g(f"v_mov_b32 {z[0]}, 0\nv_mov_b32 {z[1]}, 0\nv_mov_b32 {z[2]}, 0\nv_mov_b32 {z[3]}, 0")
    g(f"s_cmp_lg_u32 s2, 0\ns_cbranch_scc1 {lead1}")
    g(f"s_mul_i32 {sT[0]}, {sW}, {FLAG_BYTES//4}")
    for i in range(FLAG_BYTES // 4096):
        if i == 4:
            g(f"s_add_u32 {sT[0]}, {sT[0]}, 4096")
        g(f"buffer_store_dwordx4 {z}, {vL16}, {R['ws']}, {sT[0]} offen offset:{(i%4)*1024} sc1")
    g(f"{lead1}:")
    for n in range(16):
        t = (t0, t3)[n & 1]
        g(f"v_xor_b32 {t}, {n*0x410}, {t2}\ns_xor_b32 m0, {sM}, {n << 10}\nv_add_u32 {t}, {sRow}, {t}")
        g.vm(f"buffer_load_dwordx4 {t}, {R['q']}, 0 offen lds", "x")
    vW1a, vW1b, vW2 = V.alloc(1), V.alloc(1), V.alloc(1)
    g(f"v_lshrrev_b32 {t0}, 3, v0\nv_and_b32 {t3}, 7, v0")
    g(f"v_lshrrev_b32 {t2}, 4, v0\nv_lshlrev_b32 {t2}, 1, {t2}\nv_xor_b32 {vW2}, {t2}, {t3}")
    g(f"v_and_b32 {t2}, 2, {t2}\nv_xor_b32 {vW1a}, {t2}, {t3}")
    g(f"v_lshlrev_b32 {t0}, 10, {t0}")
    g(f"v_lshl_add_u32 {vW2}, {vW2}, 4, {t0}\nv_lshl_add_u32 {vW1a}, {vW1a}, 4, {t0}\nv_xor_b32 {vW1b}, 64, {vW1a}")
    sCol = S.alloc(1)
    sRotW = S.alloc(1)
    g(f"s_lshl_b32 {sCol}, {sJ}, 7")
    if o.rot:
        g(f"s_and_b32 {sT[0]}, {sX}, 1\ns_lshl_b32 {sT[1]}, {sPP}, 1\ns_add_u32 {sRotW}, {sT[0]}, {sT[1]}\ns_lshl_b32 {sRotW}, {sRotW}, 1")
    else:
        g(f"s_mov_b32 {sRotW}, 0")
    g(f"s_lshl_b32 {sT[0]}, {sRotW}, 13\ns_lshl_b32 {sT[1]}, {sW}, 17\ns_add_u32 {sOff}, {sT[0]}, {sT[1]}\ns_add_u32 {sOff}, {sOff}, {sCol}")
    g(f"s_lshl_b32 {sT[0]}, {sRotW}, 10\ns_add_u32 {sM}, {sLdsW}, {sT[0]}\ns_add_u32 {sM}, {sM}, {LB}")
    for n in range(16):
        g(f"s_xor_b32 m0, {sM}, {n << 10}\ns_xor_b32 {sT[0]}, {sOff}, {n << 13}")
        g.vm(f"buffer_load_dwordx4 {(vW1a, vW1b)[n & 1]}, {R['w1']}, {sT[0]} offen lds", "w1")
    vW1a.free(); vW1b.free()
    g(f"s_cmp_lg_u32 s2, 0\ns_cbranch_scc1 {lead2}")
    g(f"s_waitcnt vmcnt(32)\ns_lshl_b32 {sT[0]}, {sW}, 2\ns_mov_b64 exec, 1")
    g(f"buffer_store_dword {vOne}, off, {R['dbg']}, {sT[0]} sc1\ns_mov_b64 exec, -1")
    g(f"{lead2}:")
    z.free()

    sPan = S.alloc(1)
    g(f"s_lshl_b32 {sPan}, {sP}, 16\ns_add_u32 {sPan}, {sPan}, {sCol}")
    kskip = g.label("kskip")
    g(f"s_cmp_lg_u32 {sW}, 0\ns_cbranch_scc1 {kskip}")
    g(f"s_sub_u32 {sT[0]}, {sPan}, 8192\nv_add_u32 {t0}, {sT[0]}, {vW2}\ns_mov_b32 m0, {C_K}\ns_nop 0")
    g(f"buffer_load_dwordx4 {t0}, {R['k']}, 0 offen {o.nt_once} lds")
    g(f"{kskip}:")
    g(f"s_lshl_b32 {sT[0]}, {sW}, 14\ns_add_u32 {sT[0]}, {sT[0]}, {sPan}\ns_add_u32 {sT[1]}, {sT[0]}, 8192")
    g(f"s_lshl_b32 {sT[2]}, {sW}, 11\ns_add_u32 m0, {sT[2]}, {C_K + 1024}\ns_nop 0")
    g.vm(f"buffer_load_dwordx4 {vW2}, {R['k']}, {sT[0]} offen {o.nt_once} lds", "kv")
    g(f"s_add_u32 m0, {sT[2]}, {C_K + 2048}\ns_nop 0")
    g.vm(f"buffer_load_dwordx4 {vW2}, {R['k']}, {sT[1]} offen {o.nt_once} lds", "kv")
    g(f"v_lshrrev_b32 {t0}, 3, v0\nv_lshlrev_b32 {t0}, 10, {t0}\nv_and_b32 {t3}, 7, v0")
    g(f"v_lshrrev_b32 {t2}, 5, v0\nv_lshlrev_b32 {t2}, 1, {t2}\nv_xor_b32 {t2}, {t2}, {t3}\nv_lshl_add_u32 {t2}, {t2}, 4, {t0}")
    g(f"s_add_u32 m0, {sT[2]}, {C_V}\ns_nop 0")
    g.vm(f"buffer_load_dwordx4 {t2}, {R['v']}, {sT[0]} offen {o.nt_once} lds", "kv")
    g(f"v_xor_b32 {t2}, 64, {t2}\ns_add_u32 m0, {sT[2]}, {C_V + 1024}\ns_nop 0")
    g.vm(f"buffer_load_dwordx4 {t2}, {R['v']}, {sT[1]} offen {o.nt_once} lds", "kv")
    g(f"v_lshrrev_b32 {t2}, 4, v0\nv_xor_b32 {t2}, {t2}, {t3}\nv_lshl_add_u32 {t2}, {t2}, 4, {t0}")
    g(f"s_add_u32 m0, {sT[2]}, {C_Q}\ns_nop 0")
    g.vm(f"buffer_load_dwordx4 {t2}, {R['q']}, {sT[0]} offen lds", "kv")
    g(f"v_xor_b32 {t2}, 64, {t2}\ns_add_u32 m0, {sT[2]}, {C_Q + 1024}\ns_nop 0")
    g.vm(f"buffer_load_dwordx4 {t2}, {R['q']}, {sT[1]} offen lds", "kv")
    vC, vKq = V.alloc(1), V.alloc(1)
    g(f"v_and_b32 {vC}, 15, v0\nv_lshrrev_b32 {vKq}, 4, v0")
    shk = V.alloc(2)
    gw = V.alloc(8)
    vD = V.alloc(1)
    g(f"v_lshlrev_b32 {t0}, 3, {vC}\ns_lshl_b32 {sT[0]}, {sJ}, 9\ns_lshl_b32 {sT[1]}, {sW}, 7\ns_add_u32 {sT[0]}, {sT[0]}, {sT[1]}")
    g.vm(f"buffer_load_dwordx2 {shk}, {t0}, {R['shift_k']}, {sT[0]} offen", "kv")
    g(f"v_lshlrev_b32 {t3}, 3, {vKq}")
    for T in range(4):
        g.vm(f"buffer_load_dwordx2 {gw.r(2*T,2)}, {t3}, {R['gate_w']}, {sCol} offen offset:{32*T}", "kv")
    sCh = S.alloc(1)
    g(f"s_lshl_b32 {sCh}, {sJ}, 5\ns_add_u32 {sCh}, {sCh}, {sP}\ns_lshl_b32 {sCh}, {sCh}, 1\ns_lshr_b32 {sT[0]}, {sW}, 1\ns_add_u32 {sCh}, {sCh}, {sT[0]}")
    g(f"s_lshl_b32 {sT[0]}, {sCh}, 1\nv_mov_b32 {vD}, 0")
    g.vm(f"buffer_load_short_d16_hi {vD}, off, {R['ssm_D']}, {sT[0]}", "kv")
    stamp("issued")
    for n in ("w1", "k", "v", "q", "shift_k", "ssm_D", "gate_w"):
        R[n].free()
    sRow.free()

    xf = V.alloc(64, align=4)
    xa = V.alloc(4)
    for b in range(4):
        g(f"v_add_u32 {t0}, {4*b}, {vKq}\nv_xor_b32 {t0}, {t0}, {vC}\nv_lshlrev_b32 {t0}, 4, {t0}")
        g(f"v_lshl_add_u32 {t0}, {vC}, 10, {t0}\nv_add_u32 {xa[b]}, {sLdsW}, {t0}")
    g.wait(vm="x")
    stamp("x_in")
    for ks in range(16):
        g.ds(f"ds_read_b128 {xf.r(4*ks,4)}, {xa[ks & 3]} offset:{LA + 256*(ks >> 2)}", f"x{ks}")
    xa.free()
    st = V.alloc(4)
    for i in range(4):
        g(f"v_mov_b32 {st[i]}, 0")
    g(f"s_lshl_b32 {sT[0]}, {sW}, 4\ns_xor_b32 {sT[0]}, {sT[0]}, {sRotW}\ns_lshl_b32 {sM}, {sT[0]}, 10")
    if o.rot:
        g(f"s_lshl_b32 {sT[1]}, {sJ}, 3\ns_xor_b32 {sT[0]}, {sT[0]}, {sT[1]}")
    g(f"s_lshl_b32 {sOff}, {sT[0]}, 13\ns_add_u32 {sOff}, {sOff}, {sCol}")

    def w2_dma():
        for n in range(16):
            g(f"s_xor_b32 m0, {sM}, {n << 10}\ns_xor_b32 {sT[0]}, {sOff}, {n << 13}")
            g.vm(f"buffer_load_dwordx4 {vW2}, {R['w2']}, {sT[0]} offen lds", "w2")
            yield
    w2it = w2_dma()
    for ks in range(16):
        g.wait(lg=f"x{ks}")
        for i in range(4):
            g(f"v_dot2c_f32_bf16 {st[i & 1]}, {sOnes}, {xf[4*ks+i]}")
            g(f"v_dot2c_f32_bf16 {st[2 + (i & 1)]}, {xf[4*ks+i]}, {xf[4*ks+i]}")
    g(f"v_add_f32 {st[0]}, {st[0]}, {st[1]}\nv_add_f32 {st[2]}, {st[2]}, {st[3]}")
    for sw in ("32", "16"):
        g(f"v_mov_b32 {st[1]}, {st[0]}\nv_mov_b32 {st[3]}, {st[2]}")
        g(f"v_permlane{sw}_swap_b32 {st[0]}, {st[1]}\nv_permlane{sw}_swap_b32 {st[2]}, {st[3]}")
        g(f"v_add_f32 {st[0]}, {st[0]}, {st[1]}\nv_add_f32 {st[2]}, {st[2]}, {st[3]}")
    rs = V.alloc(2)
    ln_stats(st[0], st[2], st[1], rs[0])
    tmp = V.alloc(8)
    regs = [xf[i] for i in range(64)]
    for _ in center(regs, regs, st[1], tmp):
        step(w2it)
    run(w2it)
    st.free(); R["w2"].free(); sM.free(); sOff.free(); sRotW.free(); vW2.free()
    vR4 = V.alloc(1)
    vC8 = V.alloc(1)
    g(f"v_bfe_u32 {vR4}, v0, 2, 2\nv_and_b32 {vC8}, 3, v0\nv_lshlrev_b32 {vC8}, 3, {vC8}")
    wa = V.alloc(4)
    g(f"v_lshl_add_u32 {t0}, {vKq}, 3, {vR4}\nv_lshl_add_u32 {t0}, {t0}, 7, {vC8}")
    g(f"v_lshrrev_b32 {t2}, 1, {vR4}\nv_and_b32 {t3}, 1, {vKq}\nv_lshl_or_b32 {t2}, {t3}, 1, {t2}")
    g(f"v_lshl_add_u32 {t0}, {t2}, 5, {t0}\nv_add_u32 {wa[0]}, {LB}, {t0}")
    for T in range(1, 4):
        g(f"v_xor_b32 {wa[T]}, {32*T}, {wa[0]}")
    wf = V.alloc(32, at=160)
    acc = V.alloc(16, at=192)

    def gemm16(tok, e2off, pre=None, bg=None):
        def reads(ks):
            for T in range(4):
                for e2 in range(2):
                    g.ds(f"ds_read_b64_tr_b16 {wf.r(16*(ks & 1) + 4*T + 2*e2, 2)}, {wa[T]} offset:{ks*4096 + e2*e2off}", f"w{ks}_{T}")
                yield
        run(reads(0))
        for ks in range(16):
            nxt = reads(ks + 1) if ks < 15 else iter(())
            if pre:
                pre(ks)
            for T in range(4):
                g.wait(lg=f"w{ks}_{T}")
                g(f"v_mfma_f32_16x16x32_bf16 {acc.r(4*T,4)}, {wf.r(16*(ks & 1) + 4*T, 4)}, {tok.r(4*ks,4)}, {acc.r(4*T,4) if ks else 0}")
                step(nxt)
            if bg:
                bg(ks)

    g.wait(vm="w1")
    g("s_barrier")
    stamp("w1_in")
    gemm16(xf, 512)
    g.wait(vm="kv")
    g("s_barrier")
    stamp("g1_mfma")
    hp = V.alloc(8, align=4)
    run(gelu(acc, 16, rs, hp, tmp))
    sHo = S.alloc(1)
    g(f"s_lshl_b32 {sHo}, {sP}, 16\ns_add_u32 {sHo}, {sHo}, {sLdsW}\ns_add_u32 {sHo}, {sHo}, {HBUF}")
    g(f"s_lshl_b32 {sT[0]}, {sJ}, 11\ns_add_u32 {sT[0]}, {sT[0]}, {sHo}")
    for gg in range(2):
        g.vm(f"buffer_store_dwordx4 {hp.r(4*gg,4)}, {vL16}, {R['ws']}, {sT[0]} offen offset:{gg*1024} sc1", "hst")
    vL4 = V.alloc(1)
    g(f"v_lshlrev_b32 {vL4}, 2, v0")
    poll(R["dbg"], vL4, 0, 4)
    sFg = S.alloc(1)
    g(f"s_lshl_b32 {sFg}, {sP}, 7\ns_lshl_b32 {sT[0]}, {sW}, 5\ns_add_u32 {sFg}, {sFg}, {sT[0]}")
    g(f"s_lshl_b32 {sT[0]}, {sJ}, 2\ns_add_u32 {sT[0]}, {sT[0]}, {sFg}")
    flag_set(sT[0])
    hp.free(); rs.free()
    stamp("h_out")

    sL = S.alloc(1)
    sW3, sRot3, sW4, sG4, sRot4, sIdle = (S.alloc(1) for _ in range(6))
    g(f"s_lshr_b32 {sT[0]}, {sJ}, 1\ns_mul_i32 {sL}, {sT[0]}, 7\ns_and_b32 {sT[1]}, {sJ}, 1\ns_lshl_b32 {sT[2]}, {sT[1]}, 2")
    g(f"s_add_u32 {sT[2]}, {sT[2]}, {sW}\ns_add_u32 {sL}, {sL}, {sT[2]}")
    g(f"s_cmp_eq_u32 {sT[2]}, 7\ns_cselect_b32 {sIdle}, {OOB}, 0")
    g(f"s_lshl_b32 {sW3}, {sL}, 7\ns_add_u32 {sW3}, {sW3}, {sIdle}")
    if o.rot:
        g(f"s_lshl_b32 {sT[0]}, {sPP}, 2\ns_lshr_b32 {sT[1]}, {sX}, 1\ns_add_u32 {sRot3}, {sT[0]}, {sT[1]}")
        g(f"s_lshl_b32 {sT[0]}, {sJ}, 1\ns_xor_b32 {sRot3}, {sRot3}, {sT[0]}")
        g(f"s_mul_i32 {sT[0]}, {sPP}, 28\ns_mul_i32 {sT[1]}, {sX}, 3\ns_mul_i32 {sT[2]}, {sJ}, 14")
        g(f"s_add_u32 {sT[0]}, {sT[0]}, {sT[1]}\ns_add_u32 {sT[0]}, {sT[0]}, {sT[2]}\ns_lshr_b32 {sRot4}, {sT[0]}, 3")
        g(f"s_cmp_ge_u32 {sRot4}, 14\ns_cselect_b32 {sT[0]}, 14, 0\ns_sub_u32 {sRot4}, {sRot4}, {sT[0]}")
    else:
        g(f"s_mov_b32 {sRot3}, 0\ns_mov_b32 {sRot4}, 0")
    g(f"s_mul_i32 {sW4}, {sW}, {448*1024}\ns_add_u32 {sW4}, {sW4}, {sCol}\ns_mov_b32 {sG4}, {sRot4}")
    d3, d4, ra = V.alloc(4), V.alloc(4), V.alloc(2)
    g(f"v_lshrrev_b32 {t0}, 3, v0\nv_and_b32 {t3}, 7, v0\nv_and_b32 {t2}, 1, {vKq}\nv_lshlrev_b32 {t2}, 2, {t2}")
    g(f"v_xor_b32 {t3}, {t2}, {t3}\nv_lshlrev_b32 {t3}, 4, {t3}")
    g(f"v_mul_u32_u24 {d3[0]}, 3584, {t0}\nv_add_u32 {d3[0]}, {d3[0]}, {t3}\nv_lshl_add_u32 {d4[0]}, {t0}, 10, {t3}")
    for i in range(1, 4):
        g(f"v_add_u32 {d3[i]}, {i*(8*3584-1024)}, {d3[0]}\nv_add_u32 {d4[i]}, {i*7168}, {d4[0]}")
    g(f"v_lshrrev_b32 {t0}, 5, v0\nv_lshl_add_u32 {t0}, {t0}, 2, {vR4}\nv_lshl_add_u32 {t0}, {t0}, 7, {vC8}")
    g(f"v_and_b32 {t2}, 1, {vKq}\nv_lshl_add_u32 {t0}, {t2}, 5, {t0}\nv_lshrrev_b32 {t2}, 1, {vR4}\nv_lshl_add_u32 {t0}, {t2}, 6, {t0}")
    g(f"s_add_u32 {sT[0]}, {sLdsW}, {LB}\nv_add_u32 {ra[0]}, {sT[0]}, {t0}\nv_xor_b32 {ra[1]}, 64, {ra[0]}")
    sRing = S.alloc(1)
    sSt = S.alloc(1)
    g(f"s_add_u32 {sRing}, {sLdsW}, {LB}")
    w3r = A.alloc(256)
    w4v = Reg(V, 160, 96)

    def w4home(n, ft):
        return w4v.r(8*n + 4*ft, 4) if n < 12 else f"a[{8*(n-12) + 4*ft}:{8*(n-12) + 4*ft + 3}]"

    def half(reg4, e2):
        k, rng = reg4[0], reg4[2:-1].split(":")
        lo = int(rng[0]) + 2 * e2
        return f"{k}[{lo}:{lo+1}]"

    class Stage:
        issued = 0
        read = 0
        busy = False

        @classmethod
        def dma(cls):
            n = cls.issued
            assert n - cls.read < 4 and n < 30
            if n >= 4:
                g.wait(lg=f"sr{n-4}")
            g(f"s_add_u32 m0, {sRing}, {(n & 3)*4096}")
            if n < 16:
                g(f"s_xor_b32 {sSt}, {sRot3}, {n}\ns_mul_i32 {sSt}, {sSt}, {32*3584}\ns_add_u32 {sSt}, {sSt}, {sW3}")
            else:
                g(f"s_lshl_b32 {sSt}, {sG4}, 15\ns_add_u32 {sSt}, {sSt}, {sW4}")
                g(f"s_add_u32 {sG4}, {sG4}, 1\ns_cmp_eq_u32 {sG4}, 14\ns_cselect_b32 {sG4}, 0, {sG4}")
            cls.issued += 1
            for i in range(4):
                d, r = (d3, R["w3"]) if n < 16 else (d4, R["w4"])
                g.vm(f"buffer_load_dwordx4 {d[i]}, {r}, {sSt} offen offset:{i*1024} lds", f"sd{n}")
                cls.busy = i < 3
                yield

        @classmethod
        def rd(cls):
            n = cls.read
            assert n < cls.issued
            g.wait(vm=f"sd{n}")
            cls.read += 1
            for u in range(2):
                for ft in range(2):
                    for e2 in range(2):
                        if n < 16:
                            dst = w3r.r(16*n + 8*u + 4*ft + 2*e2, 2)
                            off = e2 * 2048 + u * 1024
                        else:
                            dst = half(w4home(2*(n-16) + u, ft), e2)
                            off = u * 2048 + e2 * 1024
                        g.ds(f"ds_read_b64_tr_b16 {dst}, {ra[ft]} offset:{(n & 3)*4096 + off}", f"sr{n}")
                    cls.busy = (u, ft) != (1, 1)
                    yield

    def stage_until(n_read, ahead=True, max_issue=30):
        assert not Stage.busy
        while Stage.read < n_read:
            while Stage.issued - Stage.read < 4 and Stage.issued < max_issue:
                yield from Stage.dma()
            yield from Stage.rd()
        while ahead and Stage.issued - Stage.read < 4 and Stage.issued < max_issue:
            yield from Stage.dma()

    run(stage_until(0))

    qp = V.alloc(8, align=4)
    g(f"v_lshrrev_b32 {t0}, 1, {vC}\nv_lshrrev_b32 {t2}, 1, {vKq}\nv_xor_b32 {t0}, {t0}, {t2}\nv_lshlrev_b32 {t0}, 4, {t0}")
    g(f"v_lshl_add_u32 {t0}, {vC}, 7, {t0}\nv_and_b32 {t2}, 1, {vKq}\nv_lshl_add_u32 {t0}, {t2}, 3, {t0}")
    sQ = S.alloc(1)
    g(f"s_lshl_b32 {sQ}, {sW}, 11\ns_add_u32 {sQ}, {sQ}, {C_Q}")
    for T in range(4):
        g(f"v_xor_b32 {t2}, {32*T}, {t0}\nv_add_u32 {t2}, {sQ}, {t2}")
        g.ds(f"ds_read_b64 {qp.r(2*T,2)}, {t2}", "q")
    ka = V.alloc(3)
    for m in range(2):
        g(f"v_sub_u32 {t0}, {vKq}, {vR4}\nv_add_u32 {t0}, {8 + 4*m}, {t0}\nv_bfe_u32 {t2}, {t0}, 1, 2\nv_xor_b32 {t2}, {sW}, {t2}")
        g(f"v_lshl_add_u32 {t2}, {t2}, 5, {vC8}\nv_lshl_add_u32 {t2}, {t0}, 7, {t2}\nv_add_u32 {ka[m]}, {C_K}, {t2}")
    g(f"v_lshl_add_u32 {t0}, {vR4}, 2, {vKq}\nv_xor_b32 {t2}, {sW}, {vR4}\nv_lshl_add_u32 {t2}, {t2}, 5, {vC8}")
    g(f"v_lshl_add_u32 {t2}, {t0}, 7, {t2}\nv_add_u32 {ka[2]}, {C_V}, {t2}")
    kk = xf
    for m0 in range(0, 16, 4):
        g.ds(f"ds_read_b64_tr_b16 {kk.r(32 + m0//2, 2)}, {ka[2]} offset:{m0*512}", f"k{m0}")
        for m in range(m0, m0 + 4):
            g.ds(f"ds_read_b64_tr_b16 {kk.r(2*m, 2)}, {ka[m & 1]} offset:{(m >> 1)*1024}", f"k{m0}")
        if m0 == 8:
            g.wait(lg="k0")
    ka.free()
    up = V.alloc(8, align=4)
    for m0 in range(0, 16, 4):
        g.wait(lg=f"k{m0}")
        for m in range(m0, m0 + 4):
            g(f"v_dot2_f32_bf16 {kk[40+m]}, {kk[2*m]}, {shk[0]}, 0")
        for m in range(m0, m0 + 4):
            g(f"v_dot2_f32_bf16 {kk[40+m]}, {kk[2*m+1]}, {shk[1]}, {kk[40+m]}")
        for i in range(2):
            g(f"v_lshlrev_b32 {tmp[2*i]}, 16, {kk[32 + m0//2 + i]}\nv_and_b32 {tmp[2*i+1]}, {sMask}, {kk[32 + m0//2 + i]}")
        for i in range(2):
            g(f"v_pk_mul_f32 {tmp.r(2*i,2)}, {tmp.r(2*i,2)}, {kk.r(40 + m0 + 2*i, 2)}")
        for i in range(2):
            g(f"v_cvt_pk_bf16_f32 {up[m0//2 + i]}, {tmp[2*i]}, {tmp[2*i+1]}")
    shk.free()
    g(f"v_and_b32 {t0}, 7, {vC}\nv_lshlrev_b32 {t2}, 1, {vKq}\nv_xor_b32 {t0}, {t0}, {t2}\nv_lshlrev_b32 {t0}, 4, {t0}")
    g(f"v_lshl_add_u32 {t0}, {vC}, 7, {t0}\nv_add_u32 {t0}, {sQ}, {t0}\nv_xor_b32 {t2}, 16, {t0}")
    g.ds(f"ds_write_b128 {t0}, {up.r(0,4)}", "uw")
    g.ds(f"ds_write_b128 {t2}, {up.r(4,4)}", "uw")
    g(f"v_lshrrev_b32 {t0}, 3, v0\nv_and_b32 {t3}, 7, v0\nv_xor_b32 {t2}, {t0}, {t3}\nv_lshlrev_b32 {t2}, 4, {t2}")
    g(f"v_lshl_add_u32 {t2}, {t0}, 7, {t2}\nv_add_u32 {t2}, {sQ}, {t2}")
    g.wait(lg="uw")
    g.ds(f"ds_read_b128 {up.r(0,4)}, {t2}", "ur")
    g.ds(f"ds_read_b128 {up.r(4,4)}, {t2} offset:1024", "ur")
    vT4k = V.alloc(1)
    g(f"v_lshlrev_b32 {t3}, 4, {t3}\nv_lshl_add_u32 {vT4k}, {t0}, 12, {t3}")
    sTr = S.alloc(1)
    g(f"s_lshl_b32 {sT[0]}, {sJ}, 18\ns_lshl_b32 {sT[1]}, {sW}, 16\ns_add_u32 {sTr}, {sT[0]}, {sT[1]}\ns_lshl_b32 {sT[0]}, {sP}, 7\ns_add_u32 {sTr}, {sTr}, {sT[0]}")
    g(f"s_add_u32 {sT[0]}, {sTr}, {UBUF}\ns_add_u32 {sT[1]}, {sTr}, {UBUF + 32768}")
    gs = V.alloc(4)
    g(f"v_mov_b32 {gs[1]}, 0\nv_mov_b32 {gs[3]}, 0")
    for i in range(8):
        g(f"v_dot2c_f32_bf16 {gs[1]}, {qp[i]}, {gw[i]}")
    gw.free()
    g.wait(lg="ur")
    g.vm(f"buffer_store_dwordx4 {up.r(0,4)}, {vT4k}, {R['ws']}, {sT[0]} offen sc1", "ust")
    g.vm(f"buffer_store_dwordx4 {up.r(4,4)}, {vT4k}, {R['ws']}, {sT[1]} offen sc1", "ust")
    run(stage_until(2))
    g.wait(vm="ust")
    g(f"s_lshl_b32 {sT[0]}, {sJ}, 9\ns_lshl_b32 {sT[1]}, {sW}, 7\ns_add_u32 {sT[0]}, {sT[0]}, {sT[1]}\ns_lshl_b32 {sT[1]}, {sP}, 2")
    g(f"s_add_u32 {sT[0]}, {sT[0]}, {sT[1]}\ns_add_u32 {sT[0]}, {sT[0]}, {F_U}")
    flag_set(sT[0])
    up.free()
    g.wait(vm="w2")
    g("s_barrier")
    stamp("u_out")

    g(f"v_mov_b32 {tmp[0]}, 0\nv_mov_b32 {tmp[1]}, 0")
    g(f"s_lshr_b32 {sT[0]}, {sW}, 1\ns_mul_i32 {sT[1]}, {sT[0]}, {HP}\ns_and_b32 {sT[2]}, {sW}, 1")
    sCH, sCU = S.alloc(1), S.alloc(1)
    g(f"s_add_u32 {sCH}, {sT[1]}, {C_H}\ns_mul_i32 {sCU}, {sT[0]}, {4*UP}\ns_add_u32 {sCU}, {sCU}, {C_U}")
    g(f"v_mul_u32_u24 {t0}, {UP}, {vKq}\nv_lshl_add_u32 {t0}, {vC}, 3, {t0}\nv_add_u32 {t0}, {sCU}, {t0}")
    g.ds(f"ds_write_b64 {t0}, {tmp.r(0,2)}")
    g(f"v_add_u32 {t0}, {sCH}, {vC8}")
    g.ds(f"ds_write_b64 {t0}, {tmp.r(0,2)}")
    g(f"s_lshl_b32 {sT[2]}, {sT[2]}, 11\ns_lshl_b32 {sT[1]}, {sCh}, 12\ns_add_u32 {sT[1]}, {sT[1]}, {sT[2]}")
    g(f"s_add_u32 {sT[2]}, {sT[2]}, {sCH}\ns_add_u32 m0, {sT[2]}, 32\ns_nop 0")
    for i in range(2):
        g.vm(f"buffer_load_dwordx4 {vL16}, {R['ssm_k']}, {sT[1]} offen offset:{i*1024} {o.nt_once} lds", "cin")

    g(f"v_lshl_add_u32 {t0}, {vKq}, 2, {vR4}\nv_bfe_u32 {t2}, {t0}, 1, 2\nv_lshl_add_u32 {t0}, {t0}, 7, {vC8}")
    g(f"v_lshl_add_u32 {wa[0]}, {t2}, 5, {t0}")
    for T in range(1, 4):
        g(f"v_xor_b32 {wa[T]}, {32*T}, {wa[0]}")
    poll(R["ws"], vL4, sFg, 8)
    stamp("h_flag")
    g(f"s_lshl_b32 {sT[1]}, {sJ}, 11" if o.rot else f"s_mov_b32 {sT[1]}, 0")
    g(f"s_add_u32 {sT[1]}, {sT[1]}, {sHo}")
    for ks in range(16):
        if ks & 1 == 0:
            g(f"s_xor_b32 {sT[0]}, {sT[1]}, {ks << 10}")
        g.vm(f"buffer_load_dwordx4 {xf.r(4*ks,4)}, {vL16}, {R['ws']}, {sT[0]} offen offset:{(ks & 1)*1024} sc1", f"h{ks}")
    bgit = stage_until(5)
    gemm16(xf, 2048, pre=lambda ks: g.wait(vm=f"h{ks}"), bg=lambda ks: step(bgit, 2) if ks >= 8 else None)
    stamp("g2_mfma")
    wa.free(); wf.free()
    x1p = V.alloc(8, align=4)
    for T in range(0, 4, 2):
        for i in range(4):
            g(f"v_dot2_f32_bf16 {tmp[2*i]}, {qp[2*T+i]}, {sLo1}, {acc[4*T+2*i]}")
            g(f"v_dot2_f32_bf16 {tmp[2*i+1]}, {qp[2*T+i]}, {sHi1}, {acc[4*T+2*i+1]}")
        for i in range(4):
            g(f"v_cvt_pk_bf16_f32 {x1p[2*T+i]}, {tmp[2*i]}, {tmp[2*i+1]}")
    acc.free()
    g(f"v_lshlrev_b32 {t0}, 9, {vKq}\nv_lshl_add_u32 {t0}, {vC}, 4, {t0}")
    sX1 = S.alloc(1)
    g(f"s_lshl_b32 {sX1}, {sP}, 16\ns_add_u32 {sX1}, {sX1}, {X1BUF}")
    g(f"s_lshr_b32 {sT[0]}, {sW}, 1\ns_lshl_b32 {sT[0]}, {sT[0]}, 15\ns_and_b32 {sT[1]}, {sW}, 1\ns_lshl_b32 {sT[1]}, {sT[1]}, 8")
    g(f"s_add_u32 {sT[0]}, {sT[0]}, {sT[1]}\ns_lshl_b32 {sT[1]}, {sJ}, 12\ns_add_u32 {sT[0]}, {sT[0]}, {sT[1]}\ns_add_u32 {sT[0]}, {sT[0]}, {sX1}")
    for gg in range(2):
        g.vm(f"buffer_store_dwordx4 {x1p.r(4*gg,4)}, {t0}, {R['ws']}, {sT[0]} offen offset:{gg*2048} sc1", "xst")
    g(f"v_mov_b32 {gs[0]}, 0\nv_mov_b32 {gs[2]}, 0")
    for i in range(8):
        g(f"v_dot2c_f32_bf16 {gs[0]}, {sOnes}, {x1p[i]}")
        g(f"v_dot2c_f32_bf16 {gs[2]}, {x1p[i]}, {x1p[i]}")
    g(f"v_permlane32_swap_b32 {gs[0]}, {gs[2]}\nv_permlane32_swap_b32 {gs[1]}, {gs[3]}")
    g(f"v_add_f32 {gs[0]}, {gs[0]}, {gs[2]}\nv_add_f32 {gs[1]}, {gs[1]}, {gs[3]}")
    g(f"v_permlane16_swap_b32 {gs[0]}, {gs[1]}\nv_add_f32 {gs[0]}, {gs[0]}, {gs[1]}")
    sSto = S.alloc(1)
    g(f"s_lshl_b32 {sSto}, {sP}, 13\ns_add_u32 {sSto}, {sSto}, {STATS}")
    g(f"s_lshl_b32 {sT[0]}, {sJ}, 10\ns_lshl_b32 {sT[1]}, {sW}, 8\ns_add_u32 {sT[0]}, {sT[0]}, {sT[1]}\ns_add_u32 {sT[0]}, {sT[0]}, {sSto}")
    g.vm(f"buffer_store_dword {gs[0]}, {vL4}, {R['ws']}, {sT[0]} offen sc1", "xst")
    g(f"s_lshl_b32 {sT[2]}, {sJ}, 9\ns_lshr_b32 {sT[1]}, {sP}, 3\ns_lshl_b32 {sT[1]}, {sT[1]}, 7\ns_add_u32 {sT[2]}, {sT[2]}, {sT[1]}\ns_add_u32 {sT[2]}, {sT[2]}, {F_U}")
    poll(R["ws"], vL4, sT[2], 32)
    g(f"s_lshl_b32 {sT[0]}, {sJ}, 2\ns_add_u32 {sT[0]}, {sT[0]}, {sFg}\ns_add_u32 {sT[0]}, {sT[0]}, {F_X1}")
    flag_set(sT[0])
    gs.free()
    stamp("x1_out")

    g(f"v_lshrrev_b32 {t0}, 1, v0\nv_and_b32 {t2}, 1, v0\nv_lshlrev_b32 {t2}, 4, {t2}\nv_lshl_add_u32 {t0}, {t0}, 7, {t2}")
    g(f"s_and_b32 {sT[2]}, {sW}, 1\ns_lshl_b32 {sT[0]}, {sCh}, 12\ns_lshl_b32 {sT[1]}, {sT[2]}, 6\ns_add_u32 {sT[0]}, {sT[0]}, {sT[1]}\ns_add_u32 {sT[0]}, {sT[0]}, {UBUF}")
    g(f"s_mul_i32 {sT[2]}, {sT[2]}, {2*UP}\ns_add_u32 {sT[2]}, {sT[2]}, {sCU}\ns_add_u32 m0, {sT[2]}, 128\ns_add_u32 {sT[1]}, {sT[0]}, 32")
    g.vm(f"buffer_load_dwordx4 {t0}, {R['ws']}, {sT[0]} offen sc1 lds", "cin")
    g(f"s_add_u32 m0, {sT[2]}, {128 + UP}\ns_nop 0")
    g.vm(f"buffer_load_dwordx4 {t0}, {R['ws']}, {sT[1]} offen sc1 lds", "cin")
    aA, aB, aN, aU, aY = (V.alloc(1) for _ in range(5))
    g(f"v_lshlrev_b32 {t0}, 6, {vKq}\nv_add_u32 {t0}, {t0}, {vC8}\nv_lshlrev_b32 {t2}, 3, {vR4}\nv_sub_u32 {t0}, {t0}, {t2}")
    g(f"s_add_u32 {sT[0]}, {sCH}, 32\nv_add_u32 {aA}, {sT[0]}, {t0}")
    g(f"v_lshlrev_b32 {t0}, 3, {vC}\nv_lshlrev_b32 {t2}, 4, {vKq}\nv_sub_u32 {t0}, {t0}, {t2}\ns_add_u32 {sT[0]}, {sCU}, 56\nv_add_u32 {aB}, {sT[0]}, {t0}")
    g(f"v_lshl_add_u32 {t0}, {vC}, 2, {vKq}\ns_lshr_b32 {sT[0]}, {sW}, 1\ns_mul_i32 {sT[0]}, {sT[0]}, {NP}\ns_add_u32 {sT[0]}, {sT[0]}, {A_N}")
    g(f"v_lshl_add_u32 {aN}, {t0}, 4, {sT[0]}\ns_add_u32 {sT[1]}, {sCU}, 128\nv_lshl_add_u32 {aU}, {t0}, 1, {sT[1]}")
    g(f"v_lshrrev_b32 {t0}, 2, {vC}\nv_lshlrev_b32 {t0}, 7, {t0}\nv_lshl_add_u32 {t0}, {vKq}, 5, {t0}\nv_add_u32 {aY}, {t0}, {vC8}")
    g.wait(vm="cin", lg="*")
    g("s_barrier")
    stamp("u_in")
    cA = xf
    cB = V.alloc(16, align=4)
    w4v = V.alloc(96, at=160)
    pq = w4v
    sY = S.alloc(1)
    g(f"s_lshl_b32 {sY}, {sCh}, 12\ns_add_u32 {sY}, {sY}, {YBUF}")
    g(f"v_mov_b32 {tmp[0]}, 0\nv_mov_b32 {tmp[1]}, 0\nv_mov_b32 {tmp[2]}, 0\nv_mov_b32 {tmp[3]}, 0\nv_mov_b32 {t0}, {sT[0]}")
    g.ds(f"ds_write_b128 {t0}, {tmp.r(0,4)}")
    lodd, ljoin = g.label("odd"), g.label("join")
    g(f"s_bitcmp1_b32 {sW}, 0\ns_cbranch_scc1 {lodd}")
    saved = (list(g.vmq), list(g.lgq), Stage.issued, Stage.read)
    final = None
    for par in range(2):
        if par:
            g(f"{lodd}:")
            g.vmq, g.lgq, Stage.issued, Stage.read = list(saved[0]), list(saved[1]), saved[2], saved[3]
        tiles = TILES[par]
        top = max(tiles)
        for m in range(2 * top + 1, -1, -1):
            for e2 in range(2):
                g.ds(f"ds_read_b64_tr_b16 {cA.r(4*m + 2*e2, 2)}, {aA} offset:{256*m + 32 - 32*e2}", f"A{m}")
        for ti in range(len(tiles)):
            for r in (4, 5, 10, 11):
                g(f"v_mov_b32 {pq[12*ti + r]}, 0")
        seq = [(d, mp) for d in (0, 1, 2, 3) for mp in range(-1, 2 * top + 1)]

        def bread(i):
            d, mp = seq[i]
            for e2 in range(2):
                g.ds(f"ds_read_b64 {cB.r(4*(i & 3) + 2*e2, 2)}, {aB} offset:{d*UP + 64*(mp+1) + 8*e2}", f"B{i}")
        for i in range(2):
            bread(i)
        bgit = stage_until(12)
        started = set()
        cnt = 0
        for i, (d, mp) in enumerate(seq):
            if i + 2 < len(seq):
                bread(i + 2)
            g.wait(lg=f"B{i}")
            for ti, jb in enumerate(tiles):
                m = 2 * jb - mp
                if m < 0:
                    continue
                c = pq.r(12*ti + 6*(d & 1) + (d & 2), 4)
                first = d < 2 and (d, ti) not in started
                started.add((d, ti))
                g(f"v_mfma_f32_16x16x32_bf16 {c}, {cA.r(4*m,4)}, {cB.r(4*(i & 3),4)}, {0 if first else c}")
                cnt += 1
                if cnt % 2 == 0:
                    step(bgit)
        run(bgit)
        for ti, jb in enumerate(tiles):
            b = 12 * ti
            g(f"v_add_f32 {pq[b+1]}, {pq[b+1]}, {pq[b+6]}\nv_add_f32 {pq[b+2]}, {pq[b+2]}, {pq[b+7]}\nv_add_f32 {pq[b+3]}, {pq[b+3]}, {pq[b+8]}")
            g(f"v_add_f32 {pq[b+4]}, {pq[b+4]}, {pq[b+9]}\nv_add_f32 {pq[b+5]}, {pq[b+5]}, {pq[b+10]}\nv_mov_b32 {pq[b+6]}, {pq[b+11]}")
            g.ds(f"ds_write_b128 {aN}, {pq.r(b+4,4)} offset:{1024*jb + 16}")
            for m in range(4):
                g.ds(f"ds_read_u16_d16_hi {pq[b+8+m]}, {aU} offset:{m*UP + 128*jb}")
        g.wait(lg="*")
        g("s_barrier")
        for ti, jb in enumerate(tiles):
            b = 12 * ti
            g.ds(f"ds_read_b128 {pq.r(b+4,4)}, {aN} offset:{1024*jb}", f"N{ti}")
            for m in range(4):
                g(f"v_fmac_f32 {pq[b+m]}, {vD}, {pq[b+8+m]}")
        for ti, jb in enumerate(tiles):
            b = 12 * ti
            g.wait(lg=f"N{ti}")
            for m in range(3):
                g(f"v_add_f32 {pq[b+m]}, {pq[b+m]}, {pq[b+4+m]}")
            g(f"v_cvt_pk_bf16_f32 {pq[b]}, {pq[b]}, {pq[b+1]}\nv_cvt_pk_bf16_f32 {pq[b+1]}, {pq[b+2]}, {pq[b+3]}")
            g.vm(f"buffer_store_dwordx2 {pq.r(b,2)}, {aY}, {R['ws']}, {sY} offen offset:{512*jb} sc1", "yst")
        state = (Stage.issued, Stage.read)
        assert final is None or final == state
        final = state
        if not par:
            g(f"s_branch {ljoin}")
    g(f"{ljoin}:")
    g.vmq = g.vmq[:-2]
    for r in (aA, aB, aN, aU, aY, cB, vD):
        r.free()
    stamp("conv")

    sFp = S.alloc(1)
    g(f"s_lshl_b32 {sFp}, {sP}, 7\ns_add_u32 {sT[2]}, {sFp}, {F_X1}")
    poll(R["ws"], vL4, sT[2], 32)
    g(f"s_lshl_b32 {sT[0]}, {sJ}, 9\ns_lshl_b32 {sT[1]}, {sP}, 4\ns_add_u32 {sT[0]}, {sT[0]}, {sT[1]}\ns_lshl_b32 {sT[1]}, {sW}, 2")
    g(f"s_add_u32 {sT[0]}, {sT[0]}, {sT[1]}\ns_add_u32 {sT[0]}, {sT[0]}, {F_Y}")
    flag_set(sT[0])
    stamp("x1_flag")
    sv = Reg(V, w4v.base + 64, 16)
    nb = w4v
    g(f"v_and_b32 {t0}, 1, {vKq}\nv_lshlrev_b32 {t0}, 8, {t0}\nv_lshrrev_b32 {t2}, 5, v0\nv_lshl_add_u32 {t0}, {t2}, 7, {t0}\nv_lshl_add_u32 {t0}, {vC}, 2, {t0}")
    g(f"s_add_u32 {sT[3]}, {sSto}, 4096")
    g(f"s_lshl_b32 {sT[2]}, {sW}, 2\ns_xor_b32 {sT[2]}, {sT[2]}, {sRot3}\ns_lshl_b32 {sT[2]}, {sT[2]}, 11\ns_add_u32 {sT[2]}, {sT[2]}, {sX1}")
    for th in range(2):
        for jj in range(8):
            g.vm(f"buffer_load_dword {sv[8*th+jj]}, {t0}, {R['ws']}, {(sSto, sT[3])[jj >> 2]} offen offset:{(jj & 3)*1024 + th*512} sc1", f"s{th}")
        for i in range(8):
            if i & 1 == 0:
                g(f"s_xor_b32 {sT[0]}, {sT[2]}, {(i >> 1) << 11 | th << 15}")
            g.vm(f"buffer_load_dwordx4 {nb.r(32*th + 4*i, 4)}, {vL16}, {R['ws']}, {sT[0]} offen offset:{(i & 1)*1024} sc1", f"n{th}_{i}")
    rs3 = V.alloc(4)
    vXw = V.alloc(1)
    g(f"s_lshl_b32 {sT[0]}, {sW}, 13\nv_add_u32 {vXw}, {sT[0]}, {vL16}")

    def norm(th):
        g.wait(vm=f"s{th}")
        b = 8 * th
        for w in (4, 2, 1):
            for i in range(w):
                g(f"v_add_f32 {sv[b+i]}, {sv[b+i]}, {sv[b+i+w]}")
        g(f"v_mov_b32 {sv[b+1]}, {sv[b]}\nv_permlane32_swap_b32 {sv[b]}, {sv[b+1]}")
        yield
        ln_stats(sv[b], sv[b+1], sv[b+2], rs3[2*th])
        yield
        for i in range(8):
            g.wait(vm=f"n{th}_{i}")
            regs = [nb[32*th + 4*i + q] for q in range(4)]
            yield from center(regs, regs, sv[b+2], tmp)
            g.ds(f"ds_write_b128 {vXw}, {nb.r(32*th + 4*i, 4)} offset:{LA + th*32768 + i*1024}", f"xw{th}")
            yield

    run(norm(0))
    run(stage_until(16, ahead=False))
    g.wait(lg="*")
    g("s_barrier")
    stamp("xn0")
    accs = [Reg(V, xf.base, 32), Reg(V, xf.base + 32, 32)]
    tf = V.alloc(16, align=4)
    hq = V.alloc(16, align=4)
    sH2 = S.alloc(1)
    sHst = S.alloc(1)
    g(f"s_mul_i32 {sH2}, {sP}, 229376\ns_add_u32 {sH2}, {sH2}, {H2BUF}")
    g(f"s_lshl_b32 {sHst}, {sL}, 12\ns_add_u32 {sHst}, {sHst}, {sH2}\ns_add_u32 {sHst}, {sHst}, {sIdle}")
    sFl = S.alloc(1)
    g(f"s_lshr_b32 {sT[0]}, {sJ}, 1\ns_add_u32 {sT[0]}, {sT[0]}, 28\ns_cmp_eq_u32 {sIdle}, 0\ns_cselect_b32 {sFl}, {sL}, {sT[0]}")
    g(f"s_lshl_b32 {sFl}, {sFl}, 2\ns_add_u32 {sFl}, {sFl}, {sFp}")

    def h_out(th):
        yield from gelu(accs[th], 32, rs3.r(2*th, 2), hq, tmp)
        g(f"s_add_u32 {sT[0]}, {sHst}, {th*112*1024}")
        for f in range(4):
            g.vm(f"buffer_store_dwordx4 {hq.r(4*f,4)}, {vL16}, {R['ws']}, {sT[0]} offen offset:{f*1024} sc1", f"Hst{th}")
            yield

    def g3_pass(th, bgs):
        def tread(ks):
            g.ds(f"ds_read_b128 {tf.r(4*(ks & 3), 4)}, {vL16} offset:{LA + th*32768 + ks*1024}", f"t{ks}")
        for ks in range(2):
            tread(ks)
        for ks in range(32):
            if ks + 2 < 32:
                tread(ks + 2)
            g.wait(lg=f"t{ks}")
            for ft in range(2):
                c = accs[th].r(16*ft, 16)
                g(f"v_mfma_f32_32x32x16_bf16 {c}, {w3r.r(8*ks + 4*ft, 4)}, {tf.r(4*(ks & 3), 4)}, {c if ks else 0}")
                bgs(2*ks + ft)

    n1 = norm(1)
    st0 = stage_until(16, max_issue=20)

    def bg0(i):
        step(n1)
        if i >= 20 and i % 2 == 0:
            step(st0)
    g3_pass(0, bg0)
    run(n1)
    run(st0)
    g.wait(lg="xw1")
    g("s_barrier")
    stamp("g3a")
    ho = h_out(0)
    st1 = stage_until(22, max_issue=26)

    def bg1(i):
        if i >= 1:
            step(ho)
        step(st1)
    g3_pass(1, bg1)
    run(ho)
    g.wait(vm="Hst0")
    g(f"s_add_u32 {sT[0]}, {sFl}, {F_HA}")
    flag_set(sT[0])
    run(st1)
    stamp("g3b")
    run(h_out(1))
    run(stage_until(26))
    g.wait(vm="Hst1")
    g(f"s_add_u32 {sT[0]}, {sFl}, {F_HB}")
    flag_set(sT[0])
    stamp("H_out")
    tf.free(); hq.free(); rs3.free(); vXw.free()
    sv = V.alloc(16)

    g(f"s_lshr_b32 {sT[0]}, {sP}, 2\ns_mov_b32 {sT[1]}, 0x3b\ns_lshr_b32 {sT[1]}, {sT[1]}, {sT[0]}\ns_and_b32 {sT[1]}, {sT[1]}, 1\ns_lshl_b32 {sT[1]}, {sT[1]}, 2")
    g(f"s_lshl_b32 {sT[0]}, {sJ}, 9\ns_add_u32 {sT[1]}, {sT[1]}, {sT[0]}\ns_lshl_b32 {sT[0]}, {sW}, 7\ns_add_u32 {sT[1]}, {sT[1]}, {sT[0]}\ns_add_u32 {sT[2]}, {sT[1]}, {F_Y}")
    g(f"v_lshlrev_b32 {t0}, 3, v0")
    poll(R["ws"], t0, sT[2], 16)
    g(f"s_add_u32 {sT[0]}, {sTr}, {YBUF}\ns_add_u32 {sT[1]}, {sTr}, {YBUF + 32768}\ns_lshl_b32 {sT[2]}, {sW}, 11\ns_add_u32 m0, {sT[2]}, {C_Y}\ns_nop 0")
    g.vm(f"buffer_load_dwordx4 {vT4k}, {R['ws']}, {sT[0]} offen sc1 lds", "y")
    g(f"s_add_u32 m0, {sT[2]}, {C_Y + 1024}\ns_nop 0")
    g.vm(f"buffer_load_dwordx4 {vT4k}, {R['ws']}, {sT[1]} offen sc1 lds", "y")
    g(f"v_lshlrev_b32 {t0}, 11, {vKq}\nv_lshl_add_u32 {t0}, {vC}, 2, {t0}\ns_lshl_b32 {sT[0]}, {sW}, 8\ns_add_u32 {sT[0]}, {sT[0]}, {sSto}")
    g.vm(f"buffer_load_dword {sv[0]}, {t0}, {R['ws']}, {sT[0]} offen offset:64 sc1", "y")
    g.vm(f"buffer_load_dword {sv[1]}, {t0}, {R['ws']}, {sT[0]} offen offset:1088 sc1", "y")
    run(stage_until(30))
    g.wait(vm="y")
    g("s_barrier")
    g(f"v_add_f32 {sv[0]}, {sv[0]}, {sv[1]}")
    for sw in ("32", "16"):
        g(f"v_mov_b32 {sv[1]}, {sv[0]}\nv_permlane{sw}_swap_b32 {sv[0]}, {sv[1]}\nv_add_f32 {sv[0]}, {sv[0]}, {sv[1]}")
    round_bf16(sv[0])
    g(f"v_mul_f32 {sv[0]}, {fbits(-LOG2E)}, {sv[0]}\nv_exp_f32 {sv[0]}, {sv[0]}\nv_add_f32 {sv[0]}, 1.0, {sv[0]}\nv_rcp_f32 {sv[0]}, {sv[0]}")
    round_bf16(sv[0])
    g(f"v_sub_f32 {sv[2]}, 1.0, {sv[0]}")
    round_bf16(sv[2])
    g(f"v_lshl_add_u32 {t0}, {vKq}, 2, {vR4}\nv_lshlrev_b32 {t0}, 7, {t0}\nv_lshl_add_u32 {t0}, {vC8}, 2, {t0}\ns_lshl_b32 {sT[0]}, {sW}, 3\ns_add_u32 {sT[0]}, {sT[0]}, {C_Y}\nv_add_u32 {t0}, {sT[0]}, {t0}")
    for T in range(4):
        g.ds(f"ds_read_b64_tr_b16 {sv.r(8 + 2*T, 2)}, {t0} offset:{T*2048}", f"y{T}")
    g(f"s_lshl_b32 {sT[0]}, {sW}, 6\ns_add_u32 {sT[0]}, {sT[0]}, {C_OMG}\nv_lshl_add_u32 {t2}, {vC}, 2, {sT[0]}")
    g.ds(f"ds_write_b32 {t2}, {sv[2]}")
    g(f"v_xor_b32 {t0}, {vKq}, {vC}\nv_lshlrev_b32 {t0}, 4, {t0}\nv_lshl_add_u32 {t0}, {vC}, 8, {t0}\ns_lshl_b32 {sT[0]}, {sW}, 12\ns_add_u32 {sT[0]}, {sT[0]}, {C_BASE}\nv_add_u32 {t0}, {sT[0]}, {t0}")
    bq = V.alloc(12, align=4)
    for T in range(4):
        g.wait(lg=f"y{T}")
        for i in range(2):
            for src, d in ((sv[8 + 2*T + i], 0), (qp[2*T + i], 4), (x1p[2*T + i], 8)):
                g(f"v_lshlrev_b32 {bq[d + 2*i]}, 16, {src}\nv_and_b32 {bq[d + 2*i + 1]}, {sMask}, {src}")
        for i in (0, 2):
            g(f"v_pk_mul_f32 {bq.r(i,2)}, {bq.r(i,2)}, {bq.r(4+i,2)}")
            g(f"v_pk_mul_f32 {bq.r(8+i,2)}, {bq.r(8+i,2)}, {sv.r(2,2)} op_sel_hi:[1,0]")
        for i in (0, 2):
            g(f"v_pk_fma_f32 {tmp.r(4*(T & 1) + i, 2)}, {bq.r(i,2)}, {sv.r(0,2)}, {bq.r(8+i,2)} op_sel_hi:[1,0,1]")
        g(f"v_xor_b32 {t2}, {64*T}, {t0}")
        g.ds(f"ds_write_b128 {t2}, {tmp.r(4*(T & 1), 4)}", f"bw{T}")
        if T >= 1:
            g.wait(lg=f"bw{T-1}")
    bq.free(); qp.free(); x1p.free()
    stamp("base")

    w3r.free()
    w4a = A.alloc(128, at=0)
    hb = A.alloc(128, at=128)
    sHl = S.alloc(1)
    g(f"s_mul_i32 {sHl}, {sW}, {28*1024}\ns_add_u32 {sHl}, {sHl}, {sH2}")
    vPw, vPr, vOut = V.alloc(1), V.alloc(1), V.alloc(1)
    g(f"v_and_b32 {t0}, 31, v0\nv_lshrrev_b32 {t2}, 5, v0\nv_xor_b32 {t2}, {t2}, {vC}\nv_lshlrev_b32 {t2}, 4, {t2}\nv_lshl_add_u32 {t0}, {t0}, 8, {t2}")
    g(f"s_lshl_b32 {sT[0]}, {sW}, 13\nv_add_u32 {vPw}, {sT[0]}, {t0}")
    g(f"v_lshrrev_b32 {t0}, 3, v0\ns_lshl_b32 {sT[0]}, {sW}, 3\nv_add_u32 {t0}, {sT[0]}, {t0}\nv_and_b32 {t2}, 7, v0")
    g(f"v_lshlrev_b32 {t3}, 4, {t2}\nv_lshl_add_u32 {vOut}, {t0}, 10, {t3}")
    g(f"v_lshlrev_b32 {t2}, 1, {t2}\nv_and_b32 {t3}, 15, {t0}\nv_xor_b32 {t2}, {t2}, {t3}\nv_lshlrev_b32 {t2}, 4, {t2}\nv_lshl_add_u32 {vPr}, {t0}, 8, {t2}")
    vOm = V.alloc(1)
    g(f"v_lshlrev_b32 {vOm}, 2, {t0}")

    class Fin:
        @staticmethod
        def r(i, n=1):
            return accs[0].r(i, n) if i < 32 else tmp.r(i - 32, n)

        def __getitem__(self, i):
            return self.r(i)
    fin = Fin()

    def h_loads(th):
        g(f"s_mul_i32 {sT[2]}, {sW}, 28\ns_add_u32 {sT[2]}, {sT[2]}, {sFp}\ns_add_u32 {sT[2]}, {sT[2]}, {(F_HA, F_HB)[th]}")
        poll(R["ws"], vL4, sT[2], 7)
        g(f"s_mov_b32 {sG4}, {sRot4}")
        for n in range(28):
            if n & 1 == 0:
                g(f"s_lshl_b32 {sSt}, {sG4}, 11\ns_add_u32 {sSt}, {sSt}, {sHl}")
                if th:
                    g(f"s_add_u32 {sSt}, {sSt}, {112*1024}")
                g(f"s_add_u32 {sG4}, {sG4}, 1\ns_cmp_eq_u32 {sG4}, 14\ns_cselect_b32 {sG4}, 0, {sG4}")
            g.vm(f"buffer_load_dwordx4 {hb.r(4*n,4)}, {vL16}, {R['ws']}, {sSt} offen offset:{(n & 1)*1024} sc1", f"H{n}")
            yield

    def partial_out(th):
        for ft in range(2):
            for q in range(4):
                g(f"v_xor_b32 {t2}, {128*ft + 32*q}, {vPw}")
                g.ds(f"ds_write_b128 {t2}, {accs[th].r(16*ft + 4*q, 4)} offset:{LA + th*32768}", f"pw{th}")
                yield

    def final(th):
        g(f"v_xor_b32 {t0}, 16, {vPr}")
        for x, ad in enumerate((vPr, t0)):
            for w in range(4):
                g.ds(f"ds_read_b128 {fin.r(16*x + 4*w, 4)}, {ad} offset:{LA + th*32768 + w*8192}", f"f{x}")
        yield
        g(f"v_add_u32 {t2}, {C_BASE + th*8192}, {vPr}\nv_add_u32 {t3}, {C_BASE + th*8192}, {t0}")
        g.ds(f"ds_read_b128 {fin.r(32,4)}, {t2}", "fb")
        g.ds(f"ds_read_b128 {fin.r(36,4)}, {t3}", "fb")
        g(f"v_add_u32 {t2}, {C_OMG + th*128}, {vOm}")
        g.ds(f"ds_read_b32 {sv[0]}, {t2}", "fb")
        yield
        for x in range(2):
            g.wait(lg=f"f{x}")
            b = 16 * x
            for i in (0, 2):
                g(f"v_pk_add_f32 {fin.r(b+i,2)}, {fin.r(b+i,2)}, {fin.r(b+4+i,2)}")
                g(f"v_pk_add_f32 {fin.r(b+8+i,2)}, {fin.r(b+8+i,2)}, {fin.r(b+12+i,2)}")
            for i in (0, 2):
                g(f"v_pk_add_f32 {fin.r(b+i,2)}, {fin.r(b+i,2)}, {fin.r(b+8+i,2)}")
            yield
        g.wait(lg="fb")
        for x in range(2):
            for i in (0, 2):
                g(f"v_pk_fma_f32 {fin.r(16*x+i,2)}, {fin.r(16*x+i,2)}, {sv.r(0,2)}, {fin.r(32+4*x+i,2)} op_sel_hi:[1,0,1]")
        for x in range(2):
            for i in range(2):
                g(f"v_cvt_pk_bf16_f32 {fin[4 + 2*x + i]}, {fin[16*x + 2*i]}, {fin[16*x + 2*i + 1]}")
        g(f"s_add_u32 {sT[0]}, {sPan}, {th*32768}")
        g.vm(f"buffer_store_dwordx4 {fin.r(4,4)}, {vOut}, {R['out']}, {sT[0]} offen {o.out_pol}", "out")
        yield

    g.wait(lg="*")
    for th in range(2):
        run(h_loads(th))
        stamp(f"H{th}_issued")
        bg = iter(())
        if th:
            bg = final(0)
        for n in range(28):
            g.wait(vm=f"H{n}")
            for ft in range(2):
                c = accs[th].r(16*ft, 16)
                g(f"v_mfma_f32_32x32x16_bf16 {c}, {w4home(n, ft)}, {hb.r(4*n,4)}, {c if n else 0}")
            if n >= 2:
                step(bg)
        run(bg)
        stamp(f"g4_{th}")
        run(partial_out(th))
        g.wait(lg="*")
        g("s_barrier")
    run(final(1))
    stamp("end")
    stamp("end_real", real=True)
    if o.stamps:
        g(f"s_lshl_b32 {sT[0]}, s2, 2\ns_add_u32 {sT[0]}, {sT[0]}, {sW}\ns_lshl_b32 {sT[0]}, {sT[0]}, 8\ns_add_u32 {sT[0]}, {sT[0]}, {STAMPS}")
        g(f"buffer_store_dword {vStamp}, {vL4}, {R['ws']}, {sT[0]} offen")
    if amp:
        g(f"s_cmp_lg_u32 s2, 77\ns_cbranch_scc1 L_end")
        g(f"s_sub_u32 {sAmp[2]}, {sAmp[2]}, {sAmp[0]}\ns_mul_i32 {sAmp[2]}, {sAmp[2]}, {amp[2]}\ns_min_u32 {sAmp[2]}, {sAmp[2]}, 100000")
        g(f"s_memrealtime {sAmp.r(0,2)}\ns_waitcnt lgkmcnt(0)")
        g(f"L_amp:\ns_memrealtime {sStamp}\ns_waitcnt lgkmcnt(0)\ns_sub_u32 {sStamp[0]}, {sStamp[0]}, {sAmp[0]}")
        g(f"s_cmp_lt_u32 {sStamp[0]}, {sAmp[2]}\ns_cbranch_scc1 L_amp")
    g("L_end:\ns_endpgm")
    body = g.text()
    info = dict(nops=g.nops, vhigh=V.high, shigh=S.high, stamps=stamp_names, lines=len(g.lines))
    return file_text([(KNAME, 256, 256, LDS_BYTES)], [(KNAME, body, 512, 256, 102)]), info


HEADER = open("gated_mix__ssm_conv_h3__mixer_s_mlp__prompt.s.ref").read().split("; Override launch")[0] \
    if __import__("os").path.exists("gated_mix__ssm_conv_h3__mixer_s_mlp__prompt.s.ref") else ""

if __name__ == "__main__":
    out = sys.argv[1] if len(sys.argv) > 1 else "k.s"
    for kv in sys.argv[2:]:
        k, v = kv.split("=")
        cur = getattr(Opt, k)
        setattr(Opt, k, type(cur)(int(v)) if isinstance(cur, (bool, int)) else v)
    text, info = build(Opt)
    open(out, "w").write(HEADER + text)
    print(info)
```

```python
import re

REG = re.compile(r"^(-?)(?:abs\()?([vas])(?:\[(\d+):(\d+)\]|(\d+))\)?$")
TRANS = ("v_exp_f32", "v_log_f32", "v_rcp_f32", "v_rsq_f32", "v_sqrt_f32", "v_sin_f32", "v_cos_f32")
NO_DST_S = ("s_cmp", "s_waitcnt", "s_barrier", "s_nop", "s_cbranch", "s_branch", "s_endpgm", "s_setprio",
            "s_sleep", "s_bitcmp")


def regs_of(tok):
    tok = tok.strip()
    if tok in ("vcc", "vcc_lo", "vcc_hi"):
        return {("x", "vcc")}
    if tok == "m0":
        return {("x", "m0")}
    if tok in ("exec", "exec_lo", "exec_hi"):
        return {("x", "exec")}
    m = REG.match(tok)
    if not m:
        return set()
    k = m.group(2)
    if m.group(3) is not None:
        return {(k, i) for i in range(int(m.group(3)), int(m.group(4)) + 1)}
    return {(k, int(m.group(5)))}


class Ins:
    __slots__ = ("text", "op", "kind", "wr", "rd", "A", "B", "C", "passes", "data", "states", "lds")

    def __init__(self, text):
        self.text = text
        body = text.split(";")[0].strip()
        self.wr, self.rd = set(), set()
        self.A = self.B = self.C = self.data = set()
        self.passes = 0
        self.states = 1
        self.lds = False
        if body.endswith(":") or body.startswith(".") or not body:
            self.op, self.kind, self.states = body, "label", 0
            return
        parts = body.split(None, 1)
        op = self.op = parts[0]
        rest = parts[1] if len(parts) > 1 else ""
        toks = [t.strip() for t in re.split(r",(?![^\[]*\])", rest)] if rest else []
        if toks:
            last = toks[-1].split()
            mods = last[1:]
            toks[-1] = last[0] if last else ""
        else:
            mods = []
        R = [regs_of(t) for t in toks]
        allr = lambda xs: set().union(*xs) if xs else set()
        if op.startswith("v_mfma"):
            self.kind = "mfma"
            self.wr, self.A, self.B, self.C = R[0], R[1], R[2], R[3]
            self.rd = self.A | self.B | self.C
            self.passes = 8 if "32x32x16" in op else 4
        elif op.startswith("v_"):
            self.kind = "valu"
            self.wr = set(R[0])
            self.rd = allr(R[1:])
            if op.startswith("v_permlane") and "swap" in op:
                self.wr = R[0] | R[1]
                self.rd = R[0] | R[1]
            elif op.startswith(("v_fmac", "v_dot2c")):
                self.rd |= R[0]
                self.C = set(R[0])
                self.A = allr(R[1:])
            elif op.startswith("v_dot2"):
                self.C = set(R[3])
                self.A = R[1] | R[2]
            elif op.endswith("_dpp"):
                self.rd |= R[0]
        elif op.startswith("ds_"):
            self.kind = "ds"
            if op.startswith(("ds_read", "ds_bpermute", "ds_permute", "ds_swizzle")):
                self.wr, self.rd = R[0], allr(R[1:])
            else:
                self.rd = allr(R)
        elif op.startswith(("buffer_", "global_")):
            self.kind = "vmem"
            self.lds = "lds" in mods or "_lds_" in op
            if "load" in op and not self.lds:
                self.wr, self.rd = R[0], allr(R[1:])
            else:
                self.rd = allr(R)
                if self.lds:
                    self.rd |= {("x", "m0")}
                if "store" in op and ("x3" in op or "x4" in op):
                    self.data = R[0] if op.startswith("buffer_") else R[1]
        elif op.startswith("s_"):
            self.kind = "salu"
            if op == "s_nop":
                self.states = int(toks[0], 0) + 1
            elif not op.startswith(NO_DST_S):
                self.wr, self.rd = R[0], allr(R[1:])
            else:
                self.rd = allr(R)
        else:
            raise ValueError("cannot parse: " + text)


def need(p, c):
    n = 0
    isv = lambda s: {r for r in s if r[0] in "va"}
    iss = lambda s: {r for r in s if r[0] == "s" or r == ("x", "vcc")}
    if p.kind == "valu":
        pw = isv(p.wr)
        if c.kind == "mfma" and pw & c.rd:
            n = max(n, 2)
        if c.kind == "valu":
            if p.op.startswith(TRANS) and not c.op.startswith(TRANS) and pw & c.rd:
                n = max(n, 1)
            if (c.op.startswith("v_permlane") or c.op.endswith("_dpp")) and pw & c.rd:
                n = max(n, 2)
            if c.op.startswith(("v_readfirstlane", "v_readlane")) and pw & c.rd:
                n = max(n, 1)
            if iss(p.wr) & c.rd:
                n = max(n, 4 if c.op.startswith(("v_readlane", "v_writelane")) else 2)
        if p.op.startswith("v_dot2") and pw & (c.rd | c.wr):
            same = c.kind == "valu" and c.op == p.op
            if not (same and not (pw & c.A)):
                n = max(n, 3)
        if c.kind == "vmem" and iss(p.wr) & c.rd:
            n = max(n, 5)
        if c.kind == "salu" and iss(p.wr) & c.rd and not c.op.startswith("s_cbranch"):
            n = max(n, 2)
    elif p.kind == "mfma":
        if c.kind == "mfma":
            if p.wr & (c.A | c.B):
                n = max(n, p.passes + 4)
            if p.wr & c.C and not (p.wr == c.C and p.passes == c.passes):
                n = max(n, p.passes + 2)
            if p.wr & c.wr and not (p.wr == c.wr and p.passes == c.passes):
                n = max(n, p.passes + 2)
        elif c.kind in ("valu", "ds", "vmem"):
            if p.wr & (c.rd | c.wr):
                n = max(n, p.passes + 4)
            if c.kind == "valu" and p.C & c.wr:
                n = max(n, p.passes - 1)
    elif p.kind == "vmem":
        if p.data & c.wr:
            n = max(n, 2)
    elif p.kind == "salu":
        if ("x", "m0") in p.wr and c.kind == "vmem" and c.lds:
            n = max(n, 1)
    return n


def pad_hazards(lines):
    out = []
    window = []
    nops = 0
    for text in lines:
        c = Ins(text)
        if c.kind == "label":
            out.append(text)
            continue
        dist, lack = 0, 0
        for p in reversed(window):
            lack = max(lack, need(p, c) - dist)
            dist += p.states
            if dist >= 20:
                break
        while lack > 0:
            k = min(lack, 16)
            nop = Ins(f"s_nop {k-1}")
            out.append("    " + nop.text)
            window.append(nop)
            lack -= k
            nops += 1
        out.append(text)
        window.append(c)
        if len(window) > 40:
            del window[:-24]
    return out, nops


class Pool:
    def __init__(self, kind, lo, hi):
        self.kind, self.free = kind, set(range(lo, hi))
        self.high = lo

    def alloc(self, n, align=None, at=None):
        if at is not None:
            assert all(at + i in self.free for i in range(n)), f"{self.kind}{at}+{n} busy"
            base = at
        else:
            align = align or (2 if n >= 2 else 1)
            base = next((b for b in sorted(self.free) if b % align == 0 and all(b + i in self.free for i in range(n))), None)
            assert base is not None, f"out of {self.kind} registers for {n}"
        for i in range(n):
            self.free.discard(base + i)
        self.high = max(self.high, base + n)
        return Reg(self, base, n)


class Reg:
    def __init__(self, pool, base, n):
        self.pool, self.base, self.n = pool, base, n

    def __str__(self):
        return self.r(0, self.n)

    def r(self, i, n=1):
        assert 0 <= i and i + n <= self.n, (i, n, self.n)
        k = self.pool.kind
        return f"{k}{self.base+i}" if n == 1 else f"{k}[{self.base+i}:{self.base+i+n-1}]"

    def __getitem__(self, i):
        return self.r(i)

    def free(self):
        for i in range(self.n):
            assert self.base + i not in self.pool.free
            self.pool.free.add(self.base + i)


class Gen:
    def __init__(self):
        self.lines = []
        self.vmq, self.lgq = [], []
        self.smem = False
        self.nlabel = 0
        self.V = Pool("v", 1, 256)
        self.A = Pool("a", 0, 256)
        self.S = Pool("s", 3, 102)
        self.clock = 0
        self.mfree = 0
        self.pump = None
        self.held = 0
        self.m0 = None

    def __call__(self, text):
        for ln in text.split("\n"):
            ln = ln.strip()
            if not ln:
                continue
            self.lines.append(ln if ln.endswith(":") else "    " + ln)
            op = ln.split()[0]
            if op.endswith(":"):
                continue
            if op.startswith("v_mfma"):
                start = max(self.clock, self.mfree)
                self.mfree = start + (32 if "32x32" in op else 16)
                self.clock = start + 8
            elif op.startswith(("v_pk_", "v_dot2")):
                self.clock = max(self.clock, self.mfree + 12 if self.mfree > self.clock - 12 else 0) + 4
            elif op.startswith(TRANS):
                self.clock += 8
            else:
                self.clock += 4
            if " m0," in ln and op.startswith("s_"):
                self.m0 = None
        if self.pump and not self.held:
            self.held += 1
            self.pump()
            self.held -= 1

    def hold(self):
        gen = self

        class H:
            def __enter__(self):
                gen.held += 1

            def __exit__(self, *a):
                gen.held -= 1
        return H()

    def slack(self):
        return self.mfree - self.clock

    def tick(self, n):
        self.clock += n

    def label(self, stem="L"):
        self.nlabel += 1
        return f"{stem}_{self.nlabel}"

    def vm(self, text, tag=None):
        self.vmq.append(tag)
        self(text)

    def ds(self, text, tag=None):
        self.lgq.append(tag)
        self(text)

    @staticmethod
    def _after(q, tag):
        idx = [i for i, t in enumerate(q) if t == tag]
        return None if not idx else len(q) - 1 - idx[-1]

    def wait(self, vm=None, lg=None):
        parts = []
        if vm is not None:
            n = 0 if vm == "*" else self._after(self.vmq, vm)
            if n is not None and (self.vmq or vm == "*"):
                n = min(n, 63)
                parts.append(f"vmcnt({n})")
                self.vmq = self.vmq[len(self.vmq) - n:] if n else []
        if lg is not None:
            n = 0 if lg == "*" else self._after(self.lgq, lg)
            if n is not None and self.smem:
                n = 0
            if n is not None and (self.lgq or self.smem or lg == "*"):
                n = min(n, 15)
                parts.append(f"lgkmcnt({n})")
                self.lgq = self.lgq[len(self.lgq) - n:] if n else []
                if n == 0:
                    self.smem = False
        if parts:
            self("s_waitcnt " + " ".join(parts))

    def settle(self):
        self("s_nop 15")

    def text(self):
        lines, nops = pad_hazards(self.lines)
        self.nops = nops
        return "\n".join(lines) + "\n"
```

```python
import os
import struct
import sys
from asmlib import ARG, NBYTES, KNAME, file_text
from kgen import Gen, Reg

F_H, F_X1, F_HA, F_HB = 0, 128, 256, 384
F_J, F_U, F_Y = 16384, 0, 512
FLAG_BYTES = 24576
STATS = 0x8000
HBUF, X1BUF, UBUF, YBUF, H2BUF = 0x100000, 0x300000, 0x500000, 0x700000, 0x900000
STAMPS = 0x2000000
OOB = 0x40000000

LA, LB, LC = 0, 65536, 131072
C_K, C_V, C_Q = LC, LC + 9216, LC + 17408
C_H, C_U = LC, LC + 8448
HP, UP = 4224, 1152
C_Y, C_BASE, C_OMG = LC, LC + 8192, LC + 24576
A_N = LA + 32768
NP = 8448
LDS_BYTES = 163840

GELU_C0 = -2.302208198144325
GELU_C1 = GELU_C0 * 0.044715
LOG2E = 1.4426950408889634

TILES = ([7, 6, 2], [5, 4, 3, 1, 0])


def fbits(x):
    return "0x%08x" % struct.unpack("<I", struct.pack("<f", x))[0]


class Opt:
    stamps = False
    nt_once = "nt"
    out_pol = "sc1"
    code_pf = True
    code_bytes = 40960
    amp = ""
    period = 90
    lag = 1000
    l2pf = True
    gap1_groups = 5
    conv_groups = 13
    xflag_at = 40
    nt_x = ""


def build(o=Opt):
    g = Gen()
    V, A, S = g.V, g.A, g.S
    names = ["q", "w1", "ws", "dbg", "shift_k", "ssm_D", "gate_w", "k", "v", "w2", "w3", "w4", "ssm_k", "out"]
    R = {n: S.alloc(4, align=4) for n in names}
    sW, sJ, sP, sPP, sX = (S.alloc(1) for _ in range(5))
    sT = S.alloc(4, align=2)
    sOnes, sLo1, sHi1, sMask, sTmo = (S.alloc(1) for _ in range(5))
    sStamp = S.alloc(2, align=2)
    vStamp = V.alloc(1)
    stamp_names = []
    amp = o.amp.split(",") if o.amp else None
    sAmp = S.alloc(4, align=2) if amp else None
    tail = []

    def stamp(name, real=False):
        with g.hold():
            if amp and name in amp[:2]:
                g(f"s_memrealtime {sAmp.r(2*amp.index(name), 2)}")
                g.smem = True
                g.wait(lg="*")
            if o.stamps:
                g(f"s_mem{'real' if real else ''}time {sStamp}")
                g.smem = True
                g.wait(lg="*")
                g(f"v_writelane_b32 {vStamp}, {sStamp[0]}, {len(stamp_names)}")
                stamp_names.append(name)

    def flag_set(soff, off):
        with g.hold():
            g("s_mov_b64 exec, 1")
            g.vm(f"buffer_store_dword {vOne}, off, {R['ws']}, {soff} offset:{off} sc1", "flag")
            g("s_mov_b64 exec, -1")

    class Poll:
        def __init__(self, srd, vaddr, soff, off):
            self.t = V.alloc(1)
            self.tag = g.label("poll")
            self.ld = f"buffer_load_dword {self.t}, {vaddr}, {srd}, {soff} offen offset:{off} sc1"

        def issue(self):
            g.vm(self.ld, self.tag)

        def check(self):
            n = self.tag
            with g.hold():
                g.wait(vm=n)
                g(f"v_cmp_eq_u32 vcc, 0, {self.t}\ns_cbranch_vccnz {n}_slow\n{n}_ok:")
            tail.append(f"{n}_slow:\ns_sub_u32 {sTmo}, {sTmo}, 1\ns_cbranch_scc1 {n}_out\n{self.ld}\ns_waitcnt vmcnt(0)\n"
                        f"v_cmp_eq_u32 vcc, 0, {self.t}\ns_cbranch_vccnz {n}_slow\ns_branch {n}_ok\n"
                        f"{n}_out:\ns_mov_b32 {sTmo}, 0\ns_branch {n}_ok")
            self.t.free()

    def round_bf16(r):
        g(f"v_cvt_pk_bf16_f32 {r}, {r}, {r}")
        yield
        g(f"v_and_b32 {r}, {sMask}, {r}")
        yield

    def ln_stats(s1, s2, negmu, gk):
        for t in (f"v_mul_f32 {negmu}, {fbits(-1.0/512)}, {s1}", f"v_mul_f32 {s2}, {fbits(1.0/512)}, {s2}",
                  f"v_fma_f32 {s2}, -{negmu}, {negmu}, {s2}", f"v_max_f32 {s2}, 0, {s2}"):
            g(t)
            yield
        yield from round_bf16(s2)
        g(f"v_add_f32 {s2}, {fbits(1e-5)}, {s2}")
        yield
        yield from round_bf16(s2)
        g(f"v_sqrt_f32 {gk[2]}, {s2}")
        yield
        yield from round_bf16(negmu)
        yield from round_bf16(gk[2])
        g(f"v_rcp_f32 {s2}, {gk[2]}\ns_nop 0")
        yield
        for t in (f"v_mul_f32 {gk[1]}, {fbits(GELU_C0)}, {s2}", f"v_mul_f32 {gk[0]}, {s2}, {s2}",
                  f"v_mul_f32 {gk[0]}, {gk[0]}, {s2}", f"v_mul_f32 {gk[0]}, {fbits(GELU_C1)}, {gk[0]}"):
            g(t)
            yield

    def center_dot(regs, negmu, tmp):
        for b in range(0, len(regs), 4):
            for i in range(4):
                g(f"v_dot2_f32_bf16 {tmp[2*i]}, {regs[b+i]}, {sLo1}, {negmu}")
                g(f"v_dot2_f32_bf16 {tmp[2*i+1]}, {regs[b+i]}, {sHi1}, {negmu}")
            for i in range(4):
                g(f"v_cvt_pk_bf16_f32 {regs[b+i]}, {tmp[2*i]}, {tmp[2*i+1]}")
            yield

    def center_plain(regs, negmu, tmp):
        for i, r in enumerate(regs):
            a, b = tmp[2*(i & 1)], tmp[2*(i & 1) + 1]
            for t in (f"v_lshlrev_b32 {a}, 16, {r}", f"v_and_b32 {b}, {sMask}, {r}", f"v_add_f32 {a}, {a}, {negmu}",
                      f"v_add_f32 {b}, {b}, {negmu}", f"v_cvt_pk_bf16_f32 {r}, {a}, {b}"):
                g(t)
                yield

    def gelu_pk(acc, n, gk, out, tmp, done=None):
        kk, ss = gk.r(0, 2), gk.r(2, 2)
        for b in range(0, n, 8):
            P = range(0, 8, 2)
            for i in P:
                g(f"v_pk_mul_f32 {tmp.r(i,2)}, {acc.r(b+i,2)}, {acc.r(b+i,2)}")
            for i in P:
                g(f"v_pk_fma_f32 {tmp.r(i,2)}, {tmp.r(i,2)}, {kk}, {kk} op_sel:[0,0,1] op_sel_hi:[1,0,1]")
            for i in P:
                g(f"v_pk_mul_f32 {tmp.r(i,2)}, {tmp.r(i,2)}, {acc.r(b+i,2)}")
            for i in range(8):
                g(f"v_exp_f32 {tmp[i]}, {tmp[i]}")
            for i in P:
                g(f"v_pk_fma_f32 {tmp.r(i,2)}, {tmp.r(i,2)}, {ss}, {ss} op_sel_hi:[1,0,0]")
            for i in range(8):
                g(f"v_rcp_f32 {tmp[i]}, {tmp[i]}")
            for i in P:
                g(f"v_pk_mul_f32 {tmp.r(i,2)}, {tmp.r(i,2)}, {acc.r(b+i,2)}")
            for i in P:
                g(f"v_cvt_pk_bf16_f32 {out[(b+i)//2]}, {tmp[i]}, {tmp[i+1]}")
            if done:
                done(b // 8)

    def gelu_plain(acc, n, gk, out, tmp, done=None):
        for b in range(0, n, 4):
            Q = range(4)
            ops = [f"v_mul_f32 {tmp[i]}, {acc[b+i]}, {acc[b+i]}" for i in Q]
            ops += [f"v_fma_f32 {tmp[i]}, {tmp[i]}, {gk[0]}, {gk[1]}" for i in Q]
            ops += [f"v_mul_f32 {tmp[i]}, {tmp[i]}, {acc[b+i]}" for i in Q]
            ops += [f"v_exp_f32 {tmp[i]}, {tmp[i]}" for i in Q]
            ops += [f"v_fma_f32 {tmp[i]}, {tmp[i]}, {gk[2]}, {gk[2]}" for i in Q]
            ops += [f"v_rcp_f32 {tmp[i]}, {tmp[i]}" for i in Q]
            ops += [f"v_mul_f32 {tmp[i]}, {tmp[i]}, {acc[b+i]}" for i in Q]
            ops += [f"v_cvt_pk_bf16_f32 {out[(b+i)//2]}, {tmp[i]}, {tmp[i+1]}" for i in (0, 2)]
            for t in ops:
                g(t)
                yield
            if done and b % 8 == 4:
                done(b // 8)
                yield

    def run(it):
        for _ in it:
            pass

    def chain(*its):
        for it in its:
            yield from it

    class Bg:
        ops, idx, cap = [], 0, 0
        next_dma = 0
        t_issue = {}

        @classmethod
        def ready(cls, force=False):
            if cls.idx >= min(cls.cap, len(cls.ops)):
                return False
            kind, key, _ = cls.ops[cls.idx]
            if force:
                return True
            if kind == "dma":
                return g.clock >= cls.next_dma
            if kind == "rd0":
                return g.clock >= cls.t_issue[key] + o.lag
            return True

        @classmethod
        def step(cls, force=False):
            if not cls.ready(force):
                return False
            kind, key, fn = cls.ops[cls.idx]
            cls.idx += 1
            with g.hold():
                fn()
            if kind == "dma":
                cls.next_dma = g.clock + o.period - 4
                cls.t_issue[key] = g.clock
            return True

        @classmethod
        def find(cls, kind, key):
            return max(i for i, (k, y, _) in enumerate(cls.ops) if y == key and k.startswith(kind)) + 1

        @classmethod
        def flush(cls, idx):
            cap, cls.cap = cls.cap, max(cls.cap, idx)
            while cls.idx < idx:
                cls.step(True)
            cls.cap = cap

        @classmethod
        def burst(cls, n):
            while n > 0 and cls.idx < min(cls.cap, len(cls.ops)):
                kind = cls.ops[cls.idx][0]
                if kind == "rd0" and not cls.ready():
                    break
                cls.step(True)
                n -= kind == "dma"

    def pump_on():
        g.pump = Bg.step

    def pump_off():
        g.pump = None

    def fill(fillers, quota=0):
        done = 0
        while True:
            room = g.slack() >= 4
            if room and Bg.step():
                continue
            if not (room or done < quota):
                return
            while fillers:
                if next(fillers[0], 1) is None:
                    break
                fillers.pop(0)
            if not fillers:
                return
            done += 1

    g("s_cmp_ge_u32 s2, 256\ns_cbranch_scc1 L_end")
    if amp and amp[0] == "entry":
        g(f"s_memrealtime {sAmp.r(0,2)}")
    for n in names:
        g(f"s_load_dwordx2 {R[n].r(0,2)}, s[0:1], {ARG[n]}")
    g.smem = True
    vOne, vL16, vL4, vDum = (V.alloc(1) for _ in range(4))
    t0, t2, t3 = (V.alloc(1) for _ in range(3))
    if o.code_pf:
        pc = V.alloc(2)
        per = o.code_bytes // 32
        assert per <= 2048
        g(f"s_getpc_b64 {sT.r(0,2)}")
        g(f"s_lshr_b32 {sT[2]}, s2, 3\ns_mul_i32 {sT[2]}, {sT[2]}, {per}")
        g(f"v_lshl_add_u32 {t0}, v0, 3, {sT[2]}")
        g(f"v_min_u32 {t0}, L_end-L_pc, {t0}")
        g("L_pc:")
        g(f"v_mov_b32 {pc[1]}, {sT[1]}")
        g(f"v_add_co_u32 {pc[0]}, vcc, {sT[0]}, {t0}")
        g(f"s_nop 1\nv_addc_co_u32 {pc[1]}, vcc, 0, {pc[1]}, vcc")
        g.vm(f"global_load_dword {vDum}, {pc}, off", "pf")
        pc.free()
    g(f"v_lshrrev_b32 {t0}, 6, v0\nv_and_b32 v0, 63, v0\nv_readfirstlane_b32 {sW}, {t0}")
    g(f"s_and_b32 {sX}, s2, 7\ns_lshr_b32 {sT[0]}, s2, 3\ns_and_b32 {sJ}, {sT[0]}, 7\ns_lshr_b32 {sPP}, {sT[0]}, 3")
    g(f"s_lshl_b32 {sP}, {sX}, 2\ns_add_u32 {sP}, {sP}, {sPP}")

    def srd_words(ns):
        for n in ns:
            g(f"s_mov_b32 {R[n][2]}, {NBYTES[n]}\ns_mov_b32 {R[n][3]}, 0x00020000")
    srd_words(["q", "w1", "ws", "dbg"])
    vC, vKq, vR8, vS8 = (V.alloc(1) for _ in range(4))
    g(f"v_and_b32 {vC}, 15, v0\nv_lshrrev_b32 {vKq}, 4, v0\nv_lshrrev_b32 {vR8}, 3, v0\nv_lshlrev_b32 {vR8}, 10, {vR8}\nv_and_b32 {vS8}, 7, v0")
    g(f"v_lshlrev_b32 {vL16}, 4, v0")
    sRow, sLdsW, sCol, sM, sOff = (S.alloc(1) for _ in range(5))
    g(f"s_lshr_b32 {sT[0]}, {sJ}, 2\ns_add_u32 {sT[0]}, {sT[0]}, 1\ns_sub_u32 {sT[1]}, 0, {sT[0]}")
    g(f"s_bitcmp1_b32 {sJ}, 1\ns_cselect_b32 {sT[0]}, {sT[0]}, {sT[1]}")
    g(f"s_lshl_b32 {sRow}, {sP}, 2\ns_add_u32 {sRow}, {sRow}, {sW}\ns_lshl_b32 {sRow}, {sRow}, 4")
    g(f"s_add_u32 {sT[0]}, {sRow}, {sT[0]}\ns_lshl_b32 {sT[0]}, {sT[0]}, 10")
    vQa, xd = V.alloc(2), V.alloc(2)
    g(f"v_xor_b32 {t0}, {vS8}, {vKq}\nv_lshl_add_u32 {vQa[0]}, {t0}, 4, {vR8}\nv_xor_b32 {vQa[1]}, 64, {vQa[0]}\nv_add_u32 {vQa[1]}, 7168, {vQa[1]}")
    g(f"v_add_u32 {xd[0]}, {sT[0]}, {vQa[0]}\nv_add_u32 {xd[1]}, {sT[0]}, {vQa[1]}")
    g(f"s_lshl_b32 {sLdsW}, {sW}, 14\ns_lshl_b32 {sCol}, {sJ}, 7")
    wd = V.alloc(4)
    g(f"v_and_b32 {t0}, 1, {vKq}\nv_lshlrev_b32 {t0}, 1, {t0}\nv_xor_b32 {t0}, {t0}, {vS8}\nv_lshl_add_u32 {wd[0]}, {t0}, 4, {vR8}")
    g(f"v_xor_b32 {t0}, 64, {wd[0]}\nv_add_u32 {wd[1]}, 7168, {t0}\nv_add_u32 {wd[2]}, 14336, {wd[0]}\nv_add_u32 {wd[3]}, 21504, {t0}")
    g(f"s_lshl_b32 {sT[0]}, {sW}, 2\ns_xor_b32 {sT[0]}, {sT[0]}, {sPP}\ns_lshl_b32 {sM}, {sT[0]}, 12")
    g(f"s_lshl_b32 {sT[1]}, {sJ}, 1\ns_xor_b32 {sT[0]}, {sT[0]}, {sT[1]}\ns_lshl_b32 {sOff}, {sT[0]}, 15\ns_add_u32 {sOff}, {sOff}, {sCol}")
    if o.stamps:
        g(f"v_mov_b32 {vStamp}, 0")
    g.wait(lg="*")
    stamp("start_real", real=True)
    stamp("start")

    def x_dma(n):
        with g.hold():
            g(f"s_add_u32 m0, {sLdsW}, {LA + n*2048}\ns_xor_b32 {sT[0]}, {sCol}, {n << 7}")
            for hh in range(2):
                g.vm(f"buffer_load_dwordx4 {xd[hh]}, {R['q']}, {sT[0]} offen offset:{hh*1024} {o.nt_x} lds", f"x{n}")

    def w_dma(name, base, n, i):
        key = (name, n)
        if g.m0 != key:
            g(f"s_xor_b32 m0, {sM}, {base + (n << 12)}\ns_xor_b32 {sWo}, {sOff}, {n << 15}")
            g.m0 = key
        g.vm(f"buffer_load_dwordx4 {wd[i]}, {R[name]}, {sWo} offen offset:{i*1024} lds", name)

    sWo = S.alloc(1)
    x_dma(0)
    for i in range(4):
        w_dma("w1", LB, 0, i)
    x_dma(1)
    lead1, lead2 = g.label("lead"), g.label("lead")
    z = V.alloc(4, align=4)
    g(f"v_mov_b32 {z[0]}, 0\nv_mov_b32 {z[1]}, 0\nv_mov_b32 {z[2]}, 0\nv_mov_b32 {z[3]}, 0\nv_mov_b32 {vOne}, 1")
    g(f"s_cmp_lg_u32 s2, 0\ns_cbranch_scc1 {lead1}")
    g(f"s_mul_i32 {sT[0]}, {sW}, {FLAG_BYTES//4}")
    for i in range(FLAG_BYTES // 4096):
        if i == 4:
            g(f"s_add_u32 {sT[0]}, {sT[0]}, 4096")
        g(f"buffer_store_dwordx4 {z}, {vL16}, {R['ws']}, {sT[0]} offen offset:{(i%4)*1024} sc1")
    g(f"{lead1}:")
    z.free()
    srd_words([n for n in names if n not in ("q", "w1", "ws", "dbg")])
    g(f"s_mov_b32 {sOnes}, 0x3f803f80\ns_mov_b32 {sLo1}, 0x00003f80\ns_mov_b32 {sHi1}, 0x3f800000")
    g(f"s_mov_b32 {sMask}, 0xffff0000\ns_mov_b32 {sTmo}, 0x40000")
    g(f"v_lshlrev_b32 {vL4}, 2, v0")
    shk, gw, vD = V.alloc(2), V.alloc(8), V.alloc(1)
    sCh = S.alloc(1)
    g(f"v_lshlrev_b32 {t0}, 3, {vC}\ns_lshl_b32 {sT[0]}, {sJ}, 9\ns_lshl_b32 {sT[1]}, {sW}, 7\ns_add_u32 {sT[0]}, {sT[0]}, {sT[1]}")
    g.vm(f"buffer_load_dwordx2 {shk}, {t0}, {R['shift_k']}, {sT[0]} offen", "par")
    g(f"v_lshlrev_b32 {t3}, 3, {vKq}")
    for T in range(4):
        g.vm(f"buffer_load_dwordx2 {gw.r(2*T,2)}, {t3}, {R['gate_w']}, {sCol} offen offset:{32*T}", "par")
    g(f"s_lshl_b32 {sCh}, {sJ}, 5\ns_add_u32 {sCh}, {sCh}, {sP}\ns_lshl_b32 {sCh}, {sCh}, 1\ns_lshr_b32 {sT[0]}, {sW}, 1\ns_add_u32 {sCh}, {sCh}, {sT[0]}")
    g(f"s_lshl_b32 {sT[0]}, {sCh}, 1\nv_mov_b32 {vD}, 0")
    g.vm(f"buffer_load_short_d16_hi {vD}, off, {R['ssm_D']}, {sT[0]}", "par")
    for n in ("shift_k", "ssm_D", "gate_w"):
        R[n].free()

    vR4, vC8 = V.alloc(1), V.alloc(1)
    g(f"v_bfe_u32 {vR4}, v0, 2, 2\nv_and_b32 {vC8}, 3, v0\nv_lshlrev_b32 {vC8}, 3, {vC8}")
    xa = V.alloc(2)
    g(f"v_lshrrev_b32 {t0}, 1, {vC}\nv_xor_b32 {t0}, {t0}, {vKq}\nv_lshlrev_b32 {t0}, 4, {t0}\nv_lshl_add_u32 {t0}, {vC}, 7, {t0}")
    g(f"v_add_u32 {xa[0]}, {sLdsW}, {t0}\nv_xor_b32 {xa[1]}, 64, {xa[0]}")
    wa = V.alloc(4)
    g(f"v_lshl_add_u32 {t0}, {vKq}, 3, {vR4}\nv_lshl_add_u32 {t0}, {t0}, 7, {vC8}")
    g(f"v_lshrrev_b32 {t2}, 1, {vR4}\nv_and_b32 {t3}, 1, {vKq}\nv_lshl_or_b32 {t2}, {t3}, 1, {t2}")
    g(f"v_lshl_add_u32 {t0}, {t2}, 5, {t0}\nv_add_u32 {wa[0]}, {LB}, {t0}")
    for T in range(1, 4):
        g(f"v_xor_b32 {wa[T]}, {32*T}, {wa[0]}")
    sPan, sHo, sFp, sFh, sFj = (S.alloc(1) for _ in range(5))
    g(f"s_lshl_b32 {sHo}, {sP}, 16\ns_add_u32 {sPan}, {sHo}, {sCol}")
    g(f"s_add_u32 {sHo}, {sHo}, {sLdsW}\ns_lshl_b32 {sT[0]}, {sJ}, 11\ns_add_u32 {sHo}, {sHo}, {sT[0]}\ns_add_u32 {sHo}, {sHo}, {HBUF}")
    g(f"s_lshl_b32 {sFp}, {sP}, 9\ns_lshl_b32 {sT[0]}, {sW}, 5\ns_add_u32 {sFh}, {sFp}, {sT[0]}")
    g(f"s_lshl_b32 {sFj}, {sJ}, 10\ns_add_u32 {sFj}, {sFj}, {F_J}")
    sL, sW3, sRot3, sW4, sIdle, sRing, sSt = (S.alloc(1) for _ in range(7))
    g(f"s_lshr_b32 {sT[0]}, {sJ}, 1\ns_mul_i32 {sL}, {sT[0]}, 7\ns_and_b32 {sT[1]}, {sJ}, 1\ns_lshl_b32 {sT[2]}, {sT[1]}, 2")
    g(f"s_add_u32 {sT[2]}, {sT[2]}, {sW}\ns_add_u32 {sL}, {sL}, {sT[2]}")
    g(f"s_cmp_eq_u32 {sT[2]}, 7\ns_cselect_b32 {sIdle}, {OOB}, 0")
    g(f"s_lshl_b32 {sW3}, {sL}, 7\ns_add_u32 {sW3}, {sW3}, {sIdle}\ns_lshl_b32 {sRot3}, {sX}, 1")
    g(f"s_mul_i32 {sW4}, {sW}, {448*1024}\ns_add_u32 {sW4}, {sW4}, {sCol}\ns_add_u32 {sRing}, {sLdsW}, {LB}")
    d3, ra = V.alloc(4), V.alloc(2)
    g(f"v_lshrrev_b32 {t0}, 3, v0\nv_and_b32 {t2}, 1, {vKq}\nv_lshlrev_b32 {t2}, 2, {t2}")
    g(f"v_xor_b32 {t3}, {t2}, {vS8}\nv_lshlrev_b32 {t3}, 4, {t3}")
    g(f"v_mul_u32_u24 {d3[0]}, 3584, {t0}\nv_add_u32 {d3[0]}, {d3[0]}, {t3}")
    for i in range(1, 4):
        g(f"v_add_u32 {d3[i]}, {i*(8*3584-1024)}, {d3[0]}")
    g(f"v_lshrrev_b32 {t0}, 5, v0\nv_lshl_add_u32 {t0}, {t0}, 2, {vR4}\nv_lshl_add_u32 {t0}, {t0}, 7, {vC8}")
    g(f"v_and_b32 {t2}, 1, {vKq}\nv_lshl_add_u32 {t0}, {t2}, 5, {t0}\nv_lshrrev_b32 {t2}, 1, {vR4}\nv_lshl_add_u32 {t0}, {t2}, 6, {t0}")
    g(f"v_add_u32 {ra[0]}, {sRing}, {t0}\nv_xor_b32 {ra[1]}, 64, {ra[0]}")
    x_dma(2)
    x_dma(3)
    stamp("setup")

    xf = V.alloc(64, align=4)
    st = V.alloc(4)
    for i in range(4):
        g(f"v_mov_b32 {st[i]}, 0")

    def stats(n):
        g.wait(lg=f"x{n}")
        for i in range(8):
            g(f"v_dot2c_f32_bf16 {st[i & 1]}, {sOnes}, {xf[8*n+i]}")
            g(f"v_dot2c_f32_bf16 {st[2 + (i & 1)]}, {xf[8*n+i]}, {xf[8*n+i]}")
    w1seq = [(n, i) for n in range(1, 4) for i in range(4)]
    for n in range(8):
        g.wait(vm=f"x{n}")
        for b in range(2):
            g.ds(f"ds_read_b128 {xf.r(8*n + 4*b, 4)}, {xa[b]} offset:{LA + n*2048}", f"x{n}")
        if n == 2:
            g(f"s_cmp_lg_u32 s2, 0\ns_cbranch_scc1 {lead2}")
            g(f"s_lshl_b32 {sT[0]}, {sW}, 2\ns_mov_b64 exec, 1")
            g(f"buffer_store_dword {vOne}, off, {R['dbg']}, {sT[0]} sc1\ns_mov_b64 exec, -1")
            g(f"{lead2}:")
        if n + 4 < 8:
            x_dma(n + 4)
        else:
            for _ in range(2):
                w_dma("w1", LB, *w1seq.pop(0))
        if n:
            stats(n - 1)
    stats(7)
    xa.free(); xd.free()
    stamp("x_in")
    g(f"v_add_f32 {st[0]}, {st[0]}, {st[1]}\nv_add_f32 {st[2]}, {st[2]}, {st[3]}")
    for sw in ("32", "16"):
        g(f"v_mov_b32 {st[1]}, {st[0]}\nv_mov_b32 {st[3]}, {st[2]}")
        g(f"v_permlane{sw}_swap_b32 {st[0]}, {st[1]}\nv_permlane{sw}_swap_b32 {st[2]}, {st[3]}")
        g(f"v_add_f32 {st[0]}, {st[0]}, {st[1]}\nv_add_f32 {st[2]}, {st[2]}, {st[3]}")
    while w1seq:
        w_dma("w1", LB, *w1seq.pop(0))
    R["w1"].free()
    gk1 = V.alloc(4)
    run(ln_stats(st[0], st[2], st[1], gk1))

    vW2 = V.alloc(1)
    sKV, sKV2, sC2 = S.alloc(1), S.alloc(1), S.alloc(1)
    g(f"v_lshlrev_b32 {t0}, 1, {vKq}\nv_xor_b32 {t0}, {t0}, {vS8}\nv_lshl_add_u32 {vW2}, {t0}, 4, {vR8}")
    g(f"s_add_u32 {sKV}, {sLdsW}, {sPan}\ns_lshl_b32 {sC2}, {sW}, 11\ns_add_u32 {sKV2}, {sKV}, 7168")
    kskip = g.label("kskip")
    g(f"s_cmp_lg_u32 {sW}, 0\ns_cbranch_scc1 {kskip}")
    g(f"s_sub_u32 {sT[0]}, {sPan}, 8192\nv_add_u32 {t0}, {sT[0]}, {vW2}\ns_mov_b32 m0, {C_K}\ns_nop 0")
    g(f"buffer_load_dwordx4 {t0}, {R['k']}, 0 offen {o.nt_once} lds")
    g(f"{kskip}:")
    vV = V.alloc(2)
    g(f"v_lshrrev_b32 {t2}, 5, v0\nv_lshlrev_b32 {t2}, 1, {t2}\nv_xor_b32 {t2}, {t2}, {vS8}\nv_lshl_add_u32 {vV[0]}, {t2}, 4, {vR8}\nv_xor_b32 {vV[1]}, 64, {vV[0]}")
    for i in range(4):
        g(f"v_add_u32 {wd[i]}, {i*7168}, {vW2}")

    def tile_dma(name, lds, va, so, i, pol):
        def fn():
            if g.m0 != name:
                g(f"s_add_u32 m0, {sC2}, {lds}")
                g.m0 = name
            g.vm(f"buffer_load_dwordx4 {va}, {R[name]}, {so} offen offset:{i*1024} {pol} lds", "kv")
        return ("dma", "kv", fn)
    Bg.ops += [tile_dma("k", C_K + 1024, vW2, sKV, 0, o.nt_once), tile_dma("k", C_K + 1024, vW2, sKV2, 1, o.nt_once),
               tile_dma("v", C_V, vV[0], sKV, 0, o.nt_once), tile_dma("v", C_V, vV[1], sKV2, 1, o.nt_once),
               tile_dma("q", C_Q, vQa[0], sKV, 0, ""), tile_dma("q", C_Q, vQa[1], sKV, 1, "")]
    for n in range(4):
        for i in range(4):
            Bg.ops.append(("dma", "w2", lambda n=n, i=i: w_dma("w2", LA, n, i)))
    w3r = A.alloc(256)
    w4v = Reg(V, 160, 96)
    sG4 = []
    d4 = Reg(V, d3.base, 4)

    def w4home(n, ft, e2=None):
        k, b = ("v", 160 + 8*n + 4*ft) if n < 12 else ("a", 8*(n-12) + 4*ft)
        return f"{k}[{b}:{b+3}]" if e2 is None else f"{k}[{b+2*e2}:{b+2*e2+1}]"

    def st_setup(n):
        def fn():
            if n >= 4:
                g.wait(lg=f"sr{n-4}")
            if n < 16:
                g(f"s_xor_b32 {sSt}, {sRot3}, {n}\ns_mul_i32 {sSt}, {sSt}, {32*3584}\ns_add_u32 {sSt}, {sSt}, {sW3}")
            else:
                if n == 16:
                    g(f"v_and_b32 {d4[1]}, 127, {d3[0]}\nv_lshrrev_b32 {d4[0]}, 3, v0\nv_lshl_add_u32 {d4[0]}, {d4[0]}, 10, {d4[1]}")
                    for i in range(1, 4):
                        g(f"v_add_u32 {d4[i]}, {i*7168}, {d4[0]}")
                g(f"s_lshl_b32 {sSt}, {sG4[n-16]}, 4\ns_add_u32 {sSt}, {sSt}, {sW4}")
        return ("set", n, fn)

    def st_dma(n, i):
        def fn():
            if g.m0 != ("st", n):
                g(f"s_add_u32 m0, {sRing}, {(n & 3)*4096}")
                g.m0 = ("st", n)
            g.vm(f"buffer_load_dwordx4 {d3[i]}, {R['w3' if n < 16 else 'w4']}, {sSt} offen offset:{i*1024} lds", f"sd{n}")
        return ("dma", n, fn)

    def st_rd(n, u, ft, e2):
        def fn():
            g.wait(vm=f"sd{n}")
            if n < 16:
                dst, off = w3r.r(16*n + 8*u + 4*ft + 2*e2, 2), e2 * 2048 + u * 1024
            else:
                dst, off = w4home(2*(n-16) + u, ft, e2), u * 2048 + e2 * 1024
            g.ds(f"ds_read_b64_tr_b16 {dst}, {ra[ft]} offset:{(n & 3)*4096 + off}", f"sr{n}")
        return ("rd0" if (u, ft, e2) == (0, 0, 0) else "rd", n, fn)
    for n in range(33):
        rds = [st_rd(n - 3, u, ft, e2) for u in range(2) for ft in range(2) for e2 in range(2)] if n >= 3 else []
        if n < 30:
            Bg.ops.append(st_setup(n))
            for i in range(4):
                Bg.ops.append(st_dma(n, i))
                Bg.ops += rds[2*i:2*i+2]
        else:
            Bg.ops += rds

    tmp = V.alloc(8)
    Bg.cap = Bg.find("dma", "w2")
    pump_on()
    run(center_dot([xf[i] for i in range(64)], st[1], tmp))
    pump_off()
    st.free()
    wf = V.alloc(48, at=160)
    acc = V.alloc(16, at=208)

    def gemm16(tok, e2off, vmtag=None, hook=None):
        def reads(ks):
            for T in range(4):
                for e2 in range(2):
                    g.ds(f"ds_read_b64_tr_b16 {wf.r(16*(ks % 3) + 4*T + 2*e2, 2)}, {wa[T]} offset:{ks*4096 + e2*e2off}", f"w{ks}")
                yield
        for ks in range(16):
            nxt = reads(ks + 2) if ks < 14 else iter(())
            g.wait(vm=vmtag and f"{vmtag}{ks}", lg=f"w{ks}")
            for T in range(4):
                g(f"v_mfma_f32_16x16x32_bf16 {acc.r(4*T,4)}, {wf.r(16*(ks % 3) + 4*T, 4)}, {tok.r(4*ks,4)}, {acc.r(4*T,4) if ks else 0}")
                next(nxt, None)
            if hook:
                hook(ks)

    def gemm16_head(e2off):
        for ks in range(2):
            for T in range(4):
                for e2 in range(2):
                    g.ds(f"ds_read_b64_tr_b16 {wf.r(16*ks + 4*T + 2*e2, 2)}, {wa[T]} offset:{ks*4096 + e2*e2off}", f"w{ks}")

    Bg.burst(2)
    g.wait(vm="w1")
    g("s_barrier")
    stamp("w1_in")
    gemm16_head(512)
    pd = Poll(R["dbg"], t3, 0, 0)
    g(f"v_and_b32 {t3}, 12, {vL4}")

    def hook1(ks):
        Bg.step()
        if ks == 8:
            pd.issue()
    gemm16(xf, 512, hook=hook1)
    g.wait(vm="kv")
    g("s_barrier")
    stamp("g1_mfma")
    hp = V.alloc(8, align=4)
    Bg.flush(Bg.find("dma", "w2"))
    for n in ("k", "v", "q", "w2"):
        R[n].free()
    for r in (sKV, sKV2, sM, sOff, sWo, sRow, vV, vW2, wd, vQa):
        r.free()

    def h_store(gg):
        g.vm(f"buffer_store_dwordx4 {hp.r(4*gg,4)}, {vL16}, {R['ws']}, {sHo} offen offset:{gg*1024} sc1", "hst")
    gelu_pk(acc, 16, gk1, hp, tmp, h_store)
    gk1.free()
    stamp("h_st")

    Bg.cap = Bg.find("dma", o.gap1_groups - 1)
    pump_on()
    pd.check()
    R["dbg"].free()
    qp = V.alloc(8, align=4)
    g(f"v_lshrrev_b32 {t0}, 1, {vC}\nv_lshrrev_b32 {t2}, 1, {vKq}\nv_xor_b32 {t0}, {t0}, {t2}\nv_lshlrev_b32 {t0}, 4, {t0}")
    g(f"v_lshl_add_u32 {t0}, {vC}, 7, {t0}\nv_and_b32 {t2}, 1, {vKq}\nv_lshl_add_u32 {t0}, {t2}, 3, {t0}")
    sQ = sC2
    g(f"s_add_u32 {sQ}, {sC2}, {C_Q}\nv_add_u32 {t0}, {sQ}, {t0}")
    for T in range(4):
        g(f"v_xor_b32 {t2}, {32*T}, {t0}")
        g.ds(f"ds_read_b64 {qp.r(2*T,2)}, {t2}", "q")
    ka = V.alloc(3)
    for m in range(2):
        g(f"v_sub_u32 {t0}, {vKq}, {vR4}\nv_add_u32 {t0}, {8 + 4*m}, {t0}\nv_bfe_u32 {t2}, {t0}, 1, 2\nv_xor_b32 {t2}, {sW}, {t2}")
        g(f"v_lshl_add_u32 {t2}, {t2}, 5, {vC8}\nv_lshl_add_u32 {t2}, {t0}, 7, {t2}\nv_add_u32 {ka[m]}, {C_K}, {t2}")
    g(f"v_lshl_add_u32 {t0}, {vR4}, 2, {vKq}\nv_xor_b32 {t2}, {sW}, {vR4}\nv_lshl_add_u32 {t2}, {t2}, 5, {vC8}")
    g(f"v_lshl_add_u32 {t2}, {t0}, 7, {t2}\nv_add_u32 {ka[2]}, {C_V}, {t2}")
    kk = xf
    up = V.alloc(8, align=4)

    def kv_reads(m0):
        g.ds(f"ds_read_b64_tr_b16 {kk.r(32 + m0//2, 2)}, {ka[2]} offset:{m0*512}", f"k{m0}")
        for m in range(m0, m0 + 4):
            g.ds(f"ds_read_b64_tr_b16 {kk.r(2*m, 2)}, {ka[m & 1]} offset:{(m >> 1)*1024}", f"k{m0}")
    kv_reads(0)
    kv_reads(4)
    for m0 in range(0, 16, 4):
        g.wait(lg=f"k{m0}")
        if m0 + 8 < 16:
            kv_reads(m0 + 8)
        for m in range(m0, m0 + 4):
            g(f"v_dot2_f32_bf16 {kk[40+m]}, {kk[2*m]}, {shk[0]}, 0")
        for m in range(m0, m0 + 4):
            g(f"v_dot2_f32_bf16 {kk[40+m]}, {kk[2*m+1]}, {shk[1]}, {kk[40+m]}")
        for i in range(2):
            g(f"v_lshlrev_b32 {tmp[2*i]}, 16, {kk[32 + m0//2 + i]}\nv_and_b32 {tmp[2*i+1]}, {sMask}, {kk[32 + m0//2 + i]}")
        for i in range(2):
            g(f"v_pk_mul_f32 {tmp.r(2*i,2)}, {tmp.r(2*i,2)}, {kk.r(40 + m0 + 2*i, 2)}")
        for i in range(2):
            g(f"v_cvt_pk_bf16_f32 {up[m0//2 + i]}, {tmp[2*i]}, {tmp[2*i+1]}")
    shk.free(); ka.free()
    g(f"v_and_b32 {t0}, 7, {vC}\nv_lshlrev_b32 {t2}, 1, {vKq}\nv_xor_b32 {t0}, {t0}, {t2}\nv_lshlrev_b32 {t0}, 4, {t0}")
    g(f"v_lshl_add_u32 {t0}, {vC}, 7, {t0}\nv_add_u32 {t0}, {sQ}, {t0}\nv_xor_b32 {t2}, 16, {t0}")
    g.ds(f"ds_write_b128 {t0}, {up.r(0,4)}", "uw")
    g.ds(f"ds_write_b128 {t2}, {up.r(4,4)}", "uw")
    vLine = V.alloc(1)
    g(f"v_and_b32 {vLine}, 31, v0\nv_lshlrev_b32 {vLine}, 7, {vLine}\nv_lshlrev_b32 {t3}, 7, {vC}")
    g(f"s_lshl_b32 {sT[3]}, {sJ}, 2\ns_add_u32 {sT[3]}, {sT[3]}, {sFh}")
    g.wait(vm="hst")
    flag_set(sT[3], F_H)
    if o.l2pf:
        g.vm(f"buffer_load_dword {vDum}, {t3}, {R['ws']}, {sHo} offen sc1", "pf")
    hp.free()
    stamp("h_out")
    g(f"v_lshrrev_b32 {t0}, 3, v0\nv_xor_b32 {t2}, {t0}, {vS8}\nv_lshlrev_b32 {t2}, 4, {t2}")
    g(f"v_lshl_add_u32 {t2}, {t0}, 7, {t2}\nv_add_u32 {t2}, {sQ}, {t2}")
    g.wait(lg="uw")
    g.ds(f"ds_read_b128 {up.r(0,4)}, {t2}", "ur")
    g.ds(f"ds_read_b128 {up.r(4,4)}, {t2} offset:1024", "ur")
    vT4k = V.alloc(1)
    g(f"v_lshlrev_b32 {t3}, 4, {vS8}\nv_lshl_add_u32 {vT4k}, {t0}, 12, {t3}")
    sTr = S.alloc(1)
    g(f"s_lshl_b32 {sT[0]}, {sJ}, 18\ns_lshl_b32 {sT[1]}, {sW}, 16\ns_add_u32 {sTr}, {sT[0]}, {sT[1]}\ns_lshl_b32 {sT[0]}, {sP}, 7\ns_add_u32 {sTr}, {sTr}, {sT[0]}")
    g(f"s_add_u32 {sT[0]}, {sTr}, {UBUF}\ns_add_u32 {sT[1]}, {sTr}, {UBUF + 32768}")
    g.wait(lg="ur")
    g.vm(f"buffer_store_dwordx4 {up.r(0,4)}, {vT4k}, {R['ws']}, {sT[0]} offen sc1", "ust")
    g.vm(f"buffer_store_dwordx4 {up.r(4,4)}, {vT4k}, {R['ws']}, {sT[1]} offen sc1", "ust")
    gs = V.alloc(4)
    g(f"v_mov_b32 {gs[1]}, 0\nv_mov_b32 {gs[3]}, 0")
    for i in range(8):
        g(f"v_dot2c_f32_bf16 {gs[1]}, {qp[i]}, {gw[i]}")
    gw.free()
    g(f"v_lshl_add_u32 {t0}, {vKq}, 2, {vR4}\nv_bfe_u32 {t2}, {t0}, 1, 2\nv_lshl_add_u32 {t0}, {t0}, 7, {vC8}")
    g(f"v_lshl_add_u32 {wa[0]}, {t2}, 5, {t0}")
    for T in range(1, 4):
        g(f"v_xor_b32 {wa[T]}, {32*T}, {wa[0]}")
    sCH, sCU, sX1, sX1s, sSto, sStw, sY, sUl = (S.alloc(1) for _ in range(8))
    g(f"s_lshr_b32 {sT[0]}, {sW}, 1\ns_mul_i32 {sCH}, {sT[0]}, {HP}\ns_add_u32 {sCH}, {sCH}, {C_H}")
    g(f"s_mul_i32 {sCU}, {sT[0]}, {4*UP}\ns_add_u32 {sCU}, {sCU}, {C_U}")
    g(f"s_lshl_b32 {sX1}, {sP}, 16\ns_add_u32 {sX1}, {sX1}, {X1BUF}")
    g(f"s_lshl_b32 {sT[0]}, {sT[0]}, 15\ns_and_b32 {sT[1]}, {sW}, 1\ns_lshl_b32 {sT[2]}, {sT[1]}, 8\ns_add_u32 {sT[0]}, {sT[0]}, {sT[2]}")
    g(f"s_lshl_b32 {sT[2]}, {sJ}, 12\ns_add_u32 {sT[0]}, {sT[0]}, {sT[2]}\ns_add_u32 {sX1s}, {sT[0]}, {sX1}")
    g(f"s_lshl_b32 {sSto}, {sP}, 13\ns_add_u32 {sSto}, {sSto}, {STATS}")
    g(f"s_lshl_b32 {sT[0]}, {sJ}, 10\ns_lshl_b32 {sT[2]}, {sW}, 8\ns_add_u32 {sT[0]}, {sT[0]}, {sT[2]}\ns_add_u32 {sStw}, {sT[0]}, {sSto}")
    g(f"s_lshl_b32 {sY}, {sCh}, 12\ns_lshl_b32 {sT[1]}, {sT[1]}, 6\ns_add_u32 {sUl}, {sY}, {sT[1]}\ns_add_u32 {sUl}, {sUl}, {UBUF}\ns_add_u32 {sY}, {sY}, {YBUF}")
    sG4 += [S.alloc(1) for _ in range(14)]
    g(f"s_mul_i32 {sT[0]}, {sX}, 7\ns_lshr_b32 {sT[0]}, {sT[0]}, 2\ns_lshl_b32 {sG4[0]}, {sT[0]}, 11")
    for n in range(1, 14):
        g(f"s_add_u32 {sG4[n]}, {sG4[n-1]}, 2048\ns_cmp_eq_u32 {sG4[n]}, {14*2048}\ns_cselect_b32 {sG4[n]}, 0, {sG4[n]}")
    g(f"s_lshl_b32 {sT[0]}, {sW}, 7\ns_lshl_b32 {sT[1]}, {sP}, 2\ns_add_u32 {sT[0]}, {sT[0]}, {sT[1]}\ns_add_u32 {sT[3]}, {sT[0]}, {sFj}")
    g.wait(vm="ust")
    flag_set(sT[3], F_U)
    up.free()
    vP8 = V.alloc(1)
    g(f"v_lshlrev_b32 {vP8}, 2, {vS8}")
    ph = Poll(R["ws"], vP8, sFh, F_H)
    Bg.flush(Bg.cap)
    pump_off()
    g.wait(vm="w2")
    g("s_barrier")
    ph.issue()
    stamp("u_out")
    g(f"v_mov_b32 {tmp[0]}, 0\nv_mov_b32 {tmp[1]}, 0")
    g(f"v_mul_u32_u24 {t0}, {UP}, {vKq}\nv_lshl_add_u32 {t0}, {vC}, 3, {t0}\nv_add_u32 {t0}, {sCU}, {t0}")
    g.ds(f"ds_write_b64 {t0}, {tmp.r(0,2)}")
    g(f"v_add_u32 {t0}, {sCH}, {vC8}")
    g.ds(f"ds_write_b64 {t0}, {tmp.r(0,2)}")
    gemm16_head(2048)

    ph.check()
    vP8.free()
    stamp("h_flag")
    for ks in range(16):
        if ks & 1 == 0:
            g(f"s_xor_b32 {sT[0]}, {sHo}, {ks << 10}")
        g.vm(f"buffer_load_dwordx4 {xf.r(4*ks,4)}, {vL16}, {R['ws']}, {sT[0]} offen offset:{(ks & 1)*1024} sc1", f"h{ks}")
    vP32 = V.alloc(1)
    g(f"v_and_b32 {vP32}, 124, {vL4}\ns_lshr_b32 {sT[1]}, {sP}, 3\ns_lshl_b32 {sT[1]}, {sT[1]}, 7\ns_add_u32 {sT[3]}, {sT[1]}, {sFj}")
    pu = Poll(R["ws"], vP32, sT[3], F_U)
    pu.issue()
    g(f"s_and_b32 {sT[2]}, {sW}, 1\ns_lshl_b32 {sT[2]}, {sT[2]}, 11\ns_lshl_b32 {sT[1]}, {sCh}, 12\ns_add_u32 {sT[1]}, {sT[1]}, {sT[2]}")
    g(f"s_add_u32 {sT[2]}, {sT[2]}, {sCH}\ns_add_u32 m0, {sT[2]}, 32\ns_nop 0")
    for i in range(2):
        g.vm(f"buffer_load_dwordx4 {vL16}, {R['ssm_k']}, {sT[1]} offen offset:{i*1024} {o.nt_once} lds", "cin")
    R["ssm_k"].free()
    g.tick(600)
    Bg.cap = Bg.find("rd", o.conv_groups - 1)
    gemm16(xf, 2048, vmtag="h", hook=lambda ks: (g.tick(20), Bg.step()) if ks >= 6 else None)
    stamp("g2_mfma")
    wa.free(); wf.free()
    pu.check()
    g(f"v_lshrrev_b32 {t0}, 1, v0\nv_and_b32 {t2}, 1, v0\nv_lshlrev_b32 {t2}, 4, {t2}\nv_lshl_add_u32 {t0}, {t0}, 7, {t2}")
    g(f"s_and_b32 {sT[2]}, {sW}, 1\ns_mul_i32 {sT[2]}, {sT[2]}, {2*UP}\ns_add_u32 {sT[2]}, {sT[2]}, {sCU}\ns_add_u32 m0, {sT[2]}, 128\ns_add_u32 {sT[1]}, {sUl}, 32")
    g.vm(f"buffer_load_dwordx4 {t0}, {R['ws']}, {sUl} offen sc1 lds", "cin")
    g(f"s_add_u32 m0, {sT[2]}, {128 + UP}\ns_nop 0")
    g.vm(f"buffer_load_dwordx4 {t0}, {R['ws']}, {sT[1]} offen sc1 lds", "cin")
    sUl.free()
    x1p = V.alloc(8, align=4)
    g(f"v_lshlrev_b32 {t0}, 9, {vKq}\nv_lshl_add_u32 {t0}, {vC}, 4, {t0}")
    for T in range(0, 4, 2):
        for i in range(4):
            g(f"v_dot2_f32_bf16 {tmp[2*i]}, {qp[2*T+i]}, {sLo1}, {acc[4*T+2*i]}")
            g(f"v_dot2_f32_bf16 {tmp[2*i+1]}, {qp[2*T+i]}, {sHi1}, {acc[4*T+2*i+1]}")
        for i in range(4):
            g(f"v_cvt_pk_bf16_f32 {x1p[2*T+i]}, {tmp[2*i]}, {tmp[2*i+1]}")
        g.vm(f"buffer_store_dwordx4 {x1p.r(2*T,4)}, {t0}, {R['ws']}, {sX1s} offen offset:{T*1024} sc1", "xst")
    acc.free()
    g(f"v_mov_b32 {gs[0]}, 0\nv_mov_b32 {gs[2]}, 0")
    for i in range(8):
        g(f"v_dot2c_f32_bf16 {gs[0]}, {sOnes}, {x1p[i]}")
        g(f"v_dot2c_f32_bf16 {gs[2]}, {x1p[i]}, {x1p[i]}")
    g(f"v_permlane32_swap_b32 {gs[0]}, {gs[2]}\nv_permlane32_swap_b32 {gs[1]}, {gs[3]}")
    g(f"v_add_f32 {gs[0]}, {gs[0]}, {gs[2]}\nv_add_f32 {gs[1]}, {gs[1]}, {gs[3]}")
    g(f"v_permlane16_swap_b32 {gs[0]}, {gs[1]}\nv_add_f32 {gs[0]}, {gs[0]}, {gs[1]}")
    g.vm(f"buffer_store_dword {gs[0]}, {vL4}, {R['ws']}, {sStw} offen sc1", "xst")
    sStw.free()
    stamp("x1_st")

    pump_on()
    aA, aB, aN, aU, aY, vXl = (V.alloc(1) for _ in range(6))
    g(f"v_lshlrev_b32 {t0}, 6, {vKq}\nv_add_u32 {t0}, {t0}, {vC8}\nv_lshlrev_b32 {t2}, 3, {vR4}\nv_sub_u32 {t0}, {t0}, {t2}")
    g(f"s_add_u32 {sT[0]}, {sCH}, 32\nv_add_u32 {aA}, {sT[0]}, {t0}")
    g(f"v_lshlrev_b32 {t0}, 3, {vC}\nv_lshlrev_b32 {t2}, 4, {vKq}\nv_sub_u32 {t0}, {t0}, {t2}\ns_add_u32 {sT[0]}, {sCU}, 56\nv_add_u32 {aB}, {sT[0]}, {t0}")
    g(f"v_lshl_add_u32 {t0}, {vC}, 2, {vKq}\ns_lshr_b32 {sT[0]}, {sW}, 1\ns_mul_i32 {sT[0]}, {sT[0]}, {NP}\ns_add_u32 {sT[0]}, {sT[0]}, {A_N}")
    g(f"v_lshl_add_u32 {aN}, {t0}, 4, {sT[0]}\ns_add_u32 {sT[1]}, {sCU}, 128\nv_lshl_add_u32 {aU}, {t0}, 1, {sT[1]}")
    g(f"v_lshrrev_b32 {t0}, 2, {vC}\nv_lshlrev_b32 {t0}, 7, {t0}\nv_lshl_add_u32 {t0}, {vKq}, 5, {t0}\nv_add_u32 {aY}, {t0}, {vC8}")
    g(f"v_lshrrev_b32 {t0}, 1, {vC}\nv_lshlrev_b32 {t0}, 9, {t0}\nv_and_b32 {t2}, 1, v0\nv_lshl_add_u32 {vXl}, {t2}, 7, {t0}")
    g(f"s_lshl_b32 {sT[3]}, {sJ}, 2\ns_add_u32 {sT[3]}, {sT[3]}, {sFh}")
    w4v = V.alloc(96, at=160)
    pq = Reg(V, 160, 60)
    cB = Reg(V, 224, 32)
    cA = xf
    for ti in range(5):
        for r in (4, 5, 10, 11):
            g(f"v_mov_b32 {pq[12*ti + r]}, 0")
    g(f"v_mov_b32 {tmp[0]}, 0\nv_mov_b32 {tmp[1]}, 0\nv_mov_b32 {tmp[2]}, 0\nv_mov_b32 {tmp[3]}, 0\nv_mov_b32 {t0}, {sT[0]}")
    pump_off()
    g.wait(vm="cin", lg="*")
    g("s_barrier")
    stamp("u_in")
    g.ds(f"ds_write_b128 {t0}, {tmp.r(0,4)}")
    px = Poll(R["ws"], vP32, sFp, F_X1)
    lodd, ljoin = g.label("odd"), g.label("join")
    g(f"s_bitcmp1_b32 {sW}, 0\ns_cbranch_scc1 {lodd}")
    saved = (list(g.vmq), list(g.lgq), Bg.idx, Bg.next_dma, dict(Bg.t_issue), g.clock, g.mfree, g.m0)
    ends = []
    for par in range(2):
        if par:
            g(f"{lodd}:")
            g.vmq, g.lgq, Bg.idx, Bg.next_dma, Bg.t_issue = list(saved[0]), list(saved[1]), saved[2], saved[3], dict(saved[4])
            g.clock, g.mfree, g.m0 = saved[5:]
        tiles = TILES[par]
        top = max(tiles)
        seq = [(d, mp) for d in (0, 1, 2, 3) for mp in range(-1, 2 * top + 1)]
        aorder = []
        for mp in range(-1, 2 * top + 1):
            aorder += [2*jb - mp for jb in tiles if 2*jb - mp >= 0 and 2*jb - mp not in aorder]

        def aread(m):
            for e2 in range(2):
                g.ds(f"ds_read_b64_tr_b16 {cA.r(4*m + 2*e2, 2)}, {aA} offset:{256*m + 32 - 32*e2}", f"A{m}")

        def bread(i):
            d, mp = seq[i]
            for e2 in range(2):
                g.ds(f"ds_read_b64 {cB.r(4*(i & 7) + 2*e2, 2)}, {aB} offset:{d*UP + 64*(mp+1) + 8*e2}", f"B{i}")
                yield
        nA = 2 * len(tiles)
        for m in aorder[:nA]:
            aread(m)
        for i in range(4):
            run(bread(i))
        pend = aorder[nA:]
        started = set()
        cnt = 0
        for i, (d, mp) in enumerate(seq):
            rd = bread(i + 4) if i + 4 < len(seq) else iter(())
            if i % 2 == 0:
                g.wait(lg=f"B{min(i + 1, len(seq) - 1)}")
            for ti, jb in enumerate(tiles):
                m = 2 * jb - mp
                if m < 0:
                    continue
                assert m not in pend
                g.wait(lg=f"A{m}")
                c = pq.r(12*ti + 6*(d & 1) + (d & 2), 4)
                first = d < 2 and (d, ti) not in started
                started.add((d, ti))
                g(f"v_mfma_f32_16x16x32_bf16 {c}, {cA.r(4*m,4)}, {cB.r(4*(i & 7),4)}, {0 if first else c}")
                cnt += 1
                next(rd, None)
                if pend and ti < 2:
                    aread(pend.pop(0))
                if cnt == o.xflag_at:
                    g.wait(vm="xst")
                    flag_set(sT[3], F_X1)
                    if o.l2pf:
                        g.vm(f"buffer_load_dword {vDum}, {vXl}, {R['ws']}, {sX1s} offen sc1", "pf")
                if not (g.slack() >= 4 and Bg.step()) and Bg.ready() and cnt % 2:
                    Bg.step()
            run(rd)
        Bg.flush(Bg.cap)
        px.issue()
        for ti, jb in enumerate(tiles):
            b = 12 * ti
            g(f"v_add_f32 {pq[b+4]}, {pq[b+4]}, {pq[b+9]}\nv_add_f32 {pq[b+5]}, {pq[b+5]}, {pq[b+10]}")
            g(f"v_add_f32 {pq[b+1]}, {pq[b+1]}, {pq[b+6]}\nv_add_f32 {pq[b+2]}, {pq[b+2]}, {pq[b+7]}\nv_add_f32 {pq[b+3]}, {pq[b+3]}, {pq[b+8]}")
            g(f"v_mov_b32 {pq[b+6]}, {pq[b+11]}")
            g.ds(f"ds_write_b96 {aN}, {pq.r(b+4,3)} offset:{1024*jb + 16}", "Nw")
        for ti, jb in enumerate(tiles):
            for m in range(4):
                g.ds(f"ds_read_u16_d16_hi {pq[12*ti+8+m]}, {aU} offset:{m*UP + 128*jb}", f"U{ti}")
        g.wait(lg="Nw")
        g("s_barrier")
        for ti, jb in enumerate(tiles):
            g.ds(f"ds_read_b128 {pq.r(12*ti+4,4)}, {aN} offset:{1024*jb}", f"N{ti}")
        for ti, jb in enumerate(tiles):
            b = 12 * ti
            g.wait(lg=f"U{ti}")
            for m in range(4):
                g(f"v_fmac_f32 {pq[b+m]}, {vD}, {pq[b+8+m]}")
        for ti, jb in enumerate(tiles):
            b = 12 * ti
            g.wait(lg=f"N{ti}")
            for m in range(3):
                g(f"v_add_f32 {pq[b+m]}, {pq[b+m]}, {pq[b+4+m]}")
            g(f"v_cvt_pk_bf16_f32 {pq[b]}, {pq[b]}, {pq[b+1]}\nv_cvt_pk_bf16_f32 {pq[b+1]}, {pq[b+2]}, {pq[b+3]}")
            g.vm(f"buffer_store_dwordx2 {pq.r(b,2)}, {aY}, {R['ws']}, {sY} offen offset:{512*jb} sc1", "yst")
        ends.append((Bg.idx, list(g.vmq), g.m0))
        if not par:
            g(f"s_branch {ljoin}")
    g(f"{ljoin}:")
    assert ends[0][0] == ends[1][0]
    n0, n1 = len(ends[0][1]) - 3, len(ends[1][1]) - 5
    g.vmq = (ends[0][1][:n0] if n0 >= n1 else ends[1][1][:n1]) + ["yst"] * 3
    k = min(n0, n1)
    assert ends[0][1][n0-k:n0] == ends[1][1][n1-k:n1], (ends[0][1], ends[1][1])
    g.lgq = []
    g.m0 = None
    for r in (aA, aB, aN, aU, aY, vD, gs, vXl, sX1s, sY, sCH, sCU):
        r.free()
    stamp("conv")

    px.check()
    stamp("x1_flag")
    sv = Reg(V, 224, 16)
    nb = Reg(V, 160, 64)
    g(f"v_and_b32 {t0}, 1, {vKq}\nv_lshlrev_b32 {t0}, 8, {t0}\nv_lshrrev_b32 {t2}, 5, v0\nv_lshl_add_u32 {t0}, {t2}, 7, {t0}\nv_lshl_add_u32 {t0}, {vC}, 2, {t0}")
    g(f"s_add_u32 {sT[3]}, {sSto}, 4096")
    g(f"s_lshl_b32 {sT[2]}, {sW}, 2\ns_xor_b32 {sT[2]}, {sT[2]}, {sRot3}\ns_lshl_b32 {sT[2]}, {sT[2]}, 11\ns_add_u32 {sT[2]}, {sT[2]}, {sX1}")
    g("s_nop 0")
    for th in range(2):
        for jj in range(8):
            g.vm(f"buffer_load_dword {sv[8*th+jj]}, {t0}, {R['ws']}, {(sSto, sT[3])[jj >> 2]} offen offset:{(jj & 3)*1024 + th*512} sc1", f"s{th}")
        for i in range(8):
            if i & 1 == 0:
                g(f"s_xor_b32 {sT[0]}, {sT[2]}, {(i >> 1) << 11 | th << 15}")
            g.vm(f"buffer_load_dwordx4 {nb.r(32*th + 4*i, 4)}, {vL16}, {R['ws']}, {sT[0]} offen offset:{(i & 1)*1024} sc1", f"n{th}_{i}")
    gk3 = [V.alloc(4), V.alloc(4)]
    vXw = V.alloc(1)
    sH2, sHst, sFl, sFy = (S.alloc(1) for _ in range(4))
    g(f"s_lshl_b32 {sT[0]}, {sW}, 13\nv_add_u32 {vXw}, {sT[0]}, {vL16}")
    g(f"s_mul_i32 {sH2}, {sP}, 229376\ns_add_u32 {sH2}, {sH2}, {H2BUF}")
    g(f"s_lshl_b32 {sHst}, {sL}, 12\ns_add_u32 {sHst}, {sHst}, {sH2}\ns_add_u32 {sHst}, {sHst}, {sIdle}")
    g(f"s_lshr_b32 {sT[0]}, {sJ}, 1\ns_add_u32 {sT[0]}, {sT[0]}, 28\ns_cmp_eq_u32 {sIdle}, 0\ns_cselect_b32 {sFl}, {sL}, {sT[0]}")
    g(f"s_lshl_b32 {sFl}, {sFl}, 2\ns_add_u32 {sFl}, {sFl}, {sFp}")
    g(f"s_lshr_b32 {sT[0]}, {sP}, 2\ns_lshr_b32 {sT[1]}, 0x3b, {sT[0]}\ns_and_b32 {sT[1]}, {sT[1]}, 1\ns_lshl_b32 {sT[1]}, {sT[1]}, 2")
    g(f"s_lshl_b32 {sT[0]}, {sW}, 7\ns_add_u32 {sT[1]}, {sT[1]}, {sT[0]}\ns_add_u32 {sFy}, {sT[1]}, {sFj}")
    g(f"s_lshl_b32 {sT[0]}, {sP}, 4\ns_lshl_b32 {sT[1]}, {sW}, 2\ns_add_u32 {sT[0]}, {sT[0]}, {sT[1]}\ns_add_u32 {sT[3]}, {sT[0]}, {sFj}")
    g.tick(500)

    def norm(th, center):
        g.wait(vm=f"s{th}")
        b = 8 * th
        for w in (4, 2, 1):
            for i in range(w):
                g(f"v_add_f32 {sv[b+i]}, {sv[b+i]}, {sv[b+i+w]}")
                yield
        g(f"v_mov_b32 {sv[b+1]}, {sv[b]}\ns_nop 1\nv_permlane32_swap_b32 {sv[b]}, {sv[b+1]}")
        yield
        yield from ln_stats(sv[b], sv[b+1], sv[b+2], gk3[th])
        for i in range(8):
            g.wait(vm=f"n{th}_{i}")
            yield from center([nb[32*th + 4*i + q] for q in range(4)], sv[b+2], tmp)
            g.ds(f"ds_write_b128 {vXw}, {nb.r(32*th + 4*i, 4)} offset:{LA + th*32768 + i*1024}", f"xw{th}")
            yield

    g.wait(vm="yst")
    flag_set(sT[3], F_Y)
    Bg.cap = Bg.find("dma", 18)
    pump_on()
    run(norm(0, center_dot))
    pump_off()
    g.wait(lg="xw0")
    g("s_barrier")
    stamp("xn0")
    accs = [Reg(V, xf.base, 32), Reg(V, xf.base + 32, 32)]
    tf = V.alloc(16, align=4)
    hq = V.alloc(16, align=4)

    def h_store2(th):
        def fn(f):
            if f == 0 and th:
                g(f"s_add_u32 {sHst}, {sHst}, {112*1024}")
            g.vm(f"buffer_store_dwordx4 {hq.r(4*f,4)}, {vL16}, {R['ws']}, {sHst} offen offset:{f*1024} sc1", f"Hst{th}")
        return fn

    def g3_pass(th, fillers, quota, hook=None):
        def tread(ks):
            g.ds(f"ds_read_b128 {tf.r(4*(ks & 3), 4)}, {vL16} offset:{LA + th*32768 + ks*1024}", f"t{ks}")
        for ks in range(3):
            tread(ks)
        for ks in range(32):
            if th == 0 and ks % 2 == 0:
                Bg.flush(Bg.find("rd", ks // 2))
                g.wait(lg=f"sr{ks//2}")
            g.wait(lg=f"t{ks}")
            for ft in range(2):
                c = accs[th].r(16*ft, 16)
                g(f"v_mfma_f32_32x32x16_bf16 {c}, {w3r.r(8*ks + 4*ft, 4)}, {tf.r(4*(ks & 3), 4)}, {c if ks else 0}")
                if ft == 1 and ks + 3 < 32:
                    tread(ks + 3)
                if hook:
                    hook(2*ks + ft)
                fill(fillers, quota)
        for f in fillers:
            run(f)

    g3_pass(0, [norm(1, center_plain)], 3)
    g.wait(lg="xw1")
    g("s_barrier")
    stamp("g3a")
    Bg.cap = Bg.find("rd", 21)
    vP16, vP7 = V.alloc(1), V.alloc(1)
    py = Poll(R["ws"], vP16, sFy, F_Y)
    gl = V.alloc(2)

    def hook3(i):
        if i == 2:
            g(f"v_lshlrev_b32 {vP16}, 3, {vC}\nv_min_u32 {vP7}, 24, {vL4}")
            py.issue()
        if i == 24:
            py.check()
            g(f"s_add_u32 {sT[0]}, {sTr}, {YBUF}\ns_add_u32 {sT[1]}, {sTr}, {YBUF + 32768 - 1024}\ns_lshl_b32 {sT[2]}, {sW}, 11\ns_add_u32 m0, {sT[2]}, {C_Y}")
        if i == 25:
            g.vm(f"buffer_load_dwordx4 {vT4k}, {R['ws']}, {sT[0]} offen sc1 lds", "y")
            g.vm(f"buffer_load_dwordx4 {vT4k}, {R['ws']}, {sT[1]} offen offset:1024 sc1 lds", "y")
        if i == 26:
            g(f"v_lshlrev_b32 {t0}, 11, {vKq}\nv_lshl_add_u32 {t0}, {vC}, 2, {t0}\ns_lshl_b32 {sT[0]}, {sW}, 8\ns_add_u32 {sT[0]}, {sT[0]}, {sSto}")
        if i == 27:
            g.vm(f"buffer_load_dword {gl[0]}, {t0}, {R['ws']}, {sT[0]} offen offset:64 sc1", "y")
            g.vm(f"buffer_load_dword {gl[1]}, {t0}, {R['ws']}, {sT[0]} offen offset:1088 sc1", "y")
    hold24 = Bg.step

    def hook3h(i):
        hook3(i)
        if i == 24:
            Bg.saved_cap, Bg.cap = Bg.cap, 0
        if i == 25:
            Bg.cap = Bg.saved_cap
    g3_pass(1, [gelu_plain(accs[0], 32, gk3[0], hq, tmp, h_store2(0))], 5, hook3h)
    vP16.free()
    stamp("g3b")
    Bg.cap = len(Bg.ops)
    pump_on()
    st1 = h_store2(1)

    def done1(f):
        if f == 2:
            g.wait(vm="Hst0")
            flag_set(sFl, F_HA)
            if o.l2pf:
                g(f"s_sub_u32 {sT[0]}, {sHst}, {112*1024}")
                g.vm(f"buffer_load_dword {vDum}, {vLine}, {R['ws']}, {sT[0]} offen sc1", "pf")
        st1(f)
    gelu_pk(accs[1], 32, gk3[1], hq, tmp, done1)
    stamp("H_st")
    tf.free(); vXw.free()
    for r in gk3:
        r.free()
    sv = V.alloc(16)
    g.wait(vm="y")
    g("s_barrier")

    g(f"v_lshl_add_u32 {t0}, {vKq}, 2, {vR4}\nv_lshlrev_b32 {t0}, 7, {t0}\nv_lshl_add_u32 {t0}, {vC8}, 2, {t0}\ns_lshl_b32 {sT[0]}, {sW}, 3\ns_add_u32 {sT[0]}, {sT[0]}, {C_Y}\nv_add_u32 {t0}, {sT[0]}, {t0}")
    for T in range(4):
        g.ds(f"ds_read_b64_tr_b16 {sv.r(8 + 2*T, 2)}, {t0} offset:{T*2048}", f"y{T}")
    g(f"v_add_f32 {sv[0]}, {gl[0]}, {gl[1]}")
    gl.free()
    for sw in ("32", "16"):
        g(f"v_mov_b32 {sv[1]}, {sv[0]}\ns_nop 1\nv_permlane{sw}_swap_b32 {sv[0]}, {sv[1]}\nv_add_f32 {sv[0]}, {sv[0]}, {sv[1]}")
    run(round_bf16(sv[0]))
    g(f"v_mul_f32 {sv[0]}, {fbits(-LOG2E)}, {sv[0]}\nv_exp_f32 {sv[0]}, {sv[0]}\ns_nop 0\nv_add_f32 {sv[0]}, 1.0, {sv[0]}\nv_rcp_f32 {sv[0]}, {sv[0]}\ns_nop 0")
    run(round_bf16(sv[0]))
    g(f"v_sub_f32 {sv[2]}, 1.0, {sv[0]}")
    run(round_bf16(sv[2]))
    g(f"s_lshl_b32 {sT[0]}, {sW}, 6\ns_add_u32 {sT[0]}, {sT[0]}, {C_OMG}\nv_lshl_add_u32 {t2}, {vC}, 2, {sT[0]}")
    g.ds(f"ds_write_b32 {t2}, {sv[2]}")
    g(f"v_xor_b32 {t0}, {vKq}, {vC}\nv_lshlrev_b32 {t0}, 4, {t0}\nv_lshl_add_u32 {t0}, {vC}, 8, {t0}\ns_lshl_b32 {sT[0]}, {sW}, 12\ns_add_u32 {sT[0]}, {sT[0]}, {C_BASE}\nv_add_u32 {t0}, {sT[0]}, {t0}")
    sFa = S.alloc(1)
    g(f"s_mul_i32 {sFa}, {sW}, 28\ns_add_u32 {sFa}, {sFa}, {sFp}")
    pa = Poll(R["ws"], vP7, sFa, F_HA)
    pb = Poll(R["ws"], vP7, sFa, F_HB)
    bq = Reg(V, accs[1].base, 32)
    for T in range(4):
        if T == 2:
            g.wait(vm="Hst1")
            flag_set(sFl, F_HB)
            if o.l2pf:
                g.vm(f"buffer_load_dword {vDum}, {vLine}, {R['ws']}, {sHst} offen sc1", "pf")
            pa.issue()
        g.wait(lg=f"y{T}")
        for i in range(2):
            for src, d in ((sv[8 + 2*T + i], 0), (qp[2*T + i], 4), (x1p[2*T + i], 8)):
                g(f"v_lshlrev_b32 {bq[d + 2*i]}, 16, {src}\nv_and_b32 {bq[d + 2*i + 1]}, {sMask}, {src}")
        for i in (0, 2):
            g(f"v_pk_mul_f32 {bq.r(i,2)}, {bq.r(i,2)}, {bq.r(4+i,2)}")
            g(f"v_pk_mul_f32 {bq.r(8+i,2)}, {bq.r(8+i,2)}, {sv.r(2,2)} op_sel_hi:[1,0]")
        for i in (0, 2):
            g(f"v_pk_fma_f32 {bq.r(12 + 4*T + i, 2)}, {bq.r(i,2)}, {sv.r(0,2)}, {bq.r(8+i,2)} op_sel_hi:[1,0,1]")
        g(f"v_xor_b32 {t2}, {64*T}, {t0}")
        g.ds(f"ds_write_b128 {t2}, {bq.r(12 + 4*T, 4)}", "bw")
    qp.free(); x1p.free(); hq.free()
    vPw, vPr, vOut, vOm, vHl = (V.alloc(1) for _ in range(5))
    g(f"v_and_b32 {t0}, 31, v0\nv_lshrrev_b32 {t2}, 5, v0\nv_xor_b32 {t2}, {t2}, {vC}\nv_lshlrev_b32 {t2}, 4, {t2}\nv_lshl_add_u32 {t0}, {t0}, 8, {t2}")
    g(f"s_lshl_b32 {sT[0]}, {sW}, 13\nv_add_u32 {vPw}, {sT[0]}, {t0}")
    g(f"v_lshrrev_b32 {t0}, 3, v0\ns_lshl_b32 {sT[0]}, {sW}, 3\nv_add_u32 {t0}, {sT[0]}, {t0}")
    g(f"v_lshlrev_b32 {t3}, 4, {vS8}\nv_lshl_add_u32 {vOut}, {t0}, 10, {t3}")
    g(f"v_lshlrev_b32 {t2}, 1, {vS8}\nv_and_b32 {t3}, 15, {t0}\nv_xor_b32 {t2}, {t2}, {t3}\nv_lshlrev_b32 {t2}, 4, {t2}\nv_lshl_add_u32 {vPr}, {t0}, 8, {t2}")
    g(f"v_lshlrev_b32 {vOm}, 2, {t0}")
    g(f"s_mul_i32 {sT[0]}, {sW}, {28*1024}\ns_add_u32 {sT[0]}, {sT[0]}, {sH2}\nv_add_u32 {vHl}, {sT[0]}, {vL16}")
    Bg.flush(Bg.find("dma", 29))
    pump_off()
    stamp("base")
    hb = Reg(A, 128, 128)

    class Fin:
        @staticmethod
        def r(i, n=1):
            return accs[0].r(i, n) if i < 32 else tmp.r(i - 32, n)

        def __getitem__(self, i):
            return self.r(i)
    fin = Fin()

    def h_load(m):
        th, n = divmod(m, 28)
        if m == 28:
            g(f"v_add_u32 {vHl}, {112*1024}, {vHl}")
        g.vm(f"buffer_load_dwordx4 {hb.r(4*(m & 31), 4)}, {vHl}, {R['ws']}, {sG4[n >> 1]} offen offset:{(n & 1)*1024} sc1", f"H{m}")

    def partial_out(th):
        for ft in range(2):
            for q in range(4):
                g(f"v_xor_b32 {t2}, {128*ft + 32*q}, {vPw}")
                g.ds(f"ds_write_b128 {t2}, {accs[th].r(16*ft + 4*q, 4)} offset:{LA + th*32768}", f"pw{th}")
                yield

    def final(th, packed):
        g(f"v_xor_b32 {t0}, 16, {vPr}")
        for x, ad in enumerate((vPr, t0)):
            for w in range(4):
                g.ds(f"ds_read_b128 {fin.r(16*x + 4*w, 4)}, {ad} offset:{LA + th*32768 + w*8192}", f"f{x}")
                yield
        g(f"v_add_u32 {t2}, {C_BASE + th*8192}, {vPr}\nv_add_u32 {t3}, {C_BASE + th*8192}, {t0}")
        yield
        g.ds(f"ds_read_b128 {fin.r(32,4)}, {t2}", "fb")
        g.ds(f"ds_read_b128 {fin.r(36,4)}, {t3}", "fb")
        yield
        g(f"v_add_u32 {t2}, {C_OMG + th*128}, {vOm}")
        g.ds(f"ds_read_b32 {sv[0]}, {t2}", "fb")
        yield
        for x in range(2):
            g.wait(lg=f"f{x}")
            b = 16 * x
            for d, s in ((0, 4), (8, 12), (0, 8)):
                if packed:
                    for i in (0, 2):
                        g(f"v_pk_add_f32 {fin.r(b+d+i,2)}, {fin.r(b+d+i,2)}, {fin.r(b+s+i,2)}")
                else:
                    for i in range(4):
                        g(f"v_add_f32 {fin[b+d+i]}, {fin[b+d+i]}, {fin[b+s+i]}")
                        yield
        g.wait(lg="fb")
        for x in range(2):
            for i in range(4):
                g(f"v_fma_f32 {fin[16*x+i]}, {fin[16*x+i]}, {sv[0]}, {fin[32+4*x+i]}")
                yield
        for x in range(2):
            for i in range(2):
                g(f"v_cvt_pk_bf16_f32 {fin[4 + 2*x + i]}, {fin[16*x + 2*i]}, {fin[16*x + 2*i + 1]}")
                yield
        g(f"s_add_u32 {sT[0]}, {sPan}, {th*32768}")
        g.vm(f"buffer_store_dwordx4 {fin.r(4,4)}, {vOut}, {R['out']}, {sT[0]} offen {o.out_pol}", "out")
        yield

    def barrier_after(tag):
        g.wait(lg=tag)
        g("s_barrier")
        yield

    pa.check()
    stamp("HA_flag")
    AHEAD = 10
    nxt = 0
    while nxt < AHEAD:
        h_load(nxt)
        nxt += 1
    g.tick(500)
    fillers = []
    for m in range(56):
        th, n = divmod(m, 28)
        if n % 2 == 0 and th == 0:
            Bg.flush(Bg.find("rd", 16 + n // 2))
            g.wait(lg=f"sr{16 + n//2}")
        if m == 28:
            stamp("g4_0")
            fillers = [partial_out(0), barrier_after("pw0"), final(0, False)]
        g.wait(vm=f"H{m}")
        for ft in range(2):
            c = accs[th].r(16*ft, 16)
            g(f"v_mfma_f32_32x32x16_bf16 {c}, {w4home(n, ft)}, {hb.r(4*(m & 31), 4)}, {c if n else 0}")
            if ft == 0:
                if m == 8:
                    pb.issue()
                if nxt == 28:
                    pb.check()
                if nxt < 56:
                    h_load(nxt)
                    nxt += 1
            if not (m == 28 and ft == 0):
                fill(fillers, 1 if fillers else 0)
    for f in fillers:
        run(f)
    stamp("g4_1")
    run(partial_out(1))
    run(barrier_after("pw1"))
    run(final(1, True))
    stamp("end")
    stamp("end_real", real=True)
    if o.stamps:
        g(f"s_lshl_b32 {sT[0]}, s2, 2\ns_add_u32 {sT[0]}, {sT[0]}, {sW}\ns_lshl_b32 {sT[0]}, {sT[0]}, 8\ns_add_u32 {sT[0]}, {sT[0]}, {STAMPS}")
        g(f"buffer_store_dword {vStamp}, {vL4}, {R['ws']}, {sT[0]} offen")
    if amp:
        g(f"s_cmp_lg_u32 s2, 77\ns_cbranch_scc1 L_end")
        g(f"s_sub_u32 {sAmp[2]}, {sAmp[2]}, {sAmp[0]}\ns_mul_i32 {sAmp[2]}, {sAmp[2]}, {amp[2]}\ns_min_u32 {sAmp[2]}, {sAmp[2]}, 100000")
        g(f"s_memrealtime {sAmp.r(0,2)}\ns_waitcnt lgkmcnt(0)")
        g(f"L_amp:\ns_memrealtime {sStamp}\ns_waitcnt lgkmcnt(0)\ns_sub_u32 {sStamp[0]}, {sStamp[0]}, {sAmp[0]}")
        g(f"s_cmp_lt_u32 {sStamp[0]}, {sAmp[2]}\ns_cbranch_scc1 L_amp")
    g("s_endpgm")
    for t in tail:
        g(t)
    g("L_end:\ns_endpgm")
    body = g.text()
    info = dict(nops=g.nops, vhigh=V.high, shigh=S.high, stamps=stamp_names, lines=len(g.lines), clock=g.clock)
    return file_text([(KNAME, 256, 256, LDS_BYTES)], [(KNAME, body, 512, 256, 102)]), info


REF = "gated_mix__ssm_conv_h3__mixer_s_mlp__prompt.s.ref"
HEADER = open(REF).read().split("; Override launch")[0] if os.path.exists(REF) else ""


def set_opts(args):
    for kv in args:
        k, v = kv.split("=")
        cur = getattr(Opt, k)
        setattr(Opt, k, type(cur)(int(v)) if isinstance(cur, (bool, int)) else v)


if __name__ == "__main__":
    out = sys.argv[1] if len(sys.argv) > 1 else "k.s"
    set_opts(sys.argv[2:])
    text, info = build(Opt)
    open(out, "w").write(HEADER + text)
    print(info)
```

```python
import re

REG = re.compile(r"^(-?)(?:abs\()?([vas])(?:\[(\d+):(\d+)\]|(\d+))\)?$")
TRANS = ("v_exp_f32", "v_log_f32", "v_rcp_f32", "v_rsq_f32", "v_sqrt_f32", "v_sin_f32", "v_cos_f32")
NO_DST_S = ("s_cmp", "s_waitcnt", "s_barrier", "s_nop", "s_cbranch", "s_branch", "s_endpgm", "s_setprio",
            "s_sleep", "s_bitcmp")


def regs_of(tok):
    tok = tok.strip()
    if tok in ("vcc", "vcc_lo", "vcc_hi"):
        return {("x", "vcc")}
    if tok == "m0":
        return {("x", "m0")}
    if tok in ("exec", "exec_lo", "exec_hi"):
        return {("x", "exec")}
    m = REG.match(tok)
    if not m:
        return set()
    k = m.group(2)
    if m.group(3) is not None:
        return {(k, i) for i in range(int(m.group(3)), int(m.group(4)) + 1)}
    return {(k, int(m.group(5)))}


class Ins:
    __slots__ = ("text", "op", "kind", "wr", "rd", "A", "B", "C", "passes", "data", "states", "lds")

    def __init__(self, text):
        self.text = text
        body = text.split(";")[0].strip()
        self.wr, self.rd = set(), set()
        self.A = self.B = self.C = self.data = set()
        self.passes = 0
        self.states = 1
        self.lds = False
        if body.endswith(":") or body.startswith(".") or not body:
            self.op, self.kind, self.states = body, "label", 0
            return
        parts = body.split(None, 1)
        op = self.op = parts[0]
        rest = parts[1] if len(parts) > 1 else ""
        toks = [t.strip() for t in re.split(r",(?![^\[]*\])", rest)] if rest else []
        if toks:
            last = toks[-1].split()
            mods = last[1:]
            toks[-1] = last[0] if last else ""
        else:
            mods = []
        R = [regs_of(t) for t in toks]
        allr = lambda xs: set().union(*xs) if xs else set()
        if op.startswith("v_mfma"):
            self.kind = "mfma"
            self.wr, self.A, self.B, self.C = R[0], R[1], R[2], R[3]
            self.rd = self.A | self.B | self.C
            self.passes = 8 if "32x32x16" in op else 4
        elif op.startswith("v_"):
            self.kind = "valu"
            self.wr = set(R[0])
            self.rd = allr(R[1:])
            if op.startswith("v_permlane") and "swap" in op:
                self.wr = R[0] | R[1]
                self.rd = R[0] | R[1]
            elif op.startswith(("v_fmac", "v_dot2c")):
                self.rd |= R[0]
                self.C = set(R[0])
                self.A = allr(R[1:])
            elif op.startswith("v_dot2"):
                self.C = set(R[3])
                self.A = R[1] | R[2]
            elif op.endswith("_dpp"):
                self.rd |= R[0]
        elif op.startswith("ds_"):
            self.kind = "ds"
            if op.startswith(("ds_read", "ds_bpermute", "ds_permute", "ds_swizzle")):
                self.wr, self.rd = R[0], allr(R[1:])
            else:
                self.rd = allr(R)
        elif op.startswith(("buffer_", "global_")):
            self.kind = "vmem"
            self.lds = "lds" in mods or "_lds_" in op
            if "load" in op and not self.lds:
                self.wr, self.rd = R[0], allr(R[1:])
            else:
                self.rd = allr(R)
                if self.lds:
                    self.rd |= {("x", "m0")}
                if "store" in op and ("x3" in op or "x4" in op):
                    self.data = R[0] if op.startswith("buffer_") else R[1]
        elif op.startswith("s_"):
            self.kind = "salu"
            if op == "s_nop":
                self.states = int(toks[0], 0) + 1
            elif not op.startswith(NO_DST_S):
                self.wr, self.rd = R[0], allr(R[1:])
            else:
                self.rd = allr(R)
        else:
            raise ValueError("cannot parse: " + text)


def need(p, c):
    n = 0
    isv = lambda s: {r for r in s if r[0] in "va"}
    iss = lambda s: {r for r in s if r[0] == "s" or r == ("x", "vcc")}
    if p.kind == "valu":
        pw = isv(p.wr)
        if c.kind == "mfma" and pw & c.rd:
            n = max(n, 2)
        if c.kind == "valu":
            if p.op.startswith(TRANS) and not c.op.startswith(TRANS) and pw & c.rd:
                n = max(n, 1)
            if (c.op.startswith("v_permlane") or c.op.endswith("_dpp")) and pw & c.rd:
                n = max(n, 2)
            if c.op.startswith(("v_readfirstlane", "v_readlane")) and pw & c.rd:
                n = max(n, 1)
            if iss(p.wr) & c.rd:
                n = max(n, 4 if c.op.startswith(("v_readlane", "v_writelane")) else 2)
        if p.op.startswith("v_dot2") and pw & (c.rd | c.wr):
            same = c.kind == "valu" and c.op == p.op
            if not (same and not (pw & c.A)):
                n = max(n, 3)
        if c.kind == "vmem" and iss(p.wr) & c.rd:
            n = max(n, 5)
        if c.kind == "salu" and iss(p.wr) & c.rd and not c.op.startswith("s_cbranch"):
            n = max(n, 2)
    elif p.kind == "mfma":
        if c.kind == "mfma":
            if p.wr & (c.A | c.B):
                n = max(n, p.passes + 4)
            if p.wr & c.C and not (p.wr == c.C and p.passes == c.passes):
                n = max(n, p.passes + 2)
            if p.wr & c.wr and not (p.wr == c.wr and p.passes == c.passes):
                n = max(n, p.passes + 2)
        elif c.kind in ("valu", "ds", "vmem"):
            if p.wr & (c.rd | c.wr):
                n = max(n, p.passes + 4)
            if c.kind == "valu" and p.C & c.wr:
                n = max(n, p.passes - 1)
    elif p.kind == "vmem":
        if p.data & c.wr:
            n = max(n, 2)
    elif p.kind == "salu":
        if ("x", "m0") in p.wr and c.kind == "vmem" and c.lds:
            n = max(n, 1)
    return n


def pad_hazards(lines):
    out = []
    window = []
    nops = 0
    for text in lines:
        c = Ins(text)
        if c.kind == "label":
            out.append(text)
            continue
        dist, lack = 0, 0
        for p in reversed(window):
            lack = max(lack, need(p, c) - dist)
            dist += p.states
            if dist >= 20:
                break
        while lack > 0:
            k = min(lack, 16)
            nop = Ins(f"s_nop {k-1}")
            out.append("    " + nop.text)
            window.append(nop)
            lack -= k
            nops += 1
        out.append(text)
        window.append(c)
        if len(window) > 40:
            del window[:-24]
    return out, nops


class Pool:
    def __init__(self, kind, lo, hi):
        self.kind, self.free = kind, set(range(lo, hi))
        self.high = lo

    def alloc(self, n, align=None, at=None):
        if at is not None:
            assert all(at + i in self.free for i in range(n)), f"{self.kind}{at}+{n} busy"
            base = at
        else:
            align = align or (2 if n >= 2 else 1)
            base = next((b for b in sorted(self.free) if b % align == 0 and all(b + i in self.free for i in range(n))), None)
            assert base is not None, f"out of {self.kind} registers for {n}"
        for i in range(n):
            self.free.discard(base + i)
        self.high = max(self.high, base + n)
        return Reg(self, base, n)


class Reg:
    def __init__(self, pool, base, n):
        self.pool, self.base, self.n = pool, base, n

    def __str__(self):
        return self.r(0, self.n)

    def r(self, i, n=1):
        assert 0 <= i and i + n <= self.n, (i, n, self.n)
        k = self.pool.kind
        return f"{k}{self.base+i}" if n == 1 else f"{k}[{self.base+i}:{self.base+i+n-1}]"

    def __getitem__(self, i):
        return self.r(i)

    def free(self):
        for i in range(self.n):
            assert self.base + i not in self.pool.free
            self.pool.free.add(self.base + i)


class Gen:
    def __init__(self):
        self.lines = []
        self.vmq, self.lgq = [], []
        self.smem = False
        self.nlabel = 0
        self.V = Pool("v", 1, 256)
        self.A = Pool("a", 0, 256)
        self.S = Pool("s", 3, 102)
        self.clock = 0
        self.mfree = 0
        self.pump = None
        self.held = 0
        self.m0 = None
        self.q = 0
        self.vm_cost, self.vm_lat, self.vm_win = 90, 600, 720
        self.vmt, self.lgt = {}, {}
        self.lq = 0
        self.ta = 0

    def __call__(self, text):
        for ln in text.split("\n"):
            ln = ln.strip()
            if not ln:
                continue
            self.lines.append(ln if ln.endswith(":") else "    " + ln)
            op = ln.split()[0]
            if op.endswith(":"):
                continue
            if op.startswith("v_mfma"):
                start = max(self.clock, self.mfree)
                self.mfree = start + (32 if "32x32" in op else 16)
                self.clock = start + 8
            elif op.startswith(("v_pk_", "v_dot2")):
                self.clock = max(self.clock, self.mfree + 12 if self.mfree > self.clock - 12 else 0) + 4
            elif op.startswith(TRANS):
                self.clock += 8
            else:
                self.clock += 4
            if " m0," in ln and op.startswith("s_"):
                self.m0 = None
        if self.pump and not self.held:
            self.held += 1
            self.pump()
            self.held -= 1

    def hold(self):
        gen = self

        class H:
            def __enter__(self):
                gen.held += 1

            def __exit__(self, *a):
                gen.held -= 1
        return H()

    def slack(self):
        return self.mfree - self.clock

    def tick(self, n):
        self.clock += n

    def label(self, stem="L"):
        self.nlabel += 1
        return f"{stem}_{self.nlabel}"

    def vm(self, text, tag=None, cost=None, lat=None):
        self.vmq.append(tag)
        if cost is None:
            cost = self.vm_cost if "x4" in text else 25
        self.clock = max(self.clock, self.q - self.vm_win, self.ta - 70)
        self.ta = max(self.ta, self.clock) + (66 if "x4" in text else 30)
        self.q = max(self.q, self.clock) + cost
        done = self.q + (self.vm_lat if lat is None else lat)
        self.last_done = done = max(done, getattr(self, "last_done", 0))
        self.vmt[tag] = done
        self(text)

    def ds(self, text, tag=None):
        self.lgq.append(tag)
        cost = 52 if "write_b128" in text or "write_b96" in text else 16 if "b128" in text else 8
        self.lq = max(self.lq, self.clock) + cost
        self.lgt[tag] = self.lq + 64
        self(text)

    def backlog(self):
        return self.q - self.clock

    @staticmethod
    def _after(q, tag):
        idx = [i for i, t in enumerate(q) if t == tag]
        return None if not idx else len(q) - 1 - idx[-1]

    def wait(self, vm=None, lg=None):
        parts = []
        if vm is not None:
            n = 0 if vm == "*" else self._after(self.vmq, vm)
            if n is not None and (self.vmq or vm == "*"):
                n = min(n, 63)
                self.clock = max(self.clock, getattr(self, "last_done", 0) if vm == "*" else self.vmt[vm])
                parts.append(f"vmcnt({n})")
                self.vmq = self.vmq[len(self.vmq) - n:] if n else []
        if lg is not None:
            n = 0 if lg == "*" else self._after(self.lgq, lg)
            if n is not None and self.smem:
                n = 0
            if n is not None and (self.lgq or self.smem or lg == "*"):
                n = min(n, 15)
                self.clock = max(self.clock, self.lq + 64 if lg == "*" and self.lgq else self.lgt.get(lg, 0))
                parts.append(f"lgkmcnt({n})")
                self.lgq = self.lgq[len(self.lgq) - n:] if n else []
                if n == 0:
                    self.smem = False
        if parts:
            self("s_waitcnt " + " ".join(parts))

    def settle(self):
        self("s_nop 15")

    def text(self, align=True):
        lines, nops = pad_hazards(self.lines)
        self.nops = nops
        self.widened = 0
        if align:
            lines, self.widened = align_runs(lines)
        return "\n".join(lines) + "\n"


def sizes_of(lines, clang="llvm-mc"):
    import subprocess
    src = '.amdgcn_target "amdgcn-amd-amdhsa--gfx950"\n.text\n' + "\n".join(lines) + "\n"
    r = subprocess.run([clang, "-triple=amdgcn-amd-amdhsa", "-mcpu=gfx950", "-show-encoding"], input=src,
                       capture_output=True, text=True)
    assert r.returncode == 0, r.stderr[:2000]
    enc = [ln.count(",", ln.index("encoding:")) + 1 for ln in r.stdout.splitlines() if "encoding:" in ln]
    out, it = [], iter(enc)
    for ln in lines:
        t = ln.strip()
        out.append(0 if t.endswith(":") or t.startswith(".") or not t else next(it))
    return out


WIDEN = ("v_add_f32", "v_mul_f32", "v_mov_b32", "v_and_b32", "v_lshlrev_b32", "v_lshrrev_b32", "v_xor_b32", "v_add_u32",
         "v_sub_u32", "v_exp_f32", "v_rcp_f32", "v_max_f32", "v_sub_f32", "v_or_b32", "v_min_u32", "v_sqrt_f32")


def align_runs(lines, min_run=3):
    size = sizes_of(lines)
    lines = list(lines)
    pos, i, n, fixed = 0, 0, len(lines), 0
    last4 = None
    while i < n:
        if size[i] == 8:
            j = i
            while j < n and size[j] in (8, 0):
                j += 1
            run = sum(1 for k in range(i, j) if size[k])
            if pos % 8 and run >= min_run and last4 is not None:
                t = lines[last4].strip().split(None, 1)
                lines[last4] = f"    {t[0]}_e64 {t[1]}"
                size[last4] = 8
                pos += 4
                fixed += 1
            pos += 8 * run
            last4 = None
            i = j
            continue
        if size[i] == 4 and lines[i].split()[0] in WIDEN:
            last4 = i
        pos += size[i]
        i += 1
    return lines, fixed
```

```python
import copy
import os
import struct
import sys
from asmlib import ARG, NBYTES, KNAME, file_text
from kgen import Gen, Reg

F_H, F_U, F_X1, F_Y, F_HA, F_HB = 1, 2, 3, 4, 5, 6
STATS = 0x40000
HBUF, X1BUF, UBUF, YBUF, H2BUF = 0x100000, 0x300000, 0x500000, 0x700000, 0x900000
STAMPS = 0x2000000
OOB = 0x40000000

LA, LB, LC = 0, 65536, 131072
C_K, C_V, C_Q, C_CS = LC, LC + 9216, LC + 17920, LC + 26112
C_H, C_U = LC, LC + 8448
HP, UP = 4224, 1152
C_Y, C_BASE, C_OMG = LC, LC + 8192, LC + 24576
A_N = LA + 32768
NP = 8448
LDS_BYTES = 163840

GELU_C0 = -2.302208198144325
GELU_C1 = GELU_C0 * 0.044715
LOG2E = 1.4426950408889634

TILES = ([7, 6, 2], [5, 4, 3, 1, 0])


def fbits(x):
    return "0x%08x" % struct.unpack("<I", struct.pack("<f", x))[0]


class Opt:
    stamps = False
    nt_once = "nt"
    out_pol = "sc1"
    code_pf = True
    code_bytes = 40960
    amp = ""
    period = 90
    lat = 700
    thresh = 100
    conv_stop = 130
    align = True
    pretouch = False
    nap = 2
    upoll_at = 13
    ucheck_at = 17
    gap_1 = 0
    gap_2 = 0
    gap_c = 0
    bg_a = 2
    bg_b = 6
    bg_c = 9
    haflag_at = 0
    hbflag_at = 3
    apoll_at = 0
    xpoll_at = 118
    bpoll_at = 10
    ahead = 9
    conv_cap = 0
    q3b = 0
    q3a = 0
    cap_a = 22
    cap_b = 27
    norm_early = False
    flag_lat = 900
    fine = False
    l2pf = False
    xflag_at = 40
    nt_x = "nt"


def build(o=Opt):
    if not o.conv_cap:
        o.conv_cap = -1
        cap = build(o)[1]["conv_cap"]
        o.conv_cap = cap
        try:
            return build(o)
        finally:
            o.conv_cap = 0
    g = Gen()
    g.vm_cost, g.vm_lat, g.vm_win = o.period, o.lat, 8 * o.period
    V, A, S = g.V, g.A, g.S
    names = ["q", "w1", "ws", "dbg", "shift_k", "ssm_D", "gate_w", "k", "v", "w2", "w3", "w4", "ssm_k", "out"]
    R = {n: S.alloc(4, align=4) for n in names}
    sW, sJ, sP, sPP, sX = (S.alloc(1) for _ in range(5))
    sT = S.alloc(4, align=2)
    sOnes, sLo1, sHi1, sMask, sTmo = (S.alloc(1) for _ in range(5))
    sStamp = S.alloc(2, align=2)
    vStamp = V.alloc(1)
    stamp_names = []
    amp = o.amp.split(",") if o.amp else None
    sAmp = S.alloc(4, align=2) if amp else None
    tail = []

    model, bgat = {}, {}

    def stamp(name, real=False):
        model[name] = g.clock
        bgat[name] = "%s%s" % Bg.ops[Bg.idx][:2] if Bg.idx < len(Bg.ops) else "end"
        with g.hold():
            if amp and name in amp[:2]:
                g(f"s_memrealtime {sAmp.r(2*amp.index(name), 2)}")
                g.smem = True
                g.wait(lg="*")
            if o.stamps:
                g(f"s_mem{'real' if real else ''}time {sStamp}")
                g.smem = True
                g.wait(lg="*")
                if name not in stamp_names:
                    stamp_names.append(name)
                g(f"v_writelane_b32 {vStamp}, {sStamp[0]}, {stamp_names.index(name)}")

    def flag_set(val):
        with g.hold():
            g(f"s_mov_b64 exec, 1\nv_mov_b32 {vOne}, {val}")
            g.vm(f"buffer_store_dword {vOne}, off, {R['ws']}, {sFl} sc1", "flag")
            g("s_mov_b64 exec, -1")

    class Poll:
        def __init__(self, srd, vaddr, soff, need):
            self.t = V.alloc(1)
            self.tag = g.label("poll")
            self.cmp = f"v_cmp_gt_u32 vcc, {need}, {self.t}"
            self.ld = f"buffer_load_dword {self.t}, {vaddr}, {srd}, {soff} offen sc1"

        def issue(self):
            g.vm(self.ld, self.tag)

        def check(self, free=True, then=None):
            n = g.label("chk")
            with g.hold():
                g.wait(vm=self.tag)
                if then:
                    then()
                g(f"{self.cmp}\ns_cbranch_vccnz {n}_slow\n{n}_ok:")
            nap = f"s_sleep {o.nap}\n" if o.nap else ""
            tail.append(f"{n}_slow:\ns_sub_u32 {sTmo}, {sTmo}, 1\ns_cbranch_scc1 {n}_out\n{nap}{self.ld}\ns_waitcnt vmcnt(0)\n"
                        f"{self.cmp}\ns_cbranch_vccnz {n}_slow\ns_branch {n}_ok\n"
                        f"{n}_out:\ns_mov_b32 {sTmo}, 0\ns_branch {n}_ok")
            if free:
                self.t.free()

    def round_bf16(r):
        g(f"v_cvt_pk_bf16_f32 {r}, {r}, {r}")
        yield
        g(f"v_and_b32 {r}, {sMask}, {r}")
        yield

    def ln_stats(s1, s2, negmu, gk):
        for t in (f"v_mul_f32 {negmu}, {fbits(-1.0/512)}, {s1}", f"v_mul_f32 {s2}, {fbits(1.0/512)}, {s2}",
                  f"v_fma_f32 {s2}, -{negmu}, {negmu}, {s2}", f"v_max_f32 {s2}, 0, {s2}"):
            g(t)
            yield
        yield from round_bf16(s2)
        g(f"v_add_f32 {s2}, {fbits(1e-5)}, {s2}")
        yield
        yield from round_bf16(s2)
        g(f"v_sqrt_f32 {gk[2]}, {s2}")
        yield
        yield from round_bf16(negmu)
        yield from round_bf16(gk[2])
        g(f"v_rcp_f32 {s2}, {gk[2]}\ns_nop 0")
        yield
        for t in (f"v_mul_f32 {gk[1]}, {fbits(GELU_C0)}, {s2}", f"v_mul_f32 {gk[0]}, {s2}, {s2}",
                  f"v_mul_f32 {gk[0]}, {gk[0]}, {s2}", f"v_mul_f32 {gk[0]}, {fbits(GELU_C1)}, {gk[0]}"):
            g(t)
            yield

    def center_dot(regs, negmu, tmp):
        for b in range(0, len(regs), 4):
            for i in range(4):
                g(f"v_dot2_f32_bf16 {tmp[2*i]}, {regs[b+i]}, {sLo1}, {negmu}")
                g(f"v_dot2_f32_bf16 {tmp[2*i+1]}, {regs[b+i]}, {sHi1}, {negmu}")
            for i in range(4):
                g(f"v_cvt_pk_bf16_f32 {regs[b+i]}, {tmp[2*i]}, {tmp[2*i+1]}")
            yield

    def center_plain(regs, negmu, tmp):
        for i, r in enumerate(regs):
            a, b = tmp[2*(i & 1)], tmp[2*(i & 1) + 1]
            for t in (f"v_lshlrev_b32 {a}, 16, {r}", f"v_and_b32 {b}, {sMask}, {r}", f"v_add_f32 {a}, {a}, {negmu}",
                      f"v_add_f32 {b}, {b}, {negmu}", f"v_cvt_pk_bf16_f32 {r}, {a}, {b}"):
                g(t)
                yield

    def gelu_pk(acc, n, gk, out, tmp, done=None):
        kk, ss = gk.r(0, 2), gk.r(2, 2)
        for b in range(0, n, 8):
            P = range(0, 8, 2)
            for i in P:
                g(f"v_pk_mul_f32 {tmp.r(i,2)}, {acc.r(b+i,2)}, {acc.r(b+i,2)}")
            for i in P:
                g(f"v_pk_fma_f32 {tmp.r(i,2)}, {tmp.r(i,2)}, {kk}, {kk} op_sel:[0,0,1] op_sel_hi:[1,0,1]")
            for i in P:
                g(f"v_pk_mul_f32 {tmp.r(i,2)}, {tmp.r(i,2)}, {acc.r(b+i,2)}")
            for i in range(8):
                g(f"v_exp_f32 {tmp[i]}, {tmp[i]}")
            for i in P:
                g(f"v_pk_fma_f32 {tmp.r(i,2)}, {tmp.r(i,2)}, {ss}, {ss} op_sel_hi:[1,0,0]")
            for i in range(8):
                g(f"v_rcp_f32 {tmp[i]}, {tmp[i]}")
            for i in P:
                g(f"v_pk_mul_f32 {tmp.r(i,2)}, {tmp.r(i,2)}, {acc.r(b+i,2)}")
            for i in P:
                g(f"v_cvt_pk_bf16_f32 {out[(b+i)//2 % out.n]}, {tmp[i]}, {tmp[i+1]}")
            if done:
                done(b // 8)

    def gelu_plain(acc, n, gk, out, tmp, done):
        streams = [[], []]
        left = {}
        for b in range(0, n, 4):
            h = (b // 4) & 1
            T = [tmp[4*h + i] for i in range(4)]
            Q = range(4)
            ops = [f"v_mul_f32 {T[i]}, {acc[b+i]}, {acc[b+i]}" for i in Q]
            ops += [f"v_fma_f32 {T[i]}, {T[i]}, {gk[0]}, {gk[1]}" for i in Q]
            ops += [f"v_mul_f32 {T[i]}, {T[i]}, {acc[b+i]}" for i in Q]
            ops += [f"v_exp_f32 {T[i]}, {T[i]}" for i in Q]
            ops += [f"v_fma_f32 {T[i]}, {T[i]}, {gk[2]}, {gk[2]}" for i in Q]
            ops += [f"v_rcp_f32 {T[i]}, {T[i]}" for i in Q]
            ops += [f"v_mul_f32 {T[i]}, {T[i]}, {acc[b+i]}" for i in Q]
            f = b // 8
            left[f] = 2

            def guard(f=f):
                assert left.get(f - 2, 0) == 0
            ops += [(0, guard)] + [f"v_cvt_pk_bf16_f32 {out[(b+i)//2 % out.n]}, {T[i]}, {T[i+1]}" for i in (0, 2)]

            def fin(f=f):
                left[f] -= 1
                if left[f] == 0:
                    done(f)
            streams[h] += ops + [(4, fin)]
        streams[1] = [(0, lambda: None)] * 12 + streams[1]
        return streams

    def run(it):
        for _ in it:
            pass

    def chain(*its):
        for it in its:
            yield from it

    class Bg:
        ops, idx, cap = [], 0, 0
        dma_on = True
        last, gap = 0, 0

        @classmethod
        def ready(cls, force=False):
            if cls.idx >= min(cls.cap, len(cls.ops)):
                return False
            kind, key, _ = cls.ops[cls.idx]
            if force:
                return True
            if kind == "dma":
                return cls.dma_on and g.backlog() < o.thresh and g.clock >= cls.last + cls.gap
            if kind == "rd0":
                return g.clock >= g.vmt[f"sd{key}"]
            return True

        @classmethod
        def step(cls, force=False):
            if not cls.ready(force):
                return False
            kind, key, fn = cls.ops[cls.idx]
            cls.idx += 1
            with g.hold():
                fn()
            if kind == "dma":
                cls.last = g.clock
            return True

        @classmethod
        def find(cls, kind, key):
            return max(i for i, (k, y, _) in enumerate(cls.ops) if y == key and k.startswith(kind)) + 1

        @classmethod
        def flush(cls, idx):
            cap, cls.cap = cls.cap, max(cls.cap, idx)
            while cls.idx < idx:
                cls.step(True)
            cls.cap = cap

        @classmethod
        def burst(cls, n):
            while n > 0 and cls.idx < min(cls.cap, len(cls.ops)):
                kind = cls.ops[cls.idx][0]
                if kind == "rd0" and not cls.ready():
                    break
                cls.step(True)
                n -= kind == "dma"

    def pump_on():
        g.pump = Bg.step

    def pump_off():
        g.pump = None

    class Ops:
        def __init__(self, items):
            self.items = list(items)

        def cost(self):
            it = self.items[0]
            return it[0] if isinstance(it, tuple) else 8 if it.startswith(("v_exp", "v_rcp", "v_sqrt")) else 4

        def emit(self):
            it = self.items.pop(0)
            it[1]() if isinstance(it, tuple) else g(it)

        def drain(self):
            while self.items:
                self.emit()

    def fill(fillers, over=0, reserve=0):
        while True:
            room = g.slack() - reserve + over
            if room >= 4 and Bg.step():
                continue
            live = [f for f in fillers if (f.items if isinstance(f, Ops) else True)]
            fillers[:] = live
            pick = None
            for f in live:
                if not isinstance(f, Ops):
                    pick = f if room >= 4 else None
                    break
                if f.cost() <= room and (pick is None or len(f.items) > len(pick.items)):
                    pick = f
            if pick is None:
                return
            if isinstance(pick, Ops):
                pick.emit()
            elif next(pick, 1) is not None:
                fillers.remove(pick)

    def drain(fillers):
        while fillers:
            f = fillers[0]
            if isinstance(f, Ops):
                others = [x for x in fillers if isinstance(x, Ops) and x.items]
                while others:
                    for x in others:
                        x.emit()
                    others = [x for x in others if x.items]
                fillers[:] = [x for x in fillers if not isinstance(x, Ops)]
            else:
                run(f)
                fillers.pop(0)

    g("s_cmp_ge_u32 s2, 256\ns_cbranch_scc1 L_end")
    if amp and amp[0] == "entry":
        g(f"s_memrealtime {sAmp.r(0,2)}")
    for n in names:
        g(f"s_load_dwordx2 {R[n].r(0,2)}, s[0:1], {ARG[n]}")
    g.smem = True
    vOne, vL16, vL4, vDum = (V.alloc(1) for _ in range(4))
    t0, t2, t3 = (V.alloc(1) for _ in range(3))
    if o.code_pf:
        pc = V.alloc(2)
        per = o.code_bytes // 32
        assert per <= 2048
        g(f"s_getpc_b64 {sT.r(0,2)}")
        g(f"s_lshr_b32 {sT[2]}, s2, 3\ns_mul_i32 {sT[2]}, {sT[2]}, {per}")
        g(f"v_lshl_add_u32 {t0}, v0, 3, {sT[2]}")
        g(f"v_min_u32 {t0}, L_end-L_pc, {t0}")
        g("L_pc:")
        g(f"v_mov_b32 {pc[1]}, {sT[1]}")
        g(f"v_add_co_u32 {pc[0]}, vcc, {sT[0]}, {t0}")
        g(f"s_nop 1\nv_addc_co_u32 {pc[1]}, vcc, 0, {pc[1]}, vcc")
        g.vm(f"global_load_dword {vDum}, {pc}, off", "pf")
        pc.free()
    g(f"v_lshrrev_b32 {t0}, 6, v0\nv_and_b32 v0, 63, v0\nv_readfirstlane_b32 {sW}, {t0}")
    g(f"s_and_b32 {sX}, s2, 7\ns_lshr_b32 {sT[0]}, s2, 3\ns_and_b32 {sJ}, {sT[0]}, 7\ns_lshr_b32 {sPP}, {sT[0]}, 3")
    g(f"s_lshl_b32 {sP}, {sX}, 2\ns_add_u32 {sP}, {sP}, {sPP}")

    def srd_words(ns):
        for n in ns:
            g(f"s_mov_b32 {R[n][2]}, {NBYTES[n]}\ns_mov_b32 {R[n][3]}, 0x00020000")
    srd_words(["q", "w1", "ws", "dbg"])
    vC, vKq, vR8, vS8 = (V.alloc(1) for _ in range(4))
    g(f"v_and_b32 {vC}, 15, v0\nv_lshrrev_b32 {vKq}, 4, v0\nv_lshrrev_b32 {vR8}, 3, v0\nv_lshlrev_b32 {vR8}, 10, {vR8}\nv_and_b32 {vS8}, 7, v0")
    g(f"v_lshlrev_b32 {vL16}, 4, v0")
    sRow, sLdsW, sCol, sM, sOff = (S.alloc(1) for _ in range(5))
    g(f"s_lshr_b32 {sT[0]}, {sJ}, 2\ns_add_u32 {sT[0]}, {sT[0]}, 1\ns_sub_u32 {sT[1]}, 0, {sT[0]}")
    g(f"s_bitcmp1_b32 {sJ}, 1\ns_cselect_b32 {sT[0]}, {sT[0]}, {sT[1]}")
    g(f"s_lshl_b32 {sRow}, {sP}, 2\ns_add_u32 {sRow}, {sRow}, {sW}\ns_lshl_b32 {sRow}, {sRow}, 4")
    g(f"s_add_u32 {sT[0]}, {sRow}, {sT[0]}\ns_lshl_b32 {sT[0]}, {sT[0]}, 10")
    vQa, xd = V.alloc(2), V.alloc(2)
    g(f"v_xor_b32 {t0}, {vS8}, {vKq}\nv_lshl_add_u32 {vQa[0]}, {t0}, 4, {vR8}\nv_xor_b32 {vQa[1]}, 64, {vQa[0]}\nv_add_u32 {vQa[1]}, 7168, {vQa[1]}")
    g(f"v_add_u32 {xd[0]}, {sT[0]}, {vQa[0]}\nv_add_u32 {xd[1]}, {sT[0]}, {vQa[1]}")
    g(f"s_lshl_b32 {sLdsW}, {sW}, 14\ns_lshl_b32 {sCol}, {sJ}, 7")
    sFp, sFl, sLead = S.alloc(1), S.alloc(1), S.alloc(1)
    vLine = V.alloc(1)
    g(f"v_and_b32 {vLine}, 31, v0\nv_lshlrev_b32 {vLine}, 7, {vLine}\ns_lshl_b32 {sFp}, {sP}, 12\nv_mov_b32 {vOne}, 0")
    g(f"s_lshl_b32 {sT[0]}, {sJ}, 2\ns_add_u32 {sT[0]}, {sT[0]}, {sW}\ns_lshl_b32 {sFl}, {sT[0]}, 7\ns_add_u32 {sFl}, {sFl}, {sFp}")
    g(f"s_lshl_b32 {sT[1]}, {sP}, 2\ns_cmp_eq_u32 {sT[0]}, 0\ns_cselect_b32 {sLead}, {sT[1]}, {OOB}\ns_cselect_b32 {sT[3]}, {sFp}, {OOB}")
    if o.stamps:
        g(f"v_mov_b32 {vStamp}, 0")
    g.wait(lg="*")
    stamp("start_real", real=True)
    stamp("start")

    def x_dma(n):
        with g.hold():
            g(f"s_add_u32 m0, {sLdsW}, {LA + n*2048}\ns_xor_b32 {sT[0]}, {sCol}, {n << 7}")
            for hh in range(2):
                g.vm(f"buffer_load_dwordx4 {xd[hh]}, {R['q']}, {sT[0]} offen offset:{hh*1024} {o.nt_x} lds", f"x{n}")

    def w_dma(name, base, n, i):
        key = (name, n)
        sh = 2 if name == "w1" else 0
        if g.m0 != key:
            g(f"s_xor_b32 m0, {sM}, {base + (n << (12 + sh))}\ns_xor_b32 {sWo}, {sOff}, {n << (15 + sh)}")
            g.m0 = key
        g.vm(f"buffer_load_dwordx4 {wd[i]}, {R[name]}, {sWo} offen offset:{i*1024} lds", name + ("ab"[n >> 1] if sh else ""))

    sWo = S.alloc(1)
    g.vm_lat = 1500
    g.vm(f"buffer_store_dword {vOne}, {vLine}, {R['ws']}, {sT[3]} offen sc1", "clr")
    x_dma(0)
    g.vm_lat = o.lat
    w1seq = [(n, i) for n in range(4) for i in range(4)]
    x_dma(1)
    wd = V.alloc(4, at=244)
    g(f"v_and_b32 {t0}, 1, {vKq}\nv_lshlrev_b32 {t0}, 1, {t0}\nv_xor_b32 {t0}, {t0}, {vS8}\nv_lshl_add_u32 {wd[0]}, {t0}, 4, {vR8}")
    g(f"v_xor_b32 {t0}, 64, {wd[0]}\nv_add_u32 {wd[1]}, 7168, {t0}\nv_add_u32 {wd[2]}, 14336, {wd[0]}\nv_add_u32 {wd[3]}, 21504, {t0}")
    g(f"s_and_b32 {sT[0]}, {sPP}, 1\ns_lshl_b32 {sT[0]}, {sT[0]}, 2\ns_add_u32 {sT[0]}, {sT[0]}, {sW}\ns_lshl_b32 {sM}, {sT[0]}, 12")
    g(f"s_lshl_b32 {sT[1]}, {sJ}, 1\ns_xor_b32 {sT[0]}, {sT[0]}, {sT[1]}\ns_lshl_b32 {sOff}, {sT[0]}, 15\ns_add_u32 {sOff}, {sOff}, {sCol}")
    x_dma(2)
    x_dma(3)
    srd_words([n for n in names if n not in ("q", "w1", "ws", "dbg")])
    g(f"s_mov_b32 {sOnes}, 0x3f803f80\ns_mov_b32 {sLo1}, 0x00003f80\ns_mov_b32 {sHi1}, 0x3f800000")
    g(f"s_mov_b32 {sMask}, 0xffff0000\ns_mov_b32 {sTmo}, 0x40000")
    g(f"v_lshlrev_b32 {vL4}, 2, v0")
    shk, gw, vD = V.alloc(2), V.alloc(8, at=136), V.alloc(1)
    sCh = S.alloc(1)
    g(f"s_lshl_b32 {sCh}, {sJ}, 5\ns_add_u32 {sCh}, {sCh}, {sP}\ns_lshl_b32 {sCh}, {sCh}, 1\ns_lshr_b32 {sT[0]}, {sW}, 1\ns_add_u32 {sCh}, {sCh}, {sT[0]}")
    g(f"v_mov_b32 {vD}, 0")

    vR4, vC8 = V.alloc(1), V.alloc(1)
    g(f"v_bfe_u32 {vR4}, v0, 2, 2\nv_and_b32 {vC8}, 3, v0\nv_lshlrev_b32 {vC8}, 3, {vC8}")
    xa = V.alloc(2)
    g(f"v_lshrrev_b32 {t0}, 1, {vC}\nv_xor_b32 {t0}, {t0}, {vKq}\nv_lshlrev_b32 {t0}, 4, {t0}\nv_lshl_add_u32 {t0}, {vC}, 7, {t0}")
    g(f"v_add_u32 {xa[0]}, {sLdsW}, {t0}\nv_xor_b32 {xa[1]}, 64, {xa[0]}")
    wa = V.alloc(8, at=144)
    g(f"v_lshl_add_u32 {t0}, {vKq}, 3, {vR4}\nv_lshl_add_u32 {t0}, {t0}, 7, {vC8}")
    g(f"v_lshrrev_b32 {t2}, 1, {vR4}\nv_and_b32 {t3}, 1, {vKq}\nv_lshl_or_b32 {t2}, {t3}, 1, {t2}")
    g(f"v_xor_b32 {t2}, {sW}, {t2}\nv_lshl_add_u32 {t0}, {t2}, 5, {t0}\nv_add_u32 {wa[0]}, {LB}, {t0}")
    for T in range(1, 4):
        g(f"v_xor_b32 {wa[T]}, {32*T}, {wa[0]}")
    sPan, sHo = S.alloc(1), S.alloc(1)
    g(f"s_lshl_b32 {sHo}, {sP}, 16\ns_add_u32 {sPan}, {sHo}, {sCol}")
    g(f"s_add_u32 {sHo}, {sHo}, {sLdsW}\ns_lshl_b32 {sT[0]}, {sJ}, 11\ns_add_u32 {sHo}, {sHo}, {sT[0]}\ns_add_u32 {sHo}, {sHo}, {HBUF}")
    sL, sW3, sRot3, sW4, sIdle, sRing, sSt = (S.alloc(1) for _ in range(7))
    g(f"s_lshr_b32 {sT[0]}, {sJ}, 1\ns_mul_i32 {sL}, {sT[0]}, 7\ns_and_b32 {sT[1]}, {sJ}, 1\ns_lshl_b32 {sT[2]}, {sT[1]}, 2")
    g(f"s_add_u32 {sT[2]}, {sT[2]}, {sW}\ns_add_u32 {sL}, {sL}, {sT[2]}")
    g(f"s_cmp_eq_u32 {sT[2]}, 7\ns_cselect_b32 {sIdle}, {OOB}, 0")
    g(f"s_lshl_b32 {sW3}, {sL}, 7\ns_add_u32 {sW3}, {sW3}, {sIdle}\ns_lshl_b32 {sRot3}, {sX}, 1")
    g(f"s_mul_i32 {sW4}, {sW}, {448*1024}\ns_add_u32 {sW4}, {sW4}, {sCol}\ns_add_u32 {sRing}, {sLdsW}, {LB}")
    d3, ra = V.alloc(4), V.alloc(2)
    g(f"v_lshrrev_b32 {t0}, 3, v0\nv_and_b32 {t2}, 1, {vKq}\nv_lshlrev_b32 {t2}, 2, {t2}")
    g(f"v_xor_b32 {t3}, {t2}, {vS8}\nv_lshlrev_b32 {t3}, 4, {t3}")
    g(f"v_mul_u32_u24 {d3[0]}, 3584, {t0}\nv_add_u32 {d3[0]}, {d3[0]}, {t3}")
    for i in range(1, 4):
        g(f"v_add_u32 {d3[i]}, {i*(8*3584-1024)}, {d3[0]}")
    g(f"v_lshrrev_b32 {t0}, 5, v0\nv_lshl_add_u32 {t0}, {t0}, 2, {vR4}\nv_lshl_add_u32 {t0}, {t0}, 7, {vC8}")
    g(f"v_and_b32 {t2}, 1, {vKq}\nv_lshl_add_u32 {t0}, {t2}, 5, {t0}\nv_lshrrev_b32 {t2}, 1, {vR4}\nv_lshl_add_u32 {t0}, {t2}, 6, {t0}")
    g(f"v_add_u32 {ra[0]}, {sRing}, {t0}\nv_xor_b32 {ra[1]}, 64, {ra[0]}")
    if o.pretouch:
        g(f"v_lshlrev_b32 {t0}, 21, {vS8}")
        g.vm(f"buffer_load_dword {vDum}, {t0}, {R['ws']}, 0 offen offset:4092 sc1", "pf")
        for n in ("w1", "k", "v", "w2", "w3", "w4", "ssm_k", "out", "shift_k", "ssm_D", "gate_w"):
            g.vm(f"buffer_load_dword {vDum}, off, {R[n]}, 0", "pf")
    stamp("setup")

    xf = V.alloc(64, at=48)
    st = V.alloc(4, at=120)
    for i in range(4):
        g(f"v_mov_b32 {st[i]}, 0")

    def stats(n):
        g.wait(lg=f"x{n}")
        for i in range(8):
            g(f"v_dot2c_f32_bf16 {st[i & 1]}, {sOnes}, {xf[8*n+i]}")
            g(f"v_dot2c_f32_bf16 {st[2 + (i & 1)]}, {xf[8*n+i]}, {xf[8*n+i]}")
    for n in range(8):
        g.wait(vm=f"x{n}")
        for b in range(2):
            g.ds(f"ds_read_b128 {xf.r(8*n + 4*b, 4)}, {xa[b]} offset:{LA + n*2048}", f"x{n}")
        if n == 0:
            g(f"s_mov_b64 exec, 1\nv_mov_b32 {vOne}, 1")
            g.vm(f"buffer_store_dword {vOne}, off, {R['dbg']}, {sLead} sc1", "clr")
            g("s_mov_b64 exec, -1")
            sLead.free()
        if n + 4 < 8:
            x_dma(n + 4)
        else:
            for _ in range(2):
                w_dma("w1", LB, *w1seq.pop(0))
        if n:
            stats(n - 1)
    stats(7)
    xa.free(); xd.free()
    stamp("x_in")
    gk1 = V.alloc(4, at=124)
    for n, i in w1seq:
        Bg.ops.append(("dma", "w1", lambda n=n, i=i: w_dma("w1", LB, n, i)))
    Bg.cap = len(Bg.ops)
    pump_on()
    g(f"v_add_f32 {st[0]}, {st[0]}, {st[1]}\nv_add_f32 {st[2]}, {st[2]}, {st[3]}")
    for sw in ("32", "16"):
        g(f"v_mov_b32 {st[1]}, {st[0]}\nv_mov_b32 {st[3]}, {st[2]}")
        g(f"v_permlane{sw}_swap_b32 {st[0]}, {st[1]}\nv_permlane{sw}_swap_b32 {st[2]}, {st[3]}")
        g(f"v_add_f32 {st[0]}, {st[0]}, {st[1]}\nv_add_f32 {st[2]}, {st[2]}, {st[3]}")
    run(ln_stats(st[0], st[2], st[1], gk1))

    vW2 = V.alloc(1)
    sKV, sKV2, sC2 = S.alloc(1), S.alloc(1), S.alloc(1)
    g(f"v_lshlrev_b32 {t0}, 1, {vKq}\nv_xor_b32 {t0}, {t0}, {vS8}\nv_lshl_add_u32 {vW2}, {t0}, 4, {vR8}")
    g(f"s_add_u32 {sKV}, {sLdsW}, {sPan}\ns_lshl_b32 {sC2}, {sW}, 11\ns_add_u32 {sKV2}, {sKV}, 7168")
    vV = V.alloc(2)
    g(f"v_lshrrev_b32 {t2}, 5, v0\nv_lshlrev_b32 {t2}, 1, {t2}\nv_xor_b32 {t2}, {t2}, {vS8}\nv_lshl_add_u32 {vV[0]}, {t2}, 4, {vR8}\nv_xor_b32 {vV[1]}, 64, {vV[0]}")

    def small_loads():
        g(f"s_sub_u32 {sT[0]}, {sPan}, 8192\ns_add_u32 {sT[1]}, {sC2}, {C_Q}\ns_cmp_eq_u32 {sW}, 0")
        g(f"s_cselect_b32 {sT[0]}, {sT[0]}, {OOB}\ns_cselect_b32 m0, {C_K}, {sT[1]}\nv_add_u32 {t0}, {sT[0]}, {vW2}")
        g.vm(f"buffer_load_dwordx4 {t0}, {R['k']}, 0 offen {o.nt_once} lds", "kv", cost=30)
        g(f"v_lshlrev_b32 {t0}, 3, {vC}\ns_lshl_b32 {sT[0]}, {sJ}, 9\ns_lshl_b32 {sT[1]}, {sW}, 7\ns_add_u32 {sT[0]}, {sT[0]}, {sT[1]}")
        g.vm(f"buffer_load_dwordx2 {shk}, {t0}, {R['shift_k']}, {sT[0]} offen", "kv")
        g(f"v_lshlrev_b32 {t2}, 3, {vKq}\ns_lshl_b32 {sT[0]}, {sCh}, 1")
        for T in range(4):
            g.vm(f"buffer_load_dwordx2 {gw.r(2*T,2)}, {t2}, {R['gate_w']}, {sCol} offen offset:{32*T}", "kv")
        g.vm(f"buffer_load_short_d16_hi {vD}, off, {R['ssm_D']}, {sT[0]}", "kv")
        for i in range(4):
            g(f"v_add_u32 {wd[i]}, {i*7168}, {vW2}")
        g(f"s_lshl_b32 {sT[0]}, {sW}, 2\ns_xor_b32 {sT[0]}, {sT[0]}, {sPP}\ns_lshl_b32 {sM}, {sT[0]}, 12")
        g(f"s_lshl_b32 {sT[1]}, {sJ}, 1\ns_xor_b32 {sT[0]}, {sT[0]}, {sT[1]}\ns_lshl_b32 {sOff}, {sT[0]}, 15\ns_add_u32 {sOff}, {sOff}, {sCol}")
    Bg.ops.append(("dma", "kv", small_loads))

    def tile_dma(name, lds, va, so, i, pol):
        def fn():
            if g.m0 != name:
                g(f"s_add_u32 m0, {sC2}, {lds}")
                g.m0 = name
            g.vm(f"buffer_load_dwordx4 {va}, {R[name]}, {so} offen offset:{i*1024} {pol} lds", "kv")
        return ("dma", "kv", fn)
    Bg.ops += [tile_dma("k", C_K + 1024, vW2, sKV, 0, o.nt_once), tile_dma("k", C_K + 1024, vW2, sKV2, 1, o.nt_once),
               tile_dma("v", C_V, vV[0], sKV, 0, o.nt_once), tile_dma("v", C_V, vV[1], sKV2, 1, o.nt_once),
               tile_dma("q", C_Q, vQa[0], sKV, 0, ""), tile_dma("q", C_Q, vQa[1], sKV, 1, "")]
    for n in range(4):
        for i in range(4):
            Bg.ops.append(("dma", "w2", lambda n=n, i=i: w_dma("w2", LA, n, i)))
    w3r = A.alloc(256)
    w4v = Reg(V, 160, 96)
    sG4 = []
    d4 = Reg(V, d3.base, 4)

    def w4home(n, ft, e2=None):
        k, b = ("v", 160 + 8*n + 4*ft) if n < 12 else ("a", 8*(n-12) + 4*ft)
        return f"{k}[{b}:{b+3}]" if e2 is None else f"{k}[{b+2*e2}:{b+2*e2+1}]"

    rx = []
    sRx = []
    prev = lambda n: n - 4 if n < 26 else None if n < 28 else n - 6
    slot = lambda n: (n & 3) if n < 26 else n - 26

    def st_setup(n):
        def fn():
            if n == 26:
                rx.append(V.alloc(2))
                sRx.append(S.alloc(1))
                g(f"s_lshl_b32 {sRx[0]}, {sW}, 13\ns_sub_u32 {sSt}, {sRx[0]}, {sRing}\nv_add_u32 {rx[0][0]}, {sSt}, {ra[0]}\nv_add_u32 {rx[0][1]}, {sSt}, {ra[1]}")
            if n >= 4 and prev(n) is not None:
                g.wait(lg=f"sr{prev(n)}")
            if n < 16:
                g(f"s_xor_b32 {sSt}, {sRot3}, {n}\ns_mul_i32 {sSt}, {sSt}, {32*3584}\ns_add_u32 {sSt}, {sSt}, {sW3}")
            else:
                if n == 16:
                    g(f"v_and_b32 {d4[1]}, 127, {d3[0]}\nv_lshrrev_b32 {d4[0]}, 3, v0\nv_lshl_add_u32 {d4[0]}, {d4[0]}, 10, {d4[1]}")
                    for i in range(1, 4):
                        g(f"v_add_u32 {d4[i]}, {i*7168}, {d4[0]}")
                g(f"s_lshl_b32 {sSt}, {sG4[n-16]}, 4\ns_add_u32 {sSt}, {sSt}, {sW4}")
        return ("set", n, fn)

    def st_dma(n, i):
        def fn():
            if g.m0 != ("st", n):
                g(f"s_add_u32 m0, {sRx[0] if n in (26, 27) else sRing}, {slot(n)*4096}")
                g.m0 = ("st", n)
            g.vm(f"buffer_load_dwordx4 {d3[i]}, {R['w3' if n < 16 else 'w4']}, {sSt} offen offset:{i*1024} lds", f"sd{n}")
        return ("dma", n, fn)

    def st_rd(n, u, ft, e2):
        def fn():
            g.wait(vm=f"sd{n}")
            if n < 16:
                dst, off = w3r.r(16*n + 8*u + 4*ft + 2*e2, 2), e2 * 2048 + u * 1024
            else:
                dst, off = w4home(2*(n-16) + u, ft, e2), u * 2048 + e2 * 1024
            g.ds(f"ds_read_b64_tr_b16 {dst}, {(rx[0] if n in (26, 27) else ra)[ft]} offset:{slot(n)*4096 + off}", f"sr{n}")
        return ("rd0" if (u, ft, e2) == (0, 0, 0) else "rd", n, fn)
    allrd = lambda n: [st_rd(n, u, ft, e2) for u in range(2) for ft in range(2) for e2 in range(2)]
    alldma = lambda n: [st_setup(n)] + [st_dma(n, i) for i in range(4)]
    for n in range(25):
        rds = allrd(n - 3) if n >= 3 else []
        Bg.ops.append(st_setup(n))
        for i in range(4):
            Bg.ops.append(st_dma(n, i))
            Bg.ops += rds[2*i:2*i+2]
    Bg.ops += alldma(25) + alldma(26) + alldma(27)
    Bg.ops += allrd(22) + allrd(23)[:4] + alldma(28) + allrd(23)[4:] + allrd(24)[:4] + alldma(29) + allrd(24)[4:]
    for n in range(25, 30):
        Bg.ops += allrd(n)

    tmp = V.alloc(8, at=112)
    wf = V.alloc(48, at=160)
    acc = V.alloc(16, at=208)
    cs = V.alloc(16, at=224)
    ones = V.alloc(4, at=240)
    vCs = V.alloc(1)
    for i in range(4):
        g(f"v_mov_b32 {ones[i]}, {sOnes}")
    g(f"s_lshl_b32 {sT[0]}, {sW}, 6\ns_add_u32 {sT[0]}, {sT[0]}, {C_CS}\nv_lshl_add_u32 {vCs}, {vKq}, 4, {sT[0]}")
    vP32 = V.alloc(1)
    pd = Poll(R["dbg"], vP32, 0, 1)
    g(f"v_and_b32 {vP32}, 124, {vL4}")
    sHs = S.alloc(2)
    g(f"s_lshr_b32 {sT[0]}, {sW}, 1\ns_lshl_b32 {sT[0]}, {sT[0]}, 10\ns_add_u32 {sHs[0]}, {sHo}, {sT[0]}\ns_xor_b32 {sHs[1]}, {sHs[0]}, 1024")
    pump_off()

    def wreads(ks, first):
        for T in range(4):
            for e2 in range(2):
                ad, off = (wa[T], ks*4096 + e2*512) if first else (wa[2*T + e2], ks*4096)
                g.ds(f"ds_read_b64_tr_b16 {wf.r(16*(ks % 3) + 4*T + 2*e2, 2)}, {ad} offset:{off}", f"w{ks}")
            yield

    def gemm16(tok, first, vmtag=None, hook=None, pre=None):
        for ks in range(16):
            if pre:
                pre(ks)
            nxt = wreads(ks + 2, first) if ks < 14 else iter(())
            g.wait(vm=vmtag and f"{vmtag}{ks}", lg=f"w{ks}")
            for T in range(4):
                g(f"v_mfma_f32_16x16x32_bf16 {acc.r(4*T,4)}, {wf.r(16*(ks % 3) + 4*T, 4)}, {tok.r(4*ks,4)}, {acc.r(4*T,4) if ks else 0}")
                next(nxt, None)
            if first:
                g(f"v_mfma_f32_16x16x32_bf16 {cs.r(0,4)}, {wf.r(16*(ks % 3), 4)}, {ones}, {cs.r(0,4) if ks else 0}")
            if hook:
                hook(ks)

    Bg.flush(Bg.find("dma", "w1"))
    Bg.cap = Bg.find("dma", "w2")
    g.wait(vm="w1a")
    g("s_barrier")
    stamp("w1_in")
    run(wreads(0, True))
    run(wreads(1, True))

    def pre1(ks):
        if ks == 6:
            g.wait(vm="w1b")
            g("s_barrier")

    def hook1(ks):
        Bg.step()
    gemm16(xf, True, hook=hook1, pre=pre1)
    ones.free()
    g.ds(f"ds_write_b128 {vCs}, {cs.r(0,4)}", "csw")
    Bg.flush(Bg.find("dma", "kv"))
    for i in range(4):
        g(f"v_fmac_f32 {acc[i]}, {st[1]}, {cs[i]}")
    g.wait(lg="csw")
    g("s_barrier")
    stamp("g1_mfma")
    for i in range(1, 4):
        g(f"v_xor_b32 {t0}, {64*i}, {vCs}")
        g.ds(f"ds_read_b128 {cs.r(4*i,4)}, {t0}", f"cs{i}")
    vCs.free()
    pd.issue()
    hp = V.alloc(8, at=128)
    Bg.cap = len(Bg.ops)
    pump_on()
    for i in range(1, 4):
        g.wait(lg=f"cs{i}")
        for e in range(4):
            g(f"v_fmac_f32 {acc[4*i+e]}, {st[1]}, {cs[4*i+e]}")
    st.free(); cs.free()

    def h_store(gg):
        g.vm(f"buffer_store_dwordx4 {hp.r(4*gg,4)}, {vL16}, {R['ws']}, {sHs[gg]} offen sc1", "hst")
    gelu_pk(acc, 16, gk1, hp, tmp, h_store)
    gk1.free(); sHs.free()
    Bg.gap = o.gap_1
    stamp("h_st")

    for n in ("k", "v", "q", "w1", "shift_k", "ssm_D", "gate_w"):
        R[n].free()
    for r in (sKV, sKV2, sRow, vV, vW2, vQa):
        r.free()
    qp = V.alloc(8, at=120)
    g(f"v_lshrrev_b32 {t0}, 1, {vC}\nv_lshrrev_b32 {t2}, 1, {vKq}\nv_xor_b32 {t0}, {t0}, {t2}\nv_lshlrev_b32 {t0}, 4, {t0}")
    g(f"v_lshl_add_u32 {t0}, {vC}, 7, {t0}\nv_and_b32 {t2}, 1, {vKq}\nv_lshl_add_u32 {t0}, {t2}, 3, {t0}")
    sQ = sC2
    g(f"s_add_u32 {sQ}, {sC2}, {C_Q}\nv_add_u32 {t0}, {sQ}, {t0}")
    qa = V.alloc(1)
    g(f"v_mov_b32 {qa}, {t0}")
    ka = V.alloc(3)
    for m in range(2):
        g(f"v_sub_u32 {t0}, {vKq}, {vR4}\nv_add_u32 {t0}, {8 + 4*m}, {t0}\nv_bfe_u32 {t2}, {t0}, 1, 2\nv_xor_b32 {t2}, {sW}, {t2}")
        g(f"v_lshl_add_u32 {t2}, {t2}, 5, {vC8}\nv_lshl_add_u32 {t2}, {t0}, 7, {t2}\nv_add_u32 {ka[m]}, {C_K}, {t2}")
    g(f"v_lshl_add_u32 {t0}, {vR4}, 2, {vKq}\nv_xor_b32 {t2}, {sW}, {vR4}\nv_lshl_add_u32 {t2}, {t2}, 5, {vC8}")
    g(f"v_lshl_add_u32 {t2}, {t0}, 7, {t2}\nv_add_u32 {ka[2]}, {C_V}, {t2}")
    kk = xf
    up = V.alloc(8, at=152)

    def kv_reads(m0):
        g.ds(f"ds_read_b64_tr_b16 {kk.r(32 + m0//2, 2)}, {ka[2]} offset:{m0*512}", f"k{m0}")
        for m in range(m0, m0 + 4):
            g.ds(f"ds_read_b64_tr_b16 {kk.r(2*m, 2)}, {ka[m & 1]} offset:{(m >> 1)*1024}", f"k{m0}")
    g.wait(vm="kv")
    g("s_barrier")
    for T in range(4):
        g(f"v_xor_b32 {t2}, {32*T}, {qa}")
        g.ds(f"ds_read_b64 {qp.r(2*T,2)}, {t2}", "q")
    qa.free()
    kv_reads(0)
    kv_reads(4)
    for m0 in range(0, 16, 4):
        g.wait(lg=f"k{m0}")
        if m0 + 8 < 16:
            kv_reads(m0 + 8)
        for m in range(m0, m0 + 4):
            g(f"v_dot2_f32_bf16 {kk[40+m]}, {kk[2*m]}, {shk[0]}, 0")
        for m in range(m0, m0 + 4):
            g(f"v_dot2_f32_bf16 {kk[40+m]}, {kk[2*m+1]}, {shk[1]}, {kk[40+m]}")
        for i in range(2):
            g(f"v_lshlrev_b32 {tmp[2*i]}, 16, {kk[32 + m0//2 + i]}\nv_and_b32 {tmp[2*i+1]}, {sMask}, {kk[32 + m0//2 + i]}")
        for i in range(2):
            g(f"v_pk_mul_f32 {tmp.r(2*i,2)}, {tmp.r(2*i,2)}, {kk.r(40 + m0 + 2*i, 2)}")
        for i in range(2):
            g(f"v_cvt_pk_bf16_f32 {up[m0//2 + i]}, {tmp[2*i]}, {tmp[2*i+1]}")
    shk.free(); ka.free()
    g(f"v_and_b32 {t0}, 7, {vC}\nv_lshlrev_b32 {t2}, 1, {vKq}\nv_xor_b32 {t0}, {t0}, {t2}\nv_lshlrev_b32 {t0}, 4, {t0}")
    g(f"v_lshl_add_u32 {t0}, {vC}, 7, {t0}\nv_add_u32 {t0}, {sQ}, {t0}\nv_xor_b32 {t2}, 16, {t0}")
    g.ds(f"ds_write_b128 {t0}, {up.r(0,4)}", "uw")
    g.ds(f"ds_write_b128 {t2}, {up.r(4,4)}", "uw")
    g(f"v_lshlrev_b32 {t3}, 7, {vC}")
    pd.check()
    R["dbg"].free()
    g.wait(vm="hst")
    flag_set(F_H)
    t_hflag = g.clock
    if o.l2pf:
        g.vm(f"buffer_load_dword {vDum}, {t3}, {R['ws']}, {sHo} offen sc1", "pf")
    hp.free()
    vP8 = V.alloc(1)
    sFh = S.alloc(1)
    g(f"v_lshlrev_b32 {vP8}, 9, {vS8}\ns_lshl_b32 {sFh}, {sW}, 7\ns_add_u32 {sFh}, {sFh}, {sFp}")
    ph = Poll(R["ws"], vP8, sFh, F_H)
    stamp("h_out")
    g(f"v_lshrrev_b32 {t0}, 3, v0\nv_xor_b32 {t2}, {t0}, {vS8}\nv_lshlrev_b32 {t2}, 4, {t2}")
    g(f"v_lshl_add_u32 {t2}, {t0}, 7, {t2}\nv_add_u32 {t2}, {sQ}, {t2}")
    g.wait(lg="uw")
    g.ds(f"ds_read_b128 {up.r(0,4)}, {t2}", "ur")
    g.ds(f"ds_read_b128 {up.r(4,4)}, {t2} offset:1024", "ur")
    vT4k = V.alloc(1)
    g(f"v_lshlrev_b32 {t3}, 4, {vS8}\nv_lshl_add_u32 {vT4k}, {t0}, 12, {t3}")
    sTr = S.alloc(1)
    g(f"s_lshl_b32 {sT[0]}, {sJ}, 18\ns_lshl_b32 {sT[1]}, {sW}, 16\ns_add_u32 {sTr}, {sT[0]}, {sT[1]}\ns_lshl_b32 {sT[0]}, {sP}, 7\ns_add_u32 {sTr}, {sTr}, {sT[0]}")
    g(f"s_add_u32 {sT[0]}, {sTr}, {UBUF}\ns_add_u32 {sT[1]}, {sTr}, {UBUF + 32768}")
    g.wait(lg="ur")
    g.vm(f"buffer_store_dwordx4 {up.r(0,4)}, {vT4k}, {R['ws']}, {sT[0]} offen sc1", "ust")
    g.vm(f"buffer_store_dwordx4 {up.r(4,4)}, {vT4k}, {R['ws']}, {sT[1]} offen sc1", "ust")
    gs = V.alloc(4)
    g(f"v_mov_b32 {gs[1]}, 0\nv_mov_b32 {gs[3]}, 0")
    for i in range(8):
        g(f"v_dot2c_f32_bf16 {gs[1]}, {qp[i]}, {gw[i]}")
    gw.free()
    g(f"v_lshl_add_u32 {t0}, {vKq}, 2, {vR4}\nv_bfe_u32 {t2}, {t0}, 1, 2\nv_lshl_add_u32 {t0}, {t0}, 7, {vC8}")
    g(f"s_and_b32 {sT[0]}, {sW}, 1\ns_lshl_b32 {sT[0]}, {sT[0]}, 11\nv_lshl_add_u32 {t0}, {t2}, 5, {t0}\nv_add_u32 {wa[0]}, {sT[0]}, {t0}")
    for i in range(1, 8):
        g(f"v_xor_b32 {wa[i]}, {32*(i >> 1) + 2048*(i & 1)}, {wa[0]}")
    sCH, sCU, sX1, sX1s, sSto, sStw, sY, sUl = (S.alloc(1) for _ in range(8))
    g(f"s_lshr_b32 {sT[0]}, {sW}, 1\ns_mul_i32 {sCH}, {sT[0]}, {HP}\ns_add_u32 {sCH}, {sCH}, {C_H}")
    g(f"s_mul_i32 {sCU}, {sT[0]}, {4*UP}\ns_add_u32 {sCU}, {sCU}, {C_U}")
    g(f"s_lshl_b32 {sX1}, {sP}, 16\ns_add_u32 {sX1}, {sX1}, {X1BUF}")
    g(f"s_lshl_b32 {sT[0]}, {sT[0]}, 15\ns_and_b32 {sT[1]}, {sW}, 1\ns_lshl_b32 {sT[2]}, {sT[1]}, 8\ns_add_u32 {sT[0]}, {sT[0]}, {sT[2]}")
    g(f"s_lshl_b32 {sT[2]}, {sJ}, 12\ns_add_u32 {sT[0]}, {sT[0]}, {sT[2]}\ns_add_u32 {sX1s}, {sT[0]}, {sX1}")
    g(f"s_lshl_b32 {sSto}, {sP}, 13\ns_add_u32 {sSto}, {sSto}, {STATS}")
    g(f"s_lshl_b32 {sT[0]}, {sJ}, 10\ns_lshl_b32 {sT[2]}, {sW}, 8\ns_add_u32 {sT[0]}, {sT[0]}, {sT[2]}\ns_add_u32 {sStw}, {sT[0]}, {sSto}")
    g(f"s_lshl_b32 {sY}, {sCh}, 12\ns_lshl_b32 {sT[1]}, {sT[1]}, 6\ns_add_u32 {sUl}, {sY}, {sT[1]}\ns_add_u32 {sUl}, {sUl}, {UBUF}\ns_add_u32 {sY}, {sY}, {YBUF}")
    sG4 += [S.alloc(1) for _ in range(14)]
    g(f"s_mul_i32 {sT[0]}, {sX}, 7\ns_lshr_b32 {sT[0]}, {sT[0]}, 2\ns_lshl_b32 {sG4[0]}, {sT[0]}, 11")
    for n in range(1, 14):
        g(f"s_add_u32 {sG4[n]}, {sG4[n-1]}, 2048\ns_cmp_eq_u32 {sG4[n]}, {14*2048}\ns_cselect_b32 {sG4[n]}, 0, {sG4[n]}")
    Bg.flush(Bg.find("dma", "w2"))
    for r in (R["w2"], sM, sOff, sWo, wd):
        r.free()
    g(f"v_mov_b32 {tmp[0]}, 0\nv_mov_b32 {tmp[1]}, 0")
    g(f"v_mul_u32_u24 {t0}, {UP}, {vKq}\nv_lshl_add_u32 {t0}, {vC}, 3, {t0}\nv_add_u32 {t0}, {sCU}, {t0}\nv_add_u32 {t2}, {sCH}, {vC8}")
    pump_off()
    g.wait(vm="w2")
    g("s_barrier")
    Bg.flush(Bg.find("dma", o.bg_a))
    g.wait(vm="ust")
    flag_set(F_U)
    Bg.flush(Bg.find("dma", o.bg_b))
    ph.issue()
    stamp("u_out")
    g.ds(f"ds_write_b64 {t0}, {tmp.r(0,2)}")
    g.ds(f"ds_write_b64 {t2}, {tmp.r(0,2)}")
    run(wreads(0, False))
    run(wreads(1, False))

    ph.check()
    Bg.gap = o.gap_2
    vP8.free(); sFh.free()
    stamp("h_flag")
    sHl2 = S.alloc(1)

    def h1_load(ks):
        if ks & 1 == 0:
            g(f"s_xor_b32 {sHl2}, {sHo}, {ks << 10}")
        g.vm(f"buffer_load_dwordx4 {xf.r(4*ks,4)}, {vL16}, {R['ws']}, {sHl2} offen offset:{(ks & 1)*1024} sc1", f"h{ks}")
    for ks in range(8):
        h1_load(ks)
    g(f"v_lshlrev_b32 {vP32}, 5, {vLine}\ns_lshr_b32 {sT[1]}, {sP}, 3\ns_lshl_b32 {sT[1]}, {sT[1]}, 7\ns_lshl_b32 {sT[3]}, {sJ}, 9\ns_add_u32 {sT[3]}, {sT[1]}, {sT[3]}")
    pu = Poll(R["ws"], vP32, sT[3], F_U)
    g(f"s_and_b32 {sT[2]}, {sW}, 1\ns_lshl_b32 {sT[2]}, {sT[2]}, 11\ns_lshl_b32 {sT[1]}, {sCh}, 12\ns_add_u32 {sT[1]}, {sT[1]}, {sT[2]}")
    g(f"s_add_u32 {sT[2]}, {sT[2]}, {sCH}")

    g(f"v_lshrrev_b32 {t3}, 1, v0\nv_and_b32 {t2}, 1, v0\nv_lshlrev_b32 {t2}, 4, {t2}\nv_lshl_add_u32 {t3}, {t3}, 7, {t2}")
    g(f"s_and_b32 {sT[0]}, {sW}, 1\ns_mul_i32 {sT[0]}, {sT[0]}, {2*UP}\ns_add_u32 {sT[0]}, {sT[0]}, {sCU}")

    def u_loads():
        g.held += 1
        pu.check()
        g(f"s_add_u32 m0, {sT[0]}, 128\ns_nop 0")
        g.vm(f"buffer_load_dwordx4 {t3}, {R['ws']}, {sUl} offen sc1 lds", "cin")
        g(f"s_add_u32 m0, {sT[0]}, {128 + UP - 32}\ns_nop 0")
        g.vm(f"buffer_load_dwordx4 {t3}, {R['ws']}, {sUl} offen offset:32 sc1 lds", "cin")
        g.held -= 1

    def hook2(ks):
        if ks < 8:
            h1_load(ks + 8)
        if ks == o.upoll_at:
            pu.issue()
        if ks == 8:
            g(f"s_add_u32 m0, {sT[2]}, 32\ns_nop 0")
            for i in range(2):
                g.vm(f"buffer_load_dwordx4 {vL16}, {R['ssm_k']}, {sT[1]} offen offset:{i*1024} {o.nt_once} lds", "cin")
        if ks > 8:
            Bg.step()
            Bg.step()
    gemm16(xf, False, vmtag="h", hook=hook2)
    R["ssm_k"].free(); sHl2.free()
    stamp("g2_mfma")
    wa.free(); wf.free()
    up.free()
    pump_on()
    x1p = V.alloc(8, at=128)
    g(f"v_lshlrev_b32 {t0}, 9, {vKq}\nv_lshl_add_u32 {t0}, {vC}, 4, {t0}")
    for T in range(0, 4, 2):
        for i in range(4):
            g(f"v_dot2_f32_bf16 {tmp[2*i]}, {qp[2*T+i]}, {sLo1}, {acc[4*T+2*i]}")
            g(f"v_dot2_f32_bf16 {tmp[2*i+1]}, {qp[2*T+i]}, {sHi1}, {acc[4*T+2*i+1]}")
        for i in range(4):
            g(f"v_cvt_pk_bf16_f32 {x1p[2*T+i]}, {tmp[2*i]}, {tmp[2*i+1]}")
        g.vm(f"buffer_store_dwordx4 {x1p.r(2*T,4)}, {t0}, {R['ws']}, {sX1s} offen offset:{T*1024} sc1", "xst")
    acc.free()
    if o.ucheck_at == 16:
        u_loads()
    g(f"v_mov_b32 {gs[0]}, 0\nv_mov_b32 {gs[2]}, 0")
    for i in range(8):
        g(f"v_dot2c_f32_bf16 {gs[0]}, {sOnes}, {x1p[i]}")
        g(f"v_dot2c_f32_bf16 {gs[2]}, {x1p[i]}, {x1p[i]}")
    g(f"v_permlane32_swap_b32 {gs[0]}, {gs[2]}\nv_permlane32_swap_b32 {gs[1]}, {gs[3]}")
    g(f"v_add_f32 {gs[0]}, {gs[0]}, {gs[2]}\nv_add_f32 {gs[1]}, {gs[1]}, {gs[3]}")
    g(f"v_permlane16_swap_b32 {gs[0]}, {gs[1]}\nv_add_f32 {gs[0]}, {gs[0]}, {gs[1]}")
    g.vm(f"buffer_store_dword {gs[0]}, {vL4}, {R['ws']}, {sStw} offen sc1", "xst")
    sStw.free()
    stamp("x1_st")
    if o.ucheck_at == 17:
        u_loads()
    sUl.free(); vP32.free()

    pump_on()
    aA, aB, aN, aU, aY, vXl = (V.alloc(1) for _ in range(6))
    g(f"v_lshlrev_b32 {t0}, 6, {vKq}\nv_add_u32 {t0}, {t0}, {vC8}\nv_lshlrev_b32 {t2}, 3, {vR4}\nv_sub_u32 {t0}, {t0}, {t2}")
    g(f"s_add_u32 {sT[0]}, {sCH}, 32\nv_add_u32 {aA}, {sT[0]}, {t0}")
    g(f"v_lshlrev_b32 {t0}, 3, {vC}\nv_lshlrev_b32 {t2}, 4, {vKq}\nv_sub_u32 {t0}, {t0}, {t2}\ns_add_u32 {sT[0]}, {sCU}, 56\nv_add_u32 {aB}, {sT[0]}, {t0}")
    g(f"v_lshl_add_u32 {t0}, {vC}, 2, {vKq}\ns_lshr_b32 {sT[0]}, {sW}, 1\ns_mul_i32 {sT[0]}, {sT[0]}, {NP}\ns_add_u32 {sT[0]}, {sT[0]}, {A_N}")
    g(f"v_lshl_add_u32 {aN}, {t0}, 4, {sT[0]}\ns_add_u32 {sT[1]}, {sCU}, 128\nv_lshl_add_u32 {aU}, {t0}, 1, {sT[1]}")
    g(f"v_lshrrev_b32 {t0}, 2, {vC}\nv_lshlrev_b32 {t0}, 7, {t0}\nv_lshl_add_u32 {t0}, {vKq}, 5, {t0}\nv_add_u32 {aY}, {t0}, {vC8}")
    g(f"v_lshrrev_b32 {t0}, 1, {vC}\nv_lshlrev_b32 {t0}, 9, {t0}\nv_and_b32 {t2}, 1, v0\nv_lshl_add_u32 {vXl}, {t2}, 7, {t0}")
    w4v = V.alloc(96, at=160)
    pq = Reg(V, 160, 60)
    cB = Reg(V, 224, 16)
    uu = lambda ti, m: f"v{(240 + 4*ti + m) if ti < 4 else 220 + m}"
    cA = xf
    for ti in range(5):
        for r in (4, 5, 10, 11):
            g(f"v_mov_b32 {pq[12*ti + r]}, 0")
    g(f"v_mov_b32 {tmp[0]}, 0\nv_mov_b32 {tmp[1]}, 0\nv_mov_b32 {tmp[2]}, 0\nv_mov_b32 {tmp[3]}, 0\nv_mov_b32 {t0}, {sT[0]}")
    pump_off()
    Bg.flush(Bg.find("dma", o.bg_c))
    g.wait(vm="cin", lg="*")
    g("s_barrier")
    stamp("u_in")
    g.ds(f"ds_write_b128 {t0}, {tmp.r(0,4)}")
    px = Poll(R["ws"], vLine, sFp, F_X1)
    lodd, ljoin = g.label("odd"), g.label("join")
    keys = ("vmq", "lgq", "vmt", "lgt", "clock", "mfree", "m0", "q", "lq", "last_done", "ta")
    saved = (copy.deepcopy({k: getattr(g, k) for k in keys}), Bg.idx)
    Bg.cap = o.conv_cap if o.conv_cap > 0 else Bg.find("dma", 18)
    sv = Reg(V, 224, 16)
    nb = xf
    sX1l, sSto2, sXo = S.alloc(1), S.alloc(1), S.alloc(1)
    vSt = V.alloc(1)

    def x1_loads(th):
        for jj in range(8):
            g.vm(f"buffer_load_dword {sv[8*th+jj]}, {vSt}, {R['ws']}, {(sSto, sSto2)[jj >> 2]} offen offset:{(jj & 3)*1024 + th*512} sc1", f"s{th}")
            yield
        for i in range(8):
            if i & 1 == 0:
                g(f"s_xor_b32 {sXo}, {sX1l}, {(i >> 1) << 11 | th << 15}")
            g.vm(f"buffer_load_dwordx4 {nb.r(32*th + 4*i, 4)}, {vL16}, {R['ws']}, {sXo} offen offset:{(i & 1)*1024} sc1", f"n{th}_{i}")
            yield
    g(f"v_and_b32 {t0}, 1, {vKq}\nv_lshlrev_b32 {t0}, 8, {t0}\nv_lshrrev_b32 {t2}, 5, v0\nv_lshl_add_u32 {t0}, {t2}, 7, {t0}\nv_lshl_add_u32 {vSt}, {vC}, 2, {t0}")
    g(f"s_add_u32 {sSto2}, {sSto}, 4096")
    g(f"s_lshl_b32 {sX1l}, {sW}, 2\ns_xor_b32 {sX1l}, {sX1l}, {sRot3}\ns_lshl_b32 {sX1l}, {sX1l}, 11\ns_add_u32 {sX1l}, {sX1l}, {sX1}")
    g(f"s_bitcmp1_b32 {sW}, 0\ns_cbranch_scc1 {lodd}")
    saved = (copy.deepcopy({k: getattr(g, k) for k in keys}), Bg.idx)
    ends, reached = [], []
    for par in range(2):
        if par:
            g(f"{lodd}:")
            for k, v in copy.deepcopy(saved[0]).items():
                setattr(g, k, v)
            Bg.idx = saved[1]
        Bg.dma_on = True
        Bg.gap, Bg.last = o.gap_c, 0
        tiles = TILES[par]
        top = max(tiles)
        seq = [(d, mp) for d in (0, 1, 2, 3) for mp in range(-1, 2 * top + 1)]
        aorder = []
        for mp in range(-1, 2 * top + 1):
            aorder += [2*jb - mp for jb in tiles if 2*jb - mp >= 0 and 2*jb - mp not in aorder]

        def aread(m):
            for e2 in range(2):
                g.ds(f"ds_read_b64_tr_b16 {cA.r(4*m + 2*e2, 2)}, {aA} offset:{256*m + 32 - 32*e2}", f"A{m}")

        def bread(i):
            d, mp = seq[i]
            for e2 in range(2):
                g.ds(f"ds_read_b64 {cB.r(4*(i & 3) + 2*e2, 2)}, {aB} offset:{d*UP + 64*(mp+1) + 8*e2}", f"B{i}")
                yield
        nA = 2 * len(tiles)
        for m in aorder[:nA]:
            aread(m)
        for i in range(3):
            run(bread(i))
        ureads = [(ti, jb, m) for ti, jb in enumerate(tiles) for m in range(4)]
        pend = aorder[nA:]
        started = set()
        cnt = 0
        for i, (d, mp) in enumerate(seq):
            rd = bread(i + 3) if i + 3 < len(seq) else iter(())
            if i % 2 == 0:
                g.wait(lg=f"B{min(i + 1, len(seq) - 1)}")
            for ti, jb in enumerate(tiles):
                m = 2 * jb - mp
                if m < 0:
                    continue
                assert m not in pend
                g.wait(lg=f"A{m}")
                c = pq.r(12*ti + 6*(d & 1) + (d & 2), 4)
                first = d < 2 and (d, ti) not in started
                started.add((d, ti))
                g(f"v_mfma_f32_16x16x32_bf16 {c}, {cA.r(4*m,4)}, {cB.r(4*(i & 3),4)}, {0 if first else c}")
                cnt += 1
                next(rd, None)
                if pend and ti < 2:
                    aread(pend.pop(0))
                if cnt == o.xflag_at:
                    g.wait(vm="xst")
                    flag_set(F_X1)
                    if o.l2pf:
                        g.vm(f"buffer_load_dword {vDum}, {vXl}, {R['ws']}, {sX1s} offen sc1", "pf")
                if o.fine and cnt in (o.xflag_at + 1, 96):
                    stamp(f"cv{cnt}")
                if cnt == o.conv_stop:
                    Bg.dma_on = False
                if cnt == o.xpoll_at:
                    px.issue()
                if cnt > 60 and ureads and g.slack() >= 4 and not Bg.ready():
                    ti_, jb_, m_ = ureads.pop(0)
                    g.ds(f"ds_read_u16_d16_hi {uu(ti_, m_)}, {aU} offset:{m_*UP + 128*jb_}", f"U{ti_}")
                if not (g.slack() >= 4 and Bg.step()) and Bg.ready() and cnt % 2:
                    Bg.step()
            run(rd)
        reached.append(Bg.idx)
        if o.conv_cap > 0:
            Bg.flush(Bg.cap)
        if o.fine:
            stamp("cv_mfma")
        px.check(free=par)
        if o.fine:
            stamp("cv_chk")
        for ti_, jb_, m_ in ureads:
            g.ds(f"ds_read_u16_d16_hi {uu(ti_, m_)}, {aU} offset:{m_*UP + 128*jb_}", f"U{ti_}")
        l0 = x1_loads(0)
        g.pump = lambda: next(l0, None) if g.ta - g.clock < 30 else None
        for ti, jb in enumerate(tiles):
            b = 12 * ti
            g(f"v_add_f32 {pq[b+4]}, {pq[b+4]}, {pq[b+9]}\nv_add_f32 {pq[b+5]}, {pq[b+5]}, {pq[b+10]}")
            g(f"v_add_f32 {pq[b+1]}, {pq[b+1]}, {pq[b+6]}\nv_add_f32 {pq[b+2]}, {pq[b+2]}, {pq[b+7]}\nv_add_f32 {pq[b+3]}, {pq[b+3]}, {pq[b+8]}")
            g(f"v_mov_b32 {pq[b+6]}, {pq[b+11]}")
            g.ds(f"ds_write_b96 {aN}, {pq.r(b+4,3)} offset:{1024*jb + 16}", "Nw")
        for ti, jb in enumerate(tiles):
            g.wait(lg=f"U{ti}")
            for m in range(4):
                g(f"v_fmac_f32 {pq[12*ti+m]}, {vD}, {uu(ti, m)}")
        g.wait(lg="Nw")
        g("s_barrier")
        for ti, jb in enumerate(tiles):
            g.ds(f"ds_read_b128 {pq.r(12*ti+4,4)}, {aN} offset:{1024*jb}", f"N{ti}")
        g.pump = None
        run(l0)
        for ti, jb in enumerate(tiles):
            b = 12 * ti
            g.wait(lg=f"N{ti}")
            for m in range(3):
                g(f"v_add_f32 {pq[b+m]}, {pq[b+m]}, {pq[b+4+m]}")
            g(f"v_cvt_pk_bf16_f32 {pq[b]}, {pq[b]}, {pq[b+1]}\nv_cvt_pk_bf16_f32 {pq[b+1]}, {pq[b+2]}, {pq[b+3]}")
            g.vm(f"buffer_store_dwordx2 {pq.r(b,2)}, {aY}, {R['ws']}, {sY} offen offset:{512*jb} sc1", "yst")
        ends.append((Bg.idx, list(g.vmq), g.m0))
        if not par:
            g(f"s_branch {ljoin}")
    g(f"{ljoin}:")
    if o.conv_cap < 0:
        return None, dict(conv_cap=min(reached))
    assert ends[0][0] == ends[1][0]
    Bg.dma_on = True
    Bg.gap = 0
    n0, n1 = len(ends[0][1]) - 3, len(ends[1][1]) - 5
    g.vmq = (ends[0][1][:n0] if n0 >= n1 else ends[1][1][:n1]) + ["yst"] * 3
    k = min(n0, n1)
    assert ends[0][1][n0-k:n0] == ends[1][1][n1-k:n1], (ends[0][1], ends[1][1])
    g.lgq = []
    g.m0 = None
    for r in (aA, aB, aN, aU, aY, vD, gs, vXl, sX1s, sY, sCH, sCU):
        r.free()
    stamp("conv")

    gk3 = [V.alloc(4), V.alloc(4)]
    vXw = V.alloc(1)
    sH2, sHst, sFy = (S.alloc(1) for _ in range(3))
    g(f"s_lshl_b32 {sT[0]}, {sW}, 13\nv_add_u32 {vXw}, {sT[0]}, {vL16}")
    g(f"s_mul_i32 {sH2}, {sP}, 229376\ns_add_u32 {sH2}, {sH2}, {H2BUF}")
    g(f"s_lshl_b32 {sHst}, {sL}, 12\ns_add_u32 {sHst}, {sHst}, {sH2}\ns_add_u32 {sHst}, {sHst}, {sIdle}")
    g(f"s_lshr_b32 {sT[0]}, {sP}, 2\ns_lshr_b32 {sT[1]}, 0x3b, {sT[0]}\ns_and_b32 {sT[1]}, {sT[1]}, 1\ns_lshl_b32 {sT[1]}, {sT[1]}, 7")
    g(f"s_lshl_b32 {sT[0]}, {sW}, 15\ns_add_u32 {sT[1]}, {sT[1]}, {sT[0]}\ns_lshl_b32 {sT[0]}, {sJ}, 9\ns_add_u32 {sFy}, {sT[1]}, {sT[0]}")

    def norm(th, center):
        g.wait(vm=f"s{th}")
        b = 8 * th
        for w in (4, 2, 1):
            for i in range(w):
                g(f"v_add_f32 {sv[b+i]}, {sv[b+i]}, {sv[b+i+w]}")
                yield
        g(f"v_mov_b32 {sv[b+1]}, {sv[b]}\ns_nop 1\nv_permlane32_swap_b32 {sv[b]}, {sv[b+1]}")
        yield
        yield from ln_stats(sv[b], sv[b+1], sv[b+2], gk3[th])
        for i in range(8):
            g.wait(vm=f"n{th}_{i}")
            yield from center([nb[32*th + 4*i + q] for q in range(4)], sv[b+2], tmp)
            g.ds(f"ds_write_b128 {vXw}, {nb.r(32*th + 4*i, 4)} offset:{LA + th*32768 + i*1024}", f"xw{th}")
            yield

    l1 = x1_loads(1)
    g.pump = lambda: next(l1, None) if g.ta - g.clock < 30 else None
    run(norm(0, center_dot))
    g.pump = None
    run(l1)
    sXo.free(); sX1l.free(); vSt.free()
    g.wait(vm="yst")
    flag_set(F_Y)
    Bg.cap = Bg.find("dma", o.cap_a)
    g.wait(lg="xw0")
    g("s_barrier")
    stamp("xn0")
    accs = [Reg(V, xf.base, 32), Reg(V, xf.base + 32, 32)]
    tf = V.alloc(16, at=136)
    hq = V.alloc(8, at=152)

    def h_store2(th):
        def fn(f):
            if f == 0 and th:
                g(f"s_add_u32 {sHst}, {sHst}, {112*1024}")
            g.vm(f"buffer_store_dwordx4 {hq.r(4*(f & 1),4)}, {vL16}, {R['ws']}, {sHst} offen offset:{f*1024} sc1", f"Hst{th}")
        return fn

    def g3_pass(th, fillers, over, hook=None):
        def tread(ks):
            g.ds(f"ds_read_b128 {tf.r(4*(ks & 3), 4)}, {vL16} offset:{LA + th*32768 + ks*1024}", f"t{ks}")
        for ks in range(3):
            tread(ks)
        for ks in range(32):
            if th == 0 and ks % 2 == 0:
                Bg.flush(Bg.find("rd", ks // 2))
                g.wait(lg=f"sr{ks//2}")
            g.wait(lg=f"t{ks}")
            for ft in range(2):
                c = accs[th].r(16*ft, 16)
                g(f"v_mfma_f32_32x32x16_bf16 {c}, {w3r.r(8*ks + 4*ft, 4)}, {tf.r(4*(ks & 3), 4)}, {c if ks else 0}")
                if ft == 1 and ks + 3 < 32:
                    tread(ks + 3)
                if hook:
                    hook(2*ks + ft)
                fill(fillers, over, reserve=4 * ft)
        drain(fillers)

    if o.norm_early:
        run(norm(1, center_dot))
        stamp("norm1")
        g3_pass(0, [], 0)
    else:
        g3_pass(0, [norm(1, center_plain)], o.q3a)
    g.wait(lg="xw1")
    g("s_barrier")
    stamp("g3a")
    Bg.cap = Bg.find("dma", o.cap_b)
    vP16, vP7 = V.alloc(1), V.alloc(1)
    py = Poll(R["ws"], vP16, sFy, F_Y)
    gl = V.alloc(2)

    def hook3(i):
        if i == 2:
            g(f"v_lshrrev_b32 {vP16}, 1, {vC}\nv_lshlrev_b32 {vP16}, 12, {vP16}\nv_and_b32 {vP7}, 1, v0\nv_lshl_add_u32 {vP16}, {vP7}, 8, {vP16}")
        if i == 3:
            g(f"v_min_u32 {vP7}, 6, v0\nv_lshlrev_b32 {vP7}, 7, {vP7}")
            py.issue()
        if i == 24:
            py.check()
            g(f"s_add_u32 {sT[0]}, {sTr}, {YBUF}\ns_add_u32 {sT[1]}, {sTr}, {YBUF + 32768 - 1024}\ns_lshl_b32 {sT[2]}, {sW}, 11\ns_add_u32 m0, {sT[2]}, {C_Y}")
        if i == 25:
            g.vm(f"buffer_load_dwordx4 {vT4k}, {R['ws']}, {sT[0]} offen sc1 lds", "y")
            g.vm(f"buffer_load_dwordx4 {vT4k}, {R['ws']}, {sT[1]} offen offset:1024 sc1 lds", "y")
        if i == 26:
            g(f"v_lshlrev_b32 {t0}, 11, {vKq}\nv_lshl_add_u32 {t0}, {vC}, 2, {t0}\ns_lshl_b32 {sT[0]}, {sW}, 8\ns_add_u32 {sT[0]}, {sT[0]}, {sSto}")
        if i == 27:
            g.vm(f"buffer_load_dword {gl[0]}, {t0}, {R['ws']}, {sT[0]} offen offset:64 sc1", "y")
            g.vm(f"buffer_load_dword {gl[1]}, {t0}, {R['ws']}, {sT[0]} offen offset:1088 sc1", "y")
    hold24 = Bg.step

    def hook3h(i):
        hook3(i)
        if i == 24:
            Bg.saved_cap, Bg.cap = Bg.cap, 0
        if i == 25:
            Bg.cap = Bg.saved_cap
    g3_pass(1, [Ops(x) for x in gelu_plain(accs[0], 32, gk3[0], hq, tmp, h_store2(0))], o.q3b, hook3h)
    vP16.free()
    stamp("g3b")
    Bg.cap = len(Bg.ops)
    Bg.flush(Bg.find("dma", 27))
    sFa = S.alloc(1)
    g(f"s_lshl_b32 {sFa}, {sW}, 10\ns_add_u32 {sFa}, {sFa}, {sFp}")
    pa = Poll(R["ws"], vP7, sFa, F_HA)
    pb = Poll(R["ws"], vP7, sFa, F_HB)
    pump_on()
    st1 = h_store2(1)

    def done1(f):
        if f == o.haflag_at:
            g.wait(vm="Hst0")
            flag_set(F_HA)
            if o.l2pf:
                g(f"s_sub_u32 {sT[0]}, {sHst}, {112*1024}")
                g.vm(f"buffer_load_dword {vDum}, {vLine}, {R['ws']}, {sT[0]} offen sc1", "pf")
        st1(f)
    gelu_pk(accs[1], 32, gk3[1], hq, tmp, done1)
    stamp("H_st")
    tf.free(); vXw.free()
    for r in gk3:
        r.free()
    sv = V.alloc(16, at=136)
    g.wait(vm="y")
    g("s_barrier")
    if o.apoll_at < 0:
        pa.issue()

    g(f"v_lshl_add_u32 {t0}, {vKq}, 2, {vR4}\nv_lshlrev_b32 {t0}, 7, {t0}\nv_lshl_add_u32 {t0}, {vC8}, 2, {t0}\ns_lshl_b32 {sT[0]}, {sW}, 3\ns_add_u32 {sT[0]}, {sT[0]}, {C_Y}\nv_add_u32 {t0}, {sT[0]}, {t0}")
    for T in range(4):
        g.ds(f"ds_read_b64_tr_b16 {sv.r(8 + 2*T, 2)}, {t0} offset:{T*2048}", f"y{T}")
    g(f"v_add_f32 {sv[0]}, {gl[0]}, {gl[1]}")
    gl.free()
    for sw in ("32", "16"):
        g(f"v_mov_b32 {sv[1]}, {sv[0]}\ns_nop 1\nv_permlane{sw}_swap_b32 {sv[0]}, {sv[1]}\nv_add_f32 {sv[0]}, {sv[0]}, {sv[1]}")
    run(round_bf16(sv[0]))
    g(f"v_mul_f32 {sv[0]}, {fbits(-LOG2E)}, {sv[0]}\nv_exp_f32 {sv[0]}, {sv[0]}\ns_nop 0\nv_add_f32 {sv[0]}, 1.0, {sv[0]}\nv_rcp_f32 {sv[0]}, {sv[0]}\ns_nop 0")
    run(round_bf16(sv[0]))
    g(f"v_sub_f32 {sv[2]}, 1.0, {sv[0]}")
    run(round_bf16(sv[2]))
    g(f"s_lshl_b32 {sT[0]}, {sW}, 6\ns_add_u32 {sT[0]}, {sT[0]}, {C_OMG}\nv_lshl_add_u32 {t2}, {vC}, 2, {sT[0]}")
    g.ds(f"ds_write_b32 {t2}, {sv[2]}")
    g(f"v_xor_b32 {t0}, {vKq}, {vC}\nv_lshlrev_b32 {t0}, 4, {t0}\nv_lshl_add_u32 {t0}, {vC}, 8, {t0}\ns_lshl_b32 {sT[0]}, {sW}, 12\ns_add_u32 {sT[0]}, {sT[0]}, {C_BASE}\nv_add_u32 {t0}, {sT[0]}, {t0}")
    bq = Reg(V, accs[1].base, 32)
    for T in range(4):
        if T == o.apoll_at:
            pa.issue()
        if T == o.hbflag_at:
            g.wait(vm="Hst1")
            flag_set(F_HB)
            if o.l2pf:
                g.vm(f"buffer_load_dword {vDum}, {vLine}, {R['ws']}, {sHst} offen sc1", "pf")
        g.wait(lg=f"y{T}")
        for i in range(2):
            for src, d in ((sv[8 + 2*T + i], 0), (qp[2*T + i], 4), (x1p[2*T + i], 8)):
                g(f"v_lshlrev_b32 {bq[d + 2*i]}, 16, {src}\nv_and_b32 {bq[d + 2*i + 1]}, {sMask}, {src}")
        for i in (0, 2):
            g(f"v_pk_mul_f32 {bq.r(i,2)}, {bq.r(i,2)}, {bq.r(4+i,2)}")
            g(f"v_pk_mul_f32 {bq.r(8+i,2)}, {bq.r(8+i,2)}, {sv.r(2,2)} op_sel_hi:[1,0]")
        for i in (0, 2):
            g(f"v_pk_fma_f32 {bq.r(12 + 4*T + i, 2)}, {bq.r(i,2)}, {sv.r(0,2)}, {bq.r(8+i,2)} op_sel_hi:[1,0,1]")
        g(f"v_xor_b32 {t2}, {64*T}, {t0}")
        g.ds(f"ds_write_b128 {t2}, {bq.r(12 + 4*T, 4)}", "bw")
    qp.free(); x1p.free(); hq.free()
    vPw, vPr, vOut, vOm, vHl = (V.alloc(1) for _ in range(5))
    g(f"v_and_b32 {t0}, 31, v0\nv_lshrrev_b32 {t2}, 5, v0\nv_xor_b32 {t2}, {t2}, {vC}\nv_lshlrev_b32 {t2}, 4, {t2}\nv_lshl_add_u32 {t0}, {t0}, 8, {t2}")
    g(f"s_lshl_b32 {sT[0]}, {sW}, 13\nv_add_u32 {vPw}, {sT[0]}, {t0}")
    g(f"v_lshrrev_b32 {t0}, 3, v0\ns_lshl_b32 {sT[0]}, {sW}, 3\nv_add_u32 {t0}, {sT[0]}, {t0}")
    g(f"v_lshlrev_b32 {t3}, 4, {vS8}\nv_lshl_add_u32 {vOut}, {t0}, 10, {t3}")
    g(f"v_lshlrev_b32 {t2}, 1, {vS8}\nv_and_b32 {t3}, 15, {t0}\nv_xor_b32 {t2}, {t2}, {t3}\nv_lshlrev_b32 {t2}, 4, {t2}\nv_lshl_add_u32 {vPr}, {t0}, 8, {t2}")
    g(f"v_lshlrev_b32 {vOm}, 2, {t0}")
    g(f"s_mul_i32 {sT[0]}, {sW}, {28*1024}\ns_add_u32 {sT[0]}, {sT[0]}, {sH2}\nv_add_u32 {vHl}, {sT[0]}, {vL16}")
    Bg.flush(Bg.find("dma", 29))
    pump_off()
    stamp("base")
    hb = Reg(A, 128, 128)

    class Fin:
        @staticmethod
        def r(i, n=1):
            return accs[0].r(i, n) if i < 32 else tmp.r(i - 32, n)

        def __getitem__(self, i):
            return self.r(i)
    fin = Fin()

    def h_load(m):
        th, n = divmod(m, 28)
        if m == 28:
            g(f"v_add_u32 {vHl}, {112*1024}, {vHl}")
        g.vm(f"buffer_load_dwordx4 {hb.r(4*(m & 31), 4)}, {vHl}, {R['ws']}, {sG4[n >> 1]} offen offset:{(n & 1)*1024} sc1", f"H{m}")

    def partial_out(th):
        for ft in range(2):
            for q in range(4):
                g(f"v_xor_b32 {t2}, {128*ft + 32*q}, {vPw}")
                g.ds(f"ds_write_b128 {t2}, {accs[th].r(16*ft + 4*q, 4)} offset:{LA + th*32768}", f"pw{th}")
                yield

    def final(th, packed):
        g(f"v_xor_b32 {t0}, 16, {vPr}")
        for x, ad in enumerate((vPr, t0)):
            for w in range(4):
                g.ds(f"ds_read_b128 {fin.r(16*x + 4*w, 4)}, {ad} offset:{LA + th*32768 + w*8192}", f"f{x}")
                yield
        g(f"v_add_u32 {t2}, {C_BASE + th*8192}, {vPr}\nv_add_u32 {t3}, {C_BASE + th*8192}, {t0}")
        yield
        g.ds(f"ds_read_b128 {fin.r(32,4)}, {t2}", "fb")
        g.ds(f"ds_read_b128 {fin.r(36,4)}, {t3}", "fb")
        yield
        g(f"v_add_u32 {t2}, {C_OMG + th*128}, {vOm}")
        g.ds(f"ds_read_b32 {sv[0]}, {t2}", "fb")
        yield
        for x in range(2):
            g.wait(lg=f"f{x}")
            b = 16 * x
            for d, s in ((0, 4), (8, 12), (0, 8)):
                if packed:
                    for i in (0, 2):
                        g(f"v_pk_add_f32 {fin.r(b+d+i,2)}, {fin.r(b+d+i,2)}, {fin.r(b+s+i,2)}")
                else:
                    for i in range(4):
                        g(f"v_add_f32 {fin[b+d+i]}, {fin[b+d+i]}, {fin[b+s+i]}")
                        yield
        g.wait(lg="fb")
        for x in range(2):
            for i in range(4):
                g(f"v_fma_f32 {fin[16*x+i]}, {fin[16*x+i]}, {sv[0]}, {fin[32+4*x+i]}")
                yield
        for x in range(2):
            for i in range(2):
                g(f"v_cvt_pk_bf16_f32 {fin[4 + 2*x + i]}, {fin[16*x + 2*i]}, {fin[16*x + 2*i + 1]}")
                yield
        g(f"s_add_u32 {sT[0]}, {sPan}, {th*32768}")
        g.vm(f"buffer_store_dwordx4 {fin.r(4,4)}, {vOut}, {R['out']}, {sT[0]} offen {o.out_pol}", "out")
        yield

    def barrier_after(tag):
        g.wait(lg=tag)
        g("s_barrier")
        yield

    pa.check()
    stamp("HA_flag")
    AHEAD = o.ahead
    nxt = 0
    while nxt < AHEAD:
        h_load(nxt)
        nxt += 1
    g.tick(500)
    fillers = []
    for m in range(56):
        th, n = divmod(m, 28)
        if n % 2 == 0 and th == 0:
            Bg.flush(Bg.find("rd", 16 + n // 2))
            g.wait(lg=f"sr{16 + n//2}")
        if m == 28:
            stamp("g4_0")
            fillers = [partial_out(0), barrier_after("pw0"), final(0, False)]
        g.wait(vm=f"H{m}")
        for ft in range(2):
            c = accs[th].r(16*ft, 16)
            g(f"v_mfma_f32_32x32x16_bf16 {c}, {w4home(n, ft)}, {hb.r(4*(m & 31), 4)}, {c if n else 0}")
            if ft == 0:
                if m == o.bpoll_at:
                    pb.issue()
                if nxt == 28:
                    pb.check()
                if nxt < 56:
                    h_load(nxt)
                    nxt += 1
            if not (m == 28 and ft == 0):
                fill(fillers, 0, reserve=4 * ft)
    drain(fillers)
    stamp("g4_1")
    run(partial_out(1))
    run(barrier_after("pw1"))
    run(final(1, True))
    stamp("end")
    stamp("end_real", real=True)
    if o.stamps:
        g(f"s_lshl_b32 {sT[0]}, s2, 2\ns_add_u32 {sT[0]}, {sT[0]}, {sW}\ns_lshl_b32 {sT[0]}, {sT[0]}, 8\ns_add_u32 {sT[0]}, {sT[0]}, {STAMPS}")
        g(f"buffer_store_dword {vStamp}, {vL4}, {R['ws']}, {sT[0]} offen")
    if amp:
        g(f"s_cmp_lg_u32 s2, 77\ns_cbranch_scc1 L_end")
        g(f"s_sub_u32 {sAmp[2]}, {sAmp[2]}, {sAmp[0]}\ns_mul_i32 {sAmp[2]}, {sAmp[2]}, {amp[2]}\ns_min_u32 {sAmp[2]}, {sAmp[2]}, 100000")
        g(f"s_memrealtime {sAmp.r(0,2)}\ns_waitcnt lgkmcnt(0)")
        g(f"L_amp:\ns_memrealtime {sStamp}\ns_waitcnt lgkmcnt(0)\ns_sub_u32 {sStamp[0]}, {sStamp[0]}, {sAmp[0]}")
        g(f"s_cmp_lt_u32 {sStamp[0]}, {sAmp[2]}\ns_cbranch_scc1 L_amp")
    g("s_endpgm")
    for t in tail:
        g(t)
    g("L_end:\ns_endpgm")
    body = g.text(o.align)
    info = dict(nops=g.nops, vhigh=V.high, shigh=S.high, stamps=stamp_names, lines=len(g.lines), clock=g.clock, model=model, bgat=bgat)
    return file_text([(KNAME, 256, 256, LDS_BYTES)], [(KNAME, body, 512, 256, 102)]), info


REF = "gated_mix__ssm_conv_h3__mixer_s_mlp__prompt.s.ref"
HEADER = open(REF).read().split("; Override launch")[0] if os.path.exists(REF) else ""


def set_opts(args):
    for kv in args:
        k, v = kv.split("=")
        cur = getattr(Opt, k)
        setattr(Opt, k, type(cur)(int(v)) if isinstance(cur, (bool, int)) else v)


if __name__ == "__main__":
    out = sys.argv[1] if len(sys.argv) > 1 else "k.s"
    set_opts(sys.argv[2:])
    text, info = build(Opt)
    open(out, "w").write(HEADER + text)
    print(info)
```

```python
import re

REG = re.compile(r"^(-?)(?:abs\()?([vas])(?:\[(\d+):(\d+)\]|(\d+))\)?$")
TRANS = ("v_exp_f32", "v_log_f32", "v_rcp_f32", "v_rsq_f32", "v_sqrt_f32", "v_sin_f32", "v_cos_f32")
NO_DST_S = ("s_cmp", "s_waitcnt", "s_barrier", "s_nop", "s_cbranch", "s_branch", "s_endpgm", "s_setprio",
            "s_sleep", "s_bitcmp")


def regs_of(tok):
    tok = tok.strip()
    if tok in ("vcc", "vcc_lo", "vcc_hi"):
        return {("x", "vcc")}
    if tok == "m0":
        return {("x", "m0")}
    if tok in ("exec", "exec_lo", "exec_hi"):
        return {("x", "exec")}
    m = REG.match(tok)
    if not m:
        return set()
    k = m.group(2)
    if m.group(3) is not None:
        return {(k, i) for i in range(int(m.group(3)), int(m.group(4)) + 1)}
    return {(k, int(m.group(5)))}


class Ins:
    __slots__ = ("text", "op", "kind", "wr", "rd", "A", "B", "C", "passes", "data", "states", "lds")

    def __init__(self, text):
        self.text = text
        body = text.split(";")[0].strip()
        self.wr, self.rd = set(), set()
        self.A = self.B = self.C = self.data = set()
        self.passes = 0
        self.states = 1
        self.lds = False
        if body.endswith(":") or body.startswith(".") or not body:
            self.op, self.kind, self.states = body, "label", 0
            return
        parts = body.split(None, 1)
        op = self.op = parts[0]
        rest = parts[1] if len(parts) > 1 else ""
        toks = [t.strip() for t in re.split(r",(?![^\[]*\])", rest)] if rest else []
        if toks:
            last = toks[-1].split()
            mods = last[1:]
            toks[-1] = last[0] if last else ""
        else:
            mods = []
        R = [regs_of(t) for t in toks]
        allr = lambda xs: set().union(*xs) if xs else set()
        if op.startswith("v_mfma"):
            self.kind = "mfma"
            self.wr, self.A, self.B, self.C = R[0], R[1], R[2], R[3]
            self.rd = self.A | self.B | self.C
            self.passes = 8 if "32x32x16" in op else 4
        elif op.startswith("v_"):
            self.kind = "valu"
            self.wr = set(R[0])
            self.rd = allr(R[1:])
            if op.startswith("v_permlane") and "swap" in op:
                self.wr = R[0] | R[1]
                self.rd = R[0] | R[1]
            elif op.startswith(("v_fmac", "v_dot2c")):
                self.rd |= R[0]
                self.C = set(R[0])
                self.A = allr(R[1:])
            elif op.startswith("v_dot2"):
                self.C = set(R[3])
                self.A = R[1] | R[2]
            elif op.endswith("_dpp"):
                self.rd |= R[0]
        elif op.startswith("ds_"):
            self.kind = "ds"
            if op.startswith(("ds_read", "ds_bpermute", "ds_permute", "ds_swizzle")):
                self.wr, self.rd = R[0], allr(R[1:])
            else:
                self.rd = allr(R)
        elif op.startswith(("buffer_", "global_")):
            self.kind = "vmem"
            self.lds = "lds" in mods or "_lds_" in op
            if "load" in op and not self.lds:
                self.wr, self.rd = R[0], allr(R[1:])
            else:
                self.rd = allr(R)
                if self.lds:
                    self.rd |= {("x", "m0")}
                if "store" in op and ("x3" in op or "x4" in op):
                    self.data = R[0] if op.startswith("buffer_") else R[1]
        elif op.startswith("s_"):
            self.kind = "salu"
            if op == "s_nop":
                self.states = int(toks[0], 0) + 1
            elif not op.startswith(NO_DST_S):
                self.wr, self.rd = R[0], allr(R[1:])
            else:
                self.rd = allr(R)
        else:
            raise ValueError("cannot parse: " + text)


def need(p, c):
    n = 0
    isv = lambda s: {r for r in s if r[0] in "va"}
    iss = lambda s: {r for r in s if r[0] == "s" or r == ("x", "vcc")}
    if p.kind == "valu":
        pw = isv(p.wr)
        if c.kind == "mfma" and pw & c.rd:
            n = max(n, 2)
        if c.kind == "valu":
            if p.op.startswith(TRANS) and not c.op.startswith(TRANS) and pw & c.rd:
                n = max(n, 1)
            if (c.op.startswith("v_permlane") or c.op.endswith("_dpp")) and pw & c.rd:
                n = max(n, 2)
            if c.op.startswith(("v_readfirstlane", "v_readlane")) and pw & c.rd:
                n = max(n, 1)
            if iss(p.wr) & c.rd:
                n = max(n, 4 if c.op.startswith(("v_readlane", "v_writelane")) else 2)
        if p.op.startswith("v_dot2") and pw & (c.rd | c.wr):
            same = c.kind == "valu" and c.op == p.op
            if not (same and not (pw & c.A)):
                n = max(n, 3)
        if c.kind == "vmem" and iss(p.wr) & c.rd:
            n = max(n, 5)
        if c.kind == "salu" and iss(p.wr) & c.rd and not c.op.startswith("s_cbranch"):
            n = max(n, 2)
    elif p.kind == "mfma":
        if c.kind == "mfma":
            if p.wr & (c.A | c.B):
                n = max(n, p.passes + 4)
            if p.wr & c.C and not (p.wr == c.C and p.passes == c.passes):
                n = max(n, p.passes + 2)
            if p.wr & c.wr and not (p.wr == c.wr and p.passes == c.passes):
                n = max(n, p.passes + 2)
        elif c.kind in ("valu", "ds", "vmem"):
            if p.wr & (c.rd | c.wr):
                n = max(n, p.passes + 4)
            if c.kind == "valu" and p.C & c.wr:
                n = max(n, p.passes - 1)
    elif p.kind == "vmem":
        if p.data & c.wr:
            n = max(n, 2)
    elif p.kind == "salu":
        if ("x", "m0") in p.wr and c.kind == "vmem" and c.lds:
            n = max(n, 1)
    return n


def pad_hazards(lines):
    out = []
    window = []
    nops = 0
    for text in lines:
        c = Ins(text)
        if c.kind == "label":
            out.append(text)
            continue
        dist, lack = 0, 0
        for p in reversed(window):
            lack = max(lack, need(p, c) - dist)
            dist += p.states
            if dist >= 20:
                break
        while lack > 0:
            k = min(lack, 16)
            nop = Ins(f"s_nop {k-1}")
            out.append("    " + nop.text)
            window.append(nop)
            lack -= k
            nops += 1
        out.append(text)
        window.append(c)
        if len(window) > 40:
            del window[:-24]
    return out, nops


class Pool:
    def __init__(self, kind, lo, hi):
        self.kind, self.free = kind, set(range(lo, hi))
        self.high = lo

    def alloc(self, n, align=None, at=None):
        if at is not None:
            assert all(at + i in self.free for i in range(n)), f"{self.kind}{at}+{n} busy"
            base = at
        else:
            align = align or (2 if n >= 2 else 1)
            base = next((b for b in sorted(self.free) if b % align == 0 and all(b + i in self.free for i in range(n))), None)
            assert base is not None, f"out of {self.kind} registers for {n}"
        for i in range(n):
            self.free.discard(base + i)
        self.high = max(self.high, base + n)
        return Reg(self, base, n)


class Reg:
    def __init__(self, pool, base, n):
        self.pool, self.base, self.n = pool, base, n

    def __str__(self):
        return self.r(0, self.n)

    def r(self, i, n=1):
        assert 0 <= i and i + n <= self.n, (i, n, self.n)
        k = self.pool.kind
        return f"{k}{self.base+i}" if n == 1 else f"{k}[{self.base+i}:{self.base+i+n-1}]"

    def __getitem__(self, i):
        return self.r(i)

    def free(self):
        for i in range(self.n):
            assert self.base + i not in self.pool.free
            self.pool.free.add(self.base + i)


class Gen:
    def __init__(self):
        self.lines = []
        self.vmq, self.lgq = [], []
        self.smem = False
        self.nlabel = 0
        self.V = Pool("v", 1, 256)
        self.A = Pool("a", 0, 256)
        self.S = Pool("s", 3, 102)
        self.clock = 0
        self.mfree = 0
        self.pump = None
        self.held = 0
        self.m0 = None
        self.q = 0
        self.vm_cost, self.vm_lat, self.vm_win = 90, 600, 720
        self.vmt, self.lgt = {}, {}
        self.lq = 0
        self.ta = 0

    def __call__(self, text):
        for ln in text.split("\n"):
            ln = ln.strip()
            if not ln:
                continue
            self.lines.append(ln if ln.endswith(":") else "    " + ln)
            op = ln.split()[0]
            if op.endswith(":"):
                continue
            if op.startswith("v_mfma"):
                start = max(self.clock, self.mfree)
                self.mfree = start + (32 if "32x32" in op else 16)
                self.clock = start + 8
            elif op.startswith(("v_pk_", "v_dot2")):
                self.clock = max(self.clock, self.mfree + 12 if self.mfree > self.clock - 12 else 0) + 4
            elif op.startswith(TRANS):
                self.clock += 8
            else:
                self.clock += 4
            if " m0," in ln and op.startswith("s_"):
                self.m0 = None
        if self.pump and not self.held:
            self.held += 1
            self.pump()
            self.held -= 1

    def hold(self):
        gen = self

        class H:
            def __enter__(self):
                gen.held += 1

            def __exit__(self, *a):
                gen.held -= 1
        return H()

    def slack(self):
        return self.mfree - self.clock

    def tick(self, n):
        self.clock += n

    def label(self, stem="L"):
        self.nlabel += 1
        return f"{stem}_{self.nlabel}"

    def vm(self, text, tag=None, cost=None, lat=None):
        self.vmq.append(tag)
        if cost is None:
            cost = self.vm_cost if "x4" in text else 25
        self.clock = max(self.clock, self.q - self.vm_win, self.ta - 70)
        self.ta = max(self.ta, self.clock) + (66 if "x4" in text else 30)
        self.q = max(self.q, self.clock) + cost
        done = self.q + (self.vm_lat if lat is None else lat)
        self.last_done = done = max(done, getattr(self, "last_done", 0))
        self.vmt[tag] = done
        self(text)

    def ds(self, text, tag=None):
        self.lgq.append(tag)
        cost = 52 if "write_b128" in text or "write_b96" in text else 16 if "b128" in text else 8
        self.lq = max(self.lq, self.clock) + cost
        self.lgt[tag] = self.lq + 64
        self(text)

    def backlog(self):
        return self.q - self.clock

    @staticmethod
    def _after(q, tag):
        idx = [i for i, t in enumerate(q) if t == tag or (isinstance(t, frozenset) and tag in t)]
        return None if not idx else len(q) - 1 - idx[-1]

    def wait(self, vm=None, lg=None):
        parts = []
        if vm is not None:
            n = 0 if vm == "*" else self._after(self.vmq, vm)
            if n is not None and (self.vmq or vm == "*"):
                n = min(n, 63)
                self.clock = max(self.clock, getattr(self, "last_done", 0) if vm == "*" else self.vmt[vm])
                parts.append(f"vmcnt({n})")
                self.vmq = self.vmq[len(self.vmq) - n:] if n else []
        if lg is not None:
            n = 0 if lg == "*" else self._after(self.lgq, lg)
            if n is not None and self.smem:
                n = 0
            if n is not None and (self.lgq or self.smem or lg == "*"):
                n = min(n, 15)
                self.clock = max(self.clock, self.lq + 64 if lg == "*" and self.lgq else self.lgt.get(lg, 0))
                parts.append(f"lgkmcnt({n})")
                self.lgq = self.lgq[len(self.lgq) - n:] if n else []
                if n == 0:
                    self.smem = False
        if parts:
            self("s_waitcnt " + " ".join(parts))

    def settle(self):
        self("s_nop 15")

    def text(self, align=True):
        lines, nops = pad_hazards(self.lines)
        self.nops = nops
        self.widened = 0
        if align:
            lines, self.widened = align_runs(lines)
        return "\n".join(lines) + "\n"


def sizes_of(lines, clang="llvm-mc"):
    import subprocess
    src = '.amdgcn_target "amdgcn-amd-amdhsa--gfx950"\n.text\n' + "\n".join(lines) + "\n"
    r = subprocess.run([clang, "-triple=amdgcn-amd-amdhsa", "-mcpu=gfx950", "-show-encoding"], input=src,
                       capture_output=True, text=True)
    assert r.returncode == 0, r.stderr[:2000]
    enc = [ln.count(",", ln.index("encoding:")) + 1 for ln in r.stdout.splitlines() if "encoding:" in ln]
    out, it = [], iter(enc)
    for ln in lines:
        t = ln.strip()
        out.append(0 if t.endswith(":") or t.startswith(".") or not t else next(it))
    return out


WIDEN = ("v_add_f32", "v_mul_f32", "v_mov_b32", "v_and_b32", "v_lshlrev_b32", "v_lshrrev_b32", "v_xor_b32", "v_add_u32",
         "v_sub_u32", "v_exp_f32", "v_rcp_f32", "v_max_f32", "v_sub_f32", "v_or_b32", "v_min_u32", "v_sqrt_f32")


def align_runs(lines, min_run=3):
    size = sizes_of(lines)
    lines = list(lines)
    pos, i, n, fixed = 0, 0, len(lines), 0
    last4 = None
    while i < n:
        if size[i] == 8:
            j = i
            while j < n and size[j] in (8, 0):
                j += 1
            run = sum(1 for k in range(i, j) if size[k])
            if pos % 8 and run >= min_run and last4 is not None:
                t = lines[last4].strip().split(None, 1)
                lines[last4] = f"    {t[0]}_e64 {t[1]}"
                size[last4] = 8
                pos += 4
                fixed += 1
            pos += 8 * run
            last4 = None
            i = j
            continue
        if size[i] == 4 and lines[i].split()[0] in WIDEN:
            last4 = i
        pos += size[i]
        i += 1
    return lines, fixed


def merge_queues(a, b):
    after = {}
    for q in (a, b):
        seen = {}
        for i, t in enumerate(q):
            for x in (t if isinstance(t, frozenset) else (t,)):
                seen[x] = len(q) - 1 - i
        for x, n in seen.items():
            after[x] = min(after.get(x, n), n)
    after.pop(None, None)
    if not after:
        return [None] * min(len(a), len(b))
    n = max(after.values()) + 1
    return [frozenset(x for x, k in after.items() if k == n - 1 - i) for i in range(n)]
```

```python
import copy
import os
import struct
import sys
from asmlib import ARG, NBYTES, KNAME, file_text
from kgen import Gen, Reg, merge_queues

F_H, F_U, F_S, F_X1, F_Y, F_HA, F_HB = 1, 2, 3, 4, 5, 6, 7
LFLAG = 0x20000
STATS = 0x40000
HBUF, X1BUF, UBUF, YBUF, H2BUF = 0x100000, 0x300000, 0x500000, 0x700000, 0x900000
STAMPS = 0x2000000
OOB = 0x40000000

LA, LB, LC = 0, 65536, 131072
C_K, C_V, C_Q, C_CS = LC, LC + 9216, LC + 17920, LC + 26112
C_H, C_U = LC, LC + 8448
HP, UP = 4224, 1152
C_Y, C_BASE, C_OMG, C_STD = LC, LC + 8192, LC + 24576, LC + 26624
A_N = LA + 32768
NP = 8448
LDS_BYTES = 163840

GELU_C0 = -2.302208198144325
GELU_C1 = GELU_C0 * 0.044715
LOG2E = 1.4426950408889634

TILES = ([7, 6, 2], [5, 4, 3, 1, 0])


def fbits(x):
    return "0x%08x" % struct.unpack("<I", struct.pack("<f", x))[0]


class Opt:
    stamps = False
    fine = 0
    amp = ""
    nt_once = ""
    out_pol = "sc1"
    code_pf = True
    code_bytes = 40960
    align = True
    nap = 2
    period = 85
    lat = 700
    thresh = 100
    thresh1 = 500
    fake = 0
    local = True
    dpoll_at = 12
    bg_a = 0
    bg_b = 1
    cap_p2 = 6
    cap2 = 11
    upoll_at = 6
    ucheck_at = 13
    bdist = 6
    hflag_m = 8
    bar_at = 40
    yflag_at = 10
    rot = False
    sflag_at = 20
    spoll_at = 42
    scheck_at = 60
    center_at = 82
    xflag_at = 118
    xpoll_at = 144
    cap_a = 24
    cap_b = 27
    q3a = 0
    q3b = 0
    haflag_at = 1
    hbflag_at = 0
    apoll_at = 0
    bpoll_at = 10
    ahead = 9


def build(o=Opt):
    g = Gen()
    g.vm_cost, g.vm_lat, g.vm_win = o.period, o.lat, 8 * o.period
    V, A, S = g.V, g.A, g.S
    names = ["q", "ws", "w1", "dbg", "k", "v", "shift_k", "ssm_D", "gate_w", "w2", "w3", "w4", "ssm_k", "out"]
    R = {n: S.alloc(4, align=4) for n in names}
    sW, sJ, sP, sPP, sX = (S.alloc(1) for _ in range(5))
    sT = S.alloc(4, align=2)
    sOnes, sLo1, sHi1, sMask, sTmo = (S.alloc(1) for _ in range(5))
    sStamp = S.alloc(2, align=2) if (o.stamps or o.amp) else None
    vStamp = V.alloc(1)
    stamp_names = []
    amp = o.amp.split(",") if o.amp else None
    sAmp = S.alloc(4, align=2) if amp else None
    tail = []

    model, bgat = {}, {}

    def stamp(name, real=False):
        model[name] = g.clock
        bgat[name] = "%s%s" % Bg.ops[Bg.idx][:2] if Bg.idx < len(Bg.ops) else "end"
        with g.hold():
            if amp and name in amp[:2]:
                g(f"s_memrealtime {sAmp.r(2*amp.index(name), 2)}")
                g.smem = True
                g.wait(lg="*")
            if o.stamps:
                g(f"s_mem{'real' if real else ''}time {sStamp}")
                g.smem = True
                g.wait(lg="*")
                if name not in stamp_names:
                    stamp_names.append(name)
                g(f"v_writelane_b32 {vStamp}, {sStamp[0]}, {stamp_names.index(name)}")

    def mark(level, name):
        if o.fine == level:
            stamp(name)

    def flag_set(val):
        with g.hold():
            g(f"s_mov_b64 exec, 1\nv_mov_b32 {vOne}, {val}")
            if o.local and val not in (F_U, F_Y):
                g.vm(f"buffer_store_dword {vOne}, off, {R['ws']}, {sLf}", "flag")
            g.vm(f"buffer_store_dword {vOne}, off, {R['ws']}, {sFl} sc1", "flag")
            g("s_mov_b64 exec, -1")

    class Poll:
        def __init__(self, srd, vaddr, soff, need, local=False):
            self.t = V.alloc(1)
            self.tag = g.label("poll")
            self.cmp = f"v_cmp_gt_u32 vcc, {need}, {self.t}"
            self.ld = f"buffer_load_dword {self.t}, {vaddr}, {srd}, {soff} offen sc1"
            self.first = self.ld
            self.pre = ""
            if local:
                self.ld = f"v_lshlrev_b32 {self.t}, 5, {vaddr}\nbuffer_load_dword {self.t}, {self.t}, {srd}, {sFp} offen sc1"
                self.first = self.ld
                if o.local:
                    self.first = f"buffer_load_dword {self.t}, {vaddr}, {srd}, {sLp} offen sc1"
                    self.pre = self.first

        def issue(self):
            with g.hold():
                g.vm(self.first, self.tag)

        def check(self, free=True, then=None):
            n = g.label("chk")
            with g.hold():
                g.wait(vm=self.tag)
                if then:
                    then()
                g(f"{self.cmp}\ns_cbranch_vccnz {n}_slow\n{n}_ok:")
            nap = f"s_sleep {o.nap}\n" if o.nap else ""
            for _ in range(3 if self.pre else 0):
                nap += f"{self.pre}\ns_waitcnt vmcnt(0)\n{self.cmp}\ns_cbranch_vccz {n}_ok\n"
            tail.append(f"{n}_slow:\ns_sub_u32 {sTmo}, {sTmo}, 1\ns_cbranch_scc1 {n}_out\n{nap}{self.ld}\ns_waitcnt vmcnt(0)\n"
                        f"{self.cmp}\ns_cbranch_vccnz {n}_slow\ns_branch {n}_ok\n"
                        f"{n}_out:\ns_mov_b32 {sTmo}, 0\ns_branch {n}_ok")
            if free:
                self.t.free()

    def round_bf16(r):
        g(f"v_cvt_pk_bf16_f32 {r}, {r}, {r}")
        yield
        g(f"v_and_b32 {r}, {sMask}, {r}")
        yield

    def ln_mean(s1, negmu):
        g(f"v_mul_f32 {negmu}, {fbits(-1.0/512)}, {s1}")
        yield
        yield from round_bf16(negmu)

    def ln_std(s1, s2, std):
        for t in (f"v_mul_f32 {s1}, {fbits(1.0/512)}, {s1}", f"v_mul_f32 {s2}, {fbits(1.0/512)}, {s2}",
                  f"v_fma_f32 {s2}, -{s1}, {s1}, {s2}", f"v_max_f32 {s2}, 0, {s2}"):
            g(t)
            yield
        yield from round_bf16(s2)
        g(f"v_add_f32 {s2}, {fbits(1e-5)}, {s2}")
        yield
        yield from round_bf16(s2)
        g(f"v_sqrt_f32 {std}, {s2}\ns_nop 0")
        yield
        yield from round_bf16(std)

    def ln_scale(gk):
        g(f"v_rcp_f32 {gk[3]}, {gk[2]}\ns_nop 0")
        yield
        for t in (f"v_mul_f32 {gk[1]}, {fbits(GELU_C0)}, {gk[3]}", f"v_mul_f32 {gk[0]}, {gk[3]}, {gk[3]}",
                  f"v_mul_f32 {gk[0]}, {gk[0]}, {gk[3]}", f"v_mul_f32 {gk[0]}, {fbits(GELU_C1)}, {gk[0]}"):
            g(t)
            yield

    def ln_stats(s1, s2, negmu, gk):
        for t in (f"v_mul_f32 {negmu}, {fbits(-1.0/512)}, {s1}", f"v_mul_f32 {s2}, {fbits(1.0/512)}, {s2}",
                  f"v_fma_f32 {s2}, -{negmu}, {negmu}, {s2}", f"v_max_f32 {s2}, 0, {s2}"):
            g(t)
            yield
        yield from round_bf16(s2)
        g(f"v_add_f32 {s2}, {fbits(1e-5)}, {s2}")
        yield
        yield from round_bf16(s2)
        g(f"v_sqrt_f32 {gk[2]}, {s2}")
        yield
        yield from round_bf16(negmu)
        yield from round_bf16(gk[2])
        g(f"v_rcp_f32 {s2}, {gk[2]}\ns_nop 0")
        yield
        for t in (f"v_mul_f32 {gk[1]}, {fbits(GELU_C0)}, {s2}", f"v_mul_f32 {gk[0]}, {s2}, {s2}",
                  f"v_mul_f32 {gk[0]}, {gk[0]}, {s2}", f"v_mul_f32 {gk[0]}, {fbits(GELU_C1)}, {gk[0]}"):
            g(t)
            yield

    def center_dot(regs, negmu, tmp):
        for b in range(0, len(regs), 4):
            for i in range(4):
                g(f"v_dot2_f32_bf16 {tmp[2*i]}, {regs[b+i]}, {sLo1}, {negmu}")
                g(f"v_dot2_f32_bf16 {tmp[2*i+1]}, {regs[b+i]}, {sHi1}, {negmu}")
            for i in range(4):
                g(f"v_cvt_pk_bf16_f32 {regs[b+i]}, {tmp[2*i]}, {tmp[2*i+1]}")
            yield

    def center_plain(regs, negmu, tmp):
        for i, r in enumerate(regs):
            a, b = tmp[2*(i & 1)], tmp[2*(i & 1) + 1]
            for t in (f"v_lshlrev_b32 {a}, 16, {r}", f"v_and_b32 {b}, {sMask}, {r}", f"v_add_f32 {a}, {a}, {negmu}",
                      f"v_add_f32 {b}, {b}, {negmu}", f"v_cvt_pk_bf16_f32 {r}, {a}, {b}"):
                g(t)
                yield

    def gelu_pk(acc, n, gk, out, tmp, done=None):
        kk, ss = gk.r(0, 2), gk.r(2, 2)
        for b in range(0, n, 8):
            P = range(0, 8, 2)
            for i in P:
                g(f"v_pk_mul_f32 {tmp.r(i,2)}, {acc.r(b+i,2)}, {acc.r(b+i,2)}")
            for i in P:
                g(f"v_pk_fma_f32 {tmp.r(i,2)}, {tmp.r(i,2)}, {kk}, {kk} op_sel:[0,0,1] op_sel_hi:[1,0,1]")
            for i in P:
                g(f"v_pk_mul_f32 {tmp.r(i,2)}, {tmp.r(i,2)}, {acc.r(b+i,2)}")
            for i in range(8):
                g(f"v_exp_f32 {tmp[i]}, {tmp[i]}")
            for i in P:
                g(f"v_pk_fma_f32 {tmp.r(i,2)}, {tmp.r(i,2)}, {ss}, {ss} op_sel_hi:[1,0,0]")
            for i in range(8):
                g(f"v_rcp_f32 {tmp[i]}, {tmp[i]}")
            for i in P:
                g(f"v_pk_mul_f32 {tmp.r(i,2)}, {tmp.r(i,2)}, {acc.r(b+i,2)}")
            for i in P:
                g(f"v_cvt_pk_bf16_f32 {out[(b+i)//2 % out.n]}, {tmp[i]}, {tmp[i+1]}")
            if done:
                done(b // 8)

    def gelu_plain(acc, n, gk, out, tmp, done):
        streams = [[], []]
        left = {}
        for b in range(0, n, 4):
            h = (b // 4) & 1
            T = [tmp[4*h + i] for i in range(4)]
            Q = range(4)
            ops = [f"v_mul_f32 {T[i]}, {acc[b+i]}, {acc[b+i]}" for i in Q]
            ops += [f"v_fma_f32 {T[i]}, {T[i]}, {gk[0]}, {gk[1]}" for i in Q]
            ops += [f"v_mul_f32 {T[i]}, {T[i]}, {acc[b+i]}" for i in Q]
            ops += [f"v_exp_f32 {T[i]}, {T[i]}" for i in Q]
            ops += [f"v_fma_f32 {T[i]}, {T[i]}, {gk[2]}, {gk[2]}" for i in Q]
            ops += [f"v_rcp_f32 {T[i]}, {T[i]}" for i in Q]
            ops += [f"v_mul_f32 {T[i]}, {T[i]}, {acc[b+i]}" for i in Q]
            f = b // 8
            left[f] = 2

            def guard(f=f):
                assert left.get(f - 2, 0) == 0
            ops += [(0, guard)] + [f"v_cvt_pk_bf16_f32 {out[(b+i)//2 % out.n]}, {T[i]}, {T[i+1]}" for i in (0, 2)]

            def fin(f=f):
                left[f] -= 1
                if left[f] == 0:
                    done(f)
            streams[h] += ops + [(4, fin)]
        streams[1] = [(0, lambda: None)] * 12 + streams[1]
        return streams

    def run(it):
        for _ in it:
            pass

    def chain(*its):
        for it in its:
            yield from it

    class Bg:
        ops, idx, cap = [], 0, 0
        dma_on = True
        last, gap = 0, 0
        thresh = o.thresh

        @classmethod
        def ready(cls, force=False):
            if cls.idx >= min(cls.cap, len(cls.ops)):
                return False
            kind, key, _ = cls.ops[cls.idx]
            if force:
                return True
            if kind == "dma":
                return cls.dma_on and g.backlog() < cls.thresh and g.ta - g.clock < 30 and g.clock >= cls.last + cls.gap
            if kind == "rd0":
                return g.clock >= g.vmt[f"sd{key}"]
            return True

        @classmethod
        def step(cls, force=False):
            if not cls.ready(force):
                return False
            kind, key, fn = cls.ops[cls.idx]
            cls.idx += 1
            with g.hold():
                fn()
            if kind == "dma":
                cls.last = g.clock
            return True

        @classmethod
        def find(cls, kind, key):
            return max(i for i, (k, y, _) in enumerate(cls.ops) if y == key and k.startswith(kind)) + 1

        @classmethod
        def flush(cls, idx):
            cap, cls.cap = cls.cap, max(cls.cap, idx)
            while cls.idx < idx:
                cls.step(True)
            cls.cap = cap

        @classmethod
        def burst(cls, n):
            while n > 0 and cls.idx < min(cls.cap, len(cls.ops)):
                kind = cls.ops[cls.idx][0]
                if kind == "rd0" and not cls.ready():
                    break
                cls.step(True)
                n -= kind == "dma"

    def pump_on():
        g.pump = Bg.step

    def pump_off():
        g.pump = None

    class Ops:
        def __init__(self, items):
            self.items = list(items)

        def cost(self):
            it = self.items[0]
            return it[0] if isinstance(it, tuple) else 8 if it.startswith(("v_exp", "v_rcp", "v_sqrt")) else 4

        def emit(self):
            it = self.items.pop(0)
            it[1]() if isinstance(it, tuple) else g(it)

        def drain(self):
            while self.items:
                self.emit()

    def fill(fillers, over=0, reserve=0):
        while True:
            room = g.slack() - reserve + over
            if room >= 4 and Bg.step():
                continue
            live = [f for f in fillers if (f.items if isinstance(f, Ops) else True)]
            fillers[:] = live
            pick = None
            for f in live:
                if not isinstance(f, Ops):
                    pick = f if room >= 4 else None
                    break
                if f.cost() <= room and (pick is None or len(f.items) > len(pick.items)):
                    pick = f
            if pick is None:
                return
            if isinstance(pick, Ops):
                pick.emit()
            elif next(pick, 1) is not None:
                fillers.remove(pick)

    def drain(fillers):
        while fillers:
            f = fillers[0]
            if isinstance(f, Ops):
                others = [x for x in fillers if isinstance(x, Ops) and x.items]
                while others:
                    for x in others:
                        x.emit()
                    others = [x for x in others if x.items]
                fillers[:] = [x for x in fillers if not isinstance(x, Ops)]
            else:
                run(f)
                fillers.pop(0)

    g("s_cmp_ge_u32 s2, 256\ns_cbranch_scc1 L_end")
    if amp and amp[0] == "entry":
        g(f"s_memrealtime {sAmp.r(0,2)}")
    for n in names:
        g(f"s_load_dwordx2 {R[n].r(0,2)}, s[0:1], {ARG[n]}")
    g.smem = True
    vOne, vL16, vL4, vDum = (V.alloc(1) for _ in range(4))
    t0, t2, t3 = (V.alloc(1) for _ in range(3))
    if o.code_pf:
        pc = V.alloc(2)
        per = o.code_bytes // 32
        assert per <= 2048
        g(f"s_getpc_b64 {sT.r(0,2)}")
        g(f"s_lshr_b32 {sT[2]}, s2, 3\ns_mul_i32 {sT[2]}, {sT[2]}, {per}")
        g(f"v_lshl_add_u32 {t0}, v0, 3, {sT[2]}")
        g(f"v_min_u32 {t0}, L_end-L_pc, {t0}")
        g("L_pc:")
        g(f"v_mov_b32 {pc[1]}, {sT[1]}")
        g(f"v_add_co_u32 {pc[0]}, vcc, {sT[0]}, {t0}")
        g(f"s_nop 1\nv_addc_co_u32 {pc[1]}, vcc, 0, {pc[1]}, vcc")
        g.vm(f"global_load_dword {vDum}, {pc}, off", "pf")
        pc.free()
    g(f"v_lshrrev_b32 {t0}, 6, v0\nv_and_b32 v0, 63, v0\nv_readfirstlane_b32 {sW}, {t0}")
    g(f"s_and_b32 {sX}, s2, 7\ns_lshr_b32 {sT[0]}, s2, 3\ns_and_b32 {sJ}, {sT[0]}, 7\ns_lshr_b32 {sPP}, {sT[0]}, 3")
    g(f"s_lshl_b32 {sP}, {sX}, 2\ns_add_u32 {sP}, {sP}, {sPP}")

    def srd_words(ns):
        for n in ns:
            g(f"s_mov_b32 {R[n][2]}, {NBYTES[n]}\ns_mov_b32 {R[n][3]}, 0x00020000")
    srd_words(names[:2])
    vC, vKq, vR8, vS8 = (V.alloc(1) for _ in range(4))
    g(f"v_and_b32 {vC}, 15, v0\nv_lshrrev_b32 {vKq}, 4, v0\nv_lshrrev_b32 {vR8}, 3, v0\nv_lshlrev_b32 {vR8}, 10, {vR8}\nv_and_b32 {vS8}, 7, v0")
    sLdsW, sCol, sPan, sKV, sKV2, sC2 = (S.alloc(1) for _ in range(6))
    g(f"s_lshl_b32 {sLdsW}, {sW}, 14\ns_lshl_b32 {sCol}, {sJ}, 7\ns_lshl_b32 {sPan}, {sP}, 16\ns_add_u32 {sPan}, {sPan}, {sCol}")
    g(f"s_add_u32 {sKV}, {sLdsW}, {sPan}\ns_lshl_b32 {sC2}, {sW}, 11\ns_add_u32 {sKV2}, {sKV}, 7168")
    if o.stamps:
        g(f"v_mov_b32 {vStamp}, 0")
    g(f"s_lshr_b32 {sT[0]}, {sJ}, 2\ns_add_u32 {sT[0]}, {sT[0]}, 1\ns_sub_u32 {sT[1]}, 0, {sT[0]}")
    g(f"s_bitcmp1_b32 {sJ}, 1\ns_cselect_b32 {sT[0]}, {sT[0]}, {sT[1]}\ns_lshl_b32 {sT[0]}, {sT[0]}, 10")
    g(f"s_sub_u32 {sT[1]}, {sKV}, {sCol}\ns_add_u32 {sT[0]}, {sT[0]}, {sT[1]}")
    vQa, xd = V.alloc(2), V.alloc(2)
    g(f"v_xor_b32 {t0}, {vS8}, {vKq}\nv_lshl_add_u32 {vQa[0]}, {t0}, 4, {vR8}\nv_xor_b32 {vQa[1]}, 64, {vQa[0]}\nv_add_u32 {vQa[1]}, 7168, {vQa[1]}")
    g(f"v_add_u32 {xd[0]}, {sT[0]}, {vQa[0]}\nv_add_u32 {xd[1]}, {sT[0]}, {vQa[1]}")
    g.wait(lg="*")
    stamp("start_real", real=True)
    stamp("start")
    sM, sOff, sWo = S.alloc(1), S.alloc(1), S.alloc(1)
    wd = V.alloc(4, at=152)

    def x_dma(n, hh):
        if g.m0 != ("x", n):
            g(f"s_add_u32 m0, {sLdsW}, {LA + n*2048}\ns_xor_b32 {sWo}, {sCol}, {n << 7}")
            g.m0 = ("x", n)
        g.vm(f"buffer_load_dwordx4 {xd[hh]}, {R['q']}, {sWo} offen offset:{hh*1024} lds", f"x{n}")

    def w_dma(name, base, n, i):
        key = (name, n)
        sh = 2 if name == "w1" else 0
        if g.m0 != key:
            g(f"s_xor_b32 m0, {sM}, {base + (n << (12 + sh))}\ns_xor_b32 {sWo}, {sOff}, {n << (15 + sh)}")
            g.m0 = key
        g.vm(f"buffer_load_dwordx4 {wd[i]}, {R[name]}, {sWo} offen offset:{i*1024} lds", name + ("ab"[n >> 1] if sh else ""))

    for n in range(8):
        for hh in range(2):
            Bg.ops.append(("dma", f"x{n}", lambda n=n, hh=hh: x_dma(n, hh)))
    for n in range(4):
        for i in range(4):
            Bg.ops.append(("dma", "w1" + "ab"[n >> 1], lambda n=n, i=i: w_dma("w1", LB, n, i)))
    g.vm_lat = 1500
    Bg.flush(1)
    g.vm_lat = o.lat
    Bg.flush(Bg.find("dma", "x1"))
    sFp, sFl, sLp, sLf, sLead = (S.alloc(1) for _ in range(5))
    vP32 = V.alloc(1)
    g(f"v_and_b32 {vP32}, 31, v0\nv_lshlrev_b32 {vP32}, 2, {vP32}\ns_lshl_b32 {sFp}, {sP}, 12\nv_mov_b32 {vOne}, 0")
    g(f"s_lshl_b32 {sLp}, {sP}, 7\ns_add_u32 {sLp}, {sLp}, {LFLAG}")
    g(f"s_lshl_b32 {sT[0]}, {sJ}, 2\ns_add_u32 {sT[0]}, {sT[0]}, {sW}\ns_lshl_b32 {sFl}, {sT[0]}, 7\ns_add_u32 {sFl}, {sFl}, {sFp}")
    g(f"s_lshl_b32 {sLf}, {sT[0]}, 2\ns_add_u32 {sLf}, {sLf}, {sLp}")
    g(f"v_lshl_add_u32 {t0}, {vP32}, 5, {sFp}\nv_add_u32 {t2}, {sLp}, {vP32}\nv_cmp_gt_u32 vcc, 32, v0\ns_nop 1\nv_cndmask_b32 {t0}, {t2}, {t0}, vcc")
    g(f"s_lshl_b32 {sT[1]}, {sP}, 2\ns_cmp_eq_u32 {sT[0]}, 0\ns_cselect_b32 {sLead}, {sT[1]}, {OOB}\ns_cselect_b32 {sT[3]}, 0, {OOB}")
    g.vm(f"buffer_store_dword {vOne}, {t0}, {R['ws']}, {sT[3]} offen sc1", "clr")
    Bg.cap = Bg.find("dma", "x3")
    Bg.thresh = o.thresh1
    pump_on()
    srd_words(names[2:])
    g(f"v_and_b32 {t0}, 1, {vKq}\nv_lshlrev_b32 {t0}, 1, {t0}\nv_xor_b32 {t0}, {t0}, {vS8}\nv_lshl_add_u32 {wd[0]}, {t0}, 4, {vR8}")
    g(f"v_xor_b32 {t0}, 64, {wd[0]}\nv_add_u32 {wd[1]}, 7168, {t0}\nv_add_u32 {wd[2]}, 14336, {wd[0]}\nv_add_u32 {wd[3]}, 21504, {t0}")
    g(f"s_and_b32 {sT[0]}, {sPP}, 1\ns_lshl_b32 {sT[0]}, {sT[0]}, 2\ns_add_u32 {sT[0]}, {sT[0]}, {sW}\ns_lshl_b32 {sM}, {sT[0]}, 12")
    g(f"s_lshl_b32 {sT[1]}, {sJ}, 1\ns_xor_b32 {sT[0]}, {sT[0]}, {sT[1]}\ns_lshl_b32 {sOff}, {sT[0]}, 15\ns_add_u32 {sOff}, {sOff}, {sCol}")
    vW2, vV, vK0, vSk = V.alloc(1), V.alloc(2), V.alloc(1), V.alloc(1)
    sK0, sSk = S.alloc(1), S.alloc(1)
    g(f"v_lshlrev_b32 {t0}, 1, {vKq}\nv_xor_b32 {t0}, {t0}, {vS8}\nv_lshl_add_u32 {vW2}, {t0}, 4, {vR8}")
    g(f"v_lshrrev_b32 {t2}, 5, v0\nv_lshlrev_b32 {t2}, 1, {t2}\nv_xor_b32 {t2}, {t2}, {vS8}\nv_lshl_add_u32 {vV[0]}, {t2}, 4, {vR8}\nv_xor_b32 {vV[1]}, 64, {vV[0]}")
    g(f"s_sub_u32 {sT[0]}, {sPan}, 8192\ns_add_u32 {sT[1]}, {sC2}, {C_Q}\ns_cmp_eq_u32 {sW}, 0\n"
      f"s_cselect_b32 {sT[0]}, {sT[0]}, {OOB}\ns_cselect_b32 {sK0}, {C_K}, {sT[1]}\nv_add_u32 {vK0}, {sT[0]}, {vW2}")
    g(f"v_lshlrev_b32 {vSk}, 3, {vC}\ns_lshl_b32 {sT[2]}, {sJ}, 9\ns_lshl_b32 {sT[3]}, {sW}, 7\ns_add_u32 {sSk}, {sT[2]}, {sT[3]}")
    vR8.free()
    g(f"s_mov_b32 {sOnes}, 0x3f803f80\ns_mov_b32 {sLo1}, 0x00003f80\ns_mov_b32 {sHi1}, 0x3f800000")
    g(f"s_mov_b32 {sMask}, 0xffff0000\ns_mov_b32 {sTmo}, 0x40000")
    g(f"v_lshlrev_b32 {vL4}, 2, v0\nv_lshlrev_b32 {vL16}, 4, v0")

    vR4, vC8 = V.alloc(1), V.alloc(1)
    g(f"v_bfe_u32 {vR4}, v0, 2, 2\nv_and_b32 {vC8}, 3, v0\nv_lshlrev_b32 {vC8}, 3, {vC8}")
    ka = V.alloc(3)
    for m in range(2):
        g(f"v_sub_u32 {t0}, {vKq}, {vR4}\nv_add_u32 {t0}, {8 + 4*m}, {t0}\nv_bfe_u32 {t2}, {t0}, 1, 2\nv_xor_b32 {t2}, {sW}, {t2}")
        g(f"v_lshl_add_u32 {t2}, {t2}, 5, {vC8}\nv_lshl_add_u32 {t2}, {t0}, 7, {t2}\nv_add_u32 {ka[m]}, {C_K}, {t2}")
    g(f"v_lshl_add_u32 {t0}, {vR4}, 2, {vKq}\nv_xor_b32 {t2}, {sW}, {vR4}\nv_lshl_add_u32 {t2}, {t2}, 5, {vC8}")
    g(f"v_lshl_add_u32 {t2}, {t0}, 7, {t2}\nv_add_u32 {ka[2]}, {C_V}, {t2}")
    sQ = S.alloc(1)
    ua = V.alloc(2)
    g(f"s_add_u32 {sQ}, {sC2}, {C_Q}")
    g(f"v_and_b32 {t0}, 7, {vC}\nv_lshlrev_b32 {t2}, 1, {vKq}\nv_xor_b32 {t0}, {t0}, {t2}\nv_lshlrev_b32 {t0}, 4, {t0}")
    g(f"v_lshl_add_u32 {t0}, {vC}, 7, {t0}\nv_add_u32 {ua[0]}, {sQ}, {t0}")
    g(f"v_lshrrev_b32 {t0}, 3, v0\nv_xor_b32 {t2}, {t0}, {vS8}\nv_lshlrev_b32 {t2}, 4, {t2}")
    g(f"v_lshl_add_u32 {t2}, {t0}, 7, {t2}\nv_add_u32 {ua[1]}, {sQ}, {t2}")
    vT4k = V.alloc(1)
    g(f"v_lshlrev_b32 {t3}, 4, {vS8}\nv_lshl_add_u32 {vT4k}, {t0}, 12, {t3}")
    xa = V.alloc(2)
    g(f"v_lshrrev_b32 {t0}, 1, {vC}\nv_xor_b32 {t0}, {t0}, {vKq}\nv_lshlrev_b32 {t0}, 4, {t0}\nv_lshl_add_u32 {t0}, {vC}, 7, {t0}")
    g(f"v_add_u32 {xa[0]}, {sLdsW}, {t0}\nv_xor_b32 {xa[1]}, 64, {xa[0]}")
    wa = V.alloc(8, at=144)
    g(f"v_lshl_add_u32 {t0}, {vKq}, 3, {vR4}\nv_lshl_add_u32 {t0}, {t0}, 7, {vC8}")
    g(f"v_lshrrev_b32 {t2}, 1, {vR4}\nv_and_b32 {t3}, 1, {vKq}\nv_lshl_or_b32 {t2}, {t3}, 1, {t2}")
    g(f"v_xor_b32 {t2}, {sW}, {t2}\nv_lshl_add_u32 {t0}, {t2}, 5, {t0}\nv_add_u32 {wa[0]}, {LB}, {t0}")
    for T in range(1, 4):
        g(f"v_xor_b32 {wa[T]}, {32*T}, {wa[0]}")
    sCh, sHo = S.alloc(1), S.alloc(1)
    sHs = S.alloc(2)
    g(f"s_lshr_b32 {sT[2]}, {sW}, 1\ns_and_b32 {sT[3]}, {sW}, 1")
    g(f"s_lshl_b32 {sCh}, {sJ}, 5\ns_add_u32 {sCh}, {sCh}, {sP}\ns_lshl_b32 {sCh}, {sCh}, 1\ns_add_u32 {sCh}, {sCh}, {sT[2]}")
    g(f"s_sub_u32 {sHo}, {sKV}, {sCol}\ns_lshl_b32 {sT[0]}, {sJ}, 11\ns_add_u32 {sHo}, {sHo}, {sT[0]}\ns_add_u32 {sHo}, {sHo}, {HBUF}")
    g(f"s_lshl_b32 {sT[0]}, {sT[2]}, 10\ns_add_u32 {sHs[0]}, {sHo}, {sT[0]}\ns_xor_b32 {sHs[1]}, {sHs[0]}, 1024")
    sL, sW3, sRot3, sIdle, sRing, sSt = (S.alloc(1) for _ in range(6))
    g(f"s_lshr_b32 {sT[0]}, {sJ}, 1\ns_mul_i32 {sL}, {sT[0]}, 7\ns_and_b32 {sT[1]}, {sJ}, 1\ns_lshl_b32 {sT[2]}, {sT[1]}, 2")
    g(f"s_add_u32 {sT[2]}, {sT[2]}, {sW}\ns_add_u32 {sL}, {sL}, {sT[2]}")
    g(f"s_cmp_eq_u32 {sT[2]}, 7\ns_cselect_b32 {sIdle}, {OOB}, 0")
    g(f"s_lshl_b32 {sW3}, {sL}, 7\ns_add_u32 {sW3}, {sW3}, {sIdle}")
    if o.rot:
        g(f"s_lshl_b32 {sRot3}, {sX}, 1")
    g(f"s_add_u32 {sRing}, {sLdsW}, {LB}")
    if o.fake & 1:
        g(f"s_mov_b32 {sW3}, {OOB}")
    d3, ra = V.alloc(4), V.alloc(2)
    g(f"v_lshrrev_b32 {t0}, 3, v0\nv_and_b32 {t2}, 1, {vKq}\nv_lshlrev_b32 {t2}, 2, {t2}")
    g(f"v_xor_b32 {t3}, {t2}, {vS8}\nv_lshlrev_b32 {t3}, 4, {t3}")
    g(f"v_mul_u32_u24 {d3[0]}, 3584, {t0}\nv_add_u32 {d3[0]}, {d3[0]}, {t3}")
    for i in range(1, 4):
        g(f"v_add_u32 {d3[i]}, {i*(8*3584-1024)}, {d3[0]}")
    g(f"v_lshrrev_b32 {t0}, 5, v0\nv_lshl_add_u32 {t0}, {t0}, 2, {vR4}\nv_lshl_add_u32 {t0}, {t0}, 7, {vC8}")
    g(f"v_and_b32 {t2}, 1, {vKq}\nv_lshl_add_u32 {t0}, {t2}, 5, {t0}\nv_lshrrev_b32 {t2}, 1, {vR4}\nv_lshl_add_u32 {t0}, {t2}, 6, {t0}")
    g(f"v_add_u32 {ra[0]}, {sRing}, {t0}\nv_xor_b32 {ra[1]}, 64, {ra[0]}")
    xf = V.alloc(64, at=48)
    tmp = V.alloc(8, at=112)
    st, gk1 = V.alloc(4, at=120), V.alloc(4, at=124)
    cs, ones = V.alloc(16, at=160), V.alloc(4, at=176)
    wf, acc = V.alloc(48, at=192), V.alloc(16, at=240)
    vCs = V.alloc(1)
    for i in range(4):
        g(f"v_mov_b32 {st[i]}, 0\nv_mov_b32 {ones[i]}, {sOnes}")
    g(f"s_lshl_b32 {sT[0]}, {sW}, 6\ns_add_u32 {sT[0]}, {sT[0]}, {C_CS}\nv_lshl_add_u32 {vCs}, {vKq}, 4, {sT[0]}")
    pump_off()
    Bg.flush(Bg.cap)
    stamp("setup")

    def x_reads(n):
        Bg.flush(Bg.find("dma", f"x{n}"))
        g.wait(vm=f"x{n}")
        for b in range(2):
            g.ds(f"ds_read_b128 {xf.r(8*n + 4*b, 4)}, {xa[b]} offset:{LA + n*2048}", f"x{n}")

    def stats(n):
        g.wait(lg=f"x{n}")
        for i in range(8):
            g(f"v_dot2c_f32_bf16 {st[i & 1]}, {sOnes}, {xf[8*n+i]}")
            g(f"v_dot2c_f32_bf16 {st[2 + (i & 1)]}, {xf[8*n+i]}, {xf[8*n+i]}")

    def ready_store():
        g.wait(vm="clr")
        g(f"s_mov_b64 exec, 1\nv_mov_b32 {vOne}, 1")
        g.vm(f"buffer_store_dword {vOne}, off, {R['dbg']}, {sLead} sc1", "clr")
        g("s_mov_b64 exec, -1")

    at = Bg.find("dma", "x7")
    Bg.ops[at:at] = [("dma", "rdy", ready_store)]
    Bg.cap = at
    pump_on()
    x_reads(0)
    for n in range(1, 8):
        x_reads(n)
        mark(4, f"p_x{n}")
        if n == 2:
            Bg.cap = len(Bg.ops)
        stats(n - 1)
    stats(7)
    xa.free(); xd.free()
    stamp("x_in")
    g(f"v_add_f32 {st[0]}, {st[0]}, {st[1]}\nv_add_f32 {st[2]}, {st[2]}, {st[3]}")
    for sw in ("32", "16"):
        g(f"v_mov_b32 {st[1]}, {st[0]}\nv_mov_b32 {st[3]}, {st[2]}")
        g(f"v_permlane{sw}_swap_b32 {st[0]}, {st[1]}\nv_permlane{sw}_swap_b32 {st[2]}, {st[3]}")
        g(f"v_add_f32 {st[0]}, {st[0]}, {st[1]}\nv_add_f32 {st[2]}, {st[2]}, {st[3]}")
    run(ln_stats(st[0], st[2], st[1], gk1))
    pump_off()
    mark(4, "p_ln")
    Bg.flush(len(Bg.ops))
    mark(4, "p_w1iss")
    sLead.free()
    Bg.thresh = o.thresh

    gw, vD, shk = V.alloc(8, at=136), V.alloc(1), V.alloc(2)
    for i in range(4):
        g(f"v_add_u32 {wd[i]}, {i*7168}, {vW2}")
    g(f"s_lshl_b32 {sT[0]}, {sW}, 2\ns_xor_b32 {sT[0]}, {sT[0]}, {sPP}\ns_lshl_b32 {sM}, {sT[0]}, 12")
    g(f"s_lshl_b32 {sT[1]}, {sJ}, 1\ns_xor_b32 {sT[0]}, {sT[0]}, {sT[1]}\ns_lshl_b32 {sOff}, {sT[0]}, 15\ns_add_u32 {sOff}, {sOff}, {sCol}")
    g(f"s_lshl_b32 {sT[3]}, {sCh}, 1\nv_lshlrev_b32 {t3}, 3, {vKq}\nv_mov_b32 {vD}, 0")

    def one_dma(key, m0, text, tag):
        def fn():
            if g.m0 != key:
                g(m0)
                g.m0 = key
            g.vm(text, tag)
        return ("dma", tag, fn)
    Bg.ops.append(one_dma("k0", f"s_mov_b32 m0, {sK0}", f"buffer_load_dwordx4 {vK0}, {R['k']}, 0 offen {o.nt_once} lds", "par"))
    for i in range(2):
        Bg.ops.append(one_dma("k", f"s_add_u32 m0, {sC2}, {C_K + 1024}", f"buffer_load_dwordx4 {vW2}, {R['k']}, {(sKV, sKV2)[i]} offen offset:{i*1024} {o.nt_once} lds", "par"))
    for i in range(2):
        Bg.ops.append(one_dma("v", f"s_add_u32 m0, {sC2}, {C_V}", f"buffer_load_dwordx4 {vV[i]}, {R['v']}, {(sKV, sKV2)[i]} offen offset:{i*1024} {o.nt_once} lds", "par"))
    Bg.ops.append(("dma", "par", lambda: g.vm(f"buffer_load_dwordx2 {shk}, {vSk}, {R['shift_k']}, {sSk} offen", "par")))
    for i in range(2):
        Bg.ops.append(one_dma("q", f"s_mov_b32 m0, {sQ}", f"buffer_load_dwordx4 {vQa[i]}, {R['q']}, {sKV} offen offset:{i*1024} lds", "par"))
    for T in range(4):
        Bg.ops.append(("dma", "par", lambda T=T: g.vm(f"buffer_load_dwordx2 {gw.r(2*T,2)}, {t3}, {R['gate_w']}, {sCol} offen offset:{32*T}", "par")))
    Bg.ops.append(("dma", "par", lambda: g.vm(f"buffer_load_short_d16_hi {vD}, off, {R['ssm_D']}, {sT[3]}", "par")))
    for n in range(4):
        for i in range(4):
            Bg.ops.append(("dma", "w2", lambda n=n, i=i: w_dma("w2", LA, n, i)))
    w3r = A.alloc(256)
    sG4 = []
    d4 = Reg(V, d3.base, 4)

    def w4home(n, ft, e2=None):
        k, b = ("v", 160 + 8*n + 4*ft) if n < 12 else ("a", 8*(n-12) + 4*ft)
        return f"{k}[{b}:{b+3}]" if e2 is None else f"{k}[{b+2*e2}:{b+2*e2+1}]"

    rx, sRx = [], []
    prev = lambda n: n - 4 if n < 26 else None if n < 28 else n - 6
    slot = lambda n: (n & 3) if n < 26 else n - 26

    def d4_setup():
        g(f"v_and_b32 {d4[1]}, 127, {d3[0]}\nv_lshrrev_b32 {d4[0]}, 3, v0\nv_lshl_add_u32 {d4[0]}, {d4[0]}, 10, {d4[1]}")
        for i in range(1, 4):
            g(f"v_add_u32 {d4[i]}, {i*7168}, {d4[0]}")

    def st_setup(n):
        def fn():
            if n == 26:
                rx.append(V.alloc(2))
                sRx.append(S.alloc(1))
                g(f"s_lshl_b32 {sRx[0]}, {sW}, 13\ns_sub_u32 {sSt}, {sRx[0]}, {sRing}\nv_add_u32 {rx[0][0]}, {sSt}, {ra[0]}\nv_add_u32 {rx[0][1]}, {sSt}, {ra[1]}")
            if not o.rot:
                if n == 16:
                    d4_setup()
                g(f"s_add_u32 {sSt}, {sW3 if n < 16 else sW4}, {n*32*3584 if n < 16 else (n-16)*32768}")
            elif n < 16:
                g(f"s_xor_b32 {sSt}, {sRot3}, {n}\ns_mul_i32 {sSt}, {sSt}, {32*3584}\ns_add_u32 {sSt}, {sSt}, {sW3}")
            else:
                if n == 16:
                    d4_setup()
                g(f"s_lshl_b32 {sSt}, {sG4[n-16]}, 4\ns_add_u32 {sSt}, {sSt}, {sW4}")
        return ("set", n, fn)

    def st_dma(n, i):
        def fn():
            if i == 0 and n >= 4 and prev(n) is not None:
                g.wait(lg=f"sr{prev(n)}")
            if g.m0 != ("st", n):
                g(f"s_add_u32 m0, {sRx[0] if n in (26, 27) else sRing}, {slot(n)*4096}")
                g.m0 = ("st", n)
            g.vm(f"buffer_load_dwordx4 {d3[i]}, {R['w3' if n < 16 else 'w4']}, {sSt} offen offset:{i*1024} lds", f"sd{n}")
        return ("dma", n, fn)

    def st_rd(n, u, ft, e2):
        def fn():
            g.wait(vm=f"sd{n}")
            if n < 16:
                dst, off = w3r.r(16*n + 8*u + 4*ft + 2*e2, 2), e2 * 2048 + u * 1024
            else:
                dst, off = w4home(2*(n-16) + u, ft, e2), u * 2048 + e2 * 1024
            g.ds(f"ds_read_b64_tr_b16 {dst}, {(rx[0] if n in (26, 27) else ra)[ft]} offset:{slot(n)*4096 + off}", f"sr{n}")
        return ("rd0" if (u, ft, e2) == (0, 0, 0) else "rd", n, fn)
    allrd = lambda n: [st_rd(n, u, ft, e2) for u in range(2) for ft in range(2) for e2 in range(2)]
    alldma = lambda n: [st_setup(n)] + [st_dma(n, i) for i in range(4)]
    for n in range(25):
        rds = allrd(n - 3) if n >= 3 else []
        Bg.ops.append(st_setup(n))
        for i in range(4):
            Bg.ops.append(st_dma(n, i))
            Bg.ops += rds[4*i:4*i+4]
    Bg.ops += alldma(25) + alldma(26) + alldma(27)
    Bg.ops += allrd(22) + allrd(23)[:4] + alldma(28) + allrd(23)[4:] + allrd(24)[:4] + alldma(29) + allrd(24)[4:]
    for n in range(25, 30):
        Bg.ops += allrd(n)

    def wreads(ks, first):
        for T in range(4):
            for e2 in range(2):
                ad, off = (wa[T], ks*4096 + e2*512) if first else (wa[2*T + e2], ks*4096)
                g.ds(f"ds_read_b64_tr_b16 {wf.r(16*(ks % 3) + 4*T + 2*e2, 2)}, {ad} offset:{off}", f"w{ks}")
            yield

    def gemm16(tok, first, vmtag=None, hook=None, pre=None):
        for ks in range(16):
            if pre:
                pre(ks)
            nxt = wreads(ks + 2, first) if ks < 14 else iter(())
            g.wait(vm=vmtag and f"{vmtag}{ks}", lg=f"w{ks}")
            for T in range(4):
                g(f"v_mfma_f32_16x16x32_bf16 {acc.r(4*T,4)}, {wf.r(16*(ks % 3) + 4*T, 4)}, {tok.r(4*ks,4)}, {acc.r(4*T,4) if ks else 0}")
                next(nxt, None)
            if first:
                g(f"v_mfma_f32_16x16x32_bf16 {cs.r(0,4)}, {wf.r(16*(ks % 3), 4)}, {ones}, {cs.r(0,4) if ks else 0}")
            if hook:
                hook(ks)

    Bg.cap = Bg.find("dma", "w2")
    g.wait(vm="w1a")
    g("s_barrier")
    stamp("w1_in")
    run(wreads(0, True))
    run(wreads(1, True))
    pd = Poll(R["dbg"], vP32, 0, 1)

    def pre1(ks):
        if ks in (0, 3, 6, 10, 13):
            mark(4, f"p_k{ks}")
        if ks == 6:
            g.wait(vm="w1b")
            g("s_barrier")
            mark(4, "p_w1b")

    def hook1(ks):
        if ks == o.dpoll_at:
            pd.issue()
        Bg.step()
    gemm16(xf, True, hook=hook1, pre=pre1)
    mark(4, "p_loop")
    ones.free(); R["w1"].free()
    g.ds(f"ds_write_b128 {vCs}, {cs.r(0,4)}", "csw")
    Bg.flush(Bg.find("dma", "par"))
    for r in (R["q"], R["k"], R["v"], R["shift_k"], R["ssm_D"], R["gate_w"], vQa, sKV, sKV2, sC2, vW2, vV, vK0, vSk, sK0, sSk):
        r.free()
    for i in range(4):
        g(f"v_fmac_f32 {acc[i]}, {st[1]}, {cs[i]}")
    g.wait(lg="csw")
    g("s_barrier")
    stamp("g1_mfma")
    for i in range(1, 4):
        g(f"v_xor_b32 {t0}, {64*i}, {vCs}")
        g.ds(f"ds_read_b128 {cs.r(4*i,4)}, {t0}", f"cs{i}")
    vCs.free()
    hp = V.alloc(8, at=128)
    Bg.cap = Bg.find("dma", "w2")
    pump_on()
    for i in range(1, 4):
        g.wait(lg=f"cs{i}")
        for e in range(4):
            g(f"v_fmac_f32 {acc[4*i+e]}, {st[1]}, {cs[4*i+e]}")
    st.free(); cs.free()

    def h_store(gg):
        g.vm(f"buffer_store_dwordx4 {hp.r(4*gg,4)}, {vL16}, {R['ws']}, {sHs[gg]} offen sc1", "hst")
    gelu_pk(acc, 16, gk1, hp, tmp, h_store)
    gk1.free(); sHs.free(); acc.free()
    stamp("h_st")

    qp = V.alloc(8, at=120)
    g(f"v_lshrrev_b32 {t0}, 1, {vC}\nv_lshrrev_b32 {t2}, 1, {vKq}\nv_xor_b32 {t0}, {t0}, {t2}\nv_lshlrev_b32 {t0}, 4, {t0}")
    g(f"v_lshl_add_u32 {t0}, {vC}, 7, {t0}\nv_and_b32 {t2}, 1, {vKq}\nv_lshl_add_u32 {t0}, {t2}, 3, {t0}\nv_add_u32 {t0}, {sQ}, {t0}")
    Bg.cap = Bg.find("dma", o.bg_a)
    mark(2, "a_pre")
    g.wait(vm="par")
    mark(2, "a_par")
    g("s_barrier")
    mark(2, "a_bar")
    for T in range(4):
        g(f"v_xor_b32 {t2}, {32*T}, {t0}")
        g.ds(f"ds_read_b64 {qp.r(2*T,2)}, {t2}", "q")
    sQ.free()
    up = V.alloc(8, at=160)
    kk = xf

    def kv_reads(m0):
        g.ds(f"ds_read_b64_tr_b16 {kk.r(32 + m0//2, 2)}, {ka[2]} offset:{m0*512}", f"k{m0}")
        for m in range(m0, m0 + 4):
            g.ds(f"ds_read_b64_tr_b16 {kk.r(2*m, 2)}, {ka[m & 1]} offset:{(m >> 1)*1024}", f"k{m0}")
    def hflag():
        g.wait(vm="hst")
        flag_set(F_H)
        hp.free()
    pd.check()
    R["dbg"].free()
    if o.local:
        g.vm(f"buffer_load_dword {vDum}, off, {R['ws']}, {sLp} sc1", "pf")
    mark(2, "a_pd")
    kv_reads(0)
    kv_reads(4)
    for m0 in range(0, 16, 4):
        g.wait(lg=f"k{m0}")
        if m0 + 8 < 16:
            kv_reads(m0 + 8)
        for m in range(m0, m0 + 4):
            g(f"v_dot2_f32_bf16 {kk[40+m]}, {kk[2*m]}, {shk[0]}, 0")
        for m in range(m0, m0 + 4):
            g(f"v_dot2_f32_bf16 {kk[40+m]}, {kk[2*m+1]}, {shk[1]}, {kk[40+m]}")
        for i in range(2):
            g(f"v_lshlrev_b32 {tmp[2*i]}, 16, {kk[32 + m0//2 + i]}\nv_and_b32 {tmp[2*i+1]}, {sMask}, {kk[32 + m0//2 + i]}")
        for i in range(2):
            g(f"v_pk_mul_f32 {tmp.r(2*i,2)}, {tmp.r(2*i,2)}, {kk.r(40 + m0 + 2*i, 2)}")
        for i in range(2):
            g(f"v_cvt_pk_bf16_f32 {up[m0//2 + i]}, {tmp[2*i]}, {tmp[2*i+1]}")
        mark(2, f"a_kv{m0}")
        if m0 == o.hflag_m:
            hflag()
            mark(2, "a_hflag")
        if m0 == 4:
            g.ds(f"ds_write_b128 {ua[0]}, {up.r(0,4)}", "uw")
            g(f"v_xor_b32 {ua[0]}, 16, {ua[0]}")
    g.ds(f"ds_write_b128 {ua[0]}, {up.r(4,4)}", "uw")
    shk.free(); ka.free()

    sTr = S.alloc(1)
    g(f"s_lshl_b32 {sT[0]}, {sJ}, 18\ns_lshl_b32 {sT[1]}, {sW}, 16\ns_add_u32 {sTr}, {sT[0]}, {sT[1]}\ns_lshl_b32 {sT[0]}, {sP}, 7\ns_add_u32 {sTr}, {sTr}, {sT[0]}")
    g(f"s_add_u32 {sT[0]}, {sTr}, {UBUF}\ns_add_u32 {sT[1]}, {sTr}, {UBUF + 32768}")
    g.wait(lg="uw")
    g.ds(f"ds_read_b128 {up.r(0,4)}, {ua[1]}", "ur")
    g.ds(f"ds_read_b128 {up.r(4,4)}, {ua[1]} offset:1024", "ur")
    ua.free()
    if o.hflag_m >= 16:
        hflag()
    stamp("h_out")
    g.wait(lg="ur")
    for i in range(2):
        g.vm(f"buffer_store_dwordx4 {up.r(4*i,4)}, {vT4k}, {R['ws']}, {sT[i]} offen sc1", "ust")
    g(f"v_lshl_add_u32 {t0}, {vKq}, 2, {vR4}\nv_bfe_u32 {t2}, {t0}, 1, 2\nv_lshl_add_u32 {t0}, {t0}, 7, {vC8}")
    g(f"s_and_b32 {sT[0]}, {sW}, 1\ns_lshl_b32 {sT[0]}, {sT[0]}, 11\nv_lshl_add_u32 {t0}, {t2}, 5, {t0}\nv_add_u32 {wa[0]}, {sT[0]}, {t0}")
    for i in range(1, 8):
        g(f"v_xor_b32 {wa[i]}, {32*(i >> 1) + 2048*(i & 1)}, {wa[0]}")
    vP8 = V.alloc(1)
    g(f"s_lshl_b32 {sT[0]}, {sW}, 2\nv_lshl_add_u32 {vP8}, {vS8}, 4, {sT[0]}")
    ph = Poll(R["ws"], vP8, None, F_H, local=True)
    cA = xf
    pump_off()
    mark(2, "a_set")
    Bg.flush(Bg.find("dma", "w2"))
    mark(2, "a_w2iss")
    for r in (R["w2"], sM, sOff, sWo, wd):
        r.free()

    keys = ("vmq", "lgq", "vmt", "lgt", "clock", "mfree", "m0", "q", "lq", "last_done", "ta")

    def two_paths(body, before=None):
        lodd, ljoin = g.label("odd"), g.label("join")
        g(f"s_bitcmp1_b32 {sW}, 0\ns_cbranch_scc1 {lodd}")
        saved = (copy.deepcopy({k: getattr(g, k) for k in keys}), Bg.idx)
        ends = []
        for par in range(2):
            if par:
                g(f"{lodd}:")
                for k, v in copy.deepcopy(saved[0]).items():
                    setattr(g, k, v)
                Bg.idx = saved[1]
            extra = body(par)
            ends.append((Bg.idx, list(g.vmq), list(g.lgq), extra, g.clock))
            if not par:
                g(f"s_branch {ljoin}")
        g(f"{ljoin}:")
        assert ends[0][0] == ends[1][0]
        g.vmq = merge_queues(ends[0][1], ends[1][1])
        g.lgq = merge_queues(ends[0][2], ends[1][2])
        g.clock = max(ends[0][4], ends[1][4])
        g.m0 = None

    def conv_all(par, events, spare=None):
        tiles = TILES[par]
        top = max(tiles)
        seq = [(d, mp) for d in (0, 1, 2, 3) for mp in range(-1, 2 * top + 1)]
        aorder = []
        for mp in range(-1, 2 * top + 1):
            aorder += [2*jb - mp for jb in tiles if 2*jb - mp >= 0 and 2*jb - mp not in aorder]

        def aread(m):
            for e2 in range(2):
                g.ds(f"ds_read_b64_tr_b16 {cA.r(4*m + 2*e2, 2)}, {aA} offset:{256*m + 32 - 32*e2}", f"A{m}")

        def bread(i):
            d, mp = seq[i]
            for e2 in range(2):
                g.ds(f"ds_read_b64 {cBr(i, 2*e2, 2)}, {aB} offset:{d*UP + 64*(mp+1) + 8*e2}", f"B{i}")
                yield
        nA = len(tiles)
        for m in aorder[:nA]:
            aread(m)
        run(bread(0))
        run(bread(1))
        for m in aorder[nA:2*nA]:
            aread(m)
        for i in range(2, o.bdist):
            run(bread(i))
        pend = aorder[2*nA:]
        started = set()
        cnt = 0
        ndma = sum(1 for x in Bg.ops[Bg.idx:Bg.cap] if x[0] == "dma")
        per = max(1, 138 // max(ndma, 1))
        done = [-per]
        for i, (d, mp) in enumerate(seq):
            rd = bread(i + o.bdist) if i + o.bdist < len(seq) else iter(())
            if i % 2 == 0:
                g.wait(lg=f"B{min(i + 1, len(seq) - 1)}")
            for ti, jb in enumerate(tiles):
                m = 2 * jb - mp
                if m < 0:
                    continue
                assert m not in pend
                g.wait(lg=f"A{m}")
                c = (pp, qq)[d & 1].r(6*ti + (d & 2), 4)
                first = d < 2 and (d, ti) not in started
                started.add((d, ti))
                g(f"v_mfma_f32_16x16x32_bf16 {c}, {cA.r(4*m,4)}, {cBr(i, 0, 4)}, {0 if first else c}")
                cnt += 1
                next(rd, None)
                if pend and ti < 2:
                    aread(pend.pop(0))
                if cnt in events:
                    mark(5, f"c{cnt}a")
                    events[cnt]()
                    mark(5, f"c{cnt}b")
                if spare and cnt > 144 - 2 * len(spare) - 8 and cnt % 2:
                    spare.pop(0)()
                for _ in range(2):
                    if Bg.idx < Bg.cap and (Bg.ops[Bg.idx][0] != "dma" or cnt - done[0] >= per):
                        if Bg.ops[Bg.idx][0] == "dma":
                            done[0] = cnt
                        Bg.step(True)
                        if g.slack() < 4:
                            break
            run(rd)
        Bg.flush(Bg.cap)

    Bg.flush(Bg.find("dma", o.bg_a))
    mark(2, "a_bga")
    ph.issue()
    Bg.cap = Bg.find("dma", o.cap_p2)
    Bg.flush(Bg.find("dma", o.bg_b))
    mark(2, "a_bgb")
    g.wait(vm="w2")
    g("s_barrier")
    stamp("u_out")
    run(wreads(0, False))
    run(wreads(1, False))

    ph.check(then=lambda: flag_set(F_U))
    up.free()
    stamp("h_flag")
    sHl2 = S.alloc(1)
    acc = V.alloc(16, at=240)

    def h1_load(ks):
        if ks & 1 == 0:
            g(f"s_xor_b32 {sHl2}, {sHo}, {ks << 10}")
        g.vm(f"buffer_load_dwordx4 {xf.r(4*ks,4)}, {vL16}, {R['ws']}, {sHl2} offen offset:{(ks & 1)*1024} sc1", f"h{ks}")
    hl = (h1_load(ks) for ks in range(9))
    next(hl)
    g.pump = lambda: next(hl, None) if g.ta - g.clock < 30 else None
    gs = V.alloc(4)
    g(f"v_mov_b32 {gs[1]}, 0\nv_mov_b32 {gs[3]}, 0")
    g.wait(lg="q")
    for i in range(8):
        g(f"v_dot2c_f32_bf16 {gs[1]}, {qp[i]}, {gw[i]}")
    gw.free()
    sCH, sCU, sUl, sFu = (S.alloc(1) for _ in range(4))
    g(f"s_lshr_b32 {sT[2]}, {sW}, 1\ns_and_b32 {sT[3]}, {sW}, 1")
    g(f"s_mul_i32 {sCH}, {sT[2]}, {HP}\ns_add_u32 {sCH}, {sCH}, {C_H}\ns_mul_i32 {sCU}, {sT[2]}, {4*UP}\ns_add_u32 {sCU}, {sCU}, {C_U}")
    g(f"s_lshl_b32 {sUl}, {sCh}, 12\ns_lshl_b32 {sT[0]}, {sT[3]}, 6\ns_add_u32 {sUl}, {sUl}, {sT[0]}\ns_add_u32 {sUl}, {sUl}, {UBUF}")
    g(f"s_lshr_b32 {sT[0]}, {sP}, 3\ns_lshl_b32 {sT[0]}, {sT[0]}, 7\ns_lshl_b32 {sFu}, {sJ}, 9\ns_add_u32 {sFu}, {sFu}, {sT[0]}")
    aA, aB = V.alloc(1), V.alloc(1)
    g(f"v_lshlrev_b32 {t0}, 6, {vKq}\nv_add_u32 {t0}, {t0}, {vC8}\nv_lshlrev_b32 {t2}, 3, {vR4}\nv_sub_u32 {t0}, {t0}, {t2}")
    g(f"s_add_u32 {sT[0]}, {sCH}, 32\nv_add_u32 {aA}, {sT[0]}, {t0}")
    g(f"v_lshlrev_b32 {t0}, 3, {vC}\nv_lshlrev_b32 {t2}, 4, {vKq}\nv_sub_u32 {t0}, {t0}, {t2}\ns_add_u32 {sT[0]}, {sCU}, 56\nv_add_u32 {aB}, {sT[0]}, {t0}")
    sW4 = S.alloc(1)
    g(f"s_mul_i32 {sW4}, {sW}, {448*1024}\ns_add_u32 {sW4}, {sW4}, {sCol}")
    if o.fake & 2:
        g(f"s_mov_b32 {sW4}, {OOB}")
    if o.rot:
        sG4 += [S.alloc(1) for _ in range(14)]
        g(f"s_mul_i32 {sT[0]}, {sX}, 7\ns_lshr_b32 {sT[0]}, {sT[0]}, 2\ns_lshl_b32 {sG4[0]}, {sT[0]}, 11")
        for n in range(1, 14):
            g(f"s_add_u32 {sG4[n]}, {sG4[n-1]}, 2048\ns_cmp_eq_u32 {sG4[n]}, {14*2048}\ns_cselect_b32 {sG4[n]}, 0, {sG4[n]}")
    g(f"v_mov_b32 {tmp[0]}, 0\nv_mov_b32 {tmp[1]}, 0")
    g(f"v_mul_u32_u24 {t0}, {UP}, {vKq}\nv_lshl_add_u32 {t0}, {vC}, 3, {t0}\nv_add_u32 {t0}, {sCU}, {t0}\nv_add_u32 {t2}, {sCH}, {vC8}")
    g.ds(f"ds_write_b64 {t0}, {tmp.r(0,2)}")
    g.ds(f"ds_write_b64 {t2}, {tmp.r(0,2)}")
    sX1s, sX1l, sSto, sStw, sY, sXo, sH2, sHst, sFy, sXm = (S.alloc(1) for _ in range(10))
    aN, aU, aY, vSt, vSw, vXs, vN0 = (V.alloc(1) for _ in range(7))
    g(f"s_lshr_b32 {sT[0]}, {sW}, 1\ns_mul_i32 {sT[1]}, {sT[0]}, {NP}\ns_add_u32 {sT[1]}, {sT[1]}, {A_N}\nv_mov_b32 {vN0}, {sT[1]}")
    g(f"v_lshl_add_u32 {t0}, {vC}, 2, {vKq}\nv_lshl_add_u32 {aN}, {t0}, 4, {sT[1]}")
    g(f"s_add_u32 {sT[1]}, {sCU}, 128\nv_lshl_add_u32 {aU}, {t0}, 1, {sT[1]}")
    g(f"v_lshrrev_b32 {t0}, 2, {vC}\nv_lshlrev_b32 {t0}, 7, {t0}")
    g(f"v_lshl_add_u32 {t0}, {vKq}, 5, {t0}\nv_add_u32 {aY}, {t0}, {vC8}")
    g(f"s_lshl_b32 {sT[3]}, {sP}, 16\ns_add_u32 {sT[3]}, {sT[3]}, {X1BUF}")
    g(f"s_lshl_b32 {sT[0]}, {sT[0]}, 15\ns_and_b32 {sT[1]}, {sW}, 1\ns_lshl_b32 {sT[2]}, {sT[1]}, 8\ns_add_u32 {sT[0]}, {sT[0]}, {sT[2]}")
    g(f"s_lshl_b32 {sT[2]}, {sJ}, 12\ns_add_u32 {sT[0]}, {sT[0]}, {sT[2]}\ns_add_u32 {sX1s}, {sT[0]}, {sT[3]}")
    if o.rot:
        g(f"s_lshl_b32 {sX1l}, {sW}, 2\ns_xor_b32 {sX1l}, {sX1l}, {sRot3}\ns_lshl_b32 {sX1l}, {sX1l}, 11\ns_add_u32 {sX1l}, {sX1l}, {sT[3]}")
    else:
        g(f"s_lshl_b32 {sX1l}, {sW}, 13\ns_add_u32 {sX1l}, {sX1l}, {sT[3]}")
    g(f"s_lshl_b32 {sSto}, {sP}, 13\ns_add_u32 {sSto}, {sSto}, {STATS}\ns_lshl_b32 {sXm}, {sW}, 13")
    g(f"s_lshl_b32 {sT[0]}, {sJ}, 10\ns_lshl_b32 {sT[2]}, {sW}, 8\ns_add_u32 {sSto}, {sSto}, {sT[2]}\ns_add_u32 {sStw}, {sT[0]}, {sSto}")
    g(f"s_lshl_b32 {sY}, {sCh}, 12\ns_add_u32 {sY}, {sY}, {YBUF}")
    g(f"v_lshlrev_b32 {t0}, 9, {vKq}\nv_lshl_add_u32 {vXs}, {vC}, 4, {t0}")
    g(f"v_lshrrev_b32 {t2}, 5, v0\nv_and_b32 {t3}, 1, {vKq}\nv_lshl_add_u32 {t2}, {t3}, 1, {t2}\nv_lshlrev_b32 {t0}, 4, {vC}")
    g(f"v_lshl_add_u32 {vSw}, {t2}, 2, {t0}\nv_lshl_add_u32 {vSt}, {vKq}, 11, {t0}")
    g(f"s_mul_i32 {sH2}, {sP}, 229376\ns_add_u32 {sH2}, {sH2}, {H2BUF}")
    g(f"s_lshl_b32 {sHst}, {sL}, 12\ns_add_u32 {sHst}, {sHst}, {sH2}\ns_add_u32 {sHst}, {sHst}, {sIdle}")
    g(f"s_lshr_b32 {sT[0]}, {sP}, 2\ns_lshr_b32 {sT[1]}, 0x3b, {sT[0]}\ns_and_b32 {sT[1]}, {sT[1]}, 1\ns_lshl_b32 {sT[1]}, {sT[1]}, 7")
    g(f"s_lshl_b32 {sT[0]}, {sW}, 15\ns_add_u32 {sT[1]}, {sT[1]}, {sT[0]}\ns_lshl_b32 {sT[0]}, {sJ}, 9\ns_add_u32 {sFy}, {sT[1]}, {sT[0]}")
    g(f"v_mov_b32 {gs[0]}, 0\nv_mov_b32 {gs[2]}, 0")
    vPu = V.alloc(1)
    pu = Poll(R["ws"], vPu, sFu, F_U)
    g(f"v_lshlrev_b32 {vPu}, 10, {vP32}")
    g(f"s_and_b32 {sT[3]}, {sW}, 1\ns_lshl_b32 {sT[2]}, {sT[3]}, 11\ns_lshl_b32 {sT[1]}, {sCh}, 12\ns_add_u32 {sT[1]}, {sT[1]}, {sT[2]}")
    g(f"s_add_u32 {sT[2]}, {sT[2]}, {sCH}\ns_mul_i32 {sT[0]}, {sT[3]}, {2*UP}\ns_add_u32 {sT[0]}, {sT[0]}, {sCU}")
    g(f"v_lshrrev_b32 {t3}, 1, v0\nv_and_b32 {t2}, 1, v0\nv_lshlrev_b32 {t2}, 4, {t2}\nv_lshl_add_u32 {t3}, {t3}, 7, {t2}")
    for r in (sL, sIdle, sCh, sCH, sCU):
        r.free()
    mark(2, "b_set")
    g.pump = None
    run(hl)
    mark(2, "b_iss")

    def u_loads():
        pu.check()
        g(f"s_add_u32 m0, {sT[0]}, 128\ns_nop 0")
        g.vm(f"buffer_load_dwordx4 {t3}, {R['ws']}, {sUl} offen sc1 lds", "cin")
        g(f"s_add_u32 m0, {sT[0]}, {128 + UP - 32}\ns_nop 0")
        g.vm(f"buffer_load_dwordx4 {t3}, {R['ws']}, {sUl} offen offset:32 sc1 lds", "cin")

    def hook2(ks):
        if ks in (0, 4, 8, 12):
            mark(2, f"b_k{ks}")
        if ks == o.upoll_at:
            pu.issue()
        if ks == o.ucheck_at:
            u_loads()
        if ks + 9 < 16:
            h1_load(ks + 9)
        elif ks == 7:
            g(f"s_add_u32 m0, {sT[2]}, 32\ns_nop 0")
            for i in range(2):
                g.vm(f"buffer_load_dwordx4 {vL16}, {R['ssm_k']}, {sT[1]} offen offset:{i*1024} {o.nt_once} lds", "cin")
        else:
            Bg.step()
            Bg.step()
    gemm16(xf, False, vmtag="h", hook=hook2)
    sHl2.free(); sHo.free()
    stamp("g2_mfma")
    wa.free(); wf.free(); R["ssm_k"].free()
    if o.ucheck_at >= 16:
        u_loads()
    sUl.free(); sFu.free(); vPu.free()
    pump_on()
    x1p = V.alloc(8, at=128)
    for T in range(0, 4, 2):
        for i in range(4):
            g(f"v_dot2_f32_bf16 {tmp[2*i]}, {qp[2*T+i]}, {sLo1}, {acc[4*T+2*i]}")
            g(f"v_dot2_f32_bf16 {tmp[2*i+1]}, {qp[2*T+i]}, {sHi1}, {acc[4*T+2*i+1]}")
        for i in range(4):
            g(f"v_cvt_pk_bf16_f32 {x1p[2*T+i]}, {tmp[2*i]}, {tmp[2*i+1]}")
    acc.free()
    for i in range(8):
        g(f"v_dot2c_f32_bf16 {gs[0]}, {sOnes}, {x1p[i]}")
        g(f"v_dot2c_f32_bf16 {gs[2]}, {x1p[i]}, {x1p[i]}")
    g(f"v_permlane32_swap_b32 {gs[0]}, {gs[2]}\nv_permlane32_swap_b32 {gs[1]}, {gs[3]}")
    g(f"v_add_f32 {gs[0]}, {gs[0]}, {gs[2]}\nv_add_f32 {gs[1]}, {gs[1]}, {gs[3]}")
    g(f"v_permlane16_swap_b32 {gs[0]}, {gs[1]}\nv_add_f32 {gs[0]}, {gs[0]}, {gs[1]}")
    g.vm(f"buffer_store_dword {gs[0]}, {vSw}, {R['ws']}, {sStw} offen sc1", "sst")
    sStw.free(); vSw.free()
    stamp("x1_st")

    pp = V.alloc(30, at=160)
    qq = V.alloc(30, at=190)
    uu = V.alloc(20, at=220)
    cB, cB2 = V.alloc(16, at=240), V.alloc(16, at=136)
    cBr = lambda i, k, n: (cB, cB2)[(i >> 2) & 1].r(4*(i & 3) + k, n)
    for ti in range(5):
        g(f"v_mov_b32 {qq[6*ti + 4]}, 0\nv_mov_b32 {qq[6*ti + 5]}, 0\nv_mov_b32 {pp[6*ti + 4]}, 0\nv_mov_b32 {pp[6*ti + 5]}, 0")
    g(f"v_mov_b32 {tmp[0]}, 0\nv_mov_b32 {tmp[1]}, 0\nv_mov_b32 {tmp[2]}, 0\nv_mov_b32 {tmp[3]}, 0")
    pump_off()
    px = Poll(R["ws"], vP32, None, F_X1, local=True)
    ps = Poll(R["ws"], vP8, None, F_S, local=True)
    sa = V.alloc(8, at=152)
    gate = V.alloc(2)
    xc = V.alloc(8)

    def x1_dma(th, i):
        if g.m0 != ("x1", th, i >> 1):
            g(f"s_add_u32 m0, {sXm}, {LA + th*32768 + (i >> 1)*2048}\ns_xor_b32 {sXo}, {sX1l}, {(i >> 1) << 11 | th << 15}")
            g.m0 = ("x1", th, i >> 1)
        g.vm(f"buffer_load_dwordx4 {vL16}, {R['ws']}, {sXo} offen offset:{(i & 1)*1024} sc1 lds", f"xn{th}")

    def sflag():
        g.wait(vm="sst")
        flag_set(F_S)

    def sload(par):
        ps.check(free=par)
        for i in range(2):
            g.vm(f"buffer_load_dwordx4 {sa.r(4*i,4)}, {vSt}, {R['ws']}, {sSto} offen offset:{i*1024} sc1", "sa")

    def fold(r, t):
        for sw in ("32", "16"):
            g(f"v_mov_b32 {t}, {r}\ns_nop 1\nv_permlane{sw}_swap_b32 {r}, {t}")
            yield
            g(f"v_add_f32 {r}, {r}, {t}")
            yield

    def center_store():
        g.wait(vm="sa")
        g(f"v_add_f32 {sa[0]}, {sa[0]}, {sa[4]}")
        run(fold(sa[0], sa[4]))
        run(ln_mean(sa[0], sa[3]))
        for T in range(2):
            for i in range(4):
                g(f"v_dot2_f32_bf16 {tmp[2*i]}, {x1p[4*T+i]}, {sLo1}, {sa[3]}")
                g(f"v_dot2_f32_bf16 {tmp[2*i+1]}, {x1p[4*T+i]}, {sHi1}, {sa[3]}")
            for i in range(4):
                g(f"v_cvt_pk_bf16_f32 {xc[4*T+i]}, {tmp[2*i]}, {tmp[2*i+1]}")
            g.vm(f"buffer_store_dwordx4 {xc.r(4*T,4)}, {vXs}, {R['ws']}, {sX1s} offen offset:{T*2048} sc1", "xst")

    def row_scalars():
        g(f"v_add_f32 {sa[1]}, {sa[1]}, {sa[5]}\nv_add_f32 {sa[2]}, {sa[2]}, {sa[6]}")
        yield
        yield from fold(sa[1], sa[5])
        yield from ln_std(sa[0], sa[1], sa[4])
        g(f"s_lshl_b32 {sT[0]}, {sW}, 6\ns_add_u32 {sT[0]}, {sT[0]}, {C_STD}\nv_lshl_add_u32 {sa[5]}, {vC}, 2, {sT[0]}")
        g.ds(f"ds_write_b32 {sa[5]}, {sa[4]}", "stdw")
        yield
        yield from fold(sa[2], sa[6])
        yield from round_bf16(sa[2])
        for t in (f"v_mul_f32 {sa[2]}, {fbits(-LOG2E)}, {sa[2]}", f"v_exp_f32 {sa[2]}, {sa[2]}\ns_nop 0", f"v_add_f32 {sa[2]}, 1.0, {sa[2]}",
                  f"v_rcp_f32 {gate[0]}, {sa[2]}\ns_nop 0"):
            g(t)
            yield
        yield from round_bf16(gate[0])
        g(f"v_sub_f32 {gate[1]}, 1.0, {gate[0]}")
        yield
        yield from round_bf16(gate[1])

    def xflag():
        g.wait(vm="xst")
        flag_set(F_X1)

    Bg.cap = Bg.find("dma", o.cap2)

    def half2(par):
        tiles = TILES[par]
        ur = [lambda ti=ti, jb=jb, m=m: g.ds(f"ds_read_u16_d16_hi {uu[4*ti + m]}, {aU} offset:{m*UP + 128*jb}", f"U{ti}")
              for ti, jb in enumerate(tiles) for m in range(4)]
        g.wait(vm="cin", lg="*")
        g("s_barrier")
        stamp("u_in")
        g.ds(f"ds_write_b128 {vN0}, {tmp.r(0,4)}", "Nw")
        conv_all(par, {o.sflag_at: sflag, o.spoll_at: ps.issue, o.scheck_at: lambda: sload(par), o.center_at: center_store,
                       o.xflag_at: xflag, o.xpoll_at: px.issue}, ur)
        if o.fine:
            stamp("cv_mfma")
        for f in ur:
            f()
        for ti, jb in enumerate(tiles):
            b = 6 * ti
            g(f"v_add_f32 {pp[b+3]}, {pp[b+3]}, {qq[b+2]}\nv_add_f32 {qq[b+2]}, {pp[b+4]}, {qq[b+3]}")
            g(f"v_add_f32 {qq[b+3]}, {pp[b+5]}, {qq[b+4]}\nv_mov_b32 {qq[b+4]}, {qq[b+5]}")
            g.ds(f"ds_write_b96 {aN}, {qq.r(b+2,3)} offset:{1024*jb + 16}", "Nw")
        mark(5, "c_nw")
        run(row_scalars())
        mark(5, "c_row")
        px.check(free=par)
        if o.fine:
            stamp("cv_chk")
        l0 = (x1_dma(0, i) for i in range(8))
        g.pump = lambda: next(l0, None) if g.ta - g.clock < 30 else None
        for ti, jb in enumerate(tiles):
            b = 6 * ti
            g(f"v_add_f32 {pp[b+1]}, {pp[b+1]}, {qq[b]}\nv_add_f32 {pp[b+2]}, {pp[b+2]}, {qq[b+1]}")
        mark(5, "c_add")
        g.wait(lg="stdw")
        g("s_barrier")
        mark(5, "c_bar")
        for ti, jb in enumerate(tiles):
            g.ds(f"ds_read_b128 {qq.r(6*ti,4)}, {aN} offset:{1024*jb}", f"N{ti}")
        for ti, jb in enumerate(tiles):
            for m in range(4):
                g(f"v_fmac_f32 {pp[6*ti+m]}, {vD}, {uu[4*ti + m]}")
        for ti, jb in enumerate(tiles):
            b = 6 * ti
            g.wait(lg=f"N{ti}")
            for m in range(3):
                g(f"v_add_f32 {pp[b+m]}, {pp[b+m]}, {qq[b+m]}")
            g(f"v_cvt_pk_bf16_f32 {pp[b]}, {pp[b]}, {pp[b+1]}\nv_cvt_pk_bf16_f32 {pp[b+1]}, {pp[b+2]}, {pp[b+3]}")
        mark(5, "c_cvt")
        g.pump = None
        run(l0)
        mark(5, "c_l0")
        for ti, jb in enumerate(tiles):
            g.vm(f"buffer_store_dwordx2 {pp.r(6*ti,2)}, {aY}, {R['ws']}, {sY} offen offset:{512*jb} sc1", "yst")
        return len(tiles)
    two_paths(half2)
    for r in (aA, aB, aN, aU, aY, vD, gs, vN0, sY, pp, qq, uu, cB, cB2, sa, xc, vXs, sX1s, vSt, vP8):
        r.free()
    w4v = V.alloc(96, at=160)
    stamp("conv2")

    gk3 = [V.alloc(4), V.alloc(4)]
    g(f"v_add_u32 {t0}, {C_STD}, {vP32}")
    for th in range(2):
        g.ds(f"ds_read_b32 {gk3[th][2]}, {t0} offset:{th*128}", "std")
    Bg.cap = Bg.idx
    g.wait(vm="xn0")
    g("s_barrier")
    stamp("xn0")
    accs = [Reg(V, xf.base, 32), Reg(V, xf.base + 32, 32)]
    tf = V.alloc(16, at=136)
    hq = V.alloc(8, at=152)

    def h_store2(th):
        def fn(f):
            if f == 0 and th:
                g(f"s_add_u32 {sHst}, {sHst}, {112*1024}")
            g.vm(f"buffer_store_dwordx4 {hq.r(4*(f & 1),4)}, {vL16}, {R['ws']}, {sHst} offen offset:{f*1024} sc1", f"Hst{th}")
        return fn

    def g3_pass(th, fillers, over, hook=None):
        def tread(ks):
            g.ds(f"ds_read_b128 {tf.r(4*(ks & 3), 4)}, {vL16} offset:{LA + th*32768 + ks*1024}", f"t{ks}")
        for ks in range(3):
            tread(ks)
        for ks in range(32):
            if th == 0 and ks % 2 == 0:
                Bg.flush(Bg.find("rd", ks // 2))
                g.wait(lg=f"sr{ks//2}")
            g.wait(lg=f"t{ks}")
            for ft in range(2):
                c = accs[th].r(16*ft, 16)
                g(f"v_mfma_f32_32x32x16_bf16 {c}, {w3r.r(8*ks + 4*ft, 4)}, {tf.r(4*(ks & 3), 4)}, {c if ks else 0}")
                if ft == 1 and ks + 3 < 32:
                    tread(ks + 3)
                if ft == 0 and ks % 4 == 0 and ks:
                    mark(3, f"g{th}_k{ks}")
                if hook:
                    hook(2*ks + ft)
                fill(fillers, over, reserve=4 * ft)
        mark(3, f"g{th}_loop")
        drain(fillers)
        mark(3, f"g{th}_drain")

    def scales():
        g.wait(lg="std")
        for th in range(2):
            yield from ln_scale(gk3[th])
    l1 = (x1_dma(1, i) for i in range(8))

    def hook0(i):
        if i % 2 == 0 and next(l1, 1) is not None:
            Bg.cap = Bg.find("dma", o.cap_a)
        if i == o.yflag_at:
            g.wait(vm="yst")
            flag_set(F_Y)
    g3_pass(0, [scales()], o.q3a, hook0)
    for r in (sXo, sX1l, sXm):
        r.free()
    g.wait(vm="xn1")
    g("s_barrier")
    stamp("g3a")
    Bg.cap = Bg.find("dma", o.cap_b)
    vP16, vP7 = V.alloc(1), V.alloc(1)
    py = Poll(R["ws"], vP16, sFy, F_Y)

    def hook3(i):
        if i == 2:
            g(f"v_lshrrev_b32 {vP16}, 1, {vC}\nv_lshlrev_b32 {vP16}, 12, {vP16}\nv_and_b32 {vP7}, 1, v0\nv_lshl_add_u32 {vP16}, {vP7}, 8, {vP16}")
        if i == 3:
            g(f"v_min_u32 {vP7}, 6, v0\ns_lshl_b32 {sT[0]}, {sW}, 5\nv_lshl_add_u32 {vP7}, {vP7}, 2, {sT[0]}")
            py.issue()
        if i == 24:
            py.check()
            g(f"s_add_u32 {sT[0]}, {sTr}, {YBUF}\ns_add_u32 {sT[1]}, {sTr}, {YBUF + 32768 - 1024}\ns_lshl_b32 {sT[2]}, {sW}, 11\ns_add_u32 m0, {sT[2]}, {C_Y}")
        if i == 25:
            g.vm(f"buffer_load_dwordx4 {vT4k}, {R['ws']}, {sT[0]} offen sc1 lds", "y")
            g.vm(f"buffer_load_dwordx4 {vT4k}, {R['ws']}, {sT[1]} offen offset:1024 sc1 lds", "y")

    def hook3h(i):
        hook3(i)
        if i == 24:
            Bg.saved_cap, Bg.cap = Bg.cap, 0
        if i == 25:
            Bg.cap = Bg.saved_cap
    g3_pass(1, [Ops(x) for x in gelu_plain(accs[0], 32, gk3[0], hq, tmp, h_store2(0))], o.q3b, hook3h)
    vP16.free()
    stamp("g3b")
    Bg.cap = Bg.find("dma", 29)
    Bg.flush(Bg.find("dma", 27))
    pa = Poll(R["ws"], vP7, None, F_HA, local=True)
    pb = Poll(R["ws"], vP7, None, F_HB, local=True)
    pump_on()
    st1 = h_store2(1)

    def done1(f):
        if f == o.haflag_at:
            g.wait(vm="Hst0")
            flag_set(F_HA)
        st1(f)
        mark(3, f"H_f{f}")
    gelu_pk(accs[1], 32, gk3[1], hq, tmp, done1)
    stamp("H_st")
    tf.free()
    for r in gk3:
        r.free()
    sv = V.alloc(16, at=136)
    g.wait(vm="y")
    g("s_barrier")
    if o.apoll_at < 0:
        pa.issue()

    g(f"v_lshl_add_u32 {t0}, {vKq}, 2, {vR4}\nv_lshlrev_b32 {t0}, 7, {t0}\nv_lshl_add_u32 {t0}, {vC8}, 2, {t0}\ns_lshl_b32 {sT[0]}, {sW}, 3\ns_add_u32 {sT[0]}, {sT[0]}, {C_Y}\nv_add_u32 {t0}, {sT[0]}, {t0}")
    for T in range(4):
        g.ds(f"ds_read_b64_tr_b16 {sv.r(8 + 2*T, 2)}, {t0} offset:{T*2048}", f"y{T}")
    g(f"s_lshl_b32 {sT[0]}, {sW}, 6\ns_add_u32 {sT[0]}, {sT[0]}, {C_OMG}\nv_lshl_add_u32 {t2}, {vC}, 2, {sT[0]}")
    g.ds(f"ds_write_b32 {t2}, {gate[1]}")
    g(f"v_xor_b32 {t0}, {vKq}, {vC}\nv_lshlrev_b32 {t0}, 4, {t0}\nv_lshl_add_u32 {t0}, {vC}, 8, {t0}\ns_lshl_b32 {sT[0]}, {sW}, 12\ns_add_u32 {sT[0]}, {sT[0]}, {C_BASE}\nv_add_u32 {t0}, {sT[0]}, {t0}")
    bq = Reg(V, accs[1].base, 32)
    for T in range(4):
        if T == o.apoll_at:
            pa.issue()
        g.wait(lg=f"y{T}")
        for i in range(2):
            for src, d in ((sv[8 + 2*T + i], 0), (qp[2*T + i], 4), (x1p[2*T + i], 8)):
                g(f"v_lshlrev_b32 {bq[d + 2*i]}, 16, {src}\nv_and_b32 {bq[d + 2*i + 1]}, {sMask}, {src}")
        for i in (0, 2):
            g(f"v_pk_mul_f32 {bq.r(i,2)}, {bq.r(i,2)}, {bq.r(4+i,2)}")
            g(f"v_pk_mul_f32 {bq.r(8+i,2)}, {bq.r(8+i,2)}, {gate} op_sel:[0,1] op_sel_hi:[1,1]")
        for i in (0, 2):
            g(f"v_pk_fma_f32 {bq.r(12 + 4*T + i, 2)}, {bq.r(i,2)}, {gate}, {bq.r(8+i,2)} op_sel_hi:[1,0,1]")
        g(f"v_xor_b32 {t2}, {64*T}, {t0}")
        g.ds(f"ds_write_b128 {t2}, {bq.r(12 + 4*T, 4)}", "bw")
    qp.free(); x1p.free(); hq.free()
    vPw, vPr, vOut, vOm, vHl = (V.alloc(1) for _ in range(5))
    g(f"s_mul_i32 {sT[0]}, {sW}, {28*1024}\ns_add_u32 {sT[0]}, {sT[0]}, {sH2}\nv_add_u32 {vHl}, {sT[0]}, {vL16}")
    if o.fake & 4:
        g(f"v_mov_b32 {vHl}, {OOB}")
    Bg.flush(Bg.find("dma", 29))
    pump_off()
    stamp("base")
    hb = Reg(A, 128, 128)
    sSt2 = S.alloc(1)

    class Fin:
        @staticmethod
        def r(i, n=1):
            return accs[0].r(i, n) if i < 32 else tmp.r(i - 32, n)

        def __getitem__(self, i):
            return self.r(i)
    fin = Fin()

    def h_load(m):
        th, n = divmod(m, 28)
        if o.rot:
            if m == 28:
                g(f"v_add_u32 {vHl}, {112*1024}, {vHl}")
            so, off = sG4[n >> 1], (n & 1) * 1024
        else:
            if n % 4 == 0:
                g(f"s_mov_b32 {sSt2}, {th*112*1024 + n*1024}")
            so, off = sSt2, (n & 3) * 1024
        g.vm(f"buffer_load_dwordx4 {hb.r(4*(m & 31), 4)}, {vHl}, {R['ws']}, {so} offen offset:{off} sc1", f"H{m}")

    def partial_out(th):
        for ft in range(2):
            for q in range(4):
                g(f"v_xor_b32 {t2}, {128*ft + 32*q}, {vPw}")
                g.ds(f"ds_write_b128 {t2}, {accs[th].r(16*ft + 4*q, 4)} offset:{LA + th*32768}", f"pw{th}")
                yield

    def final(th, packed):
        g(f"v_xor_b32 {t0}, 16, {vPr}")
        for x, ad in enumerate((vPr, t0)):
            for w in range(4):
                g.ds(f"ds_read_b128 {fin.r(16*x + 4*w, 4)}, {ad} offset:{LA + th*32768 + w*8192}", f"f{x}")
                yield
        g(f"v_add_u32 {t2}, {C_BASE + th*8192}, {vPr}\nv_add_u32 {t3}, {C_BASE + th*8192}, {t0}")
        yield
        g.ds(f"ds_read_b128 {fin.r(32,4)}, {t2}", "fb")
        g.ds(f"ds_read_b128 {fin.r(36,4)}, {t3}", "fb")
        yield
        g(f"v_add_u32 {t2}, {C_OMG + th*128}, {vOm}")
        g.ds(f"ds_read_b32 {sv[0]}, {t2}", "fb")
        yield
        for x in range(2):
            g.wait(lg=f"f{x}")
            b = 16 * x
            for d, s in ((0, 4), (8, 12), (0, 8)):
                if packed:
                    for i in (0, 2):
                        g(f"v_pk_add_f32 {fin.r(b+d+i,2)}, {fin.r(b+d+i,2)}, {fin.r(b+s+i,2)}")
                else:
                    for i in range(4):
                        g(f"v_add_f32 {fin[b+d+i]}, {fin[b+d+i]}, {fin[b+s+i]}")
                        yield
        g.wait(lg="fb")
        for x in range(2):
            for i in range(4):
                g(f"v_fma_f32 {fin[16*x+i]}, {fin[16*x+i]}, {sv[0]}, {fin[32+4*x+i]}")
                yield
        for x in range(2):
            for i in range(2):
                g(f"v_cvt_pk_bf16_f32 {fin[4 + 2*x + i]}, {fin[16*x + 2*i]}, {fin[16*x + 2*i + 1]}")
                yield
        g(f"s_add_u32 {sT[0]}, {sPan}, {th*32768}")
        g.vm(f"buffer_store_dwordx4 {fin.r(4,4)}, {vOut}, {R['out']}, {sT[0]} offen {o.out_pol}", "out")
        yield

    def barrier_after(tag):
        g.wait(lg=tag)
        g("s_barrier")
        yield

    pa.check()
    stamp("HA_flag")
    nxt = o.ahead
    hl = (h_load(m) for m in range(nxt))
    next(hl)
    g.pump = lambda: next(hl, None) if g.ta - g.clock < 30 else None
    g(f"v_and_b32 {t0}, 31, v0\nv_lshrrev_b32 {t2}, 5, v0\nv_xor_b32 {t2}, {t2}, {vC}\nv_lshlrev_b32 {t2}, 4, {t2}\nv_lshl_add_u32 {t0}, {t0}, 8, {t2}")
    g(f"s_lshl_b32 {sT[0]}, {sW}, 13\nv_add_u32 {vPw}, {sT[0]}, {t0}")
    g(f"v_lshrrev_b32 {t0}, 3, v0\ns_lshl_b32 {sT[0]}, {sW}, 3\nv_add_u32 {t0}, {sT[0]}, {t0}")
    g(f"v_lshlrev_b32 {t3}, 4, {vS8}\nv_lshl_add_u32 {vOut}, {t0}, 10, {t3}")
    g(f"v_lshlrev_b32 {t2}, 1, {vS8}\nv_and_b32 {t3}, 15, {t0}\nv_xor_b32 {t2}, {t2}, {t3}\nv_lshlrev_b32 {t2}, 4, {t2}\nv_lshl_add_u32 {vPr}, {t0}, 8, {t2}")
    g(f"v_lshlrev_b32 {vOm}, 2, {t0}")
    Bg.cap = len(Bg.ops)
    g.held += 1
    while Bg.idx < Bg.find("rd", 27):
        Bg.step(True)
        g.pump()
    g.held -= 1
    g.pump = None
    run(hl)
    fillers = []
    for m in range(56):
        th, n = divmod(m, 28)
        if n % 2 == 0 and th == 0:
            Bg.flush(Bg.find("rd", 16 + n // 2))
            g.wait(lg=f"sr{16 + n//2}")
        if m == 28:
            stamp("g4_0")
            fillers = [partial_out(0)]
        if m == o.bar_at:
            drain(fillers)
            fillers = [barrier_after("pw0"), final(0, False)]
        if m == o.hbflag_at:
            g.wait(vm="Hst1")
            flag_set(F_HB)
        if m % 7 == 0:
            mark(3, f"m{m}")
        g.wait(vm=f"H{m}")
        for ft in range(2):
            c = accs[th].r(16*ft, 16)
            g(f"v_mfma_f32_32x32x16_bf16 {c}, {w4home(n, ft)}, {hb.r(4*(m & 31), 4)}, {c if n else 0}")
            if ft == 0:
                if m == o.bpoll_at:
                    pb.issue()
                if nxt == 28:
                    pb.check()
                if nxt < 56:
                    h_load(nxt)
                    nxt += 1
            if not (m == 28 and ft == 0):
                fill(fillers, 0, reserve=4 * ft)
    drain(fillers)
    stamp("g4_1")
    run(partial_out(1))
    run(barrier_after("pw1"))
    run(final(1, True))
    stamp("end")
    stamp("end_real", real=True)
    if o.stamps:
        g(f"s_lshl_b32 {sT[0]}, s2, 2\ns_add_u32 {sT[0]}, {sT[0]}, {sW}\ns_lshl_b32 {sT[0]}, {sT[0]}, 8\ns_add_u32 {sT[0]}, {sT[0]}, {STAMPS}")
        g(f"buffer_store_dword {vStamp}, {vL4}, {R['ws']}, {sT[0]} offen")
    if amp:
        g(f"s_cmp_lg_u32 s2, 77\ns_cbranch_scc1 L_end")
        g(f"s_sub_u32 {sAmp[2]}, {sAmp[2]}, {sAmp[0]}\ns_mul_i32 {sAmp[2]}, {sAmp[2]}, {amp[2]}\ns_min_u32 {sAmp[2]}, {sAmp[2]}, 100000")
        g(f"s_memrealtime {sAmp.r(0,2)}\ns_waitcnt lgkmcnt(0)")
        g(f"L_amp:\ns_memrealtime {sStamp}\ns_waitcnt lgkmcnt(0)\ns_sub_u32 {sStamp[0]}, {sStamp[0]}, {sAmp[0]}")
        g(f"s_cmp_lt_u32 {sStamp[0]}, {sAmp[2]}\ns_cbranch_scc1 L_amp")
    g("s_endpgm")
    for t in tail:
        g(t)
    g("L_end:\ns_endpgm")
    body = g.text(o.align)
    info = dict(nops=g.nops, vhigh=V.high, shigh=S.high, stamps=stamp_names, lines=len(g.lines), clock=g.clock, model=model, bgat=bgat)
    return file_text([(KNAME, 256, 256, LDS_BYTES)], [(KNAME, body, 512, 256, 102)]), info


REF = "gated_mix__ssm_conv_h3__mixer_s_mlp__prompt.s.ref"
HEADER = open(REF).read().split("; Override launch")[0] if os.path.exists(REF) else ""


def set_opts(args):
    for kv in args:
        k, v = kv.split("=")
        cur = getattr(Opt, k)
        setattr(Opt, k, type(cur)(int(v)) if isinstance(cur, (bool, int)) else v)


if __name__ == "__main__":
    out = sys.argv[1] if len(sys.argv) > 1 else "k.s"
    set_opts(sys.argv[2:])
    text, info = build(Opt)
    open(out, "w").write(HEADER + text)
    print(info)
```

```python
import copy
import os
import struct
import sys
from asmlib import ARG, NBYTES, KNAME, file_text
from kgen import Gen, Reg, merge_queues

F_H, F_U, F_X1, F_Y, F_HA, F_HB = 1, 2, 3, 4, 5, 6
LFLAG = 0x20000
STATS = 0x40000
HBUF, X1BUF, UBUF, YBUF, H2BUF = 0x100000, 0x300000, 0x500000, 0x700000, 0x900000
STAMPS = 0x2000000
OOB = 0x40000000

LA, LB, LC = 0, 65536, 131072
C_K, C_V, C_Q, C_CS = LC, LC + 9216, LC + 17920, LC + 26112
C_H, C_U = LC, LC + 8448
HP, UP = 4224, 1152
C_Y, C_BASE, C_OMG, C_STD = LC, LC + 8192, LC + 24576, LC + 26624
A_N = LC + 17920
NP = 6912
LDS_BYTES = 163840

GELU_C0 = -2.302208198144325
GELU_C1 = GELU_C0 * 0.044715
LOG2E = 1.4426950408889634

TILES = ([7, 6, 2], [5, 4, 3, 1, 0])


def fbits(x):
    return "0x%08x" % struct.unpack("<I", struct.pack("<f", x))[0]


class Opt:
    stamps = 0
    fine = 0
    amp = ""
    nt_once = ""
    out_pol = "sc1"
    code_pf = True
    code_bytes = 40960
    align = True
    nap = 2
    period = 85
    lat = 700
    thresh = 100
    thresh1 = 500
    fake = 0
    t3 = 3
    tx1 = ""
    tx2 = ""
    tx34 = ""
    t3_at = 5
    cap0 = "x3"
    t3_first = "x0"
    touch1 = "x0"
    bg_u = 5
    rd_ha = 26
    touch = 2
    touch2 = "w1b"
    pre2 = True
    local = True
    dpoll_at = 16
    bg_a = 0
    bg_b = 1
    cap_p2 = 6
    cap2 = 13
    upoll_at = 11
    ucheck_at = 16
    bdist = 6
    hflag_m = 8
    bar_at = 46
    yflag_at = 10
    rot = False
    xflag_at = 24
    xpoll_at = 104
    xcheck_at = 126
    norm1_at = 10
    cap_a = 23
    l1_early = 8
    cap_b = 27
    q3a = 0
    q3b = 0
    haflag_at = 1
    hbflag_at = 0
    apoll_at = 3
    bpoll_at = 10
    ahead = 9


def build(o=Opt):
    g = Gen()
    g.vm_cost, g.vm_lat, g.vm_win = o.period, o.lat, 8 * o.period
    V, A, S = g.V, g.A, g.S
    names = ["q", "ws", "w1", "w2", "dbg", "k", "v", "shift_k", "ssm_D", "gate_w", "w3", "w4", "ssm_k", "out"]
    R = {n: S.alloc(4, align=4) for n in names}
    sW, sJ, sP, sPP, sX = (S.alloc(1) for _ in range(5))
    sT = S.alloc(4, align=2)
    sOnes, sLo1, sHi1, sMask, sTmo = (S.alloc(1) for _ in range(5))
    sStamp = S.alloc(2, align=2) if (o.stamps or o.amp) else None
    vStamp = V.alloc(1)
    stamp_names = []
    amp = o.amp.split(",") if o.amp else None
    sAmp = S.alloc(4, align=2) if amp else None
    tail = []

    model, bgat = {}, {}

    def stamp(name, real=False):
        model[name] = g.clock
        bgat[name] = "%s%s" % Bg.ops[Bg.idx][:2] if Bg.idx < len(Bg.ops) else "end"
        with g.hold():
            if amp and name in amp[:2]:
                g(f"s_memrealtime {sAmp.r(2*amp.index(name), 2)}")
                g.smem = True
                g.wait(lg="*")
            if o.stamps in (1, 3) or (o.stamps == 2 and real):
                g(f"s_mem{'real' if real or o.stamps == 3 else ''}time {sStamp}")
                g.smem = True
                g.wait(lg="*")
                if name not in stamp_names:
                    stamp_names.append(name)
                g(f"v_writelane_b32 {vStamp}, {sStamp[0]}, {stamp_names.index(name)}")

    def mark(level, name):
        if o.fine == level:
            stamp(name)

    def flag_set(val):
        with g.hold():
            g(f"s_mov_b64 exec, 1\nv_mov_b32 {vOne}, {val}")
            if o.local and val not in (F_U, F_Y):
                g.vm(f"buffer_store_dword {vOne}, off, {R['ws']}, {sLf}", "flag")
            g.vm(f"buffer_store_dword {vOne}, off, {R['ws']}, {sFl} sc1", "flag")
            g("s_mov_b64 exec, -1")

    class Poll:
        def __init__(self, srd, vaddr, soff, need, local=False):
            self.t = V.alloc(1)
            self.tag = g.label("poll")
            self.cmp = f"v_cmp_gt_u32 vcc, {need}, {self.t}"
            self.ld = f"buffer_load_dword {self.t}, {vaddr}, {srd}, {soff} offen sc1"
            self.first = self.ld
            self.pre = ""
            if local:
                self.ld = f"v_lshlrev_b32 {self.t}, 5, {vaddr}\nbuffer_load_dword {self.t}, {self.t}, {srd}, {sFp} offen sc1"
                self.first = self.ld
                if o.local:
                    self.first = f"buffer_load_dword {self.t}, {vaddr}, {srd}, {sLp} offen sc1"
                    self.pre = self.first

        def issue(self):
            with g.hold():
                g.vm(self.first, self.tag)

        def check(self, free=True, then=None):
            n = g.label("chk")
            with g.hold():
                g.wait(vm=self.tag)
                if then:
                    then()
                g(f"{self.cmp}\ns_cbranch_vccnz {n}_slow\n{n}_ok:")
            nap = f"s_sleep {o.nap}\n" if o.nap else ""
            for _ in range(3 if self.pre else 0):
                nap += f"{self.pre}\ns_waitcnt vmcnt(0)\n{self.cmp}\ns_cbranch_vccz {n}_ok\n"
            tail.append(f"{n}_slow:\ns_sub_u32 {sTmo}, {sTmo}, 1\ns_cbranch_scc1 {n}_out\n{nap}{self.ld}\ns_waitcnt vmcnt(0)\n"
                        f"{self.cmp}\ns_cbranch_vccnz {n}_slow\ns_branch {n}_ok\n"
                        f"{n}_out:\ns_mov_b32 {sTmo}, 0\ns_branch {n}_ok")
            if free:
                self.t.free()

    def round_bf16(r):
        g(f"v_cvt_pk_bf16_f32 {r}, {r}, {r}")
        yield
        g(f"v_and_b32 {r}, {sMask}, {r}")
        yield

    def ln_mean(s1, negmu):
        g(f"v_mul_f32 {negmu}, {fbits(-1.0/512)}, {s1}")
        yield
        yield from round_bf16(negmu)

    def ln_std(s1, s2, std):
        for t in (f"v_mul_f32 {s1}, {fbits(1.0/512)}, {s1}", f"v_mul_f32 {s2}, {fbits(1.0/512)}, {s2}",
                  f"v_fma_f32 {s2}, -{s1}, {s1}, {s2}", f"v_max_f32 {s2}, 0, {s2}"):
            g(t)
            yield
        yield from round_bf16(s2)
        g(f"v_add_f32 {s2}, {fbits(1e-5)}, {s2}")
        yield
        yield from round_bf16(s2)
        g(f"v_sqrt_f32 {std}, {s2}\ns_nop 0")
        yield
        yield from round_bf16(std)

    def ln_scale(gk):
        g(f"v_rcp_f32 {gk[3]}, {gk[2]}\ns_nop 0")
        yield
        for t in (f"v_mul_f32 {gk[1]}, {fbits(GELU_C0)}, {gk[3]}", f"v_mul_f32 {gk[0]}, {gk[3]}, {gk[3]}",
                  f"v_mul_f32 {gk[0]}, {gk[0]}, {gk[3]}", f"v_mul_f32 {gk[0]}, {fbits(GELU_C1)}, {gk[0]}"):
            g(t)
            yield

    def ln_stats(s1, s2, negmu, gk):
        for t in (f"v_mul_f32 {negmu}, {fbits(-1.0/512)}, {s1}", f"v_mul_f32 {s2}, {fbits(1.0/512)}, {s2}",
                  f"v_fma_f32 {s2}, -{negmu}, {negmu}, {s2}", f"v_max_f32 {s2}, 0, {s2}"):
            g(t)
            yield
        yield from round_bf16(s2)
        g(f"v_add_f32 {s2}, {fbits(1e-5)}, {s2}")
        yield
        yield from round_bf16(s2)
        g(f"v_sqrt_f32 {gk[2]}, {s2}")
        yield
        yield from round_bf16(negmu)
        yield from round_bf16(gk[2])
        g(f"v_rcp_f32 {s2}, {gk[2]}\ns_nop 0")
        yield
        for t in (f"v_mul_f32 {gk[1]}, {fbits(GELU_C0)}, {s2}", f"v_mul_f32 {gk[0]}, {s2}, {s2}",
                  f"v_mul_f32 {gk[0]}, {gk[0]}, {s2}", f"v_mul_f32 {gk[0]}, {fbits(GELU_C1)}, {gk[0]}"):
            g(t)
            yield

    def center_dot(regs, negmu, tmp):
        for b in range(0, len(regs), 4):
            for i in range(4):
                g(f"v_dot2_f32_bf16 {tmp[2*i]}, {regs[b+i]}, {sLo1}, {negmu}")
                g(f"v_dot2_f32_bf16 {tmp[2*i+1]}, {regs[b+i]}, {sHi1}, {negmu}")
            for i in range(4):
                g(f"v_cvt_pk_bf16_f32 {regs[b+i]}, {tmp[2*i]}, {tmp[2*i+1]}")
            yield

    def center_plain(regs, negmu, tmp):
        for i, r in enumerate(regs):
            a, b = tmp[2*(i & 1)], tmp[2*(i & 1) + 1]
            for t in (f"v_lshlrev_b32 {a}, 16, {r}", f"v_and_b32 {b}, {sMask}, {r}", f"v_add_f32 {a}, {a}, {negmu}",
                      f"v_add_f32 {b}, {b}, {negmu}", f"v_cvt_pk_bf16_f32 {r}, {a}, {b}"):
                g(t)
                yield

    def gelu_pk(acc, n, gk, out, tmp, done=None):
        kk, ss = gk.r(0, 2), gk.r(2, 2)
        for b in range(0, n, 8):
            P = range(0, 8, 2)
            for i in P:
                g(f"v_pk_mul_f32 {tmp.r(i,2)}, {acc.r(b+i,2)}, {acc.r(b+i,2)}")
            for i in P:
                g(f"v_pk_fma_f32 {tmp.r(i,2)}, {tmp.r(i,2)}, {kk}, {kk} op_sel:[0,0,1] op_sel_hi:[1,0,1]")
            for i in P:
                g(f"v_pk_mul_f32 {tmp.r(i,2)}, {tmp.r(i,2)}, {acc.r(b+i,2)}")
            for i in range(8):
                g(f"v_exp_f32 {tmp[i]}, {tmp[i]}")
            for i in P:
                g(f"v_pk_fma_f32 {tmp.r(i,2)}, {tmp.r(i,2)}, {ss}, {ss} op_sel_hi:[1,0,0]")
            for i in range(8):
                g(f"v_rcp_f32 {tmp[i]}, {tmp[i]}")
            for i in P:
                g(f"v_pk_mul_f32 {tmp.r(i,2)}, {tmp.r(i,2)}, {acc.r(b+i,2)}")
            for i in P:
                g(f"v_cvt_pk_bf16_f32 {out[(b+i)//2 % out.n]}, {tmp[i]}, {tmp[i+1]}")
            if done:
                done(b // 8)

    def gelu_plain(acc, n, gk, out, tmp, done):
        streams = [[], []]
        left = {}
        for b in range(0, n, 4):
            h = (b // 4) & 1
            T = [tmp[4*h + i] for i in range(4)]
            Q = range(4)
            ops = [f"v_mul_f32 {T[i]}, {acc[b+i]}, {acc[b+i]}" for i in Q]
            ops += [f"v_fma_f32 {T[i]}, {T[i]}, {gk[0]}, {gk[1]}" for i in Q]
            ops += [f"v_mul_f32 {T[i]}, {T[i]}, {acc[b+i]}" for i in Q]
            ops += [f"v_exp_f32 {T[i]}, {T[i]}" for i in Q]
            ops += [f"v_fma_f32 {T[i]}, {T[i]}, {gk[2]}, {gk[2]}" for i in Q]
            ops += [f"v_rcp_f32 {T[i]}, {T[i]}" for i in Q]
            ops += [f"v_mul_f32 {T[i]}, {T[i]}, {acc[b+i]}" for i in Q]
            f = b // 8
            left[f] = 2

            def guard(f=f):
                assert left.get(f - 2, 0) == 0
            ops += [(0, guard)] + [f"v_cvt_pk_bf16_f32 {out[(b+i)//2 % out.n]}, {T[i]}, {T[i+1]}" for i in (0, 2)]

            def fin(f=f):
                left[f] -= 1
                if left[f] == 0:
                    done(f)
            streams[h] += ops + [(4, fin)]
        streams[1] = [(0, lambda: None)] * 12 + streams[1]
        return streams

    def run(it):
        for _ in it:
            pass

    def chain(*its):
        for it in its:
            yield from it

    class Bg:
        ops, idx, cap = [], 0, 0
        dma_on = True
        last, gap = 0, 0
        thresh = o.thresh

        @classmethod
        def ready(cls, force=False):
            if cls.idx >= min(cls.cap, len(cls.ops)):
                return False
            kind, key, _ = cls.ops[cls.idx]
            if force:
                return True
            if kind == "dma":
                return cls.dma_on and g.backlog() < cls.thresh and g.ta - g.clock < 30 and g.clock >= cls.last + cls.gap
            if kind == "rd0":
                return g.clock >= g.vmt[f"sd{key}"]
            return True

        @classmethod
        def step(cls, force=False):
            if not cls.ready(force):
                return False
            kind, key, fn = cls.ops[cls.idx]
            cls.idx += 1
            with g.hold():
                fn()
            if kind == "dma":
                cls.last = g.clock
            return True

        @classmethod
        def find(cls, kind, key):
            return max(i for i, (k, y, _) in enumerate(cls.ops) if y == key and k.startswith(kind)) + 1

        @classmethod
        def flush(cls, idx):
            cap, cls.cap = cls.cap, max(cls.cap, idx)
            while cls.idx < idx:
                cls.step(True)
            cls.cap = cap

        @classmethod
        def burst(cls, n):
            while n > 0 and cls.idx < min(cls.cap, len(cls.ops)):
                kind = cls.ops[cls.idx][0]
                if kind == "rd0" and not cls.ready():
                    break
                cls.step(True)
                n -= kind == "dma"

    def pump_on():
        g.pump = Bg.step

    def pump_off():
        g.pump = None

    class Ops:
        def __init__(self, items):
            self.items = list(items)

        def cost(self):
            it = self.items[0]
            return it[0] if isinstance(it, tuple) else 8 if it.startswith(("v_exp", "v_rcp", "v_sqrt")) else 4

        def emit(self):
            it = self.items.pop(0)
            it[1]() if isinstance(it, tuple) else g(it)

        def drain(self):
            while self.items:
                self.emit()

    def fill(fillers, over=0, reserve=0):
        while True:
            room = g.slack() - reserve + over
            if room >= 4 and Bg.step():
                continue
            live = [f for f in fillers if (f.items if isinstance(f, Ops) else True)]
            fillers[:] = live
            pick = None
            for f in live:
                if not isinstance(f, Ops):
                    pick = f if room >= 4 else None
                    break
                if f.cost() <= room and (pick is None or len(f.items) > len(pick.items)):
                    pick = f
            if pick is None:
                return
            if isinstance(pick, Ops):
                pick.emit()
            elif next(pick, 1) is not None:
                fillers.remove(pick)

    def drain(fillers):
        while fillers:
            f = fillers[0]
            if isinstance(f, Ops):
                others = [x for x in fillers if isinstance(x, Ops) and x.items]
                while others:
                    for x in others:
                        x.emit()
                    others = [x for x in others if x.items]
                fillers[:] = [x for x in fillers if not isinstance(x, Ops)]
            else:
                run(f)
                fillers.pop(0)

    g("s_cmp_ge_u32 s2, 256\ns_cbranch_scc1 L_end")
    if amp and amp[0] == "entry":
        g(f"s_memrealtime {sAmp.r(0,2)}")
    for n in names:
        g(f"s_load_dwordx2 {R[n].r(0,2)}, s[0:1], {ARG[n]}")
    g.smem = True
    vOne, vL16, vL4, vDum = (V.alloc(1) for _ in range(4))
    t0, t2, t3 = (V.alloc(1) for _ in range(3))
    if o.code_pf:
        pc = V.alloc(2)
        per = o.code_bytes // 32
        assert per <= 2048
        g(f"s_getpc_b64 {sT.r(0,2)}")
        g(f"s_lshr_b32 {sT[2]}, s2, 3\ns_mul_i32 {sT[2]}, {sT[2]}, {per}")
        g(f"v_lshl_add_u32 {t0}, v0, 3, {sT[2]}")
        g(f"v_min_u32 {t0}, L_end-L_pc, {t0}")
        g("L_pc:")
        g(f"v_mov_b32 {pc[1]}, {sT[1]}")
        g(f"v_add_co_u32 {pc[0]}, vcc, {sT[0]}, {t0}")
        g(f"s_nop 1\nv_addc_co_u32 {pc[1]}, vcc, 0, {pc[1]}, vcc")
        g.vm(f"global_load_dword {vDum}, {pc}, off", "pf")
        pc.free()
    g(f"v_lshrrev_b32 {t0}, 6, v0\nv_and_b32 v0, 63, v0\nv_readfirstlane_b32 {sW}, {t0}")
    g(f"s_and_b32 {sX}, s2, 7\ns_lshr_b32 {sT[0]}, s2, 3\ns_and_b32 {sJ}, {sT[0]}, 7\ns_lshr_b32 {sPP}, {sT[0]}, 3")
    g(f"s_lshl_b32 {sP}, {sX}, 2\ns_add_u32 {sP}, {sP}, {sPP}")

    def srd_words(ns):
        for n in ns:
            g(f"s_mov_b32 {R[n][2]}, {NBYTES[n]}\ns_mov_b32 {R[n][3]}, 0x00020000")
    srd_words(names[:4])
    vC, vKq, vR8, vS8 = (V.alloc(1) for _ in range(4))
    g(f"v_and_b32 {vC}, 15, v0\nv_lshrrev_b32 {vKq}, 4, v0\nv_lshrrev_b32 {vR8}, 3, v0\nv_lshlrev_b32 {vR8}, 10, {vR8}\nv_and_b32 {vS8}, 7, v0")
    sLdsW, sCol, sPan, sKV, sKV2, sC2 = (S.alloc(1) for _ in range(6))
    g(f"s_lshl_b32 {sLdsW}, {sW}, 14\ns_lshl_b32 {sCol}, {sJ}, 7\ns_lshl_b32 {sPan}, {sP}, 16\ns_add_u32 {sPan}, {sPan}, {sCol}")
    g(f"s_add_u32 {sKV}, {sLdsW}, {sPan}\ns_lshl_b32 {sC2}, {sW}, 11\ns_add_u32 {sKV2}, {sKV}, 7168")
    if o.stamps:
        g(f"v_mov_b32 {vStamp}, 0")
    g(f"s_lshr_b32 {sT[0]}, {sJ}, 2\ns_add_u32 {sT[0]}, {sT[0]}, 1\ns_sub_u32 {sT[1]}, 0, {sT[0]}")
    g(f"s_bitcmp1_b32 {sJ}, 1\ns_cselect_b32 {sT[0]}, {sT[0]}, {sT[1]}\ns_lshl_b32 {sT[0]}, {sT[0]}, 10")
    g(f"s_sub_u32 {sT[1]}, {sKV}, {sCol}\ns_add_u32 {sT[0]}, {sT[0]}, {sT[1]}")
    vQa, xd = V.alloc(2), V.alloc(2)
    g(f"v_xor_b32 {t0}, {vS8}, {vKq}\nv_lshl_add_u32 {vQa[0]}, {t0}, 4, {vR8}\nv_xor_b32 {vQa[1]}, 64, {vQa[0]}\nv_add_u32 {vQa[1]}, 7168, {vQa[1]}")
    g(f"v_add_u32 {xd[0]}, {sT[0]}, {vQa[0]}\nv_add_u32 {xd[1]}, {sT[0]}, {vQa[1]}")
    g.wait(lg="*")
    stamp("start_real", real=True)
    stamp("start")
    sM, sOff, sWo = S.alloc(1), S.alloc(1), S.alloc(1)
    wd = V.alloc(4, at=152)

    def x_dma(n, hh):
        if g.m0 != ("x", n):
            g(f"s_add_u32 m0, {sLdsW}, {LA + n*2048}\ns_xor_b32 {sWo}, {sCol}, {n << 7}")
            g.m0 = ("x", n)
        g.vm(f"buffer_load_dwordx4 {xd[hh]}, {R['q']}, {sWo} offen offset:{hh*1024} lds", f"x{n}")

    def w_dma(name, base, n, i):
        key = (name, n)
        sh = 2 if name == "w1" else 0
        if g.m0 != key:
            g(f"s_xor_b32 m0, {sM}, {base + (n << (12 + sh))}\ns_xor_b32 {sWo}, {sOff}, {n << (15 + sh)}")
            g.m0 = key
        g.vm(f"buffer_load_dwordx4 {wd[i]}, {R[name]}, {sWo} offen offset:{i*1024} lds", name + ("ab"[n >> 1] if sh else ""))

    for n in range(8):
        for hh in range(2):
            Bg.ops.append(("dma", f"x{n}", lambda n=n, hh=hh: x_dma(n, hh)))
    for n in range(4):
        for i in range(4):
            Bg.ops.append(("dma", "w1" + "ab"[n >> 1], lambda n=n, i=i: w_dma("w1", LB, n, i)))
    g.vm_lat = 1500

    def touch(n, bufs):
        g(f"s_lshl_b32 {sWo}, s2, 2\ns_add_u32 {sWo}, {sWo}, {sW}\ns_mul_i32 {sWo}, {sWo}, {n*128}\nv_min_u32 {vOne}, {n-1}, v0\nv_lshlrev_b32 {vOne}, 7, {vOne}")
        for b in bufs:
            g.vm(f"buffer_load_dword {vDum}, {vOne}, {R[b]}, {sWo} offen", "pf")
        g.m0 = None

    def touch3(n, bufs, sreg):
        g(f"s_lshr_b32 {sreg}, s2, 3\ns_lshl_b32 {sreg}, {sreg}, 2\ns_add_u32 {sreg}, {sreg}, {sW}\ns_mul_i32 {sreg}, {sreg}, {n*1024}")
        g(f"v_min_u32 {vOne}, {n-1}, v0\nv_lshlrev_b32 {vOne}, 10, {vOne}")
        for b in bufs:
            g.vm(f"buffer_load_dword {vDum}, {vOne}, {R[b]}, {sreg} offen offset:384", "pf")
        g.m0 = None
    if o.touch & 1:
        at = Bg.find("dma", o.touch1)
        Bg.ops[at:at] = [("dma", "tch0", lambda: touch(4, ("w1", "w2")))]

    def touchx(buf, n, part, sreg):
        g(f"s_lshr_b32 {sreg}, s2, 3\ns_lshl_b32 {sreg}, {sreg}, 2\ns_add_u32 {sreg}, {sreg}, {sW}\ns_mul_i32 {sreg}, {sreg}, {n*128}")
        if part:
            g(f"s_add_u32 {sreg}, {sreg}, {part*n*128*128}")
        g(f"v_min_u32 {vOne}, {n-1}, v0\nv_lshlrev_b32 {vOne}, 7, {vOne}")
        g.vm(f"buffer_load_dword {vDum}, {vOne}, {R[buf]}, {sreg} offen", "pf")
        g.m0 = None
    if o.tx1:
        at = Bg.find("dma", o.tx1) if o.tx1 != "0" else 0
        Bg.ops[at:at] = [("dma", "tx1", lambda: touchx("w1", 32, 0, sWo))]
    if o.tx2:
        at = Bg.find("dma", o.tx2)
        Bg.ops[at:at] = [("dma", "tx2", lambda: touchx("w2", 32, 0, sWo))]
    if o.t3 & 1:
        at = Bg.find("dma", o.t3_first)
        Bg.ops[at:at] = [("dma", "tch1", lambda: touch3(4, ("w1", "w2"), sWo))]
    Bg.flush(1)
    g.vm_lat = o.lat
    Bg.flush(Bg.find("dma", "x1"))
    sFp, sFl, sLp, sLf, sLead = (S.alloc(1) for _ in range(5))
    vP32 = V.alloc(1)
    z = V.alloc(4, at=160)
    g(f"v_and_b32 {vP32}, 31, v0\nv_lshlrev_b32 {vP32}, 2, {vP32}\ns_lshl_b32 {sFp}, {sP}, 12\nv_lshlrev_b32 {vL16}, 4, v0")
    g(f"v_mov_b32 {z[0]}, 0\nv_mov_b32 {z[1]}, 0\nv_mov_b32 {z[2]}, 0\nv_mov_b32 {z[3]}, 0\nv_lshlrev_b32 {t0}, 4, {vS8}")
    g(f"s_lshl_b32 {sLp}, {sP}, 7\ns_add_u32 {sLp}, {sLp}, {LFLAG}")
    g(f"s_lshl_b32 {sT[0]}, {sJ}, 2\ns_add_u32 {sT[0]}, {sT[0]}, {sW}\ns_lshl_b32 {sFl}, {sT[0]}, 7\ns_add_u32 {sFl}, {sFl}, {sFp}")
    g(f"s_lshl_b32 {sLf}, {sT[0]}, 2\ns_add_u32 {sLf}, {sLf}, {sLp}")
    g(f"s_lshl_b32 {sT[1]}, {sP}, 2\ns_cmp_eq_u32 {sT[0]}, 0\ns_cselect_b32 {sLead}, {sT[1]}, {OOB}\ns_cselect_b32 {sT[2]}, {sLp}, {OOB}")
    g(f"s_lshl_b32 {sT[1]}, {sW}, 10\ns_add_u32 {sT[1]}, {sT[1]}, {sFp}\ns_cmp_eq_u32 {sJ}, 0\ns_cselect_b32 {sT[3]}, {sT[1]}, {OOB}")
    g.vm(f"buffer_store_dwordx4 {z}, {vL16}, {R['ws']}, {sT[3]} offen sc1", "clr", cost=30)
    g.vm(f"buffer_store_dwordx4 {z}, {t0}, {R['ws']}, {sT[2]} offen sc1", "clr", cost=30)
    z.free()
    Bg.cap = Bg.find("dma", o.cap0)
    Bg.thresh = o.thresh1
    pump_on()
    srd_words(names[4:])
    g(f"v_and_b32 {t0}, 1, {vKq}\nv_lshlrev_b32 {t0}, 1, {t0}\nv_xor_b32 {t0}, {t0}, {vS8}\nv_lshl_add_u32 {wd[0]}, {t0}, 4, {vR8}")
    g(f"v_xor_b32 {t0}, 64, {wd[0]}\nv_add_u32 {wd[1]}, 7168, {t0}\nv_add_u32 {wd[2]}, 14336, {wd[0]}\nv_add_u32 {wd[3]}, 21504, {t0}")
    g(f"s_and_b32 {sT[0]}, {sPP}, 1\ns_lshl_b32 {sT[0]}, {sT[0]}, 2\ns_add_u32 {sT[0]}, {sT[0]}, {sW}\ns_lshl_b32 {sM}, {sT[0]}, 12")
    g(f"s_lshl_b32 {sT[1]}, {sJ}, 1\ns_xor_b32 {sT[0]}, {sT[0]}, {sT[1]}\ns_lshl_b32 {sOff}, {sT[0]}, 15\ns_add_u32 {sOff}, {sOff}, {sCol}")
    vW2, vV, vK0, vSk = V.alloc(1), V.alloc(2), V.alloc(1), V.alloc(1)
    sK0, sSk = S.alloc(1), S.alloc(1)
    g(f"v_lshlrev_b32 {t0}, 1, {vKq}\nv_xor_b32 {t0}, {t0}, {vS8}\nv_lshl_add_u32 {vW2}, {t0}, 4, {vR8}")
    g(f"v_lshrrev_b32 {t2}, 5, v0\nv_lshlrev_b32 {t2}, 1, {t2}\nv_xor_b32 {t2}, {t2}, {vS8}\nv_lshl_add_u32 {vV[0]}, {t2}, 4, {vR8}\nv_xor_b32 {vV[1]}, 64, {vV[0]}")
    g(f"s_sub_u32 {sT[0]}, {sPan}, 8192\ns_add_u32 {sT[1]}, {sC2}, {C_Q}\ns_cmp_eq_u32 {sW}, 0\n"
      f"s_cselect_b32 {sT[0]}, {sT[0]}, {OOB}\ns_cselect_b32 {sK0}, {C_K}, {sT[1]}\nv_add_u32 {vK0}, {sT[0]}, {vW2}")
    g(f"v_lshlrev_b32 {vSk}, 3, {vC}\ns_lshl_b32 {sT[2]}, {sJ}, 9\ns_lshl_b32 {sT[3]}, {sW}, 7\ns_add_u32 {sSk}, {sT[2]}, {sT[3]}")
    vR8.free()
    g(f"s_mov_b32 {sOnes}, 0x3f803f80\ns_mov_b32 {sLo1}, 0x00003f80\ns_mov_b32 {sHi1}, 0x3f800000")
    g(f"s_mov_b32 {sMask}, 0xffff0000\ns_mov_b32 {sTmo}, 0x40000")
    g(f"v_lshlrev_b32 {vL4}, 2, v0")

    vR4, vC8 = V.alloc(1), V.alloc(1)
    g(f"v_bfe_u32 {vR4}, v0, 2, 2\nv_and_b32 {vC8}, 3, v0\nv_lshlrev_b32 {vC8}, 3, {vC8}")
    ka = V.alloc(3)
    for m in range(2):
        g(f"v_sub_u32 {t0}, {vKq}, {vR4}\nv_add_u32 {t0}, {8 + 4*m}, {t0}\nv_bfe_u32 {t2}, {t0}, 1, 2\nv_xor_b32 {t2}, {sW}, {t2}")
        g(f"v_lshl_add_u32 {t2}, {t2}, 5, {vC8}\nv_lshl_add_u32 {t2}, {t0}, 7, {t2}\nv_add_u32 {ka[m]}, {C_K}, {t2}")
    g(f"v_lshl_add_u32 {t0}, {vR4}, 2, {vKq}\nv_xor_b32 {t2}, {sW}, {vR4}\nv_lshl_add_u32 {t2}, {t2}, 5, {vC8}")
    g(f"v_lshl_add_u32 {t2}, {t0}, 7, {t2}\nv_add_u32 {ka[2]}, {C_V}, {t2}")
    sQ = S.alloc(1)
    ua = V.alloc(2)
    g(f"s_add_u32 {sQ}, {sC2}, {C_Q}")
    g(f"v_and_b32 {t0}, 7, {vC}\nv_lshlrev_b32 {t2}, 1, {vKq}\nv_xor_b32 {t0}, {t0}, {t2}\nv_lshlrev_b32 {t0}, 4, {t0}")
    g(f"v_lshl_add_u32 {t0}, {vC}, 7, {t0}\nv_add_u32 {ua[0]}, {sQ}, {t0}")
    g(f"v_lshrrev_b32 {t0}, 3, v0\nv_xor_b32 {t2}, {t0}, {vS8}\nv_lshlrev_b32 {t2}, 4, {t2}")
    g(f"v_lshl_add_u32 {t2}, {t0}, 7, {t2}\nv_add_u32 {ua[1]}, {sQ}, {t2}")
    vT4k = V.alloc(1)
    g(f"v_lshlrev_b32 {t3}, 4, {vS8}\nv_lshl_add_u32 {vT4k}, {t0}, 12, {t3}")
    xa = V.alloc(2)
    g(f"v_lshrrev_b32 {t0}, 1, {vC}\nv_xor_b32 {t0}, {t0}, {vKq}\nv_lshlrev_b32 {t0}, 4, {t0}\nv_lshl_add_u32 {t0}, {vC}, 7, {t0}")
    g(f"v_add_u32 {xa[0]}, {sLdsW}, {t0}\nv_xor_b32 {xa[1]}, 64, {xa[0]}")
    wa = V.alloc(8, at=144)
    g(f"v_lshl_add_u32 {t0}, {vKq}, 3, {vR4}\nv_lshl_add_u32 {t0}, {t0}, 7, {vC8}")
    g(f"v_lshrrev_b32 {t2}, 1, {vR4}\nv_and_b32 {t3}, 1, {vKq}\nv_lshl_or_b32 {t2}, {t3}, 1, {t2}")
    g(f"v_xor_b32 {t2}, {sW}, {t2}\nv_lshl_add_u32 {t0}, {t2}, 5, {t0}\nv_add_u32 {wa[0]}, {LB}, {t0}")
    for T in range(1, 4):
        g(f"v_xor_b32 {wa[T]}, {32*T}, {wa[0]}")
    sCh, sHo = S.alloc(1), S.alloc(1)
    sHs = S.alloc(2)
    g(f"s_lshr_b32 {sT[2]}, {sW}, 1\ns_and_b32 {sT[3]}, {sW}, 1")
    g(f"s_lshl_b32 {sCh}, {sJ}, 5\ns_add_u32 {sCh}, {sCh}, {sP}\ns_lshl_b32 {sCh}, {sCh}, 1\ns_add_u32 {sCh}, {sCh}, {sT[2]}")
    g(f"s_sub_u32 {sHo}, {sKV}, {sCol}\ns_lshl_b32 {sT[0]}, {sJ}, 11\ns_add_u32 {sHo}, {sHo}, {sT[0]}\ns_add_u32 {sHo}, {sHo}, {HBUF}")
    g(f"s_lshl_b32 {sT[0]}, {sT[2]}, 10\ns_add_u32 {sHs[0]}, {sHo}, {sT[0]}\ns_xor_b32 {sHs[1]}, {sHs[0]}, 1024")
    sL, sW3, sRot3, sIdle, sRing, sSt = (S.alloc(1) for _ in range(6))
    g(f"s_lshr_b32 {sT[0]}, {sJ}, 1\ns_mul_i32 {sL}, {sT[0]}, 7\ns_and_b32 {sT[1]}, {sJ}, 1\ns_lshl_b32 {sT[2]}, {sT[1]}, 2")
    g(f"s_add_u32 {sT[2]}, {sT[2]}, {sW}\ns_add_u32 {sL}, {sL}, {sT[2]}")
    g(f"s_cmp_eq_u32 {sT[2]}, 7\ns_cselect_b32 {sIdle}, {OOB}, 0")
    g(f"s_lshl_b32 {sW3}, {sL}, 7\ns_add_u32 {sW3}, {sW3}, {sIdle}")
    if o.rot:
        g(f"s_lshl_b32 {sRot3}, {sX}, 1")
    g(f"s_add_u32 {sRing}, {sLdsW}, {LB}")
    if o.fake & 1:
        g(f"s_mov_b32 {sW3}, {OOB}")
    d3, ra = V.alloc(4), V.alloc(2)
    g(f"v_lshrrev_b32 {t0}, 3, v0\nv_and_b32 {t2}, 1, {vKq}\nv_lshlrev_b32 {t2}, 2, {t2}")
    g(f"v_xor_b32 {t3}, {t2}, {vS8}\nv_lshlrev_b32 {t3}, 4, {t3}")
    g(f"v_mul_u32_u24 {d3[0]}, 3584, {t0}\nv_add_u32 {d3[0]}, {d3[0]}, {t3}")
    for i in range(1, 4):
        g(f"v_add_u32 {d3[i]}, {i*(8*3584-1024)}, {d3[0]}")
    g(f"v_lshrrev_b32 {t0}, 5, v0\nv_lshl_add_u32 {t0}, {t0}, 2, {vR4}\nv_lshl_add_u32 {t0}, {t0}, 7, {vC8}")
    g(f"v_and_b32 {t2}, 1, {vKq}\nv_lshl_add_u32 {t0}, {t2}, 5, {t0}\nv_lshrrev_b32 {t2}, 1, {vR4}\nv_lshl_add_u32 {t0}, {t2}, 6, {t0}")
    g(f"v_add_u32 {ra[0]}, {sRing}, {t0}\nv_xor_b32 {ra[1]}, 64, {ra[0]}")
    xf = V.alloc(64, at=48)
    tmp = V.alloc(8, at=112)
    st, gk1 = V.alloc(4, at=120), V.alloc(4, at=124)
    cs, ones = V.alloc(16, at=160), V.alloc(4, at=176)
    wf, acc = V.alloc(48, at=192), V.alloc(16, at=240)
    vCs = V.alloc(1)
    for i in range(4):
        g(f"v_mov_b32 {st[i]}, 0\nv_mov_b32 {ones[i]}, {sOnes}")
    g(f"s_lshl_b32 {sT[0]}, {sW}, 6\ns_add_u32 {sT[0]}, {sT[0]}, {C_CS}\nv_lshl_add_u32 {vCs}, {vKq}, 4, {sT[0]}")
    pump_off()
    Bg.flush(Bg.cap)
    stamp("setup")

    def x_reads(n):
        Bg.flush(Bg.find("dma", f"x{n}"))
        g.wait(vm=f"x{n}")
        for b in range(2):
            g.ds(f"ds_read_b128 {xf.r(8*n + 4*b, 4)}, {xa[b]} offset:{LA + n*2048}", f"x{n}")

    def stats(n):
        g.wait(lg=f"x{n}")
        for i in range(8):
            g(f"v_dot2c_f32_bf16 {st[i & 1]}, {sOnes}, {xf[8*n+i]}")
            g(f"v_dot2c_f32_bf16 {st[2 + (i & 1)]}, {xf[8*n+i]}, {xf[8*n+i]}")

    def ready_store():
        g.wait(vm="clr")
        g(f"s_mov_b64 exec, 1\nv_mov_b32 {vOne}, 1")
        g.vm(f"buffer_store_dword {vOne}, off, {R['dbg']}, {sLead} sc1", "clr")
        g("s_mov_b64 exec, -1")

    if o.touch & 2:
        at = Bg.find("dma", o.touch2)
        Bg.ops[at:at] = [("dma", "tch", lambda: touch(14, ("w3", "w4")))]
    Bg.cap = len(Bg.ops)
    pump_on()
    x_reads(0)
    for n in range(1, 8):
        x_reads(n)
        mark(4, f"p_x{n}")
        stats(n - 1)
    stats(7)
    xa.free(); xd.free()
    stamp("x_in")
    g(f"v_add_f32 {st[0]}, {st[0]}, {st[1]}\nv_add_f32 {st[2]}, {st[2]}, {st[3]}")
    for sw in ("32", "16"):
        g(f"v_mov_b32 {st[1]}, {st[0]}\nv_mov_b32 {st[3]}, {st[2]}")
        g(f"v_permlane{sw}_swap_b32 {st[0]}, {st[1]}\nv_permlane{sw}_swap_b32 {st[2]}, {st[3]}")
        g(f"v_add_f32 {st[0]}, {st[0]}, {st[1]}\nv_add_f32 {st[2]}, {st[2]}, {st[3]}")
    run(ln_stats(st[0], st[2], st[1], gk1))
    pump_off()
    mark(4, "p_ln")
    Bg.flush(len(Bg.ops))
    mark(4, "p_w1iss")
    Bg.thresh = o.thresh

    gw, vD, shk = V.alloc(8, at=136), V.alloc(1), V.alloc(2)
    for i in range(4):
        g(f"v_add_u32 {wd[i]}, {i*7168}, {vW2}")
    g(f"s_lshl_b32 {sT[0]}, {sW}, 2\ns_xor_b32 {sT[0]}, {sT[0]}, {sPP}\ns_lshl_b32 {sM}, {sT[0]}, 12")
    g(f"s_lshl_b32 {sT[1]}, {sJ}, 1\ns_xor_b32 {sT[0]}, {sT[0]}, {sT[1]}\ns_lshl_b32 {sOff}, {sT[0]}, 15\ns_add_u32 {sOff}, {sOff}, {sCol}")
    g(f"s_lshl_b32 {sT[3]}, {sCh}, 1\nv_lshlrev_b32 {t3}, 3, {vKq}\nv_mov_b32 {vD}, 0")

    def one_dma(key, m0, text, tag):
        def fn():
            if g.m0 != key:
                g(m0)
                g.m0 = key
            g.vm(text, tag)
        return ("dma", tag, fn)
    Bg.ops.append(one_dma("k0", f"s_mov_b32 m0, {sK0}", f"buffer_load_dwordx4 {vK0}, {R['k']}, 0 offen {o.nt_once} lds", "par"))
    for i in range(2):
        Bg.ops.append(one_dma("k", f"s_add_u32 m0, {sC2}, {C_K + 1024}", f"buffer_load_dwordx4 {vW2}, {R['k']}, {(sKV, sKV2)[i]} offen offset:{i*1024} {o.nt_once} lds", "par"))
    for i in range(2):
        Bg.ops.append(one_dma("v", f"s_add_u32 m0, {sC2}, {C_V}", f"buffer_load_dwordx4 {vV[i]}, {R['v']}, {(sKV, sKV2)[i]} offen offset:{i*1024} {o.nt_once} lds", "par"))
    Bg.ops.append(("dma", "par", lambda: g.vm(f"buffer_load_dwordx2 {shk}, {vSk}, {R['shift_k']}, {sSk} offen", "par")))
    for i in range(2):
        Bg.ops.append(one_dma("q", f"s_mov_b32 m0, {sQ}", f"buffer_load_dwordx4 {vQa[i]}, {R['q']}, {sKV} offen offset:{i*1024} lds", "par"))
    for T in range(4):
        Bg.ops.append(("dma", "par", lambda T=T: g.vm(f"buffer_load_dwordx2 {gw.r(2*T,2)}, {t3}, {R['gate_w']}, {sCol} offen offset:{32*T}", "par")))
    Bg.ops.append(("dma", "par", lambda: g.vm(f"buffer_load_short_d16_hi {vD}, off, {R['ssm_D']}, {sT[3]}", "par")))
    for n in range(4):
        for i in range(4):
            Bg.ops.append(("dma", "w2", lambda n=n, i=i: w_dma("w2", LA, n, i)))
    w3r = A.alloc(256)
    sG4 = []
    d4 = Reg(V, d3.base, 4)

    def w4home(n, ft, e2=None):
        k, b = ("v", 160 + 8*n + 4*ft) if n < 12 else ("a", 8*(n-12) + 4*ft)
        return f"{k}[{b}:{b+3}]" if e2 is None else f"{k}[{b+2*e2}:{b+2*e2+1}]"

    rx, sRx = [], []
    prev = lambda n: n - 4 if n < 26 else None if n < 28 else n - 6
    slot = lambda n: (n & 3) if n < 26 else n - 26

    def d4_setup():
        g(f"v_and_b32 {d4[1]}, 127, {d3[0]}\nv_lshrrev_b32 {d4[0]}, 3, v0\nv_lshl_add_u32 {d4[0]}, {d4[0]}, 10, {d4[1]}")
        for i in range(1, 4):
            g(f"v_add_u32 {d4[i]}, {i*7168}, {d4[0]}")

    def st_setup(n):
        def fn():
            if n == 26:
                rx.append(V.alloc(2))
                sRx.append(S.alloc(1))
                g(f"s_lshl_b32 {sRx[0]}, {sW}, 13\ns_sub_u32 {sSt}, {sRx[0]}, {sRing}\nv_add_u32 {rx[0][0]}, {sSt}, {ra[0]}\nv_add_u32 {rx[0][1]}, {sSt}, {ra[1]}")
            if not o.rot:
                if n == 16:
                    d4_setup()
                g(f"s_add_u32 {sSt}, {sW3 if n < 16 else sW4}, {n*32*3584 if n < 16 else (n-16)*32768}")
            elif n < 16:
                g(f"s_xor_b32 {sSt}, {sRot3}, {n}\ns_mul_i32 {sSt}, {sSt}, {32*3584}\ns_add_u32 {sSt}, {sSt}, {sW3}")
            else:
                if n == 16:
                    d4_setup()
                g(f"s_lshl_b32 {sSt}, {sG4[n-16]}, 4\ns_add_u32 {sSt}, {sSt}, {sW4}")
        return ("set", n, fn)

    def st_dma(n, i):
        def fn():
            if i == 0 and n >= 4 and prev(n) is not None:
                g.wait(lg=f"sr{prev(n)}")
            if g.m0 != ("st", n):
                g(f"s_add_u32 m0, {sRx[0] if n in (26, 27) else sRing}, {slot(n)*4096}")
                g.m0 = ("st", n)
            g.vm(f"buffer_load_dwordx4 {d3[i]}, {R['w3' if n < 16 else 'w4']}, {sSt} offen offset:{i*1024} lds", f"sd{n}")
        return ("dma", n, fn)

    def st_rd(n, u, ft, e2):
        def fn():
            g.wait(vm=f"sd{n}")
            if n < 16:
                dst, off = w3r.r(16*n + 8*u + 4*ft + 2*e2, 2), e2 * 2048 + u * 1024
            else:
                dst, off = w4home(2*(n-16) + u, ft, e2), u * 2048 + e2 * 1024
            g.ds(f"ds_read_b64_tr_b16 {dst}, {(rx[0] if n in (26, 27) else ra)[ft]} offset:{slot(n)*4096 + off}", f"sr{n}")
        return ("rd0" if (u, ft, e2) == (0, 0, 0) else "rd", n, fn)
    allrd = lambda n: [st_rd(n, u, ft, e2) for u in range(2) for ft in range(2) for e2 in range(2)]
    alldma = lambda n: [st_setup(n)] + [st_dma(n, i) for i in range(4)]
    for n in range(25):
        rds = allrd(n - 3) if n >= 3 else []
        Bg.ops.append(st_setup(n))
        for i in range(4):
            Bg.ops.append(st_dma(n, i))
            Bg.ops += rds[4*i:4*i+4]
    for k, (buf, part) in enumerate((("w3", 0), ("w3", 1), ("w4", 0), ("w4", 1))):
        pos = o.tx34.split(":")[k] if o.tx34 else ""
        if pos:
            at = Bg.find("dma", int(pos) if pos.isdigit() else pos)
            Bg.ops[at:at] = [("dma", f"tx3{k}", lambda buf=buf, part=part: touchx(buf, 56, part, sSt))]
    if o.t3 & 2:
        at = Bg.find("dma", o.t3_at)
        Bg.ops[at:at] = [("dma", "tch3", lambda: touch3(14, ("w4",), sSt))]
    Bg.ops += alldma(25) + alldma(26) + alldma(27)
    Bg.ops += allrd(22) + allrd(23)[:4] + alldma(28) + allrd(23)[4:] + allrd(24)[:4] + alldma(29) + allrd(24)[4:]
    for n in range(25, 30):
        Bg.ops += allrd(n)

    def wfrag(ks, T, first):
        if not first and o.pre2 and ks >= 8:
            return f"a[{128 + 16*(ks-8) + 4*T}:{128 + 16*(ks-8) + 4*T + 3}]"
        return wf.r(16*(ks % 3) + 4*T, 4)

    def wreads(ks, first):
        if not first and o.pre2 and ks >= 8:
            return
        for T in range(4):
            for e2 in range(2):
                ad, off = (wa[T], ks*4096 + e2*512) if first else (wa[2*T + e2], ks*4096)
                g.ds(f"ds_read_b64_tr_b16 {wf.r(16*(ks % 3) + 4*T + 2*e2, 2)}, {ad} offset:{off}", f"w{ks}")
            yield

    def gemm16(tok, first, vmtag=None, hook=None, pre=None):
        order = list(range(16))
        if not first and o.pre2:
            order = [k for i in range(8) for k in (i, i + 8)]
        slow = [k for k in order if first or not o.pre2 or k < 8]
        for pos, ks in enumerate(order):
            if pre:
                pre(ks)
            if first or not o.pre2:
                nxt = wreads(ks + 2, first) if ks < 14 else iter(())
            elif ks < 8:
                both = wreads(ks + 2, first) if ks < 6 else iter(())
                nxt = (next(both, None) if i % 2 else None for i in range(4))
            else:
                nxt = (next(both, None) if i % 2 else None for i in range(4))
            g.wait(vm=vmtag and f"{vmtag}{ks}", lg=f"w{ks}")
            for T in range(4):
                g(f"v_mfma_f32_16x16x32_bf16 {acc.r(4*T,4)}, {wfrag(ks, T, first)}, {tok.r(4*ks,4)}, {acc.r(4*T,4) if pos else 0}")
                next(nxt, None)
            if first:
                g(f"v_mfma_f32_16x16x32_bf16 {cs.r(0,4)}, {wf.r(16*(ks % 3), 4)}, {ones}, {cs.r(0,4) if ks else 0}")
            if hook:
                hook(pos)

    Bg.cap = Bg.find("dma", "w2")
    g.wait(vm="w1a")
    g("s_barrier")
    stamp("w1_in")
    run(wreads(0, True))
    run(wreads(1, True))
    ready_store()
    sLead.free()
    pd = Poll(R["dbg"], vP32, 0, 1)

    def pre1(ks):
        if ks in (0, 3, 6, 10, 13):
            mark(4, f"p_k{ks}")
        if ks == 6:
            g.wait(vm="w1b")
            g("s_barrier")
            mark(4, "p_w1b")

    def hook1(ks):
        if ks == o.dpoll_at:
            pd.issue()
        Bg.step()
    gemm16(xf, True, hook=hook1, pre=pre1)
    mark(4, "p_loop")
    ones.free(); R["w1"].free()
    g.ds(f"ds_write_b128 {vCs}, {cs.r(0,4)}", "csw")
    Bg.flush(Bg.find("dma", "par"))
    for r in (R["q"], R["k"], R["v"], R["shift_k"], R["ssm_D"], R["gate_w"], vQa, sKV, sKV2, sC2, vW2, vV, vK0, vSk, sK0, sSk):
        r.free()
    for i in range(4):
        g(f"v_fmac_f32 {acc[i]}, {st[1]}, {cs[i]}")
    g.wait(lg="csw")
    g("s_barrier")
    stamp("g1_mfma")
    for i in range(1, 4):
        g(f"v_xor_b32 {t0}, {64*i}, {vCs}")
        g.ds(f"ds_read_b128 {cs.r(4*i,4)}, {t0}", f"cs{i}")
    vCs.free()
    hp = V.alloc(8, at=128)
    Bg.cap = Bg.find("dma", "w2")
    pump_on()
    for i in range(1, 4):
        g.wait(lg=f"cs{i}")
        for e in range(4):
            g(f"v_fmac_f32 {acc[4*i+e]}, {st[1]}, {cs[4*i+e]}")
    st.free(); cs.free()

    def h_store(gg):
        if gg == 0 and o.dpoll_at == 16:
            pd.issue()
        g.vm(f"buffer_store_dwordx4 {hp.r(4*gg,4)}, {vL16}, {R['ws']}, {sHs[gg]} offen sc1", "hst")
    gelu_pk(acc, 16, gk1, hp, tmp, h_store)
    gk1.free(); sHs.free(); acc.free()
    stamp("h_st")

    qp = V.alloc(8, at=120)
    g(f"v_lshrrev_b32 {t0}, 1, {vC}\nv_lshrrev_b32 {t2}, 1, {vKq}\nv_xor_b32 {t0}, {t0}, {t2}\nv_lshlrev_b32 {t0}, 4, {t0}")
    g(f"v_lshl_add_u32 {t0}, {vC}, 7, {t0}\nv_and_b32 {t2}, 1, {vKq}\nv_lshl_add_u32 {t0}, {t2}, 3, {t0}\nv_add_u32 {t0}, {sQ}, {t0}")
    Bg.cap = Bg.find("dma", o.bg_a)
    mark(2, "a_pre")
    g.wait(vm="par")
    mark(2, "a_par")
    g("s_barrier")
    mark(2, "a_bar")
    for T in range(4):
        g(f"v_xor_b32 {t2}, {32*T}, {t0}")
        g.ds(f"ds_read_b64 {qp.r(2*T,2)}, {t2}", "q")
    sQ.free()
    up = V.alloc(8, at=160)
    kk = xf

    def kv_reads(m0):
        g.ds(f"ds_read_b64_tr_b16 {kk.r(32 + m0//2, 2)}, {ka[2]} offset:{m0*512}", f"k{m0}")
        for m in range(m0, m0 + 4):
            g.ds(f"ds_read_b64_tr_b16 {kk.r(2*m, 2)}, {ka[m & 1]} offset:{(m >> 1)*1024}", f"k{m0}")
    def hflag():
        pd.check()
        R["dbg"].free()
        if o.local:
            g.vm(f"buffer_load_dword {vDum}, off, {R['ws']}, {sLp} sc1", "pf")
        g.wait(vm="hst")
        flag_set(F_H)
        hp.free()
    mark(2, "a_pd")
    kv_reads(0)
    kv_reads(4)
    for m0 in range(0, 16, 4):
        g.wait(lg=f"k{m0}")
        if m0 + 8 < 16:
            kv_reads(m0 + 8)
        for m in range(m0, m0 + 4):
            g(f"v_dot2_f32_bf16 {kk[40+m]}, {kk[2*m]}, {shk[0]}, 0")
        for m in range(m0, m0 + 4):
            g(f"v_dot2_f32_bf16 {kk[40+m]}, {kk[2*m+1]}, {shk[1]}, {kk[40+m]}")
        for i in range(2):
            g(f"v_lshlrev_b32 {tmp[2*i]}, 16, {kk[32 + m0//2 + i]}\nv_and_b32 {tmp[2*i+1]}, {sMask}, {kk[32 + m0//2 + i]}")
        for i in range(2):
            g(f"v_pk_mul_f32 {tmp.r(2*i,2)}, {tmp.r(2*i,2)}, {kk.r(40 + m0 + 2*i, 2)}")
        for i in range(2):
            g(f"v_cvt_pk_bf16_f32 {up[m0//2 + i]}, {tmp[2*i]}, {tmp[2*i+1]}")
        mark(2, f"a_kv{m0}")
        if m0 == o.hflag_m:
            hflag()
            mark(2, "a_hflag")
        if m0 == 4:
            g.ds(f"ds_write_b128 {ua[0]}, {up.r(0,4)}", "uw")
            g(f"v_xor_b32 {ua[0]}, 16, {ua[0]}")
    g.ds(f"ds_write_b128 {ua[0]}, {up.r(4,4)}", "uw")
    shk.free(); ka.free()

    sTr = S.alloc(1)
    g(f"s_lshl_b32 {sT[0]}, {sJ}, 18\ns_lshl_b32 {sT[1]}, {sW}, 16\ns_add_u32 {sTr}, {sT[0]}, {sT[1]}\ns_lshl_b32 {sT[0]}, {sP}, 7\ns_add_u32 {sTr}, {sTr}, {sT[0]}")
    g(f"s_add_u32 {sT[0]}, {sTr}, {UBUF}\ns_add_u32 {sT[1]}, {sTr}, {UBUF + 32768}")
    g.wait(lg="uw")
    g.ds(f"ds_read_b128 {up.r(0,4)}, {ua[1]}", "ur")
    g.ds(f"ds_read_b128 {up.r(4,4)}, {ua[1]} offset:1024", "ur")
    ua.free()
    if o.hflag_m >= 16:
        hflag()
    stamp("h_out")
    g.wait(lg="ur")
    for i in range(2):
        g.vm(f"buffer_store_dwordx4 {up.r(4*i,4)}, {vT4k}, {R['ws']}, {sT[i]} offen sc1", "ust")
    g(f"v_lshl_add_u32 {t0}, {vKq}, 2, {vR4}\nv_bfe_u32 {t2}, {t0}, 1, 2\nv_lshl_add_u32 {t0}, {t0}, 7, {vC8}")
    g(f"s_and_b32 {sT[0]}, {sW}, 1\ns_lshl_b32 {sT[0]}, {sT[0]}, 11\nv_lshl_add_u32 {t0}, {t2}, 5, {t0}\nv_add_u32 {wa[0]}, {sT[0]}, {t0}")
    for i in range(1, 8):
        g(f"v_xor_b32 {wa[i]}, {32*(i >> 1) + 2048*(i & 1)}, {wa[0]}")
    vP8 = V.alloc(1)
    g(f"s_lshl_b32 {sT[0]}, {sW}, 2\nv_lshl_add_u32 {vP8}, {vS8}, 4, {sT[0]}")
    ph = Poll(R["ws"], vP8, None, F_H, local=True)
    cA = xf
    pump_off()
    mark(2, "a_set")
    Bg.flush(Bg.find("dma", "w2"))
    mark(2, "a_w2iss")
    for r in (R["w2"], sM, sOff, sWo, wd):
        r.free()

    keys = ("vmq", "lgq", "vmt", "lgt", "clock", "mfree", "m0", "q", "lq", "last_done", "ta")

    def two_paths(body, before=None):
        lodd, ljoin = g.label("odd"), g.label("join")
        g(f"s_bitcmp1_b32 {sW}, 0\ns_cbranch_scc1 {lodd}")
        saved = (copy.deepcopy({k: getattr(g, k) for k in keys}), Bg.idx)
        ends = []
        for par in range(2):
            if par:
                g(f"{lodd}:")
                for k, v in copy.deepcopy(saved[0]).items():
                    setattr(g, k, v)
                Bg.idx = saved[1]
            extra = body(par)
            ends.append((Bg.idx, list(g.vmq), list(g.lgq), extra, g.clock))
            if not par:
                g(f"s_branch {ljoin}")
        g(f"{ljoin}:")
        assert ends[0][0] == ends[1][0]
        g.vmq = merge_queues(ends[0][1], ends[1][1])
        g.lgq = merge_queues(ends[0][2], ends[1][2])
        g.clock = max(ends[0][4], ends[1][4])
        g.m0 = None

    def conv_all(par, events, spare=None):
        tiles = TILES[par]
        top = max(tiles)
        seq = [(d, mp) for d in (0, 1, 2, 3) for mp in range(-1, 2 * top + 1)]

        def bread(i):
            d, mp = seq[i]
            for e2 in range(2):
                g.ds(f"ds_read_b64 {cBr(i, 2*e2, 2)}, {aB} offset:{d*UP + 64*(mp+1) + 8*e2}", f"B{i}")
                yield
        for i in range(o.bdist):
            run(bread(i))
        started = set()
        cnt = 0
        ndma = sum(1 for x in Bg.ops[Bg.idx:Bg.cap] if x[0] == "dma")
        per = max(1, 138 // max(ndma, 1))
        done = [-per]
        for i, (d, mp) in enumerate(seq):
            rd = bread(i + o.bdist) if i + o.bdist < len(seq) else iter(())
            if i % 2 == 0:
                g.wait(lg=f"B{min(i + 1, len(seq) - 1)}")
            for ti, jb in enumerate(tiles):
                m = 2 * jb - mp
                if m < 0:
                    continue
                c = (pp, qq)[d & 1].r(6*ti + (d & 2), 4)
                first = d < 2 and (d, ti) not in started
                started.add((d, ti))
                g(f"v_mfma_f32_16x16x32_bf16 {c}, {cA.r(4*m,4)}, {cBr(i, 0, 4)}, {0 if first else c}")
                cnt += 1
                next(rd, None)
                if cnt in events:
                    mark(5, f"c{cnt}a")
                    events[cnt]()
                    mark(5, f"c{cnt}b")
                if spare and cnt > 144 - 2 * len(spare) - 8 and cnt % 2:
                    spare.pop(0)()
                for _ in range(2):
                    if Bg.idx < Bg.cap and (Bg.ops[Bg.idx][0] != "dma" or cnt - done[0] >= per):
                        if Bg.ops[Bg.idx][0] == "dma":
                            done[0] = cnt
                        Bg.step(True)
                        if g.slack() < 4:
                            break
            run(rd)
        Bg.flush(Bg.cap)

    sCH, sCU, sUl, sFu = (S.alloc(1) for _ in range(4))
    g(f"s_lshr_b32 {sT[2]}, {sW}, 1\ns_and_b32 {sT[3]}, {sW}, 1")
    g(f"s_mul_i32 {sCH}, {sT[2]}, {HP}\ns_add_u32 {sCH}, {sCH}, {C_H}\ns_mul_i32 {sCU}, {sT[2]}, {4*UP}\ns_add_u32 {sCU}, {sCU}, {C_U}")
    g(f"s_lshl_b32 {sT[1]}, {sCh}, 12")
    Bg.flush(Bg.find("dma", o.bg_a))
    mark(2, "a_bga")
    ph.issue()
    Bg.cap = Bg.find("dma", o.cap_p2)
    Bg.flush(Bg.find("dma", o.bg_b))
    mark(2, "a_bgb")
    g.wait(vm="w2")
    g("s_barrier")
    stamp("u_out")
    g(f"s_add_u32 m0, {sCH}, 32\ns_nop 0")
    fl = (g.vm(f"buffer_load_dwordx4 {vL16}, {R['ssm_k']}, {sT[1]} offen offset:{i*1024} {o.nt_once} lds", "fin") for i in range(4))
    next(fl)
    g.pump = lambda: next(fl, None) if g.ta - g.clock < 0 else None
    if o.pre2:
        assert o.cap_p2 <= 10
        for ks in range(8, 16):
            for T in range(4):
                for e2 in range(2):
                    b = 128 + 16*(ks-8) + 4*T + 2*e2
                    g.ds(f"ds_read_b64_tr_b16 a[{b}:{b+1}], {wa[2*T + e2]} offset:{ks*4096}", "wpre")
    run(wreads(0, False))
    run(wreads(1, False))

    g.pump = None
    run(fl)
    R["ssm_k"].free()
    ph.check(then=lambda: flag_set(F_U))
    up.free(); vP8.free()
    stamp("h_flag")
    sHl2 = S.alloc(2)
    acc = V.alloc(16, at=240)

    def h1_load(pos):
        ks = (pos >> 1) + 8 * (pos & 1) if o.pre2 else pos
        so = sHl2[ks >> 3]
        if ks & 1 == 0:
            g(f"s_xor_b32 {so}, {sHo}, {ks << 10}")
        g.vm(f"buffer_load_dwordx4 {xf.r(4*ks,4)}, {vL16}, {R['ws']}, {so} offen offset:{(ks & 1)*1024} sc1", f"h{ks}")
    hl = (h1_load(ks) for ks in range(9))
    next(hl)
    g.pump = lambda: next(hl, None) if g.ta - g.clock < 30 else None
    gs = V.alloc(4)
    g(f"v_mov_b32 {gs[1]}, 0\nv_mov_b32 {gs[3]}, 0")
    g.wait(lg="q")
    for i in range(8):
        g(f"v_dot2c_f32_bf16 {gs[1]}, {qp[i]}, {gw[i]}")
    gw.free()
    g(f"s_lshl_b32 {sUl}, {sCh}, 12\ns_add_u32 {sUl}, {sUl}, {UBUF}")
    g(f"s_lshr_b32 {sT[0]}, {sP}, 3\ns_lshl_b32 {sT[0]}, {sT[0]}, 7\ns_lshl_b32 {sFu}, {sJ}, 9\ns_add_u32 {sFu}, {sFu}, {sT[0]}")
    aA, aB = V.alloc(1), V.alloc(1)
    g(f"v_lshlrev_b32 {t0}, 6, {vKq}\nv_add_u32 {t0}, {t0}, {vC8}\nv_lshlrev_b32 {t2}, 3, {vR4}\nv_sub_u32 {t0}, {t0}, {t2}")
    g(f"s_add_u32 {sT[0]}, {sCH}, 32\nv_add_u32 {aA}, {sT[0]}, {t0}")
    g(f"v_lshlrev_b32 {t0}, 3, {vC}\nv_lshlrev_b32 {t2}, 4, {vKq}\nv_sub_u32 {t0}, {t0}, {t2}\ns_add_u32 {sT[0]}, {sCU}, 56\nv_add_u32 {aB}, {sT[0]}, {t0}")
    sW4 = S.alloc(1)
    g(f"s_mul_i32 {sW4}, {sW}, {448*1024}\ns_add_u32 {sW4}, {sW4}, {sCol}")
    if o.fake & 2:
        g(f"s_mov_b32 {sW4}, {OOB}")
    if o.rot:
        sG4 += [S.alloc(1) for _ in range(14)]
        g(f"s_mul_i32 {sT[0]}, {sX}, 7\ns_lshr_b32 {sT[0]}, {sT[0]}, 2\ns_lshl_b32 {sG4[0]}, {sT[0]}, 11")
        for n in range(1, 14):
            g(f"s_add_u32 {sG4[n]}, {sG4[n-1]}, 2048\ns_cmp_eq_u32 {sG4[n]}, {14*2048}\ns_cselect_b32 {sG4[n]}, 0, {sG4[n]}")
    g(f"v_mov_b32 {tmp[0]}, 0\nv_mov_b32 {tmp[1]}, 0")
    g(f"v_mul_u32_u24 {t0}, {UP}, {vKq}\nv_lshl_add_u32 {t0}, {vC}, 3, {t0}\nv_add_u32 {t0}, {sCU}, {t0}\nv_add_u32 {t2}, {sCH}, {vC8}")
    g.ds(f"ds_write_b64 {t0}, {tmp.r(0,2)}")
    g.ds(f"ds_write_b64 {t2}, {tmp.r(0,2)}")
    sX1s, sX1l, sSto, sSto2, sStw, sY, sXo, sH2, sHst, sFy = (S.alloc(1) for _ in range(10))
    aN, aU, aY, vSt, vSw, vXs, vN0 = (V.alloc(1) for _ in range(7))
    g(f"s_lshr_b32 {sT[0]}, {sW}, 1\ns_mul_i32 {sT[1]}, {sT[0]}, {NP}\ns_add_u32 {sT[1]}, {sT[1]}, {A_N}\nv_mov_b32 {vN0}, {sT[1]}")
    g.ds(f"ds_write2st64_b32 {vN0}, {tmp[0]}, {tmp[0]} offset0:0 offset1:9")
    g.ds(f"ds_write_b32 {vN0}, {tmp[0]} offset:{18*256}")
    g(f"v_lshl_add_u32 {t0}, {vC}, 2, {vKq}\nv_lshl_add_u32 {aN}, {t0}, 2, {sT[1]}")
    g(f"s_add_u32 {sT[1]}, {sCU}, 128\nv_lshl_add_u32 {aU}, {t0}, 1, {sT[1]}")
    g(f"v_lshrrev_b32 {t0}, 2, {vC}\nv_lshlrev_b32 {t0}, 7, {t0}")
    g(f"v_lshl_add_u32 {t0}, {vKq}, 5, {t0}\nv_add_u32 {aY}, {t0}, {vC8}")
    g(f"s_lshl_b32 {sT[3]}, {sP}, 16\ns_add_u32 {sT[3]}, {sT[3]}, {X1BUF}")
    g(f"s_lshl_b32 {sT[0]}, {sT[0]}, 15\ns_and_b32 {sT[1]}, {sW}, 1\ns_lshl_b32 {sT[2]}, {sT[1]}, 8\ns_add_u32 {sT[0]}, {sT[0]}, {sT[2]}")
    g(f"s_lshl_b32 {sT[2]}, {sJ}, 12\ns_add_u32 {sT[0]}, {sT[0]}, {sT[2]}\ns_add_u32 {sX1s}, {sT[0]}, {sT[3]}")
    if o.rot:
        g(f"s_lshl_b32 {sX1l}, {sW}, 2\ns_xor_b32 {sX1l}, {sX1l}, {sRot3}\ns_lshl_b32 {sX1l}, {sX1l}, 11\ns_add_u32 {sX1l}, {sX1l}, {sT[3]}")
    else:
        g(f"s_lshl_b32 {sX1l}, {sW}, 13\ns_add_u32 {sX1l}, {sX1l}, {sT[3]}")
    g(f"s_lshl_b32 {sSto}, {sP}, 13\ns_add_u32 {sSto}, {sSto}, {STATS}\ns_add_u32 {sSto2}, {sSto}, 4096")
    g(f"s_lshl_b32 {sT[0]}, {sJ}, 10\ns_lshl_b32 {sT[2]}, {sW}, 8\ns_add_u32 {sT[0]}, {sT[0]}, {sT[2]}\ns_add_u32 {sStw}, {sT[0]}, {sSto}")
    g(f"s_lshl_b32 {sY}, {sCh}, 12\ns_add_u32 {sY}, {sY}, {YBUF}")
    g(f"v_lshlrev_b32 {t0}, 9, {vKq}\nv_lshl_add_u32 {vXs}, {vC}, 4, {t0}")
    g(f"v_lshrrev_b32 {t2}, 5, v0\nv_and_b32 {t3}, 1, {vKq}")
    g(f"v_lshlrev_b32 {t0}, 10, {t2}\nv_lshl_add_u32 {t0}, {t3}, 8, {t0}\nv_lshl_add_u32 {vSt}, {vC}, 3, {t0}")
    g(f"v_lshlrev_b32 {t0}, 2, {t2}\nv_lshl_add_u32 {t0}, {vC}, 3, {t0}")
    g(f"v_lshlrev_b32 {t2}, 6, {t2}\nv_lshl_add_u32 {t2}, {vC}, 2, {t2}\nv_add_u32 {t2}, 128, {t2}")
    g(f"v_cmp_eq_u32 vcc, 0, {t3}\ns_nop 1\nv_cndmask_b32 {vSw}, {t2}, {t0}, vcc")
    g(f"s_mul_i32 {sH2}, {sP}, 229376\ns_add_u32 {sH2}, {sH2}, {H2BUF}")
    g(f"s_lshl_b32 {sHst}, {sL}, 12\ns_add_u32 {sHst}, {sHst}, {sH2}\ns_add_u32 {sHst}, {sHst}, {sIdle}")
    g(f"s_lshr_b32 {sT[0]}, {sP}, 2\ns_lshr_b32 {sT[1]}, 0x3b, {sT[0]}\ns_and_b32 {sT[1]}, {sT[1]}, 1\ns_lshl_b32 {sT[1]}, {sT[1]}, 7")
    g(f"s_lshl_b32 {sT[0]}, {sW}, 15\ns_add_u32 {sT[1]}, {sT[1]}, {sT[0]}\ns_lshl_b32 {sT[0]}, {sJ}, 9\ns_add_u32 {sFy}, {sT[1]}, {sT[0]}")
    g(f"v_mov_b32 {gs[0]}, 0\nv_mov_b32 {gs[2]}, 0")
    vPu = V.alloc(1)
    pu = Poll(R["ws"], vPu, sFu, F_U)
    g(f"v_lshlrev_b32 {vPu}, 10, {vP32}")
    g(f"s_mov_b32 {sT[0]}, {sCU}")
    g(f"v_lshrrev_b32 {t3}, 1, v0\nv_and_b32 {t2}, 1, v0\nv_lshlrev_b32 {t2}, 4, {t2}\nv_lshl_add_u32 {t3}, {t3}, 7, {t2}")
    for r in (sL, sIdle, sCh, sCH, sCU):
        r.free()
    mark(2, "b_set")
    g.pump = None
    run(hl)
    mark(2, "b_iss")

    def u_load(i):
        if i == 0:
            pu.check()
        g(f"s_add_u32 m0, {sT[0]}, {128 + i*(UP - 32)}\ns_nop 0")
        g.vm(f"buffer_load_dwordx4 {t3}, {R['ws']}, {sUl} offen offset:{32*i} sc1 lds", "cin")

    def hook2(ks):
        if ks in (0, 4, 8, 12):
            mark(2, f"b_k{ks}")
        if ks == o.upoll_at:
            pu.issue()
        if ks + 9 < 16:
            h1_load(ks + 9)
        elif ks >= o.ucheck_at:
            u_load(ks - o.ucheck_at)
        else:
            Bg.step()
            Bg.step()
    gemm16(xf, False, vmtag="h", hook=hook2)
    sHl2.free(); sHo.free()
    stamp("g2_mfma")
    wa.free(); wf.free()
    g.wait(vm="fin")
    areads = [f"ds_read_b64_tr_b16 {xf.r(4*m + 2*e2, 2)}, {aA} offset:{256*m + 32 - 32*e2}" for m in range(15, -1, -1) for e2 in range(2)]
    g.pump = lambda: g.ds(areads.pop(0), "A") if areads else None
    x1p = V.alloc(8, at=128)
    for T in range(0, 4, 2):
        for i in range(4):
            g(f"v_dot2_f32_bf16 {tmp[2*i]}, {qp[2*T+i]}, {sLo1}, {acc[4*T+2*i]}")
            g(f"v_dot2_f32_bf16 {tmp[2*i+1]}, {qp[2*T+i]}, {sHi1}, {acc[4*T+2*i+1]}")
        for i in range(4):
            g(f"v_cvt_pk_bf16_f32 {x1p[2*T+i]}, {tmp[2*i]}, {tmp[2*i+1]}")
        g.vm(f"buffer_store_dwordx4 {x1p.r(2*T,4)}, {vXs}, {R['ws']}, {sX1s} offen offset:{T*1024} sc1", "xst")
    acc.free(); vXs.free(); sX1s.free()
    with g.hold():
        for i in range(max(0, 16 - o.ucheck_at), 4):
            u_load(i)
        sUl.free(); sFu.free(); vPu.free()

    for i in range(8):
        g(f"v_dot2c_f32_bf16 {gs[0]}, {sOnes}, {x1p[i]}")
        g(f"v_dot2c_f32_bf16 {gs[2]}, {x1p[i]}, {x1p[i]}")
    g(f"v_permlane32_swap_b32 {gs[0]}, {gs[2]}\nv_permlane32_swap_b32 {gs[1]}, {gs[3]}")
    g(f"v_add_f32 {gs[0]}, {gs[0]}, {gs[2]}\nv_add_f32 {gs[1]}, {gs[1]}, {gs[3]}")
    g(f"v_permlane16_swap_b32 {gs[0]}, {gs[1]}\nv_add_f32 {gs[0]}, {gs[0]}, {gs[1]}")
    g.vm(f"buffer_store_dword {gs[0]}, {vSw}, {R['ws']}, {sStw} offen sc1", "xst")
    sStw.free(); vSw.free()
    stamp("x1_st")

    pp = V.alloc(30, at=160)
    qq = V.alloc(30, at=190)
    uu = V.alloc(20, at=220)
    cB, cB2 = V.alloc(16, at=240), V.alloc(16, at=136)
    cBr = lambda i, k, n: (cB, cB2)[(i >> 2) & 1].r(4*(i & 3) + k, n)
    for ti in range(5):
        g(f"v_mov_b32 {qq[6*ti + 4]}, 0\nv_mov_b32 {qq[6*ti + 5]}, 0\nv_mov_b32 {pp[6*ti + 4]}, 0\nv_mov_b32 {pp[6*ti + 5]}, 0")
    pump_off()
    while areads:
        g.ds(areads.pop(0), "A")
    px = Poll(R["ws"], vP32, None, F_X1, local=True)
    sv = [Reg(V, 152, 8), Reg(V, 248, 8)]
    gate = V.alloc(2)
    nb = [Reg(V, xf.base + 32, 32), Reg(V, xf.base, 32)]

    def st_loads(th):
        for i in range(4):
            g.vm(f"buffer_load_dwordx2 {sv[th].r(2*i, 2)}, {vSt}, {R['ws']}, {(sSto, sSto2)[i >> 1]} offen offset:{(i & 1)*2048 + th*512} sc1", f"s{th}")
            yield

    def x1_loads(th):
        for i in range(7, -1, -1):
            if i & 1:
                g(f"s_xor_b32 {sXo}, {sX1l}, {(i >> 1) << 11 | th << 15}")
            g.vm(f"buffer_load_dwordx4 {nb[th].r(4*i, 4)}, {vL16}, {R['ws']}, {sXo} offen offset:{(i & 1)*1024} sc1", f"n{th}_{i}")
            yield

    def fold(r, t):
        for sw in ("32", "16"):
            g(f"v_mov_b32 {t}, {r}\ns_nop 1\nv_permlane{sw}_swap_b32 {r}, {t}")
            yield
            g(f"v_add_f32 {r}, {r}, {t}")
            yield

    def gate_calc():
        g.wait(vm="gl")
        g(f"v_add_f32 {gate[0]}, {gate[0]}, {gate[1]}")
        yield
        yield from fold(gate[0], gate[1])
        yield from round_bf16(gate[0])
        for t in (f"v_mul_f32 {gate[0]}, {fbits(-LOG2E)}, {gate[0]}", f"v_exp_f32 {gate[0]}, {gate[0]}\ns_nop 0", f"v_add_f32 {gate[0]}, 1.0, {gate[0]}",
                  f"v_rcp_f32 {gate[0]}, {gate[0]}\ns_nop 0"):
            g(t)
            yield
        yield from round_bf16(gate[0])
        g(f"v_sub_f32 {gate[1]}, 1.0, {gate[0]}")
        yield
        yield from round_bf16(gate[1])

    def xflag():
        g.wait(vm="xst")
        flag_set(F_X1)

    Bg.flush(Bg.find("dma", o.bg_u))
    Bg.cap = Bg.find("dma", o.cap2)

    def half2(par):
        tiles = TILES[par]
        ur = [lambda ti=ti, jb=jb, m=m: g.ds(f"ds_read_u16_d16_hi {uu[4*ti + m]}, {aU} offset:{m*UP + 128*jb}", f"U{ti}")
              for ti, jb in enumerate(tiles) for m in range(4)]
        g.wait(vm="cin")
        stamp("u_in")
        l0 = chain(st_loads(0), x1_loads(0))
        ev = {o.xflag_at: xflag, o.xpoll_at: px.issue, o.xcheck_at: lambda: px.check(free=par)}
        for i in range(4):
            ev[o.xcheck_at + 1 + 2*i] = lambda: next(l0)
        conv_all(par, ev, ur)
        if o.fine:
            stamp("cv_mfma")
        next(l0)
        g.pump = lambda: next(l0, None) if g.ta - g.clock < 30 else None
        for f in ur:
            f()
        g(f"v_add_u32 {vN0}, 4, {aN}")
        for ti, jb in enumerate(tiles):
            b = 6 * ti
            g(f"v_add_f32 {pp[b+4]}, {pp[b+4]}, {qq[b+3]}\nv_add_f32 {pp[b+5]}, {pp[b+5]}, {qq[b+4]}")
            g.ds(f"ds_write2st64_b32 {vN0}, {pp[b+4]}, {pp[b+5]} offset0:{jb} offset1:{jb + 9}", "Nw")
            g.ds(f"ds_write_b32 {vN0}, {qq[b+5]} offset:{(jb + 18)*256}", "Nw")
        for ti, jb in enumerate(tiles):
            b = 6 * ti
            g(f"v_add_f32 {pp[b+1]}, {pp[b+1]}, {qq[b]}\nv_add_f32 {pp[b+2]}, {pp[b+2]}, {qq[b+1]}\nv_add_f32 {pp[b+3]}, {pp[b+3]}, {qq[b+2]}")
        mark(5, "c_add")
        g.wait(lg="Nw")
        g("s_barrier")
        mark(5, "c_bar")
        for ti, jb in enumerate(tiles):
            g.ds(f"ds_read2st64_b32 {qq.r(6*ti,2)}, {aN} offset0:{jb} offset1:{jb + 9}", f"N{ti}")
            g.ds(f"ds_read_b32 {qq[6*ti+2]}, {aN} offset:{(jb + 18)*256}", f"N{ti}")
        for ti, jb in enumerate(tiles):
            for m in range(4):
                g(f"v_fmac_f32 {pp[6*ti+m]}, {vD}, {uu[4*ti + m]}")
        for ti, jb in enumerate(tiles):
            b = 6 * ti
            g.wait(lg=f"N{ti}")
            for m in range(3):
                g(f"v_add_f32 {pp[b+m]}, {pp[b+m]}, {qq[b+m]}")
            g(f"v_cvt_pk_bf16_f32 {pp[b]}, {pp[b]}, {pp[b+1]}\nv_cvt_pk_bf16_f32 {pp[b+1]}, {pp[b+2]}, {pp[b+3]}")
        mark(5, "c_cvt")
        g.pump = None
        run(l0)
        mark(5, "c_l0")
        for ti, jb in enumerate(tiles):
            g.vm(f"buffer_store_dwordx2 {pp.r(6*ti,2)}, {aY}, {R['ws']}, {sY} offen offset:{512*jb} sc1", "yst")
        return len(tiles)
    two_paths(half2)
    for r in (aA, aB, aN, aU, aY, vD, gs, vN0, sY, pp, qq, uu, cB, cB2):
        r.free()
    w4v = V.alloc(96, at=160)
    stamp("conv2")

    gk3 = [V.alloc(4), V.alloc(4)]
    vXw = V.alloc(1)
    g(f"s_lshl_b32 {sT[0]}, {sW}, 13\nv_add_u32 {vXw}, {sT[0]}, {vL16}")

    def norm(th, center):
        g.wait(vm=f"s{th}")
        r = sv[th]
        for d, s_ in ((0, 2), (1, 3), (4, 6), (5, 7), (0, 4), (1, 5)):
            g(f"v_add_f32 {r[d]}, {r[d]}, {r[s_]}")
            yield
        g(f"s_nop 1\nv_permlane32_swap_b32 {r[0]}, {r[1]}")
        yield
        g(f"v_add_f32 {r[0]}, {r[0]}, {r[1]}\nv_mov_b32 {r[1]}, {r[0]}")
        yield
        g(f"s_nop 1\nv_permlane32_swap_b32 {r[0]}, {r[1]}")
        yield
        yield from ln_mean(r[0], r[2])
        for i in range(7, -1, -1):
            g.wait(vm=f"n{th}_{i}")
            if th == 0 and i % 4 == 3:
                mark(3, f"n_{i}")
            yield from center([nb[th][4*i + q] for q in range(4)], r[2], tmp)
            g.ds(f"ds_write_b128 {vXw}, {nb[th].r(4*i, 4)} offset:{LA + th*32768 + i*1024}", f"xw{th}")
            yield

    def gate_loads():
        g(f"v_lshlrev_b32 {t0}, 11, {vKq}\nv_lshl_add_u32 {t0}, {vC}, 2, {t0}\ns_lshl_b32 {sT[0]}, {sW}, 8\ns_add_u32 {sT[0]}, {sT[0]}, {sSto}")
        for i in range(2):
            g.vm(f"buffer_load_dword {gate[i]}, {t0}, {R['ws']}, {sT[0]} offen offset:{128 + i*1024} sc1", "gl")
            yield
    l1 = chain(st_loads(1), x1_loads(1), gate_loads())
    cnt1 = [0]

    def pump1():
        if g.ta - g.clock < 0 and cnt1[0] < o.l1_early:
            cnt1[0] += 1
            next(l1, None)
    g.pump = pump1
    run(norm(0, center_dot))
    g.pump = None
    Bg.cap = Bg.idx
    g.wait(lg="xw0")
    g("s_barrier")
    stamp("xn0")
    accs = [nb[0], nb[1]]
    tf = V.alloc(16, at=136)
    hq = V.alloc(8, at=152)

    def h_store2(th):
        def fn(f):
            if f == 0 and th:
                g(f"s_add_u32 {sHst}, {sHst}, {112*1024}")
            g.vm(f"buffer_store_dwordx4 {hq.r(4*(f & 1),4)}, {vL16}, {R['ws']}, {sHst} offen offset:{f*1024} sc1", f"Hst{th}")
        return fn

    def g3_pass(th, fillers, over, hook=None):
        def tread(ks):
            g.ds(f"ds_read_b128 {tf.r(4*(ks & 3), 4)}, {vL16} offset:{LA + th*32768 + ks*1024}", f"t{ks}")
        for ks in range(3):
            tread(ks)
        for ks in range(32):
            if th == 0 and ks % 2 == 0:
                Bg.flush(Bg.find("rd", ks // 2))
                g.wait(lg=f"sr{ks//2}")
            g.wait(lg=f"t{ks}")
            for ft in range(2):
                c = accs[th].r(16*ft, 16)
                g(f"v_mfma_f32_32x32x16_bf16 {c}, {w3r.r(8*ks + 4*ft, 4)}, {tf.r(4*(ks & 3), 4)}, {c if ks else 0}")
                if ft == 1 and ks + 3 < 32:
                    tread(ks + 3)
                if ft == 0 and ks % 4 == 0 and ks:
                    mark(3, f"g{th}_k{ks}")
                if hook:
                    hook(2*ks + ft)
                fill(fillers, over, reserve=4 * ft)
        mark(3, f"g{th}_loop")
        drain(fillers)
        mark(3, f"g{th}_drain")

    def scale(th):
        yield from ln_std(sv[th][0], sv[th][1], gk3[th][2])
        yield from ln_scale(gk3[th])
    f0 = [scale(0)]

    def hook0(i):
        if i % 2 == 0 and next(l1, 1) is not None:
            Bg.cap = Bg.find("dma", o.cap_a)
        if i == o.norm1_at:
            f0.append(chain(norm(1, center_plain), scale(1)))
        if i == o.yflag_at:
            g.wait(vm="yst")
            flag_set(F_Y)
    g3_pass(0, f0, o.q3a, hook0)
    for r in (sXo, sX1l, vSt, sSto2):
        r.free()
    g.wait(lg="xw1")
    g("s_barrier")
    stamp("g3a")
    Bg.cap = Bg.find("dma", o.cap_b)
    vP16, vP7 = V.alloc(1), V.alloc(1)
    py = Poll(R["ws"], vP16, sFy, F_Y)

    def hook3(i):
        if i == 2:
            g(f"v_lshrrev_b32 {vP16}, 1, {vC}\nv_lshlrev_b32 {vP16}, 12, {vP16}\nv_and_b32 {vP7}, 1, v0\nv_lshl_add_u32 {vP16}, {vP7}, 8, {vP16}")
        if i == 3:
            g(f"v_min_u32 {vP7}, 6, v0\ns_lshl_b32 {sT[0]}, {sW}, 5\nv_lshl_add_u32 {vP7}, {vP7}, 2, {sT[0]}")
            py.issue()
        if i == 24:
            py.check()
            g(f"s_add_u32 {sT[0]}, {sTr}, {YBUF}\ns_add_u32 {sT[1]}, {sTr}, {YBUF + 32768 - 1024}\ns_lshl_b32 {sT[2]}, {sW}, 11\ns_add_u32 m0, {sT[2]}, {C_Y}")
        if i == 25:
            g.vm(f"buffer_load_dwordx4 {vT4k}, {R['ws']}, {sT[0]} offen sc1 lds", "y")
            g.vm(f"buffer_load_dwordx4 {vT4k}, {R['ws']}, {sT[1]} offen offset:1024 sc1 lds", "y")

    nd = [sum(1 for x in Bg.ops[Bg.idx:Bg.cap] if x[0] == "dma"), 0]

    def hook3h(i):
        hook3(i)
        if i not in (24, 25) and nd[1] < nd[0] * i // 58 and Bg.idx < Bg.cap:
            nd[1] += Bg.ops[Bg.idx][0] == "dma"
            Bg.step(True)
        if i == 24:
            Bg.saved_cap, Bg.cap = Bg.cap, 0
        if i == 25:
            Bg.cap = Bg.saved_cap
    g3_pass(1, [Ops(x) for x in gelu_plain(accs[0], 32, gk3[0], hq, tmp, h_store2(0))], o.q3b, hook3h)
    vP16.free()
    stamp("g3b")
    Bg.cap = Bg.find("dma", 29)
    Bg.flush(Bg.find("dma", 27))
    pa = Poll(R["ws"], vP7, None, F_HA, local=True)
    pb = Poll(R["ws"], vP7, None, F_HB, local=True)
    pump_on()
    st1 = h_store2(1)

    def done1(f):
        if f == o.haflag_at:
            g.wait(vm="Hst0")
            flag_set(F_HA)
        st1(f)
        if f == o.apoll_at:
            pa.issue()
        mark(3, f"H_f{f}")
    gelu_pk(accs[1], 32, gk3[1], hq, tmp, done1)
    stamp("H_st")
    tf.free(); vXw.free()
    for r in gk3:
        r.free()
    sv = V.alloc(16, at=136)
    g.wait(vm="y")
    g("s_barrier")

    g(f"v_lshl_add_u32 {t0}, {vKq}, 2, {vR4}\nv_lshlrev_b32 {t0}, 7, {t0}\nv_lshl_add_u32 {t0}, {vC8}, 2, {t0}\ns_lshl_b32 {sT[0]}, {sW}, 3\ns_add_u32 {sT[0]}, {sT[0]}, {C_Y}\nv_add_u32 {t0}, {sT[0]}, {t0}")
    for T in range(4):
        g.ds(f"ds_read_b64_tr_b16 {sv.r(8 + 2*T, 2)}, {t0} offset:{T*2048}", f"y{T}")
    run(gate_calc())
    g(f"s_lshl_b32 {sT[0]}, {sW}, 6\ns_add_u32 {sT[0]}, {sT[0]}, {C_OMG}\nv_lshl_add_u32 {t2}, {vC}, 2, {sT[0]}")
    g.ds(f"ds_write_b32 {t2}, {gate[1]}")
    g(f"v_xor_b32 {t0}, {vKq}, {vC}\nv_lshlrev_b32 {t0}, 4, {t0}\nv_lshl_add_u32 {t0}, {vC}, 8, {t0}\ns_lshl_b32 {sT[0]}, {sW}, 12\ns_add_u32 {sT[0]}, {sT[0]}, {C_BASE}\nv_add_u32 {t0}, {sT[0]}, {t0}")
    vHl = V.alloc(1)
    hb = Reg(A, 128, 128)
    sSt2 = S.alloc(1)

    def h_load(m):
        th, n = divmod(m, 28)
        if o.rot:
            if m == 28:
                g(f"v_add_u32 {vHl}, {112*1024}, {vHl}")
            so, off = sG4[n >> 1], (n & 1) * 1024
        else:
            if n % 4 == 0:
                g(f"s_mov_b32 {sSt2}, {th*112*1024 + n*1024}")
            so, off = sSt2, (n & 3) * 1024
        g.vm(f"buffer_load_dwordx4 {hb.r(4*(m & 31), 4)}, {vHl}, {R['ws']}, {so} offen offset:{off} sc1", f"H{m}")

    g(f"s_mul_i32 {sT[0]}, {sW}, {28*1024}\ns_add_u32 {sT[0]}, {sT[0]}, {sH2}\nv_add_u32 {vHl}, {sT[0]}, {vL16}")
    if o.fake & 4:
        g(f"v_mov_b32 {vHl}, {OOB}")
    Bg.flush(max(Bg.find("dma", 29), Bg.find("rd", o.rd_ha)))
    pump_off()
    pa.check()
    stamp("HA_flag")
    nxt = o.ahead
    hl = (h_load(m) for m in range(nxt))
    next(hl)
    g.pump = lambda: next(hl, None) if g.ta - g.clock < 30 else None
    bq = Reg(V, accs[1].base, 32)
    for T in range(4):
        g.wait(lg=f"y{T}")
        for i in range(2):
            for src, d in ((sv[8 + 2*T + i], 0), (qp[2*T + i], 4), (x1p[2*T + i], 8)):
                g(f"v_lshlrev_b32 {bq[d + 2*i]}, 16, {src}\nv_and_b32 {bq[d + 2*i + 1]}, {sMask}, {src}")
        for i in (0, 2):
            g(f"v_pk_mul_f32 {bq.r(i,2)}, {bq.r(i,2)}, {bq.r(4+i,2)}")
            g(f"v_pk_mul_f32 {bq.r(8+i,2)}, {bq.r(8+i,2)}, {gate} op_sel:[0,1] op_sel_hi:[1,1]")
        for i in (0, 2):
            g(f"v_pk_fma_f32 {bq.r(12 + 4*T + i, 2)}, {bq.r(i,2)}, {gate}, {bq.r(8+i,2)} op_sel_hi:[1,0,1]")
        g(f"v_xor_b32 {t2}, {64*T}, {t0}")
        g.ds(f"ds_write_b128 {t2}, {bq.r(12 + 4*T, 4)}", "bw")
    qp.free(); x1p.free(); hq.free()
    vPw, vPr, vOut, vOm = (V.alloc(1) for _ in range(4))
    stamp("base")
    class Fin:
        @staticmethod
        def r(i, n=1):
            return accs[0].r(i, n) if i < 32 else tmp.r(i - 32, n)

        def __getitem__(self, i):
            return self.r(i)
    fin = Fin()

    def partial_out(th):
        for ft in range(2):
            for q in range(4):
                g(f"v_xor_b32 {t2}, {128*ft + 32*q}, {vPw}")
                g.ds(f"ds_write_b128 {t2}, {accs[th].r(16*ft + 4*q, 4)} offset:{LA + th*32768}", f"pw{th}")
                yield

    def final(th, packed):
        g(f"v_xor_b32 {t0}, 16, {vPr}")
        for x, ad in enumerate((vPr, t0)):
            for w in range(4):
                g.ds(f"ds_read_b128 {fin.r(16*x + 4*w, 4)}, {ad} offset:{LA + th*32768 + w*8192}", f"f{x}")
                yield
        g(f"v_add_u32 {t2}, {C_BASE + th*8192}, {vPr}\nv_add_u32 {t3}, {C_BASE + th*8192}, {t0}")
        yield
        g.ds(f"ds_read_b128 {fin.r(32,4)}, {t2}", "fb")
        g.ds(f"ds_read_b128 {fin.r(36,4)}, {t3}", "fb")
        yield
        g(f"v_add_u32 {t2}, {C_OMG + th*128}, {vOm}")
        g.ds(f"ds_read_b32 {sv[0]}, {t2}", "fb")
        yield
        for x in range(2):
            g.wait(lg=f"f{x}")
            b = 16 * x
            for d, s in ((0, 4), (8, 12), (0, 8)):
                if packed:
                    for i in (0, 2):
                        g(f"v_pk_add_f32 {fin.r(b+d+i,2)}, {fin.r(b+d+i,2)}, {fin.r(b+s+i,2)}")
                else:
                    for i in range(4):
                        g(f"v_add_f32 {fin[b+d+i]}, {fin[b+d+i]}, {fin[b+s+i]}")
                        yield
        g.wait(lg="fb")
        for x in range(2):
            for i in range(4):
                g(f"v_fma_f32 {fin[16*x+i]}, {fin[16*x+i]}, {sv[0]}, {fin[32+4*x+i]}")
                yield
        for x in range(2):
            for i in range(2):
                g(f"v_cvt_pk_bf16_f32 {fin[4 + 2*x + i]}, {fin[16*x + 2*i]}, {fin[16*x + 2*i + 1]}")
                yield
        g(f"s_add_u32 {sT[0]}, {sPan}, {th*32768}")
        g.vm(f"buffer_store_dwordx4 {fin.r(4,4)}, {vOut}, {R['out']}, {sT[0]} offen {o.out_pol}", "out")
        yield

    def barrier_after(tag):
        g.wait(lg=tag)
        g("s_barrier")
        yield

    g(f"v_and_b32 {t0}, 31, v0\nv_lshrrev_b32 {t2}, 5, v0\nv_xor_b32 {t2}, {t2}, {vC}\nv_lshlrev_b32 {t2}, 4, {t2}\nv_lshl_add_u32 {t0}, {t0}, 8, {t2}")
    g(f"s_lshl_b32 {sT[0]}, {sW}, 13\nv_add_u32 {vPw}, {sT[0]}, {t0}")
    g(f"v_lshrrev_b32 {t0}, 3, v0\ns_lshl_b32 {sT[0]}, {sW}, 3\nv_add_u32 {t0}, {sT[0]}, {t0}")
    g(f"v_lshlrev_b32 {t3}, 4, {vS8}\nv_lshl_add_u32 {vOut}, {t0}, 10, {t3}")
    g(f"v_lshlrev_b32 {t2}, 1, {vS8}\nv_and_b32 {t3}, 15, {t0}\nv_xor_b32 {t2}, {t2}, {t3}\nv_lshlrev_b32 {t2}, 4, {t2}\nv_lshl_add_u32 {vPr}, {t0}, 8, {t2}")
    g(f"v_lshlrev_b32 {vOm}, 2, {t0}")
    Bg.cap = len(Bg.ops)
    g.held += 1
    while Bg.idx < Bg.find("rd", 27):
        Bg.step(True)
        g.pump()
    g.held -= 1
    g.pump = None
    run(hl)
    fillers = []
    for m in range(56):
        th, n = divmod(m, 28)
        if n % 2 == 0 and th == 0:
            Bg.flush(Bg.find("rd", 16 + n // 2))
            g.wait(lg=f"sr{16 + n//2}")
        if m == 28:
            stamp("g4_0")
            fillers = [partial_out(0)]
        if m == o.bar_at:
            drain(fillers)
            fillers = [barrier_after("pw0"), final(0, False)]
        if m == o.hbflag_at:
            g.wait(vm="Hst1")
            flag_set(F_HB)
        if m % 7 == 0:
            mark(3, f"m{m}")
        g.wait(vm=f"H{m}")
        for ft in range(2):
            c = accs[th].r(16*ft, 16)
            g(f"v_mfma_f32_32x32x16_bf16 {c}, {w4home(n, ft)}, {hb.r(4*(m & 31), 4)}, {c if n else 0}")
            if ft == 0:
                if m == o.bpoll_at:
                    pb.issue()
                if nxt == 28:
                    pb.check()
                if nxt < 56:
                    h_load(nxt)
                    nxt += 1
            if not (m == 28 and ft == 0):
                fill(fillers, 0, reserve=4 * ft)
    drain(fillers)
    stamp("g4_1")
    run(partial_out(1))
    run(barrier_after("pw1"))
    run(final(1, True))
    stamp("end")
    stamp("end_real", real=True)
    if o.stamps:
        g(f"s_lshl_b32 {sT[0]}, s2, 2\ns_add_u32 {sT[0]}, {sT[0]}, {sW}\ns_lshl_b32 {sT[0]}, {sT[0]}, 8\ns_add_u32 {sT[0]}, {sT[0]}, {STAMPS}")
        g(f"buffer_store_dword {vStamp}, {vL4}, {R['ws']}, {sT[0]} offen")
    if amp:
        g(f"s_cmp_lg_u32 s2, 77\ns_cbranch_scc1 L_end")
        g(f"s_sub_u32 {sAmp[2]}, {sAmp[2]}, {sAmp[0]}\ns_mul_i32 {sAmp[2]}, {sAmp[2]}, {amp[2]}\ns_min_u32 {sAmp[2]}, {sAmp[2]}, 100000")
        g(f"s_memrealtime {sAmp.r(0,2)}\ns_waitcnt lgkmcnt(0)")
        g(f"L_amp:\ns_memrealtime {sStamp}\ns_waitcnt lgkmcnt(0)\ns_sub_u32 {sStamp[0]}, {sStamp[0]}, {sAmp[0]}")
        g(f"s_cmp_lt_u32 {sStamp[0]}, {sAmp[2]}\ns_cbranch_scc1 L_amp")
    g("s_endpgm")
    for t in tail:
        g(t)
    g("L_end:\ns_endpgm")
    body = g.text(o.align)
    info = dict(nops=g.nops, vhigh=V.high, shigh=S.high, stamps=stamp_names, lines=len(g.lines), clock=g.clock, model=model, bgat=bgat)
    return file_text([(KNAME, 256, 256, LDS_BYTES)], [(KNAME, body, 512, 256, 102)]), info


REF = "gated_mix__ssm_conv_h3__mixer_s_mlp__prompt.s.ref"
HEADER = open(REF).read().split("; Override launch")[0] if os.path.exists(REF) else ""


def set_opts(args):
    for kv in args:
        k, v = kv.split("=")
        cur = getattr(Opt, k)
        setattr(Opt, k, type(cur)(int(v)) if isinstance(cur, (bool, int)) else v)


if __name__ == "__main__":
    out = sys.argv[1] if len(sys.argv) > 1 else "k.s"
    set_opts(sys.argv[2:])
    text, info = build(Opt)
    open(out, "w").write(HEADER + text)
    print(info)
```

```python
import copy
import os
import struct
import sys
from asmlib import ARG, NBYTES, KNAME, file_text
from kgen import Gen, Reg, merge_queues

F_H, F_U, F_X1, F_Y, F_HA, F_HB = 1, 2, 3, 4, 5, 6
LFLAG = 0x20000
STATS = 0x40000
HBUF, X1BUF, UBUF, YBUF, H2BUF = 0x100000, 0x300000, 0x500000, 0x700000, 0x900000
STAMPS = 0x2000000
OOB = 0x40000000

LA, LB, LC = 0, 65536, 131072
C_K, C_V, C_Q, C_CS = LC, LC + 9216, LC + 17920, LC + 26112
C_H, C_U = LC, LC + 8448
HP, UP = 4224, 1152
C_Y, C_BASE, C_OMG, C_STD = LC, LC + 8192, LC + 24576, LC + 26624
A_N = LC + 17920
NP = 6912
LDS_BYTES = 163840

GELU_C0 = -2.302208198144325
GELU_C1 = GELU_C0 * 0.044715
LOG2E = 1.4426950408889634

TILES = ([7, 6, 2], [5, 4, 3, 1, 0])


def fbits(x):
    return "0x%08x" % struct.unpack("<I", struct.pack("<f", x))[0]


class Opt:
    stamps = 0
    fine = 0
    amp = ""
    nt_once = ""
    out_pol = "sc1"
    code_pf = True
    code_bytes = 40960
    align = True
    nap = 0
    period = 85
    lat = 700
    thresh = 100
    thresh1 = 500
    fake = 0
    t3 = 3
    hpoll = 2
    idle = ""
    touch4 = 6
    rotj = 0
    tx1 = ""
    tx2 = ""
    tx34 = ""
    t3_at = 10
    cap0 = "x3"
    t3_first = "x0"
    touch1 = "x0"
    bg_u = 5
    rd_ha = 26
    touch = 3
    touch2 = "w1b"
    pre2 = True
    local = True
    dpoll_at = 16
    bg_a = 0
    bg_b = 1
    cap_p2 = 6
    l2pf = 0
    cap2 = 15
    upoll_at = 11
    ucheck_at = 16
    bdist = 6
    hflag_m = 8
    bar_at = 46
    yflag_at = 10
    rot = False
    xflag_at = 24
    xpoll_at = 104
    xcheck_at = 126
    norm1_at = 10
    cap_a = 23
    l1_early = 8
    cap_b = 27
    q3a = 0
    q3b = 0
    haflag_at = 1
    hbflag_at = -1
    apoll_at = 4
    bpoll_at = 10
    ahead = 9


def build(o=Opt):
    g = Gen()
    g.vm_cost, g.vm_lat, g.vm_win = o.period, o.lat, 8 * o.period
    V, A, S = g.V, g.A, g.S
    names = ["q", "ws", "w1", "w2", "dbg", "k", "v", "shift_k", "ssm_D", "gate_w", "w3", "w4", "ssm_k", "out"]
    R = {n: S.alloc(4, align=4) for n in names}
    sW, sJ, sP, sPP, sX = (S.alloc(1) for _ in range(5))
    sT = S.alloc(4, align=2)
    sOnes, sLo1, sHi1, sMask, sTmo = (S.alloc(1) for _ in range(5))
    sStamp = S.alloc(2, align=2) if (o.stamps or o.amp) else None
    vStamp = V.alloc(1)
    stamp_names = []
    amp = o.amp.split(",") if o.amp else None
    sAmp = S.alloc(4, align=2) if amp else None
    tail = []

    model, bgat = {}, {}

    def stamp(name, real=False):
        model[name] = g.clock
        bgat[name] = "%s%s" % Bg.ops[Bg.idx][:2] if Bg.idx < len(Bg.ops) else "end"
        with g.hold():
            if amp and name in amp[:2]:
                g(f"s_memrealtime {sAmp.r(2*amp.index(name), 2)}")
                g.smem = True
                g.wait(lg="*")
            if o.stamps in (1, 3) or (o.stamps == 2 and real):
                g(f"s_mem{'real' if real or o.stamps == 3 else ''}time {sStamp}")
                g.smem = True
                g.wait(lg="*")
                if name not in stamp_names:
                    stamp_names.append(name)
                g(f"v_writelane_b32 {vStamp}, {sStamp[0]}, {stamp_names.index(name)}")

    def idle(name):
        if name in o.idle.split(":"):
            g("s_sleep 16")

    def mark(level, name):
        if o.fine == level:
            stamp(name)

    def flag_set(val):
        with g.hold():
            g(f"s_mov_b64 exec, 1\nv_mov_b32 {vOne}, {val}")
            if o.local and val not in (F_U, F_Y):
                g.vm(f"buffer_store_dword {vOne}, off, {R['ws']}, {sLf}", "flag")
            g.vm(f"buffer_store_dword {vOne}, off, {R['ws']}, {sFl} sc1", "flag")
            g("s_mov_b64 exec, -1")

    class Poll:
        def __init__(self, srd, vaddr, soff, need, local=False):
            self.t = V.alloc(1)
            self.tag = g.label("poll")
            self.cmp = f"v_cmp_gt_u32 vcc, {need}, {self.t}"
            self.ld = f"buffer_load_dword {self.t}, {vaddr}, {srd}, {soff} offen sc1"
            self.first = self.ld
            self.pre = ""
            if local:
                self.ld = f"v_lshlrev_b32 {self.t}, 5, {vaddr}\nbuffer_load_dword {self.t}, {self.t}, {srd}, {sFp} offen sc1"
                self.first = self.ld
                if o.local:
                    self.first = f"buffer_load_dword {self.t}, {vaddr}, {srd}, {sLp} offen sc1"
                    self.pre = self.first

        def issue(self):
            with g.hold():
                g.vm(self.first, self.tag)

        def check(self, free=True, then=None):
            n = g.label("chk")
            with g.hold():
                g.wait(vm=self.tag)
                if then:
                    then()
                g(f"{self.cmp}\ns_cbranch_vccnz {n}_slow\n{n}_ok:")
                if o.stamps == 4:
                    if self.tag not in stamp_names:
                        stamp_names.append(self.tag)
                    g(f"v_writelane_b32 {vStamp}, {sTmo}, {stamp_names.index(self.tag)}")
            nap = f"s_sleep {o.nap}\n" if o.nap else ""
            for _ in range(3 if self.pre else 0):
                nap += (f"s_sub_u32 {sTmo}, {sTmo}, 1\n" if o.stamps == 4 else "") + f"{self.pre}\ns_waitcnt vmcnt(0)\n{self.cmp}\ns_cbranch_vccz {n}_ok\n"
            tail.append(f"{n}_slow:\ns_sub_u32 {sTmo}, {sTmo}, 1\ns_cbranch_scc1 {n}_out\n{nap}{self.ld}\ns_waitcnt vmcnt(0)\n"
                        f"{self.cmp}\ns_cbranch_vccnz {n}_slow\ns_branch {n}_ok\n"
                        f"{n}_out:\ns_mov_b32 {sTmo}, 0\ns_branch {n}_ok")
            if free:
                self.t.free()

    def round_bf16(r):
        g(f"v_cvt_pk_bf16_f32 {r}, {r}, {r}")
        yield
        g(f"v_and_b32 {r}, {sMask}, {r}")
        yield

    def ln_mean(s1, negmu):
        g(f"v_mul_f32 {negmu}, {fbits(-1.0/512)}, {s1}")
        yield
        yield from round_bf16(negmu)

    def ln_std(s1, s2, std):
        for t in (f"v_mul_f32 {s1}, {fbits(1.0/512)}, {s1}", f"v_mul_f32 {s2}, {fbits(1.0/512)}, {s2}",
                  f"v_fma_f32 {s2}, -{s1}, {s1}, {s2}", f"v_max_f32 {s2}, 0, {s2}"):
            g(t)
            yield
        yield from round_bf16(s2)
        g(f"v_add_f32 {s2}, {fbits(1e-5)}, {s2}")
        yield
        yield from round_bf16(s2)
        g(f"v_sqrt_f32 {std}, {s2}\ns_nop 0")
        yield
        yield from round_bf16(std)

    def ln_scale(gk):
        g(f"v_rcp_f32 {gk[3]}, {gk[2]}\ns_nop 0")
        yield
        for t in (f"v_mul_f32 {gk[1]}, {fbits(GELU_C0)}, {gk[3]}", f"v_mul_f32 {gk[0]}, {gk[3]}, {gk[3]}",
                  f"v_mul_f32 {gk[0]}, {gk[0]}, {gk[3]}", f"v_mul_f32 {gk[0]}, {fbits(GELU_C1)}, {gk[0]}"):
            g(t)
            yield

    def ln_stats(s1, s2, negmu, gk):
        for t in (f"v_mul_f32 {negmu}, {fbits(-1.0/512)}, {s1}", f"v_mul_f32 {s2}, {fbits(1.0/512)}, {s2}",
                  f"v_fma_f32 {s2}, -{negmu}, {negmu}, {s2}", f"v_max_f32 {s2}, 0, {s2}"):
            g(t)
            yield
        yield from round_bf16(s2)
        g(f"v_add_f32 {s2}, {fbits(1e-5)}, {s2}")
        yield
        yield from round_bf16(s2)
        g(f"v_sqrt_f32 {gk[2]}, {s2}")
        yield
        yield from round_bf16(negmu)
        yield from round_bf16(gk[2])
        g(f"v_rcp_f32 {s2}, {gk[2]}\ns_nop 0")
        yield
        for t in (f"v_mul_f32 {gk[1]}, {fbits(GELU_C0)}, {s2}", f"v_mul_f32 {gk[0]}, {s2}, {s2}",
                  f"v_mul_f32 {gk[0]}, {gk[0]}, {s2}", f"v_mul_f32 {gk[0]}, {fbits(GELU_C1)}, {gk[0]}"):
            g(t)
            yield

    def center_dot(regs, negmu, tmp):
        for b in range(0, len(regs), 4):
            for i in range(4):
                g(f"v_dot2_f32_bf16 {tmp[2*i]}, {regs[b+i]}, {sLo1}, {negmu}")
                g(f"v_dot2_f32_bf16 {tmp[2*i+1]}, {regs[b+i]}, {sHi1}, {negmu}")
            for i in range(4):
                g(f"v_cvt_pk_bf16_f32 {regs[b+i]}, {tmp[2*i]}, {tmp[2*i+1]}")
            yield

    def center_plain(regs, negmu, tmp):
        for i, r in enumerate(regs):
            a, b = tmp[2*(i & 1)], tmp[2*(i & 1) + 1]
            for t in (f"v_lshlrev_b32 {a}, 16, {r}", f"v_and_b32 {b}, {sMask}, {r}", f"v_add_f32 {a}, {a}, {negmu}",
                      f"v_add_f32 {b}, {b}, {negmu}", f"v_cvt_pk_bf16_f32 {r}, {a}, {b}"):
                g(t)
                yield

    def gelu_pk(acc, n, gk, out, tmp, done=None):
        kk, ss = gk.r(0, 2), gk.r(2, 2)
        for b in range(0, n, 8):
            P = range(0, 8, 2)
            for i in P:
                g(f"v_pk_mul_f32 {tmp.r(i,2)}, {acc.r(b+i,2)}, {acc.r(b+i,2)}")
            for i in P:
                g(f"v_pk_fma_f32 {tmp.r(i,2)}, {tmp.r(i,2)}, {kk}, {kk} op_sel:[0,0,1] op_sel_hi:[1,0,1]")
            for i in P:
                g(f"v_pk_mul_f32 {tmp.r(i,2)}, {tmp.r(i,2)}, {acc.r(b+i,2)}")
            for i in range(8):
                g(f"v_exp_f32 {tmp[i]}, {tmp[i]}")
            for i in P:
                g(f"v_pk_fma_f32 {tmp.r(i,2)}, {tmp.r(i,2)}, {ss}, {ss} op_sel_hi:[1,0,0]")
            for i in range(8):
                g(f"v_rcp_f32 {tmp[i]}, {tmp[i]}")
            for i in P:
                g(f"v_pk_mul_f32 {tmp.r(i,2)}, {tmp.r(i,2)}, {acc.r(b+i,2)}")
            for i in P:
                g(f"v_cvt_pk_bf16_f32 {out[(b+i)//2 % out.n]}, {tmp[i]}, {tmp[i+1]}")
            if done:
                done(b // 8)

    def gelu_plain(acc, n, gk, out, tmp, done):
        streams = [[], []]
        left = {}
        for b in range(0, n, 4):
            h = (b // 4) & 1
            T = [tmp[4*h + i] for i in range(4)]
            Q = range(4)
            ops = [f"v_mul_f32 {T[i]}, {acc[b+i]}, {acc[b+i]}" for i in Q]
            ops += [f"v_fma_f32 {T[i]}, {T[i]}, {gk[0]}, {gk[1]}" for i in Q]
            ops += [f"v_mul_f32 {T[i]}, {T[i]}, {acc[b+i]}" for i in Q]
            ops += [f"v_exp_f32 {T[i]}, {T[i]}" for i in Q]
            ops += [f"v_fma_f32 {T[i]}, {T[i]}, {gk[2]}, {gk[2]}" for i in Q]
            ops += [f"v_rcp_f32 {T[i]}, {T[i]}" for i in Q]
            ops += [f"v_mul_f32 {T[i]}, {T[i]}, {acc[b+i]}" for i in Q]
            f = b // 8
            left[f] = 2

            def guard(f=f):
                assert left.get(f - 2, 0) == 0
            ops += [(0, guard)] + [f"v_cvt_pk_bf16_f32 {out[(b+i)//2 % out.n]}, {T[i]}, {T[i+1]}" for i in (0, 2)]

            def fin(f=f):
                left[f] -= 1
                if left[f] == 0:
                    done(f)
            streams[h] += ops + [(4, fin)]
        streams[1] = [(0, lambda: None)] * 12 + streams[1]
        return streams

    def run(it):
        for _ in it:
            pass

    def chain(*its):
        for it in its:
            yield from it

    class Bg:
        ops, idx, cap = [], 0, 0
        dma_on = True
        last, gap = 0, 0
        thresh = o.thresh

        @classmethod
        def ready(cls, force=False):
            if cls.idx >= min(cls.cap, len(cls.ops)):
                return False
            kind, key, _ = cls.ops[cls.idx]
            if force:
                return True
            if kind == "dma":
                return cls.dma_on and g.backlog() < cls.thresh and g.ta - g.clock < 30 and g.clock >= cls.last + cls.gap
            if kind == "rd0":
                return g.clock >= g.vmt[f"sd{key}"]
            return True

        @classmethod
        def step(cls, force=False):
            if not cls.ready(force):
                return False
            kind, key, fn = cls.ops[cls.idx]
            cls.idx += 1
            with g.hold():
                fn()
            if kind == "dma":
                cls.last = g.clock
            return True

        @classmethod
        def find(cls, kind, key):
            return max(i for i, (k, y, _) in enumerate(cls.ops) if y == key and k.startswith(kind)) + 1

        @classmethod
        def flush(cls, idx):
            cap, cls.cap = cls.cap, max(cls.cap, idx)
            while cls.idx < idx:
                cls.step(True)
            cls.cap = cap

        @classmethod
        def burst(cls, n):
            while n > 0 and cls.idx < min(cls.cap, len(cls.ops)):
                kind = cls.ops[cls.idx][0]
                if kind == "rd0" and not cls.ready():
                    break
                cls.step(True)
                n -= kind == "dma"

    def pump_on():
        g.pump = Bg.step

    def pump_off():
        g.pump = None

    class Ops:
        def __init__(self, items):
            self.items = list(items)

        def cost(self):
            it = self.items[0]
            return it[0] if isinstance(it, tuple) else 8 if it.startswith(("v_exp", "v_rcp", "v_sqrt")) else 4

        def emit(self):
            it = self.items.pop(0)
            it[1]() if isinstance(it, tuple) else g(it)

        def drain(self):
            while self.items:
                self.emit()

    def fill(fillers, over=0, reserve=0):
        while True:
            room = g.slack() - reserve + over
            if room >= 4 and Bg.step():
                continue
            live = [f for f in fillers if (f.items if isinstance(f, Ops) else True)]
            fillers[:] = live
            pick = None
            for f in live:
                if not isinstance(f, Ops):
                    pick = f if room >= 4 else None
                    break
                if f.cost() <= room and (pick is None or len(f.items) > len(pick.items)):
                    pick = f
            if pick is None:
                return
            if isinstance(pick, Ops):
                pick.emit()
            elif next(pick, 1) is not None:
                fillers.remove(pick)

    def drain(fillers):
        while fillers:
            f = fillers[0]
            if isinstance(f, Ops):
                others = [x for x in fillers if isinstance(x, Ops) and x.items]
                while others:
                    for x in others:
                        x.emit()
                    others = [x for x in others if x.items]
                fillers[:] = [x for x in fillers if not isinstance(x, Ops)]
            else:
                run(f)
                fillers.pop(0)

    g("s_cmp_ge_u32 s2, 256\ns_cbranch_scc1 L_end")
    if amp and amp[0] == "entry":
        g(f"s_memrealtime {sAmp.r(0,2)}")
    for n in names:
        g(f"s_load_dwordx2 {R[n].r(0,2)}, s[0:1], {ARG[n]}")
    g.smem = True
    vOne, vL16, vL4, vDum = (V.alloc(1) for _ in range(4))
    t0, t2, t3 = (V.alloc(1) for _ in range(3))
    if o.code_pf:
        pc = V.alloc(2)
        per = o.code_bytes // 32
        assert per <= 2048
        g(f"s_getpc_b64 {sT.r(0,2)}")
        g(f"s_lshr_b32 {sT[2]}, s2, 3\ns_mul_i32 {sT[2]}, {sT[2]}, {per}")
        g(f"v_lshl_add_u32 {t0}, v0, 3, {sT[2]}")
        g(f"v_min_u32 {t0}, L_end-L_pc, {t0}")
        g("L_pc:")
        g(f"v_mov_b32 {pc[1]}, {sT[1]}")
        g(f"v_add_co_u32 {pc[0]}, vcc, {sT[0]}, {t0}")
        g(f"s_nop 1\nv_addc_co_u32 {pc[1]}, vcc, 0, {pc[1]}, vcc")
        g.vm(f"global_load_dword {vDum}, {pc}, off", "pf")
        pc.free()
    g(f"v_lshrrev_b32 {t0}, 6, v0\nv_and_b32 v0, 63, v0\nv_readfirstlane_b32 {sW}, {t0}")
    g(f"s_and_b32 {sX}, s2, 7\ns_lshr_b32 {sT[0]}, s2, 3\ns_and_b32 {sJ}, {sT[0]}, 7\ns_lshr_b32 {sPP}, {sT[0]}, 3")
    g(f"s_lshl_b32 {sP}, {sX}, 2\ns_add_u32 {sP}, {sP}, {sPP}")

    def srd_words(ns):
        for n in ns:
            g(f"s_mov_b32 {R[n][2]}, {NBYTES[n]}\ns_mov_b32 {R[n][3]}, 0x00020000")
    srd_words(names[:4])
    vC, vKq, vR8, vS8 = (V.alloc(1) for _ in range(4))
    g(f"v_and_b32 {vC}, 15, v0\nv_lshrrev_b32 {vKq}, 4, v0\nv_lshrrev_b32 {vR8}, 3, v0\nv_lshlrev_b32 {vR8}, 10, {vR8}\nv_and_b32 {vS8}, 7, v0")
    sLdsW, sCol, sPan, sKV, sKV2, sC2 = (S.alloc(1) for _ in range(6))
    g(f"s_lshl_b32 {sLdsW}, {sW}, 14\ns_lshl_b32 {sCol}, {sJ}, 7\ns_lshl_b32 {sPan}, {sP}, 16\ns_add_u32 {sPan}, {sPan}, {sCol}")
    g(f"s_add_u32 {sKV}, {sLdsW}, {sPan}\ns_lshl_b32 {sC2}, {sW}, 11\ns_add_u32 {sKV2}, {sKV}, 7168")
    if o.stamps:
        g(f"v_mov_b32 {vStamp}, 0")
    g(f"s_lshr_b32 {sT[0]}, {sJ}, 2\ns_add_u32 {sT[0]}, {sT[0]}, 1\ns_sub_u32 {sT[1]}, 0, {sT[0]}")
    g(f"s_bitcmp1_b32 {sJ}, 1\ns_cselect_b32 {sT[0]}, {sT[0]}, {sT[1]}\ns_lshl_b32 {sT[0]}, {sT[0]}, 10")
    g(f"s_sub_u32 {sT[1]}, {sKV}, {sCol}\ns_add_u32 {sT[0]}, {sT[0]}, {sT[1]}")
    vQa, xd = V.alloc(2), V.alloc(2)
    g(f"v_xor_b32 {t0}, {vS8}, {vKq}\nv_lshl_add_u32 {vQa[0]}, {t0}, 4, {vR8}\nv_xor_b32 {vQa[1]}, 64, {vQa[0]}\nv_add_u32 {vQa[1]}, 7168, {vQa[1]}")
    g(f"v_add_u32 {xd[0]}, {sT[0]}, {vQa[0]}\nv_add_u32 {xd[1]}, {sT[0]}, {vQa[1]}")
    g.wait(lg="*")
    stamp("start_real", real=True)
    stamp("start")
    sM, sOff, sWo = S.alloc(1), S.alloc(1), S.alloc(1)
    wd = V.alloc(4, at=152)

    def x_dma(n, hh):
        if g.m0 != ("x", n):
            g(f"s_add_u32 m0, {sLdsW}, {LA + n*2048}\ns_xor_b32 {sWo}, {sCol}, {n << 7}")
            g.m0 = ("x", n)
        g.vm(f"buffer_load_dwordx4 {xd[hh]}, {R['q']}, {sWo} offen offset:{hh*1024} lds", f"x{n}")

    def w_dma(name, base, n, i):
        key = (name, n)
        sh = 2 if name == "w1" else 0
        if g.m0 != key:
            g(f"s_xor_b32 m0, {sM}, {base + (n << (12 + sh))}\ns_xor_b32 {sWo}, {sOff}, {n << (15 + sh)}")
            g.m0 = key
        g.vm(f"buffer_load_dwordx4 {wd[i]}, {R[name]}, {sWo} offen offset:{i*1024} lds", name + ("ab"[n >> 1] if sh else ""))

    for n in range(8):
        for hh in range(2):
            Bg.ops.append(("dma", f"x{n}", lambda n=n, hh=hh: x_dma(n, hh)))
    for n in range(4):
        for i in range(4):
            Bg.ops.append(("dma", "w1" + "ab"[n >> 1], lambda n=n, i=i: w_dma("w1", LB, n, i)))
    g.vm_lat = 1500

    def touch(n, bufs, sWo=sWo):
        g(f"s_lshl_b32 {sWo}, s2, 2\ns_add_u32 {sWo}, {sWo}, {sW}\ns_mul_i32 {sWo}, {sWo}, {n*128}\nv_min_u32 {vOne}, {n-1}, v0\nv_lshlrev_b32 {vOne}, 7, {vOne}")
        for b in bufs:
            g.vm(f"buffer_load_dword {vDum}, {vOne}, {R[b]}, {sWo} offen", "pf")
        g.m0 = None

    def touch3(n, bufs, sreg):
        g(f"s_lshr_b32 {sreg}, s2, 3\ns_lshl_b32 {sreg}, {sreg}, 2\ns_add_u32 {sreg}, {sreg}, {sW}\ns_mul_i32 {sreg}, {sreg}, {n*1024}")
        g(f"v_min_u32 {vOne}, {n-1}, v0\nv_lshlrev_b32 {vOne}, 10, {vOne}")
        for b in bufs:
            g.vm(f"buffer_load_dword {vDum}, {vOne}, {R[b]}, {sreg} offen offset:384", "pf")
        g.m0 = None
    if o.touch & 1:
        at = Bg.find("dma", o.touch1)
        Bg.ops[at:at] = [("dma", "tch0", lambda: touch(4, ("w1", "w2")))]

    def touchx(buf, n, part, sreg):
        g(f"s_lshr_b32 {sreg}, s2, 3\ns_lshl_b32 {sreg}, {sreg}, 2\ns_add_u32 {sreg}, {sreg}, {sW}\ns_mul_i32 {sreg}, {sreg}, {n*128}")
        if part:
            g(f"s_add_u32 {sreg}, {sreg}, {part*n*128*128}")
        g(f"v_min_u32 {vOne}, {n-1}, v0\nv_lshlrev_b32 {vOne}, 7, {vOne}")
        g.vm(f"buffer_load_dword {vDum}, {vOne}, {R[buf]}, {sreg} offen", "pf")
        g.m0 = None
    if o.tx1:
        at = Bg.find("dma", o.tx1) if o.tx1 != "0" else 0
        Bg.ops[at:at] = [("dma", "tx1", lambda: touchx("w1", 32, 0, sWo))]
    if o.tx2:
        at = Bg.find("dma", o.tx2)
        Bg.ops[at:at] = [("dma", "tx2", lambda: touchx("w2", 32, 0, sWo))]
    if o.t3 & 1:
        at = Bg.find("dma", o.t3_first)
        Bg.ops[at:at] = [("dma", "tch1", lambda: touch3(4, ("w1", "w2"), sWo))]
    Bg.flush(1)
    g.vm_lat = o.lat
    Bg.flush(Bg.find("dma", "x1"))
    sFp, sFl, sLp, sLf, sLead = (S.alloc(1) for _ in range(5))
    vP32 = V.alloc(1)
    z = V.alloc(4, at=160)
    g(f"v_and_b32 {vP32}, 31, v0\nv_lshlrev_b32 {vP32}, 2, {vP32}\ns_lshl_b32 {sFp}, {sP}, 12\nv_lshlrev_b32 {vL16}, 4, v0")
    g(f"v_mov_b32 {z[0]}, 0\nv_mov_b32 {z[1]}, 0\nv_mov_b32 {z[2]}, 0\nv_mov_b32 {z[3]}, 0\nv_lshlrev_b32 {t0}, 4, {vS8}")
    g(f"s_lshl_b32 {sLp}, {sP}, 7\ns_add_u32 {sLp}, {sLp}, {LFLAG}")
    g(f"s_lshl_b32 {sT[0]}, {sJ}, 2\ns_add_u32 {sT[0]}, {sT[0]}, {sW}\ns_lshl_b32 {sFl}, {sT[0]}, 7\ns_add_u32 {sFl}, {sFl}, {sFp}")
    g(f"s_lshl_b32 {sLf}, {sT[0]}, 2\ns_add_u32 {sLf}, {sLf}, {sLp}")
    g(f"s_lshl_b32 {sT[1]}, {sP}, 2\ns_cmp_eq_u32 {sT[0]}, 0\ns_cselect_b32 {sLead}, {sT[1]}, {OOB}\ns_cselect_b32 {sT[2]}, {sLp}, {OOB}")
    g(f"s_lshl_b32 {sT[1]}, {sW}, 10\ns_add_u32 {sT[1]}, {sT[1]}, {sFp}\ns_cmp_eq_u32 {sJ}, 0\ns_cselect_b32 {sT[3]}, {sT[1]}, {OOB}")
    g.vm(f"buffer_store_dwordx4 {z}, {vL16}, {R['ws']}, {sT[3]} offen sc1", "clr", cost=30)
    g.vm(f"buffer_store_dwordx4 {z}, {t0}, {R['ws']}, {sT[2]} offen sc1", "clr", cost=30)
    z.free()
    Bg.cap = Bg.find("dma", o.cap0)
    Bg.thresh = o.thresh1
    pump_on()
    srd_words(names[4:])
    g(f"v_and_b32 {t0}, 1, {vKq}\nv_lshlrev_b32 {t0}, 1, {t0}\nv_xor_b32 {t0}, {t0}, {vS8}\nv_lshl_add_u32 {wd[0]}, {t0}, 4, {vR8}")
    g(f"v_xor_b32 {t0}, 64, {wd[0]}\nv_add_u32 {wd[1]}, 7168, {t0}\nv_add_u32 {wd[2]}, 14336, {wd[0]}\nv_add_u32 {wd[3]}, 21504, {t0}")
    g(f"s_and_b32 {sT[0]}, {sPP}, 1\ns_lshl_b32 {sT[0]}, {sT[0]}, 2\ns_add_u32 {sT[0]}, {sT[0]}, {sW}\ns_lshl_b32 {sM}, {sT[0]}, 12")
    g(f"s_lshl_b32 {sT[1]}, {sJ}, 1\ns_xor_b32 {sT[0]}, {sT[0]}, {sT[1]}\ns_lshl_b32 {sOff}, {sT[0]}, 15\ns_add_u32 {sOff}, {sOff}, {sCol}")
    vW2, vV, vK0, vSk = V.alloc(1), V.alloc(2), V.alloc(1), V.alloc(1)
    sK0, sSk = S.alloc(1), S.alloc(1)
    g(f"v_lshlrev_b32 {t0}, 1, {vKq}\nv_xor_b32 {t0}, {t0}, {vS8}\nv_lshl_add_u32 {vW2}, {t0}, 4, {vR8}")
    g(f"v_lshrrev_b32 {t2}, 5, v0\nv_lshlrev_b32 {t2}, 1, {t2}\nv_xor_b32 {t2}, {t2}, {vS8}\nv_lshl_add_u32 {vV[0]}, {t2}, 4, {vR8}\nv_xor_b32 {vV[1]}, 64, {vV[0]}")
    g(f"s_sub_u32 {sT[0]}, {sPan}, 8192\ns_add_u32 {sT[1]}, {sC2}, {C_Q}\ns_cmp_eq_u32 {sW}, 0\n"
      f"s_cselect_b32 {sT[0]}, {sT[0]}, {OOB}\ns_cselect_b32 {sK0}, {C_K}, {sT[1]}\nv_add_u32 {vK0}, {sT[0]}, {vW2}")
    g(f"v_lshlrev_b32 {vSk}, 3, {vC}\ns_lshl_b32 {sT[2]}, {sJ}, 9\ns_lshl_b32 {sT[3]}, {sW}, 7\ns_add_u32 {sSk}, {sT[2]}, {sT[3]}")
    vR8.free()
    g(f"s_mov_b32 {sOnes}, 0x3f803f80\ns_mov_b32 {sLo1}, 0x00003f80\ns_mov_b32 {sHi1}, 0x3f800000")
    g(f"s_mov_b32 {sMask}, 0xffff0000\ns_mov_b32 {sTmo}, 0x40000")
    g(f"v_lshlrev_b32 {vL4}, 2, v0")

    vR4, vC8 = V.alloc(1), V.alloc(1)
    g(f"v_bfe_u32 {vR4}, v0, 2, 2\nv_and_b32 {vC8}, 3, v0\nv_lshlrev_b32 {vC8}, 3, {vC8}")
    ka = V.alloc(3)
    for m in range(2):
        g(f"v_sub_u32 {t0}, {vKq}, {vR4}\nv_add_u32 {t0}, {8 + 4*m}, {t0}\nv_bfe_u32 {t2}, {t0}, 1, 2\nv_xor_b32 {t2}, {sW}, {t2}")
        g(f"v_lshl_add_u32 {t2}, {t2}, 5, {vC8}\nv_lshl_add_u32 {t2}, {t0}, 7, {t2}\nv_add_u32 {ka[m]}, {C_K}, {t2}")
    g(f"v_lshl_add_u32 {t0}, {vR4}, 2, {vKq}\nv_xor_b32 {t2}, {sW}, {vR4}\nv_lshl_add_u32 {t2}, {t2}, 5, {vC8}")
    g(f"v_lshl_add_u32 {t2}, {t0}, 7, {t2}\nv_add_u32 {ka[2]}, {C_V}, {t2}")
    sQ = S.alloc(1)
    ua = V.alloc(2)
    g(f"s_add_u32 {sQ}, {sC2}, {C_Q}")
    g(f"v_and_b32 {t0}, 7, {vC}\nv_lshlrev_b32 {t2}, 1, {vKq}\nv_xor_b32 {t0}, {t0}, {t2}\nv_lshlrev_b32 {t0}, 4, {t0}")
    g(f"v_lshl_add_u32 {t0}, {vC}, 7, {t0}\nv_add_u32 {ua[0]}, {sQ}, {t0}")
    g(f"v_lshrrev_b32 {t0}, 3, v0\nv_xor_b32 {t2}, {t0}, {vS8}\nv_lshlrev_b32 {t2}, 4, {t2}")
    g(f"v_lshl_add_u32 {t2}, {t0}, 7, {t2}\nv_add_u32 {ua[1]}, {sQ}, {t2}")
    vT4k = V.alloc(1)
    g(f"v_lshlrev_b32 {t3}, 4, {vS8}\nv_lshl_add_u32 {vT4k}, {t0}, 12, {t3}")
    xa = V.alloc(2)
    g(f"v_lshrrev_b32 {t0}, 1, {vC}\nv_xor_b32 {t0}, {t0}, {vKq}\nv_lshlrev_b32 {t0}, 4, {t0}\nv_lshl_add_u32 {t0}, {vC}, 7, {t0}")
    g(f"v_add_u32 {xa[0]}, {sLdsW}, {t0}\nv_xor_b32 {xa[1]}, 64, {xa[0]}")
    wa = V.alloc(8, at=144)
    g(f"v_lshl_add_u32 {t0}, {vKq}, 3, {vR4}\nv_lshl_add_u32 {t0}, {t0}, 7, {vC8}")
    g(f"v_lshrrev_b32 {t2}, 1, {vR4}\nv_and_b32 {t3}, 1, {vKq}\nv_lshl_or_b32 {t2}, {t3}, 1, {t2}")
    g(f"v_xor_b32 {t2}, {sW}, {t2}\nv_lshl_add_u32 {t0}, {t2}, 5, {t0}\nv_add_u32 {wa[0]}, {LB}, {t0}")
    for T in range(1, 4):
        g(f"v_xor_b32 {wa[T]}, {32*T}, {wa[0]}")
    sCh, sHo = S.alloc(1), S.alloc(1)
    sHs = S.alloc(2)
    g(f"s_lshr_b32 {sT[2]}, {sW}, 1\ns_and_b32 {sT[3]}, {sW}, 1")
    g(f"s_lshl_b32 {sCh}, {sJ}, 5\ns_add_u32 {sCh}, {sCh}, {sP}\ns_lshl_b32 {sCh}, {sCh}, 1\ns_add_u32 {sCh}, {sCh}, {sT[2]}")
    g(f"s_sub_u32 {sHo}, {sKV}, {sCol}\ns_lshl_b32 {sT[0]}, {sJ}, 11\ns_add_u32 {sHo}, {sHo}, {sT[0]}\ns_add_u32 {sHo}, {sHo}, {HBUF}")
    g(f"s_lshl_b32 {sT[0]}, {sT[2]}, 10\ns_add_u32 {sHs[0]}, {sHo}, {sT[0]}\ns_xor_b32 {sHs[1]}, {sHs[0]}, 1024")
    sL, sW3, sRot3, sIdle, sRing, sSt = (S.alloc(1) for _ in range(6))
    g(f"s_lshr_b32 {sT[0]}, {sJ}, 1\ns_mul_i32 {sL}, {sT[0]}, 7\ns_and_b32 {sT[1]}, {sJ}, 1\ns_lshl_b32 {sT[2]}, {sT[1]}, 2")
    g(f"s_add_u32 {sT[2]}, {sT[2]}, {sW}\ns_add_u32 {sL}, {sL}, {sT[2]}")
    g(f"s_cmp_eq_u32 {sT[2]}, 7\ns_cselect_b32 {sIdle}, {OOB}, 0")
    g(f"s_lshl_b32 {sW3}, {sL}, 7\ns_add_u32 {sW3}, {sW3}, {sIdle}")
    if o.rot:
        g(f"s_lshl_b32 {sRot3}, {sX}, 1")
        if o.rotj & 2:
            g(f"s_lshl_b32 {sT[0]}, {sJ}, 1\ns_xor_b32 {sRot3}, {sRot3}, {sT[0]}")
    g(f"s_add_u32 {sRing}, {sLdsW}, {LB}")
    if o.fake & 1:
        g(f"s_mov_b32 {sW3}, {OOB}")
    d3, ra = V.alloc(4), V.alloc(2)
    g(f"v_lshrrev_b32 {t0}, 3, v0\nv_and_b32 {t2}, 1, {vKq}\nv_lshlrev_b32 {t2}, 2, {t2}")
    g(f"v_xor_b32 {t3}, {t2}, {vS8}\nv_lshlrev_b32 {t3}, 4, {t3}")
    g(f"v_mul_u32_u24 {d3[0]}, 3584, {t0}\nv_add_u32 {d3[0]}, {d3[0]}, {t3}")
    for i in range(1, 4):
        g(f"v_add_u32 {d3[i]}, {i*(8*3584-1024)}, {d3[0]}")
    g(f"v_lshrrev_b32 {t0}, 5, v0\nv_lshl_add_u32 {t0}, {t0}, 2, {vR4}\nv_lshl_add_u32 {t0}, {t0}, 7, {vC8}")
    g(f"v_and_b32 {t2}, 1, {vKq}\nv_lshl_add_u32 {t0}, {t2}, 5, {t0}\nv_lshrrev_b32 {t2}, 1, {vR4}\nv_lshl_add_u32 {t0}, {t2}, 6, {t0}")
    g(f"v_add_u32 {ra[0]}, {sRing}, {t0}\nv_xor_b32 {ra[1]}, 64, {ra[0]}")
    xf = V.alloc(64, at=48)
    tmp = V.alloc(8, at=112)
    st, gk1 = V.alloc(4, at=120), V.alloc(4, at=124)
    cs, ones = V.alloc(16, at=160), V.alloc(4, at=176)
    wf, acc = V.alloc(48, at=192), V.alloc(16, at=240)
    vCs = V.alloc(1)
    for i in range(4):
        g(f"v_mov_b32 {st[i]}, 0\nv_mov_b32 {ones[i]}, {sOnes}")
    g(f"s_lshl_b32 {sT[0]}, {sW}, 6\ns_add_u32 {sT[0]}, {sT[0]}, {C_CS}\nv_lshl_add_u32 {vCs}, {vKq}, 4, {sT[0]}")
    pump_off()
    Bg.flush(Bg.cap)
    stamp("setup")

    def x_reads(n):
        Bg.flush(Bg.find("dma", f"x{n}"))
        g.wait(vm=f"x{n}")
        for b in range(2):
            g.ds(f"ds_read_b128 {xf.r(8*n + 4*b, 4)}, {xa[b]} offset:{LA + n*2048}", f"x{n}")

    def stats(n):
        g.wait(lg=f"x{n}")
        for i in range(8):
            g(f"v_dot2c_f32_bf16 {st[i & 1]}, {sOnes}, {xf[8*n+i]}")
            g(f"v_dot2c_f32_bf16 {st[2 + (i & 1)]}, {xf[8*n+i]}, {xf[8*n+i]}")

    def ready_store():
        g.wait(vm="clr")
        g(f"s_mov_b64 exec, 1\nv_mov_b32 {vOne}, 1")
        g.vm(f"buffer_store_dword {vOne}, off, {R['dbg']}, {sLead} sc1", "clr")
        g("s_mov_b64 exec, -1")

    if o.touch & 2 and o.touch2 not in ("par", "w2", "h"):
        at = Bg.find("dma", o.touch2)
        Bg.ops[at:at] = [("dma", "tch", lambda: touch(14, ("w3", "w4") if o.touch4 < 0 else ("w3",)))]
    Bg.cap = len(Bg.ops)
    pump_on()
    x_reads(0)
    for n in range(1, 8):
        x_reads(n)
        mark(4, f"p_x{n}")
        stats(n - 1)
    stats(7)
    xa.free(); xd.free()
    stamp("x_in")
    g(f"v_add_f32 {st[0]}, {st[0]}, {st[1]}\nv_add_f32 {st[2]}, {st[2]}, {st[3]}")
    for sw in ("32", "16"):
        g(f"v_mov_b32 {st[1]}, {st[0]}\nv_mov_b32 {st[3]}, {st[2]}")
        g(f"v_permlane{sw}_swap_b32 {st[0]}, {st[1]}\nv_permlane{sw}_swap_b32 {st[2]}, {st[3]}")
        g(f"v_add_f32 {st[0]}, {st[0]}, {st[1]}\nv_add_f32 {st[2]}, {st[2]}, {st[3]}")
    run(ln_stats(st[0], st[2], st[1], gk1))
    pump_off()
    mark(4, "p_ln")
    Bg.flush(len(Bg.ops))
    mark(4, "p_w1iss")
    Bg.thresh = o.thresh

    gw, vD, shk = V.alloc(8, at=136), V.alloc(1), V.alloc(2)
    for i in range(4):
        g(f"v_add_u32 {wd[i]}, {i*7168}, {vW2}")
    g(f"s_lshl_b32 {sT[0]}, {sW}, 2\ns_xor_b32 {sT[0]}, {sT[0]}, {sPP}\ns_lshl_b32 {sM}, {sT[0]}, 12")
    g(f"s_lshl_b32 {sT[1]}, {sJ}, 1\ns_xor_b32 {sT[0]}, {sT[0]}, {sT[1]}\ns_lshl_b32 {sOff}, {sT[0]}, 15\ns_add_u32 {sOff}, {sOff}, {sCol}")
    g(f"s_lshl_b32 {sT[3]}, {sCh}, 1\nv_lshlrev_b32 {t3}, 3, {vKq}\nv_mov_b32 {vD}, 0")

    def one_dma(key, m0, text, tag):
        def fn():
            if g.m0 != key:
                g(m0)
                g.m0 = key
            g.vm(text, tag)
        return ("dma", tag, fn)
    Bg.ops.append(one_dma("k0", f"s_mov_b32 m0, {sK0}", f"buffer_load_dwordx4 {vK0}, {R['k']}, 0 offen {o.nt_once} lds", "par"))
    for i in range(2):
        Bg.ops.append(one_dma("k", f"s_add_u32 m0, {sC2}, {C_K + 1024}", f"buffer_load_dwordx4 {vW2}, {R['k']}, {(sKV, sKV2)[i]} offen offset:{i*1024} {o.nt_once} lds", "par"))
    for i in range(2):
        Bg.ops.append(one_dma("v", f"s_add_u32 m0, {sC2}, {C_V}", f"buffer_load_dwordx4 {vV[i]}, {R['v']}, {(sKV, sKV2)[i]} offen offset:{i*1024} {o.nt_once} lds", "par"))
    Bg.ops.append(("dma", "par", lambda: g.vm(f"buffer_load_dwordx2 {shk}, {vSk}, {R['shift_k']}, {sSk} offen", "par")))
    for i in range(2):
        Bg.ops.append(one_dma("q", f"s_mov_b32 m0, {sQ}", f"buffer_load_dwordx4 {vQa[i]}, {R['q']}, {sKV} offen offset:{i*1024} lds", "par"))
    for T in range(4):
        Bg.ops.append(("dma", "par", lambda T=T: g.vm(f"buffer_load_dwordx2 {gw.r(2*T,2)}, {t3}, {R['gate_w']}, {sCol} offen offset:{32*T}", "par")))
    Bg.ops.append(("dma", "par", lambda: g.vm(f"buffer_load_short_d16_hi {vD}, off, {R['ssm_D']}, {sT[3]}", "par")))
    for n in range(4):
        for i in range(4):
            Bg.ops.append(("dma", "w2", lambda n=n, i=i: w_dma("w2", LA, n, i)))
    if o.touch & 2 and o.touch2 in ("par", "w2"):
        at = Bg.find("dma", o.touch2)
        Bg.ops[at:at] = [("dma", "w2" if o.touch2 == "w2" else "tch", lambda: touch(14, ("w3", "w4")))]
    w3r = A.alloc(256)
    sG4 = []
    d4 = Reg(V, d3.base, 4)

    def w4home(n, ft, e2=None):
        k, b = ("v", 160 + 8*n + 4*ft) if n < 12 else ("a", 8*(n-12) + 4*ft)
        return f"{k}[{b}:{b+3}]" if e2 is None else f"{k}[{b+2*e2}:{b+2*e2+1}]"

    rx, sRx = [], []
    prev = lambda n: n - 4 if n < 26 else None if n < 28 else n - 6
    slot = lambda n: (n & 3) if n < 26 else n - 26

    def d4_setup():
        g(f"v_and_b32 {d4[1]}, 127, {d3[0]}\nv_lshrrev_b32 {d4[0]}, 3, v0\nv_lshl_add_u32 {d4[0]}, {d4[0]}, 10, {d4[1]}")
        for i in range(1, 4):
            g(f"v_add_u32 {d4[i]}, {i*7168}, {d4[0]}")

    def st_setup(n):
        def fn():
            if n == 26:
                rx.append(V.alloc(2))
                sRx.append(S.alloc(1))
                g(f"s_lshl_b32 {sRx[0]}, {sW}, 13\ns_sub_u32 {sSt}, {sRx[0]}, {sRing}\nv_add_u32 {rx[0][0]}, {sSt}, {ra[0]}\nv_add_u32 {rx[0][1]}, {sSt}, {ra[1]}")
            if not o.rot:
                if n == 16:
                    d4_setup()
                g(f"s_add_u32 {sSt}, {sW3 if n < 16 else sW4}, {n*32*3584 if n < 16 else (n-16)*32768}")
            elif n < 16:
                g(f"s_xor_b32 {sSt}, {sRot3}, {n}\ns_mul_i32 {sSt}, {sSt}, {32*3584}\ns_add_u32 {sSt}, {sSt}, {sW3}")
            else:
                if n == 16:
                    d4_setup()
                g(f"s_lshl_b32 {sSt}, {sG4[n-16]}, 4\ns_add_u32 {sSt}, {sSt}, {sW4}")
        return ("set", n, fn)

    def st_dma(n, i):
        def fn():
            if i == 0 and n >= 4 and prev(n) is not None:
                g.wait(lg=f"sr{prev(n)}")
            if g.m0 != ("st", n):
                g(f"s_add_u32 m0, {sRx[0] if n in (26, 27) else sRing}, {slot(n)*4096}")
                g.m0 = ("st", n)
            g.vm(f"buffer_load_dwordx4 {d3[i]}, {R['w3' if n < 16 else 'w4']}, {sSt} offen offset:{i*1024} lds", f"sd{n}")
        return ("dma", n, fn)

    def st_rd(n, u, ft, e2):
        def fn():
            g.wait(vm=f"sd{n}")
            if n < 16:
                dst, off = w3r.r(16*n + 8*u + 4*ft + 2*e2, 2), e2 * 2048 + u * 1024
            else:
                dst, off = w4home(2*(n-16) + u, ft, e2), u * 2048 + e2 * 1024
            g.ds(f"ds_read_b64_tr_b16 {dst}, {(rx[0] if n in (26, 27) else ra)[ft]} offset:{slot(n)*4096 + off}", f"sr{n}")
        return ("rd0" if (u, ft, e2) == (0, 0, 0) else "rd", n, fn)
    allrd = lambda n: [st_rd(n, u, ft, e2) for u in range(2) for ft in range(2) for e2 in range(2)]
    alldma = lambda n: [st_setup(n)] + [st_dma(n, i) for i in range(4)]
    for n in range(25):
        rds = allrd(n - 3) if n >= 3 else []
        Bg.ops.append(st_setup(n))
        for i in range(4):
            Bg.ops.append(st_dma(n, i))
            Bg.ops += rds[4*i:4*i+4]
    for k, (buf, part) in enumerate((("w3", 0), ("w3", 1), ("w4", 0), ("w4", 1))):
        pos = o.tx34.split(":")[k] if o.tx34 else ""
        if pos:
            at = Bg.find("dma", int(pos) if pos.isdigit() else pos)
            Bg.ops[at:at] = [("dma", f"tx3{k}", lambda buf=buf, part=part: touchx(buf, 56, part, sSt))]
    if o.touch4 >= 0:
        at = Bg.find("dma", o.touch4)
        Bg.ops[at:at] = [("dma", "tch4", lambda: touch(14, ("w4",), sSt))]
    if o.t3 & 2:
        at = Bg.find("dma", o.t3_at)
        Bg.ops[at:at] = [("dma", "tch3", lambda: touch3(14, ("w4",), sSt))]
    Bg.ops += alldma(25) + alldma(26) + alldma(27)
    Bg.ops += allrd(22) + allrd(23)[:4] + alldma(28) + allrd(23)[4:] + allrd(24)[:4] + alldma(29) + allrd(24)[4:]
    for n in range(25, 30):
        Bg.ops += allrd(n)

    def wfrag(ks, T, first):
        if not first and o.pre2 and ks >= 8:
            return f"a[{128 + 16*(ks-8) + 4*T}:{128 + 16*(ks-8) + 4*T + 3}]"
        return wf.r(16*(ks % 3) + 4*T, 4)

    def wreads(ks, first):
        if not first and o.pre2 and ks >= 8:
            return
        for T in range(4):
            for e2 in range(2):
                ad, off = (wa[T], ks*4096 + e2*512) if first else (wa[2*T + e2], ks*4096)
                g.ds(f"ds_read_b64_tr_b16 {wf.r(16*(ks % 3) + 4*T + 2*e2, 2)}, {ad} offset:{off}", f"w{ks}")
            yield

    def gemm16(tok, first, vmtag=None, hook=None, pre=None):
        order = list(range(16))
        if not first and o.pre2:
            order = [k for i in range(8) for k in (i, i + 8)]
        slow = [k for k in order if first or not o.pre2 or k < 8]
        for pos, ks in enumerate(order):
            if pre:
                pre(ks)
            if first or not o.pre2:
                nxt = wreads(ks + 2, first) if ks < 14 else iter(())
            elif ks < 8:
                both = wreads(ks + 2, first) if ks < 6 else iter(())
                nxt = (next(both, None) if i % 2 else None for i in range(4))
            else:
                nxt = (next(both, None) if i % 2 else None for i in range(4))
            g.wait(vm=vmtag and f"{vmtag}{ks}", lg=f"w{ks}")
            for T in range(4):
                g(f"v_mfma_f32_16x16x32_bf16 {acc.r(4*T,4)}, {wfrag(ks, T, first)}, {tok.r(4*ks,4)}, {acc.r(4*T,4) if pos else 0}")
                next(nxt, None)
            if first:
                g(f"v_mfma_f32_16x16x32_bf16 {cs.r(0,4)}, {wf.r(16*(ks % 3), 4)}, {ones}, {cs.r(0,4) if ks else 0}")
            if hook:
                hook(pos)

    Bg.cap = Bg.find("dma", "w2")
    g.wait(vm="w1a")
    g("s_barrier")
    stamp("w1_in")
    run(wreads(0, True))
    run(wreads(1, True))
    ready_store()
    sLead.free()
    pd = Poll(R["dbg"], vP32, 0, 1)

    def pre1(ks):
        if ks in (0, 3, 6, 10, 13):
            mark(4, f"p_k{ks}")
        if ks == 6:
            g.wait(vm="w1b")
            g("s_barrier")
            mark(4, "p_w1b")

    def hook1(ks):
        if ks == o.dpoll_at:
            pd.issue()
        Bg.step()
    gemm16(xf, True, hook=hook1, pre=pre1)
    mark(4, "p_loop")
    ones.free(); R["w1"].free()
    g.ds(f"ds_write_b128 {vCs}, {cs.r(0,4)}", "csw")
    Bg.flush(Bg.find("dma", "par"))
    for r in (R["q"], R["k"], R["v"], R["shift_k"], R["ssm_D"], R["gate_w"], vQa, sKV, sKV2, sC2, vW2, vV, vK0, vSk, sK0, sSk):
        r.free()
    for i in range(4):
        g(f"v_fmac_f32 {acc[i]}, {st[1]}, {cs[i]}")
    g.wait(lg="csw")
    g("s_barrier")
    stamp("g1_mfma")
    for i in range(1, 4):
        g(f"v_xor_b32 {t0}, {64*i}, {vCs}")
        g.ds(f"ds_read_b128 {cs.r(4*i,4)}, {t0}", f"cs{i}")
    vCs.free()
    hp = V.alloc(8, at=128)
    Bg.cap = Bg.find("dma", "w2")
    pump_on()
    for i in range(1, 4):
        g.wait(lg=f"cs{i}")
        for e in range(4):
            g(f"v_fmac_f32 {acc[4*i+e]}, {st[1]}, {cs[4*i+e]}")
    st.free(); cs.free()

    def h_store(gg):
        if gg == 0 and o.dpoll_at == 16:
            pd.issue()
        g.vm(f"buffer_store_dwordx4 {hp.r(4*gg,4)}, {vL16}, {R['ws']}, {sHs[gg]} offen sc1", "hst")
    gelu_pk(acc, 16, gk1, hp, tmp, h_store)
    if o.touch & 2 and o.touch2 == "h":
        with g.hold():
            touch(14, ("w3", "w4"))
    gk1.free(); sHs.free(); acc.free()
    stamp("h_st")

    qp = V.alloc(8, at=120)
    g(f"v_lshrrev_b32 {t0}, 1, {vC}\nv_lshrrev_b32 {t2}, 1, {vKq}\nv_xor_b32 {t0}, {t0}, {t2}\nv_lshlrev_b32 {t0}, 4, {t0}")
    g(f"v_lshl_add_u32 {t0}, {vC}, 7, {t0}\nv_and_b32 {t2}, 1, {vKq}\nv_lshl_add_u32 {t0}, {t2}, 3, {t0}\nv_add_u32 {t0}, {sQ}, {t0}")
    Bg.cap = Bg.find("dma", o.bg_a)
    mark(2, "a_pre")
    g.wait(vm="par")
    mark(2, "a_par")
    g("s_barrier")
    mark(2, "a_bar")
    for T in range(4):
        g(f"v_xor_b32 {t2}, {32*T}, {t0}")
        g.ds(f"ds_read_b64 {qp.r(2*T,2)}, {t2}", "q")
    sQ.free()
    up = V.alloc(8, at=160)
    kk = xf

    def kv_reads(m0):
        g.ds(f"ds_read_b64_tr_b16 {kk.r(32 + m0//2, 2)}, {ka[2]} offset:{m0*512}", f"k{m0}")
        for m in range(m0, m0 + 4):
            g.ds(f"ds_read_b64_tr_b16 {kk.r(2*m, 2)}, {ka[m & 1]} offset:{(m >> 1)*1024}", f"k{m0}")
    def hflag():
        pd.check()
        R["dbg"].free()
        if o.local:
            g.vm(f"buffer_load_dword {vDum}, off, {R['ws']}, {sLp} sc1", "pf")
        g.wait(vm="hst")
        flag_set(F_H)
        if o.l2pf & 1:
            with g.hold():
                g(f"v_lshlrev_b32 {vOne}, 7, {vC}")
                g.vm(f"buffer_load_dword {vDum}, {vOne}, {R['ws']}, {sHo} offen sc1", "pf")
        hp.free()
    mark(2, "a_pd")
    kv_reads(0)
    kv_reads(4)
    for m0 in range(0, 16, 4):
        g.wait(lg=f"k{m0}")
        if m0 + 8 < 16:
            kv_reads(m0 + 8)
        for m in range(m0, m0 + 4):
            g(f"v_dot2_f32_bf16 {kk[40+m]}, {kk[2*m]}, {shk[0]}, 0")
        for m in range(m0, m0 + 4):
            g(f"v_dot2_f32_bf16 {kk[40+m]}, {kk[2*m+1]}, {shk[1]}, {kk[40+m]}")
        for i in range(2):
            g(f"v_lshlrev_b32 {tmp[2*i]}, 16, {kk[32 + m0//2 + i]}\nv_and_b32 {tmp[2*i+1]}, {sMask}, {kk[32 + m0//2 + i]}")
        for i in range(2):
            g(f"v_pk_mul_f32 {tmp.r(2*i,2)}, {tmp.r(2*i,2)}, {kk.r(40 + m0 + 2*i, 2)}")
        for i in range(2):
            g(f"v_cvt_pk_bf16_f32 {up[m0//2 + i]}, {tmp[2*i]}, {tmp[2*i+1]}")
        mark(2, f"a_kv{m0}")
        if m0 == o.hflag_m:
            hflag()
            mark(2, "a_hflag")
        if m0 == 4:
            g.ds(f"ds_write_b128 {ua[0]}, {up.r(0,4)}", "uw")
            g(f"v_xor_b32 {ua[0]}, 16, {ua[0]}")
    g.ds(f"ds_write_b128 {ua[0]}, {up.r(4,4)}", "uw")
    shk.free(); ka.free()

    sTr = S.alloc(1)
    g(f"s_lshl_b32 {sT[0]}, {sJ}, 18\ns_lshl_b32 {sT[1]}, {sW}, 16\ns_add_u32 {sTr}, {sT[0]}, {sT[1]}\ns_lshl_b32 {sT[0]}, {sP}, 7\ns_add_u32 {sTr}, {sTr}, {sT[0]}")
    g(f"s_add_u32 {sT[0]}, {sTr}, {UBUF}\ns_add_u32 {sT[1]}, {sTr}, {UBUF + 32768}")
    g.wait(lg="uw")
    g.ds(f"ds_read_b128 {up.r(0,4)}, {ua[1]}", "ur")
    g.ds(f"ds_read_b128 {up.r(4,4)}, {ua[1]} offset:1024", "ur")
    ua.free()
    if o.hflag_m >= 16:
        hflag()
    stamp("h_out")
    g.wait(lg="ur")
    for i in range(2):
        g.vm(f"buffer_store_dwordx4 {up.r(4*i,4)}, {vT4k}, {R['ws']}, {sT[i]} offen sc1", "ust")
    g(f"v_lshl_add_u32 {t0}, {vKq}, 2, {vR4}\nv_bfe_u32 {t2}, {t0}, 1, 2\nv_lshl_add_u32 {t0}, {t0}, 7, {vC8}")
    g(f"s_and_b32 {sT[0]}, {sW}, 1\ns_lshl_b32 {sT[0]}, {sT[0]}, 11\nv_lshl_add_u32 {t0}, {t2}, 5, {t0}\nv_add_u32 {wa[0]}, {sT[0]}, {t0}")
    for i in range(1, 8):
        g(f"v_xor_b32 {wa[i]}, {32*(i >> 1) + 2048*(i & 1)}, {wa[0]}")
    vP8 = V.alloc(1)
    g(f"s_lshl_b32 {sT[0]}, {sW}, 2\nv_lshl_add_u32 {vP8}, {vS8}, 4, {sT[0]}")
    ph = Poll(R["ws"], vP8, None, F_H, local=True)
    cA = xf
    pump_off()
    mark(2, "a_set")
    Bg.flush(Bg.find("dma", "w2"))
    mark(2, "a_w2iss")
    for r in (R["w2"], sM, sOff, sWo, wd):
        r.free()

    keys = ("vmq", "lgq", "vmt", "lgt", "clock", "mfree", "m0", "q", "lq", "last_done", "ta")

    def two_paths(body, before=None):
        lodd, ljoin = g.label("odd"), g.label("join")
        g(f"s_bitcmp1_b32 {sW}, 0\ns_cbranch_scc1 {lodd}")
        saved = (copy.deepcopy({k: getattr(g, k) for k in keys}), Bg.idx)
        ends = []
        for par in range(2):
            if par:
                g(f"{lodd}:")
                for k, v in copy.deepcopy(saved[0]).items():
                    setattr(g, k, v)
                Bg.idx = saved[1]
            extra = body(par)
            ends.append((Bg.idx, list(g.vmq), list(g.lgq), extra, g.clock))
            if not par:
                g(f"s_branch {ljoin}")
        g(f"{ljoin}:")
        assert ends[0][0] == ends[1][0]
        g.vmq = merge_queues(ends[0][1], ends[1][1])
        g.lgq = merge_queues(ends[0][2], ends[1][2])
        g.clock = max(ends[0][4], ends[1][4])
        g.m0 = None

    def conv_all(par, events, spare=None):
        tiles = TILES[par]
        top = max(tiles)
        seq = [(d, mp) for d in (0, 1, 2, 3) for mp in range(-1, 2 * top + 1)]

        def bread(i):
            d, mp = seq[i]
            for e2 in range(2):
                g.ds(f"ds_read_b64 {cBr(i, 2*e2, 2)}, {aB} offset:{d*UP + 64*(mp+1) + 8*e2}", f"B{i}")
                yield
        for i in range(o.bdist):
            run(bread(i))
        started = set()
        cnt = 0
        ndma = sum(1 for x in Bg.ops[Bg.idx:Bg.cap] if x[0] == "dma")
        per = max(1, 138 // max(ndma, 1))
        done = [-per]
        for i, (d, mp) in enumerate(seq):
            rd = bread(i + o.bdist) if i + o.bdist < len(seq) else iter(())
            if i % 2 == 0:
                g.wait(lg=f"B{min(i + 1, len(seq) - 1)}")
            for ti, jb in enumerate(tiles):
                m = 2 * jb - mp
                if m < 0:
                    continue
                c = (pp, qq)[d & 1].r(6*ti + (d & 2), 4)
                first = d < 2 and (d, ti) not in started
                started.add((d, ti))
                g(f"v_mfma_f32_16x16x32_bf16 {c}, {cA.r(4*m,4)}, {cBr(i, 0, 4)}, {0 if first else c}")
                cnt += 1
                next(rd, None)
                if cnt in events:
                    mark(5, f"c{cnt}a")
                    events[cnt]()
                    mark(5, f"c{cnt}b")
                if spare and cnt > 144 - 2 * len(spare) - 8 and cnt % 2:
                    spare.pop(0)()
                for _ in range(2):
                    if Bg.idx < Bg.cap and (Bg.ops[Bg.idx][0] != "dma" or cnt - done[0] >= per):
                        if Bg.ops[Bg.idx][0] == "dma":
                            done[0] = cnt
                        Bg.step(True)
                        if g.slack() < 4:
                            break
            run(rd)
        Bg.flush(Bg.cap)

    sCH, sCU, sUl, sFu = (S.alloc(1) for _ in range(4))
    g(f"s_lshr_b32 {sT[2]}, {sW}, 1\ns_and_b32 {sT[3]}, {sW}, 1")
    g(f"s_mul_i32 {sCH}, {sT[2]}, {HP}\ns_add_u32 {sCH}, {sCH}, {C_H}\ns_mul_i32 {sCU}, {sT[2]}, {4*UP}\ns_add_u32 {sCU}, {sCU}, {C_U}")
    g(f"s_lshl_b32 {sT[1]}, {sCh}, 12")
    Bg.flush(Bg.find("dma", o.bg_a))
    mark(2, "a_bga")
    if o.hpoll == 0:
        ph.issue()
    Bg.cap = Bg.find("dma", o.cap_p2)
    Bg.flush(Bg.find("dma", o.bg_b))
    mark(2, "a_bgb")
    g.wait(vm="w2")
    g("s_barrier")
    stamp("u_out")
    if o.hpoll == 1:
        ph.issue()
    g(f"s_add_u32 m0, {sCH}, 32\ns_nop 0")
    fl = (g.vm(f"buffer_load_dwordx4 {vL16}, {R['ssm_k']}, {sT[1]} offen offset:{i*1024} {o.nt_once} lds", "fin") for i in range(4))
    if o.hpoll < 2:
        next(fl)
        g.pump = lambda: next(fl, None) if g.ta - g.clock < 0 else None
    if o.pre2:
        assert o.cap_p2 <= 10
        for ks in range(8, 16):
            for T in range(4):
                for e2 in range(2):
                    b = 128 + 16*(ks-8) + 4*T + 2*e2
                    g.ds(f"ds_read_b64_tr_b16 a[{b}:{b+1}], {wa[2*T + e2]} offset:{ks*4096}", "wpre")
            if o.hpoll >= 2 and ks == 6 + o.hpoll:
                ph.issue()
                g.pump = lambda: next(fl, None) if g.ta - g.clock < 0 else None
    run(wreads(0, False))
    run(wreads(1, False))

    g.pump = None
    run(fl)
    R["ssm_k"].free()
    ph.check(then=lambda: flag_set(F_U))
    up.free(); vP8.free()
    stamp("h_flag")
    sHl2 = S.alloc(2)
    acc = V.alloc(16, at=240)

    def h1_load(pos):
        ks = (pos >> 1) + 8 * (pos & 1) if o.pre2 else pos
        so = sHl2[ks >> 3]
        if ks & 1 == 0:
            g(f"s_xor_b32 {so}, {sHo}, {ks << 10}")
        g.vm(f"buffer_load_dwordx4 {xf.r(4*ks,4)}, {vL16}, {R['ws']}, {so} offen offset:{(ks & 1)*1024} sc1", f"h{ks}")
    hl = (h1_load(ks) for ks in range(9))
    next(hl)
    g.pump = lambda: next(hl, None) if g.ta - g.clock < 30 else None
    gs = V.alloc(4)
    g(f"v_mov_b32 {gs[1]}, 0\nv_mov_b32 {gs[3]}, 0")
    g.wait(lg="q")
    for i in range(8):
        g(f"v_dot2c_f32_bf16 {gs[1]}, {qp[i]}, {gw[i]}")
    gw.free()
    g(f"s_lshl_b32 {sUl}, {sCh}, 12\ns_add_u32 {sUl}, {sUl}, {UBUF}")
    g(f"s_lshr_b32 {sT[0]}, {sP}, 3\ns_lshl_b32 {sT[0]}, {sT[0]}, 7\ns_lshl_b32 {sFu}, {sJ}, 9\ns_add_u32 {sFu}, {sFu}, {sT[0]}")
    aA, aB = V.alloc(1), V.alloc(1)
    g(f"v_lshlrev_b32 {t0}, 6, {vKq}\nv_add_u32 {t0}, {t0}, {vC8}\nv_lshlrev_b32 {t2}, 3, {vR4}\nv_sub_u32 {t0}, {t0}, {t2}")
    g(f"s_add_u32 {sT[0]}, {sCH}, 32\nv_add_u32 {aA}, {sT[0]}, {t0}")
    g(f"v_lshlrev_b32 {t0}, 3, {vC}\nv_lshlrev_b32 {t2}, 4, {vKq}\nv_sub_u32 {t0}, {t0}, {t2}\ns_add_u32 {sT[0]}, {sCU}, 56\nv_add_u32 {aB}, {sT[0]}, {t0}")
    sW4 = S.alloc(1)
    g(f"s_mul_i32 {sW4}, {sW}, {448*1024}\ns_add_u32 {sW4}, {sW4}, {sCol}")
    if o.fake & 2:
        g(f"s_mov_b32 {sW4}, {OOB}")
    if o.rot:
        sG4 += [S.alloc(1) for _ in range(14)]
        if o.rotj & 1:
            g(f"s_add_u32 {sT[0]}, {sX}, {sJ}\ns_and_b32 {sT[0]}, {sT[0]}, 7\ns_mul_i32 {sT[0]}, {sT[0]}, 7\ns_lshr_b32 {sT[0]}, {sT[0]}, 2\ns_lshl_b32 {sG4[0]}, {sT[0]}, 11")
        else:
            g(f"s_mul_i32 {sT[0]}, {sX}, 7\ns_lshr_b32 {sT[0]}, {sT[0]}, 2\ns_lshl_b32 {sG4[0]}, {sT[0]}, 11")
        for n in range(1, 14):
            g(f"s_add_u32 {sG4[n]}, {sG4[n-1]}, 2048\ns_cmp_eq_u32 {sG4[n]}, {14*2048}\ns_cselect_b32 {sG4[n]}, 0, {sG4[n]}")
    g(f"v_mov_b32 {tmp[0]}, 0\nv_mov_b32 {tmp[1]}, 0")
    g(f"v_mul_u32_u24 {t0}, {UP}, {vKq}\nv_lshl_add_u32 {t0}, {vC}, 3, {t0}\nv_add_u32 {t0}, {sCU}, {t0}\nv_add_u32 {t2}, {sCH}, {vC8}")
    g.ds(f"ds_write_b64 {t0}, {tmp.r(0,2)}")
    g.ds(f"ds_write_b64 {t2}, {tmp.r(0,2)}")
    sX1s, sX1l, sSto, sSto2, sStw, sY, sXo, sH2, sHst, sFy = (S.alloc(1) for _ in range(10))
    aN, aU, aY, vSt, vSw, vXs, vN0 = (V.alloc(1) for _ in range(7))
    g(f"s_lshr_b32 {sT[0]}, {sW}, 1\ns_mul_i32 {sT[1]}, {sT[0]}, {NP}\ns_add_u32 {sT[1]}, {sT[1]}, {A_N}\nv_mov_b32 {vN0}, {sT[1]}")
    g.ds(f"ds_write2st64_b32 {vN0}, {tmp[0]}, {tmp[0]} offset0:0 offset1:9")
    g.ds(f"ds_write_b32 {vN0}, {tmp[0]} offset:{18*256}")
    g(f"v_lshl_add_u32 {t0}, {vC}, 2, {vKq}\nv_lshl_add_u32 {aN}, {t0}, 2, {sT[1]}")
    g(f"s_add_u32 {sT[1]}, {sCU}, 128\nv_lshl_add_u32 {aU}, {t0}, 1, {sT[1]}")
    g(f"v_lshrrev_b32 {t0}, 2, {vC}\nv_lshlrev_b32 {t0}, 7, {t0}")
    g(f"v_lshl_add_u32 {t0}, {vKq}, 5, {t0}\nv_add_u32 {aY}, {t0}, {vC8}")
    g(f"s_lshl_b32 {sT[3]}, {sP}, 16\ns_add_u32 {sT[3]}, {sT[3]}, {X1BUF}")
    g(f"s_lshl_b32 {sT[0]}, {sT[0]}, 15\ns_and_b32 {sT[1]}, {sW}, 1\ns_lshl_b32 {sT[2]}, {sT[1]}, 8\ns_add_u32 {sT[0]}, {sT[0]}, {sT[2]}")
    g(f"s_lshl_b32 {sT[2]}, {sJ}, 12\ns_add_u32 {sT[0]}, {sT[0]}, {sT[2]}\ns_add_u32 {sX1s}, {sT[0]}, {sT[3]}")
    if o.rot:
        g(f"s_lshl_b32 {sX1l}, {sW}, 2\ns_xor_b32 {sX1l}, {sX1l}, {sRot3}\ns_lshl_b32 {sX1l}, {sX1l}, 11\ns_add_u32 {sX1l}, {sX1l}, {sT[3]}")
    else:
        g(f"s_lshl_b32 {sX1l}, {sW}, 13\ns_add_u32 {sX1l}, {sX1l}, {sT[3]}")
    g(f"s_lshl_b32 {sSto}, {sP}, 13\ns_add_u32 {sSto}, {sSto}, {STATS}\ns_add_u32 {sSto2}, {sSto}, 4096")
    g(f"s_lshl_b32 {sT[0]}, {sJ}, 10\ns_lshl_b32 {sT[2]}, {sW}, 8\ns_add_u32 {sT[0]}, {sT[0]}, {sT[2]}\ns_add_u32 {sStw}, {sT[0]}, {sSto}")
    g(f"s_lshl_b32 {sY}, {sCh}, 12\ns_add_u32 {sY}, {sY}, {YBUF}")
    g(f"v_lshlrev_b32 {t0}, 9, {vKq}\nv_lshl_add_u32 {vXs}, {vC}, 4, {t0}")
    g(f"v_lshrrev_b32 {t2}, 5, v0\nv_and_b32 {t3}, 1, {vKq}")
    g(f"v_lshlrev_b32 {t0}, 10, {t2}\nv_lshl_add_u32 {t0}, {t3}, 8, {t0}\nv_lshl_add_u32 {vSt}, {vC}, 3, {t0}")
    g(f"v_lshlrev_b32 {t0}, 2, {t2}\nv_lshl_add_u32 {t0}, {vC}, 3, {t0}")
    g(f"v_lshlrev_b32 {t2}, 6, {t2}\nv_lshl_add_u32 {t2}, {vC}, 2, {t2}\nv_add_u32 {t2}, 128, {t2}")
    g(f"v_cmp_eq_u32 vcc, 0, {t3}\ns_nop 1\nv_cndmask_b32 {vSw}, {t2}, {t0}, vcc")
    g(f"s_mul_i32 {sH2}, {sP}, 229376\ns_add_u32 {sH2}, {sH2}, {H2BUF}")
    g(f"s_lshl_b32 {sHst}, {sL}, 12\ns_add_u32 {sHst}, {sHst}, {sH2}\ns_add_u32 {sHst}, {sHst}, {sIdle}")
    g(f"s_lshr_b32 {sT[0]}, {sP}, 2\ns_lshr_b32 {sT[1]}, 0x3b, {sT[0]}\ns_and_b32 {sT[1]}, {sT[1]}, 1\ns_lshl_b32 {sT[1]}, {sT[1]}, 7")
    g(f"s_lshl_b32 {sT[0]}, {sW}, 15\ns_add_u32 {sT[1]}, {sT[1]}, {sT[0]}\ns_lshl_b32 {sT[0]}, {sJ}, 9\ns_add_u32 {sFy}, {sT[1]}, {sT[0]}")
    g(f"v_mov_b32 {gs[0]}, 0\nv_mov_b32 {gs[2]}, 0")
    vPu = V.alloc(1)
    pu = Poll(R["ws"], vPu, sFu, F_U)
    g(f"v_lshlrev_b32 {vPu}, 10, {vP32}")
    g(f"s_mov_b32 {sT[0]}, {sCU}")
    g(f"v_lshrrev_b32 {t3}, 1, v0\nv_and_b32 {t2}, 1, v0\nv_lshlrev_b32 {t2}, 4, {t2}\nv_lshl_add_u32 {t3}, {t3}, 7, {t2}")
    for r in (sL, sIdle, sCh, sCH, sCU):
        r.free()
    mark(2, "b_set")
    g.pump = None
    run(hl)
    mark(2, "b_iss")

    def u_load(i):
        if i == 0:
            pu.check()
        g(f"s_add_u32 m0, {sT[0]}, {128 + i*(UP - 32)}\ns_nop 0")
        g.vm(f"buffer_load_dwordx4 {t3}, {R['ws']}, {sUl} offen offset:{32*i} sc1 lds", "cin")

    def hook2(ks):
        if ks in (0, 4, 8, 12):
            mark(2, f"b_k{ks}")
        if ks == o.upoll_at:
            pu.issue()
        if ks + 9 < 16:
            h1_load(ks + 9)
        elif ks >= o.ucheck_at:
            u_load(ks - o.ucheck_at)
        else:
            Bg.step()
            Bg.step()
    gemm16(xf, False, vmtag="h", hook=hook2)
    sHl2.free(); sHo.free()
    stamp("g2_mfma")
    wa.free(); wf.free()
    g.wait(vm="fin")
    areads = [f"ds_read_b64_tr_b16 {xf.r(4*m + 2*e2, 2)}, {aA} offset:{256*m + 32 - 32*e2}" for m in range(15, -1, -1) for e2 in range(2)]
    g.pump = lambda: g.ds(areads.pop(0), "A") if areads else None
    x1p = V.alloc(8, at=128)
    for T in range(0, 4, 2):
        for i in range(4):
            g(f"v_dot2_f32_bf16 {tmp[2*i]}, {qp[2*T+i]}, {sLo1}, {acc[4*T+2*i]}")
            g(f"v_dot2_f32_bf16 {tmp[2*i+1]}, {qp[2*T+i]}, {sHi1}, {acc[4*T+2*i+1]}")
        for i in range(4):
            g(f"v_cvt_pk_bf16_f32 {x1p[2*T+i]}, {tmp[2*i]}, {tmp[2*i+1]}")
        g.vm(f"buffer_store_dwordx4 {x1p.r(2*T,4)}, {vXs}, {R['ws']}, {sX1s} offen offset:{T*1024} sc1", "xst")
    acc.free(); vXs.free()
    with g.hold():
        for i in range(max(0, 16 - o.ucheck_at), 4):
            u_load(i)
        sUl.free(); sFu.free(); vPu.free()

    for i in range(8):
        g(f"v_dot2c_f32_bf16 {gs[0]}, {sOnes}, {x1p[i]}")
        g(f"v_dot2c_f32_bf16 {gs[2]}, {x1p[i]}, {x1p[i]}")
    g(f"v_permlane32_swap_b32 {gs[0]}, {gs[2]}\nv_permlane32_swap_b32 {gs[1]}, {gs[3]}")
    g(f"v_add_f32 {gs[0]}, {gs[0]}, {gs[2]}\nv_add_f32 {gs[1]}, {gs[1]}, {gs[3]}")
    g(f"v_permlane16_swap_b32 {gs[0]}, {gs[1]}\nv_add_f32 {gs[0]}, {gs[0]}, {gs[1]}")
    g.vm(f"buffer_store_dword {gs[0]}, {vSw}, {R['ws']}, {sStw} offen sc1", "xst")
    sStw.free(); vSw.free()
    stamp("x1_st")

    pp = V.alloc(30, at=160)
    qq = V.alloc(30, at=190)
    uu = V.alloc(20, at=220)
    cB, cB2 = V.alloc(16, at=240), V.alloc(16, at=136)
    cBr = lambda i, k, n: (cB, cB2)[(i >> 2) & 1].r(4*(i & 3) + k, n)
    for ti in range(5):
        g(f"v_mov_b32 {qq[6*ti + 4]}, 0\nv_mov_b32 {qq[6*ti + 5]}, 0\nv_mov_b32 {pp[6*ti + 4]}, 0\nv_mov_b32 {pp[6*ti + 5]}, 0")
    pump_off()
    while areads:
        g.ds(areads.pop(0), "A")
    px = Poll(R["ws"], vP32, None, F_X1, local=True)
    sv = [Reg(V, 152, 8), Reg(V, 248, 8)]
    gate = V.alloc(2)
    nb = [Reg(V, xf.base + 32, 32), Reg(V, xf.base, 32)]

    def st_loads(th):
        for i in range(4):
            g.vm(f"buffer_load_dwordx2 {sv[th].r(2*i, 2)}, {vSt}, {R['ws']}, {(sSto, sSto2)[i >> 1]} offen offset:{(i & 1)*2048 + th*512} sc1", f"s{th}")
            yield

    def x1_loads(th):
        for i in range(7, -1, -1):
            if i & 1:
                g(f"s_xor_b32 {sXo}, {sX1l}, {(i >> 1) << 11 | th << 15}")
            g.vm(f"buffer_load_dwordx4 {nb[th].r(4*i, 4)}, {vL16}, {R['ws']}, {sXo} offen offset:{(i & 1)*1024} sc1", f"n{th}_{i}")
            yield

    def fold(r, t):
        for sw in ("32", "16"):
            g(f"v_mov_b32 {t}, {r}\ns_nop 1\nv_permlane{sw}_swap_b32 {r}, {t}")
            yield
            g(f"v_add_f32 {r}, {r}, {t}")
            yield

    def gate_calc():
        g.wait(vm="gl")
        g(f"v_add_f32 {gate[0]}, {gate[0]}, {gate[1]}")
        yield
        yield from fold(gate[0], gate[1])
        yield from round_bf16(gate[0])
        for t in (f"v_mul_f32 {gate[0]}, {fbits(-LOG2E)}, {gate[0]}", f"v_exp_f32 {gate[0]}, {gate[0]}\ns_nop 0", f"v_add_f32 {gate[0]}, 1.0, {gate[0]}",
                  f"v_rcp_f32 {gate[0]}, {gate[0]}\ns_nop 0"):
            g(t)
            yield
        yield from round_bf16(gate[0])
        g(f"v_sub_f32 {gate[1]}, 1.0, {gate[0]}")
        yield
        yield from round_bf16(gate[1])

    def xflag():
        g.wait(vm="xst")
        flag_set(F_X1)
        if o.l2pf & 2:
            g(f"v_lshrrev_b32 {vOne}, 1, {vC}\nv_lshlrev_b32 {vOne}, 9, {vOne}\nv_and_b32 {t2}, 1, v0\nv_lshl_add_u32 {vOne}, {t2}, 7, {vOne}")
            g.vm(f"buffer_load_dword {vDum}, {vOne}, {R['ws']}, {sX1s} offen sc1", "pf")

    Bg.flush(Bg.find("dma", o.bg_u))
    Bg.cap = Bg.find("dma", o.cap2)

    def half2(par):
        tiles = TILES[par]
        ur = [lambda ti=ti, jb=jb, m=m: g.ds(f"ds_read_u16_d16_hi {uu[4*ti + m]}, {aU} offset:{m*UP + 128*jb}", f"U{ti}")
              for ti, jb in enumerate(tiles) for m in range(4)]
        g.wait(vm="cin")
        stamp("u_in"); idle("u_in")
        l0 = chain(st_loads(0), x1_loads(0))
        ev = {o.xflag_at: xflag, o.xpoll_at: px.issue, o.xcheck_at: lambda: px.check(free=par)}
        for i in range(4):
            ev[o.xcheck_at + 1 + 2*i] = lambda: next(l0)
        conv_all(par, ev, ur)
        if o.fine:
            stamp("cv_mfma")
        next(l0)
        g.pump = lambda: next(l0, None) if g.ta - g.clock < 30 else None
        for f in ur:
            f()
        g(f"v_add_u32 {vN0}, 4, {aN}")
        for ti, jb in enumerate(tiles):
            b = 6 * ti
            g(f"v_add_f32 {pp[b+4]}, {pp[b+4]}, {qq[b+3]}\nv_add_f32 {pp[b+5]}, {pp[b+5]}, {qq[b+4]}")
            g.ds(f"ds_write2st64_b32 {vN0}, {pp[b+4]}, {pp[b+5]} offset0:{jb} offset1:{jb + 9}", "Nw")
            g.ds(f"ds_write_b32 {vN0}, {qq[b+5]} offset:{(jb + 18)*256}", "Nw")
        for ti, jb in enumerate(tiles):
            b = 6 * ti
            g(f"v_add_f32 {pp[b+1]}, {pp[b+1]}, {qq[b]}\nv_add_f32 {pp[b+2]}, {pp[b+2]}, {qq[b+1]}\nv_add_f32 {pp[b+3]}, {pp[b+3]}, {qq[b+2]}")
        mark(5, "c_add")
        g.wait(lg="Nw")
        g("s_barrier")
        mark(5, "c_bar")
        for ti, jb in enumerate(tiles):
            g.ds(f"ds_read2st64_b32 {qq.r(6*ti,2)}, {aN} offset0:{jb} offset1:{jb + 9}", f"N{ti}")
            g.ds(f"ds_read_b32 {qq[6*ti+2]}, {aN} offset:{(jb + 18)*256}", f"N{ti}")
        for ti, jb in enumerate(tiles):
            for m in range(4):
                g(f"v_fmac_f32 {pp[6*ti+m]}, {vD}, {uu[4*ti + m]}")
        for ti, jb in enumerate(tiles):
            b = 6 * ti
            g.wait(lg=f"N{ti}")
            for m in range(3):
                g(f"v_add_f32 {pp[b+m]}, {pp[b+m]}, {qq[b+m]}")
            g(f"v_cvt_pk_bf16_f32 {pp[b]}, {pp[b]}, {pp[b+1]}\nv_cvt_pk_bf16_f32 {pp[b+1]}, {pp[b+2]}, {pp[b+3]}")
        mark(5, "c_cvt")
        g.pump = None
        run(l0)
        mark(5, "c_l0")
        for ti, jb in enumerate(tiles):
            g.vm(f"buffer_store_dwordx2 {pp.r(6*ti,2)}, {aY}, {R['ws']}, {sY} offen offset:{512*jb} sc1", "yst")
        return len(tiles)
    two_paths(half2)
    for r in (aA, aB, aN, aU, aY, vD, gs, vN0, sY, pp, qq, uu, cB, cB2, sX1s):
        r.free()
    w4v = V.alloc(96, at=160)
    stamp("conv2")

    gk3 = [V.alloc(4), V.alloc(4)]
    vXw = V.alloc(1)
    g(f"s_lshl_b32 {sT[0]}, {sW}, 13\nv_add_u32 {vXw}, {sT[0]}, {vL16}")

    def norm(th, center):
        g.wait(vm=f"s{th}")
        r = sv[th]
        for d, s_ in ((0, 2), (1, 3), (4, 6), (5, 7), (0, 4), (1, 5)):
            g(f"v_add_f32 {r[d]}, {r[d]}, {r[s_]}")
            yield
        g(f"s_nop 1\nv_permlane32_swap_b32 {r[0]}, {r[1]}")
        yield
        g(f"v_add_f32 {r[0]}, {r[0]}, {r[1]}\nv_mov_b32 {r[1]}, {r[0]}")
        yield
        g(f"s_nop 1\nv_permlane32_swap_b32 {r[0]}, {r[1]}")
        yield
        yield from ln_mean(r[0], r[2])
        for i in range(7, -1, -1):
            g.wait(vm=f"n{th}_{i}")
            if th == 0 and i % 4 == 3:
                mark(3, f"n_{i}")
            yield from center([nb[th][4*i + q] for q in range(4)], r[2], tmp)
            g.ds(f"ds_write_b128 {vXw}, {nb[th].r(4*i, 4)} offset:{LA + th*32768 + i*1024}", f"xw{th}")
            yield

    def gate_loads():
        g(f"v_lshlrev_b32 {t0}, 11, {vKq}\nv_lshl_add_u32 {t0}, {vC}, 2, {t0}\ns_lshl_b32 {sT[0]}, {sW}, 8\ns_add_u32 {sT[0]}, {sT[0]}, {sSto}")
        for i in range(2):
            g.vm(f"buffer_load_dword {gate[i]}, {t0}, {R['ws']}, {sT[0]} offen offset:{128 + i*1024} sc1", "gl")
            yield
    l1 = chain(st_loads(1), x1_loads(1), gate_loads())
    cnt1 = [0]

    def pump1():
        if g.ta - g.clock < 0 and cnt1[0] < o.l1_early:
            cnt1[0] += 1
            next(l1, None)
    g.pump = pump1
    run(norm(0, center_dot))
    g.pump = None
    Bg.cap = Bg.idx
    g.wait(lg="xw0")
    g("s_barrier")
    stamp("xn0"); idle("xn0")
    accs = [nb[0], nb[1]]
    tf = V.alloc(16, at=136)
    hq = V.alloc(8, at=152)

    def h_store2(th):
        def fn(f):
            if f == 0 and th:
                g(f"s_add_u32 {sHst}, {sHst}, {112*1024}")
            g.vm(f"buffer_store_dwordx4 {hq.r(4*(f & 1),4)}, {vL16}, {R['ws']}, {sHst} offen offset:{f*1024} sc1", f"Hst{th}")
        return fn

    def g3_pass(th, fillers, over, hook=None):
        def tread(ks):
            g.ds(f"ds_read_b128 {tf.r(4*(ks & 3), 4)}, {vL16} offset:{LA + th*32768 + ks*1024}", f"t{ks}")
        for ks in range(3):
            tread(ks)
        for ks in range(32):
            if th == 0 and ks % 2 == 0:
                Bg.flush(Bg.find("rd", ks // 2))
                g.wait(lg=f"sr{ks//2}")
            g.wait(lg=f"t{ks}")
            for ft in range(2):
                c = accs[th].r(16*ft, 16)
                g(f"v_mfma_f32_32x32x16_bf16 {c}, {w3r.r(8*ks + 4*ft, 4)}, {tf.r(4*(ks & 3), 4)}, {c if ks else 0}")
                if ft == 1 and ks + 3 < 32:
                    tread(ks + 3)
                if ft == 0 and ks % 4 == 0 and ks:
                    mark(3, f"g{th}_k{ks}")
                if hook:
                    hook(2*ks + ft)
                fill(fillers, over, reserve=4 * ft)
        mark(3, f"g{th}_loop")
        drain(fillers)
        mark(3, f"g{th}_drain")

    def scale(th):
        yield from ln_std(sv[th][0], sv[th][1], gk3[th][2])
        yield from ln_scale(gk3[th])
    f0 = [scale(0)]

    def hook0(i):
        if i % 2 == 0 and next(l1, 1) is not None:
            Bg.cap = Bg.find("dma", o.cap_a)
        if i == o.norm1_at:
            f0.append(chain(norm(1, center_plain), scale(1)))
        if i == o.yflag_at:
            g.wait(vm="yst")
            flag_set(F_Y)
    g3_pass(0, f0, o.q3a, hook0)
    for r in (sXo, sX1l, vSt, sSto2):
        r.free()
    g.wait(lg="xw1")
    g("s_barrier")
    stamp("g3a"); idle("g3a")
    Bg.cap = Bg.find("dma", o.cap_b)
    vP16, vP7 = V.alloc(1), V.alloc(1)
    py = Poll(R["ws"], vP16, sFy, F_Y)

    def hook3(i):
        if i == 2:
            g(f"v_lshrrev_b32 {vP16}, 1, {vC}\nv_lshlrev_b32 {vP16}, 12, {vP16}\nv_and_b32 {vP7}, 1, v0\nv_lshl_add_u32 {vP16}, {vP7}, 8, {vP16}")
        if i == 3:
            g(f"v_min_u32 {vP7}, 6, v0\ns_lshl_b32 {sT[0]}, {sW}, 5\nv_lshl_add_u32 {vP7}, {vP7}, 2, {sT[0]}")
            py.issue()
        if i == 24:
            py.check()
            g(f"s_add_u32 {sT[0]}, {sTr}, {YBUF}\ns_add_u32 {sT[1]}, {sTr}, {YBUF + 32768 - 1024}\ns_lshl_b32 {sT[2]}, {sW}, 11\ns_add_u32 m0, {sT[2]}, {C_Y}")
        if i == 25:
            g.vm(f"buffer_load_dwordx4 {vT4k}, {R['ws']}, {sT[0]} offen sc1 lds", "y")
            g.vm(f"buffer_load_dwordx4 {vT4k}, {R['ws']}, {sT[1]} offen offset:1024 sc1 lds", "y")

    nd = [sum(1 for x in Bg.ops[Bg.idx:Bg.cap] if x[0] == "dma"), 0]

    def hook3h(i):
        hook3(i)
        if i not in (24, 25) and nd[1] < nd[0] * i // 58 and Bg.idx < Bg.cap:
            nd[1] += Bg.ops[Bg.idx][0] == "dma"
            Bg.step(True)
        if i == 24:
            Bg.saved_cap, Bg.cap = Bg.cap, 0
        if i == 25:
            Bg.cap = Bg.saved_cap
    g3_pass(1, [Ops(x) for x in gelu_plain(accs[0], 32, gk3[0], hq, tmp, h_store2(0))], o.q3b, hook3h)
    vP16.free()
    stamp("g3b"); idle("g3b")
    Bg.cap = Bg.find("dma", 29)
    Bg.flush(Bg.find("dma", 27))
    pa = Poll(R["ws"], vP7, None, F_HA, local=True)
    pb = Poll(R["ws"], vP7, None, F_HB, local=True)
    pump_on()
    st1 = h_store2(1)

    def done1(f):
        if f == o.haflag_at:
            g.wait(vm="Hst0")
            flag_set(F_HA)
            if o.l2pf & 4:
                with g.hold():
                    g(f"v_lshlrev_b32 {vOne}, 5, {vP32}\ns_sub_u32 {sT[0]}, {sHst}, {112*1024 if f else 0}")
                    g.vm(f"buffer_load_dword {vDum}, {vOne}, {R['ws']}, {sT[0]} offen sc1", "pf")
        st1(f)
        if f == o.apoll_at:
            pa.issue()
        mark(3, f"H_f{f}")
    gelu_pk(accs[1], 32, gk3[1], hq, tmp, done1)
    stamp("H_st")
    tf.free(); vXw.free()
    for r in gk3:
        r.free()
    sv = V.alloc(16, at=136)
    g.wait(vm="y")
    g("s_barrier")
    if o.apoll_at == 4:
        pa.issue()

    g(f"v_lshl_add_u32 {t0}, {vKq}, 2, {vR4}\nv_lshlrev_b32 {t0}, 7, {t0}\nv_lshl_add_u32 {t0}, {vC8}, 2, {t0}\ns_lshl_b32 {sT[0]}, {sW}, 3\ns_add_u32 {sT[0]}, {sT[0]}, {C_Y}\nv_add_u32 {t0}, {sT[0]}, {t0}")
    for T in range(4):
        g.ds(f"ds_read_b64_tr_b16 {sv.r(8 + 2*T, 2)}, {t0} offset:{T*2048}", f"y{T}")
    run(gate_calc())
    if o.apoll_at == 5:
        pa.issue()
    g(f"s_lshl_b32 {sT[0]}, {sW}, 6\ns_add_u32 {sT[0]}, {sT[0]}, {C_OMG}\nv_lshl_add_u32 {t2}, {vC}, 2, {sT[0]}")
    g.ds(f"ds_write_b32 {t2}, {gate[1]}")
    g(f"v_xor_b32 {t0}, {vKq}, {vC}\nv_lshlrev_b32 {t0}, 4, {t0}\nv_lshl_add_u32 {t0}, {vC}, 8, {t0}\ns_lshl_b32 {sT[0]}, {sW}, 12\ns_add_u32 {sT[0]}, {sT[0]}, {C_BASE}\nv_add_u32 {t0}, {sT[0]}, {t0}")
    vHl = V.alloc(1)
    hb = Reg(A, 128, 128)
    sSt2 = S.alloc(1)

    def h_load(m):
        th, n = divmod(m, 28)
        if o.rot:
            if m == 28:
                g(f"v_add_u32 {vHl}, {112*1024}, {vHl}")
            so, off = sG4[n >> 1], (n & 1) * 1024
        else:
            if n % 4 == 0:
                g(f"s_mov_b32 {sSt2}, {th*112*1024 + n*1024}")
            so, off = sSt2, (n & 3) * 1024
        g.vm(f"buffer_load_dwordx4 {hb.r(4*(m & 31), 4)}, {vHl}, {R['ws']}, {so} offen offset:{off} sc1", f"H{m}")

    g(f"s_mul_i32 {sT[0]}, {sW}, {28*1024}\ns_add_u32 {sT[0]}, {sT[0]}, {sH2}\nv_add_u32 {vHl}, {sT[0]}, {vL16}")
    if o.fake & 4:
        g(f"v_mov_b32 {vHl}, {OOB}")
    Bg.flush(max(Bg.find("dma", 29), Bg.find("rd", o.rd_ha)))
    pump_off()
    def hbflag():
        g.wait(vm="Hst1")
        flag_set(F_HB)
        if o.l2pf & 8:
            g(f"v_lshlrev_b32 {vOne}, 5, {vP32}")
            g.vm(f"buffer_load_dword {vDum}, {vOne}, {R['ws']}, {sHst} offen sc1", "pf")
    pa.check(then=hbflag if o.hbflag_at < 0 else None)
    stamp("HA_flag")
    nxt = o.ahead
    hl = (h_load(m) for m in range(nxt))
    next(hl)
    g.pump = lambda: next(hl, None) if g.ta - g.clock < 30 else None
    bq = Reg(V, accs[1].base, 32)
    for T in range(4):
        g.wait(lg=f"y{T}")
        for i in range(2):
            for src, d in ((sv[8 + 2*T + i], 0), (qp[2*T + i], 4), (x1p[2*T + i], 8)):
                g(f"v_lshlrev_b32 {bq[d + 2*i]}, 16, {src}\nv_and_b32 {bq[d + 2*i + 1]}, {sMask}, {src}")
        for i in (0, 2):
            g(f"v_pk_mul_f32 {bq.r(i,2)}, {bq.r(i,2)}, {bq.r(4+i,2)}")
            g(f"v_pk_mul_f32 {bq.r(8+i,2)}, {bq.r(8+i,2)}, {gate} op_sel:[0,1] op_sel_hi:[1,1]")
        for i in (0, 2):
            g(f"v_pk_fma_f32 {bq.r(12 + 4*T + i, 2)}, {bq.r(i,2)}, {gate}, {bq.r(8+i,2)} op_sel_hi:[1,0,1]")
        g(f"v_xor_b32 {t2}, {64*T}, {t0}")
        g.ds(f"ds_write_b128 {t2}, {bq.r(12 + 4*T, 4)}", "bw")
    qp.free(); x1p.free(); hq.free()
    vPw, vPr, vOut, vOm = (V.alloc(1) for _ in range(4))
    stamp("base")
    class Fin:
        @staticmethod
        def r(i, n=1):
            return accs[0].r(i, n) if i < 32 else tmp.r(i - 32, n)

        def __getitem__(self, i):
            return self.r(i)
    fin = Fin()

    def partial_out(th):
        for ft in range(2):
            for q in range(4):
                g(f"v_xor_b32 {t2}, {128*ft + 32*q}, {vPw}")
                g.ds(f"ds_write_b128 {t2}, {accs[th].r(16*ft + 4*q, 4)} offset:{LA + th*32768}", f"pw{th}")
                yield

    def final(th, packed):
        g(f"v_xor_b32 {t0}, 16, {vPr}")
        for x, ad in enumerate((vPr, t0)):
            for w in range(4):
                g.ds(f"ds_read_b128 {fin.r(16*x + 4*w, 4)}, {ad} offset:{LA + th*32768 + w*8192}", f"f{x}")
                yield
        g(f"v_add_u32 {t2}, {C_BASE + th*8192}, {vPr}\nv_add_u32 {t3}, {C_BASE + th*8192}, {t0}")
        yield
        g.ds(f"ds_read_b128 {fin.r(32,4)}, {t2}", "fb")
        g.ds(f"ds_read_b128 {fin.r(36,4)}, {t3}", "fb")
        yield
        g(f"v_add_u32 {t2}, {C_OMG + th*128}, {vOm}")
        g.ds(f"ds_read_b32 {sv[0]}, {t2}", "fb")
        yield
        for x in range(2):
            g.wait(lg=f"f{x}")
            b = 16 * x
            for d, s in ((0, 4), (8, 12), (0, 8)):
                if packed:
                    for i in (0, 2):
                        g(f"v_pk_add_f32 {fin.r(b+d+i,2)}, {fin.r(b+d+i,2)}, {fin.r(b+s+i,2)}")
                else:
                    for i in range(4):
                        g(f"v_add_f32 {fin[b+d+i]}, {fin[b+d+i]}, {fin[b+s+i]}")
                        yield
        g.wait(lg="fb")
        for x in range(2):
            for i in range(4):
                g(f"v_fma_f32 {fin[16*x+i]}, {fin[16*x+i]}, {sv[0]}, {fin[32+4*x+i]}")
                yield
        for x in range(2):
            for i in range(2):
                g(f"v_cvt_pk_bf16_f32 {fin[4 + 2*x + i]}, {fin[16*x + 2*i]}, {fin[16*x + 2*i + 1]}")
                yield
        g(f"s_add_u32 {sT[0]}, {sPan}, {th*32768}")
        g.vm(f"buffer_store_dwordx4 {fin.r(4,4)}, {vOut}, {R['out']}, {sT[0]} offen {o.out_pol}", "out")
        yield

    def barrier_after(tag):
        g.wait(lg=tag)
        g("s_barrier")
        yield

    g(f"v_and_b32 {t0}, 31, v0\nv_lshrrev_b32 {t2}, 5, v0\nv_xor_b32 {t2}, {t2}, {vC}\nv_lshlrev_b32 {t2}, 4, {t2}\nv_lshl_add_u32 {t0}, {t0}, 8, {t2}")
    g(f"s_lshl_b32 {sT[0]}, {sW}, 13\nv_add_u32 {vPw}, {sT[0]}, {t0}")
    g(f"v_lshrrev_b32 {t0}, 3, v0\ns_lshl_b32 {sT[0]}, {sW}, 3\nv_add_u32 {t0}, {sT[0]}, {t0}")
    g(f"v_lshlrev_b32 {t3}, 4, {vS8}\nv_lshl_add_u32 {vOut}, {t0}, 10, {t3}")
    g(f"v_lshlrev_b32 {t2}, 1, {vS8}\nv_and_b32 {t3}, 15, {t0}\nv_xor_b32 {t2}, {t2}, {t3}\nv_lshlrev_b32 {t2}, 4, {t2}\nv_lshl_add_u32 {vPr}, {t0}, 8, {t2}")
    g(f"v_lshlrev_b32 {vOm}, 2, {t0}")
    Bg.cap = len(Bg.ops)
    g.held += 1
    while Bg.idx < Bg.find("rd", 27):
        Bg.step(True)
        g.pump()
    g.held -= 1
    g.pump = None
    run(hl)
    fillers = []
    for m in range(56):
        th, n = divmod(m, 28)
        if n % 2 == 0 and th == 0:
            Bg.flush(Bg.find("rd", 16 + n // 2))
            g.wait(lg=f"sr{16 + n//2}")
        if m == 28:
            stamp("g4_0"); idle("g4_0")
            po = partial_out(0)
        if 29 <= m < 37:
            next(po)
        if m == o.bar_at:
            drain(fillers)
            fillers = [barrier_after("pw0"), final(0, False)]
        if m == o.hbflag_at:
            hbflag()
        if m % 7 == 0:
            mark(3, f"m{m}")
        g.wait(vm=f"H{m}")
        for ft in range(2):
            c = accs[th].r(16*ft, 16)
            g(f"v_mfma_f32_32x32x16_bf16 {c}, {w4home(n, ft)}, {hb.r(4*(m & 31), 4)}, {c if n else 0}")
            if ft == 0:
                if m == o.bpoll_at:
                    pb.issue()
                if nxt == 28:
                    pb.check()
                if nxt < 56:
                    h_load(nxt)
                    nxt += 1
            if not (m == 28 and ft == 0):
                fill(fillers, 0, reserve=4 * ft)
    drain(fillers)
    stamp("g4_1")
    run(partial_out(1))
    run(barrier_after("pw1"))
    run(final(1, True))
    stamp("end")
    stamp("end_real", real=True)
    if o.stamps:
        g(f"s_lshl_b32 {sT[0]}, s2, 2\ns_add_u32 {sT[0]}, {sT[0]}, {sW}\ns_lshl_b32 {sT[0]}, {sT[0]}, 8\ns_add_u32 {sT[0]}, {sT[0]}, {STAMPS}")
        g(f"buffer_store_dword {vStamp}, {vL4}, {R['ws']}, {sT[0]} offen")
    if amp:
        g(f"s_cmp_lg_u32 s2, 77\ns_cbranch_scc1 L_end")
        g(f"s_sub_u32 {sAmp[2]}, {sAmp[2]}, {sAmp[0]}\ns_mul_i32 {sAmp[2]}, {sAmp[2]}, {amp[2]}\ns_min_u32 {sAmp[2]}, {sAmp[2]}, 100000")
        g(f"s_memrealtime {sAmp.r(0,2)}\ns_waitcnt lgkmcnt(0)")
        g(f"L_amp:\ns_memrealtime {sStamp}\ns_waitcnt lgkmcnt(0)\ns_sub_u32 {sStamp[0]}, {sStamp[0]}, {sAmp[0]}")
        g(f"s_cmp_lt_u32 {sStamp[0]}, {sAmp[2]}\ns_cbranch_scc1 L_amp")
    g("s_endpgm")
    for t in tail:
        g(t)
    g("L_end:\ns_endpgm")
    body = g.text(o.align)
    info = dict(nops=g.nops, vhigh=V.high, shigh=S.high, stamps=stamp_names, lines=len(g.lines), clock=g.clock, model=model, bgat=bgat)
    return file_text([(KNAME, 256, 256, LDS_BYTES)], [(KNAME, body, 512, 256, 102)]), info


REF = "gated_mix__ssm_conv_h3__mixer_s_mlp__prompt.s.ref"
HEADER = open(REF).read().split("; Override launch")[0] if os.path.exists(REF) else ""


def set_opts(args):
    for kv in args:
        k, v = kv.split("=")
        cur = getattr(Opt, k)
        setattr(Opt, k, type(cur)(int(v)) if isinstance(cur, (bool, int)) else v)


if __name__ == "__main__":
    out = sys.argv[1] if len(sys.argv) > 1 else "k.s"
    set_opts(sys.argv[2:])
    text, info = build(Opt)
    open(out, "w").write(HEADER + text)
    print(info)
```

```python
import copy
import os
import struct
import sys
from asmlib import ARG, NBYTES, KNAME, file_text
from kgen import Gen, Reg, merge_queues

F_H, F_U, F_X1, F_Y, F_HA, F_HB = 1, 2, 3, 4, 5, 6
LFLAG = 0x20000
STATS = 0x40000
HBUF, X1BUF, UBUF, YBUF, H2BUF = 0x100000, 0x300000, 0x500000, 0x700000, 0x900000
STAMPS = 0x2000000
OOB = 0x40000000

LA, LB, LC = 0, 65536, 131072
C_K, C_V, C_Q, C_CS = LC, LC + 9216, LC + 17920, LC + 26112
C_H, C_U = LC, LC + 8448
HP, UP = 4224, 1152
C_Y, C_BASE, C_OMG, C_STD = LC, LC + 8192, LC + 24576, LC + 26624
A_N = LC + 17920
NP = 6912
LDS_BYTES = 163840

GELU_C0 = -2.302208198144325
GELU_C1 = GELU_C0 * 0.044715
LOG2E = 1.4426950408889634

TILES = ([7, 6, 2], [5, 4, 3, 1, 0])


def fbits(x):
    return "0x%08x" % struct.unpack("<I", struct.pack("<f", x))[0]


class Opt:
    stamps = 0
    fine = 0
    amp = ""
    nt_once = ""
    out_pol = "sc1"
    code_pf = True
    code_bytes = 40960
    align = True
    nap = 0
    period = 85
    lat = 700
    thresh = 100
    thresh1 = 500
    fake = 0
    t3 = 3
    abl = 0
    tail_bg = False
    hpoll = 2
    idle = ""
    touch4 = 6
    rotj = 0
    tx1 = ""
    tx2 = ""
    tx34 = ""
    t3_at = 10
    cap0 = "x3"
    t3_first = "x0"
    touch1 = "x0"
    bg_u = 5
    rd_ha = 24
    touch = 3
    touch2 = "w1b"
    pre2 = True
    local = True
    dpoll_at = 16
    bg_a = 0
    bg_b = 1
    cap_p2 = 6
    l2pf = 0
    cap2 = 15
    upoll_at = 11
    ucheck_at = 16
    bdist = 6
    hflag_m = 8
    bar_at = 46
    yflag_at = 10
    rot = False
    xflag_at = 24
    xpoll_at = 104
    xcheck_at = 126
    norm1_at = 10
    cap_a = 23
    l1_early = 8
    cap_b = 27
    q3a = 0
    q3b = 0
    haflag_at = 1
    hbflag_at = -1
    apoll_at = 4
    bpoll_at = 10
    ahead = 9


def build(o=Opt):
    g = Gen()
    g.vm_cost, g.vm_lat, g.vm_win = o.period, o.lat, 8 * o.period
    V, A, S = g.V, g.A, g.S
    names = ["q", "ws", "w1", "w2", "dbg", "k", "v", "shift_k", "ssm_D", "gate_w", "w3", "w4", "ssm_k", "out"]
    R = {n: S.alloc(4, align=4) for n in names}
    sW, sJ, sP, sPP, sX = (S.alloc(1) for _ in range(5))
    sT = S.alloc(4, align=2)
    sOnes, sLo1, sHi1, sMask, sTmo = (S.alloc(1) for _ in range(5))
    sStamp = S.alloc(2, align=2) if (o.stamps or o.amp) else None
    vStamp = V.alloc(1)
    stamp_names = []
    amp = o.amp.split(",") if o.amp else None
    sAmp = S.alloc(4, align=2) if amp else None
    tail = []

    model, bgat = {}, {}

    def stamp(name, real=False):
        model[name] = g.clock
        bgat[name] = "%s%s" % Bg.ops[Bg.idx][:2] if Bg.idx < len(Bg.ops) else "end"
        with g.hold():
            if amp and name in amp[:2]:
                g(f"s_memrealtime {sAmp.r(2*amp.index(name), 2)}")
                g.smem = True
                g.wait(lg="*")
            if o.stamps in (1, 3) or (o.stamps == 2 and real):
                g(f"s_mem{'real' if real or o.stamps == 3 else ''}time {sStamp}")
                g.smem = True
                g.wait(lg="*")
                if name not in stamp_names:
                    stamp_names.append(name)
                g(f"v_writelane_b32 {vStamp}, {sStamp[0]}, {stamp_names.index(name)}")

    def idle(name):
        if name in o.idle.split(":"):
            g("s_sleep 16")

    def mark(level, name):
        if o.fine == level:
            stamp(name)

    def flag_set(val):
        with g.hold():
            g(f"s_mov_b64 exec, 1\nv_mov_b32 {vOne}, {val}")
            if o.local and val not in (F_U, F_Y):
                g.vm(f"buffer_store_dword {vOne}, off, {R['ws']}, {sLf}", "flag")
            g.vm(f"buffer_store_dword {vOne}, off, {R['ws']}, {sFl} sc1", "flag")
            g("s_mov_b64 exec, -1")

    class Poll:
        def __init__(self, srd, vaddr, soff, need, local=False):
            self.t = V.alloc(1)
            self.tag = g.label("poll")
            self.cmp = f"v_cmp_gt_u32 vcc, {need}, {self.t}"
            self.ld = f"buffer_load_dword {self.t}, {vaddr}, {srd}, {soff} offen sc1"
            self.first = self.ld
            self.pre = ""
            if local:
                self.ld = f"v_lshlrev_b32 {self.t}, 5, {vaddr}\nbuffer_load_dword {self.t}, {self.t}, {srd}, {sFp} offen sc1"
                self.first = self.ld
                if o.local:
                    self.first = f"buffer_load_dword {self.t}, {vaddr}, {srd}, {sLp} offen sc1"
                    self.pre = self.first

        def issue(self):
            with g.hold():
                g.vm(self.first, self.tag)

        def check(self, free=True, then=None):
            n = g.label("chk")
            with g.hold():
                g.wait(vm=self.tag)
                if then:
                    then()
                g(f"{self.cmp}\ns_cbranch_vccnz {n}_slow\n{n}_ok:")
                if o.stamps == 4:
                    if self.tag not in stamp_names:
                        stamp_names.append(self.tag)
                    g(f"v_writelane_b32 {vStamp}, {sTmo}, {stamp_names.index(self.tag)}")
            nap = f"s_sleep {o.nap}\n" if o.nap else ""
            for _ in range(3 if self.pre else 0):
                nap += (f"s_sub_u32 {sTmo}, {sTmo}, 1\n" if o.stamps == 4 else "") + f"{self.pre}\ns_waitcnt vmcnt(0)\n{self.cmp}\ns_cbranch_vccz {n}_ok\n"
            tail.append(f"{n}_slow:\ns_sub_u32 {sTmo}, {sTmo}, 1\ns_cbranch_scc1 {n}_out\n{nap}{self.ld}\ns_waitcnt vmcnt(0)\n"
                        f"{self.cmp}\ns_cbranch_vccnz {n}_slow\ns_branch {n}_ok\n"
                        f"{n}_out:\ns_mov_b32 {sTmo}, 0\ns_branch {n}_ok")
            if free:
                self.t.free()

    def round_bf16(r):
        g(f"v_cvt_pk_bf16_f32 {r}, {r}, {r}")
        yield
        g(f"v_and_b32 {r}, {sMask}, {r}")
        yield

    def ln_mean(s1, negmu):
        g(f"v_mul_f32 {negmu}, {fbits(-1.0/512)}, {s1}")
        yield
        yield from round_bf16(negmu)

    def ln_std(s1, s2, std):
        for t in (f"v_mul_f32 {s1}, {fbits(1.0/512)}, {s1}", f"v_mul_f32 {s2}, {fbits(1.0/512)}, {s2}",
                  f"v_fma_f32 {s2}, -{s1}, {s1}, {s2}", f"v_max_f32 {s2}, 0, {s2}"):
            g(t)
            yield
        yield from round_bf16(s2)
        g(f"v_add_f32 {s2}, {fbits(1e-5)}, {s2}")
        yield
        yield from round_bf16(s2)
        g(f"v_sqrt_f32 {std}, {s2}\ns_nop 0")
        yield
        yield from round_bf16(std)

    def ln_scale(gk):
        g(f"v_rcp_f32 {gk[3]}, {gk[2]}\ns_nop 0")
        yield
        for t in (f"v_mul_f32 {gk[1]}, {fbits(GELU_C0)}, {gk[3]}", f"v_mul_f32 {gk[0]}, {gk[3]}, {gk[3]}",
                  f"v_mul_f32 {gk[0]}, {gk[0]}, {gk[3]}", f"v_mul_f32 {gk[0]}, {fbits(GELU_C1)}, {gk[0]}"):
            g(t)
            yield

    def ln_stats(s1, s2, negmu, gk):
        for t in (f"v_mul_f32 {negmu}, {fbits(-1.0/512)}, {s1}", f"v_mul_f32 {s2}, {fbits(1.0/512)}, {s2}",
                  f"v_fma_f32 {s2}, -{negmu}, {negmu}, {s2}", f"v_max_f32 {s2}, 0, {s2}"):
            g(t)
            yield
        yield from round_bf16(s2)
        g(f"v_add_f32 {s2}, {fbits(1e-5)}, {s2}")
        yield
        yield from round_bf16(s2)
        g(f"v_sqrt_f32 {gk[2]}, {s2}")
        yield
        yield from round_bf16(negmu)
        yield from round_bf16(gk[2])
        g(f"v_rcp_f32 {s2}, {gk[2]}\ns_nop 0")
        yield
        for t in (f"v_mul_f32 {gk[1]}, {fbits(GELU_C0)}, {s2}", f"v_mul_f32 {gk[0]}, {s2}, {s2}",
                  f"v_mul_f32 {gk[0]}, {gk[0]}, {s2}", f"v_mul_f32 {gk[0]}, {fbits(GELU_C1)}, {gk[0]}"):
            g(t)
            yield

    def center_dot(regs, negmu, tmp):
        for b in range(0, len(regs), 4):
            for i in range(4):
                g(f"v_dot2_f32_bf16 {tmp[2*i]}, {regs[b+i]}, {sLo1}, {negmu}")
                g(f"v_dot2_f32_bf16 {tmp[2*i+1]}, {regs[b+i]}, {sHi1}, {negmu}")
            for i in range(4):
                g(f"v_cvt_pk_bf16_f32 {regs[b+i]}, {tmp[2*i]}, {tmp[2*i+1]}")
            yield

    def center_plain(regs, negmu, tmp):
        for i, r in enumerate(regs):
            a, b = tmp[2*(i & 1)], tmp[2*(i & 1) + 1]
            for t in (f"v_lshlrev_b32 {a}, 16, {r}", f"v_and_b32 {b}, {sMask}, {r}", f"v_add_f32 {a}, {a}, {negmu}",
                      f"v_add_f32 {b}, {b}, {negmu}", f"v_cvt_pk_bf16_f32 {r}, {a}, {b}"):
                g(t)
                yield

    def gelu_pk(acc, n, gk, out, tmp, done=None):
        kk, ss = gk.r(0, 2), gk.r(2, 2)
        for b in range(0, n, 8):
            P = range(0, 8, 2)
            for i in P:
                g(f"v_pk_mul_f32 {tmp.r(i,2)}, {acc.r(b+i,2)}, {acc.r(b+i,2)}")
            for i in P:
                g(f"v_pk_fma_f32 {tmp.r(i,2)}, {tmp.r(i,2)}, {kk}, {kk} op_sel:[0,0,1] op_sel_hi:[1,0,1]")
            for i in P:
                g(f"v_pk_mul_f32 {tmp.r(i,2)}, {tmp.r(i,2)}, {acc.r(b+i,2)}")
            for i in range(8):
                g(f"v_exp_f32 {tmp[i]}, {tmp[i]}")
            for i in P:
                g(f"v_pk_fma_f32 {tmp.r(i,2)}, {tmp.r(i,2)}, {ss}, {ss} op_sel_hi:[1,0,0]")
            for i in range(8):
                g(f"v_rcp_f32 {tmp[i]}, {tmp[i]}")
            for i in P:
                g(f"v_pk_mul_f32 {tmp.r(i,2)}, {tmp.r(i,2)}, {acc.r(b+i,2)}")
            for i in P:
                g(f"v_cvt_pk_bf16_f32 {out[(b+i)//2 % out.n]}, {tmp[i]}, {tmp[i+1]}")
            if done:
                done(b // 8)

    def gelu_plain(acc, n, gk, out, tmp, done):
        streams = [[], []]
        left = {}
        for b in range(0, n, 4):
            h = (b // 4) & 1
            T = [tmp[4*h + i] for i in range(4)]
            Q = range(4)
            ops = [f"v_mul_f32 {T[i]}, {acc[b+i]}, {acc[b+i]}" for i in Q]
            ops += [f"v_fma_f32 {T[i]}, {T[i]}, {gk[0]}, {gk[1]}" for i in Q]
            ops += [f"v_mul_f32 {T[i]}, {T[i]}, {acc[b+i]}" for i in Q]
            ops += [f"v_exp_f32 {T[i]}, {T[i]}" for i in Q]
            ops += [f"v_fma_f32 {T[i]}, {T[i]}, {gk[2]}, {gk[2]}" for i in Q]
            ops += [f"v_rcp_f32 {T[i]}, {T[i]}" for i in Q]
            ops += [f"v_mul_f32 {T[i]}, {T[i]}, {acc[b+i]}" for i in Q]
            f = b // 8
            left[f] = 2

            def guard(f=f):
                assert left.get(f - 2, 0) == 0
            ops += [(0, guard)] + [f"v_cvt_pk_bf16_f32 {out[(b+i)//2 % out.n]}, {T[i]}, {T[i+1]}" for i in (0, 2)]

            def fin(f=f):
                left[f] -= 1
                if left[f] == 0:
                    done(f)
            streams[h] += (ops[-3:] if o.abl & 4 else ops) + [(4, fin)]
        streams[1] = [(0, lambda: None)] * 12 + streams[1]
        return streams

    def run(it):
        for _ in it:
            pass

    def chain(*its):
        for it in its:
            yield from it

    class Bg:
        ops, idx, cap = [], 0, 0
        dma_on = True
        last, gap = 0, 0
        thresh = o.thresh

        @classmethod
        def ready(cls, force=False):
            if cls.idx >= min(cls.cap, len(cls.ops)):
                return False
            kind, key, _ = cls.ops[cls.idx]
            if force:
                return True
            if kind == "dma":
                return cls.dma_on and g.backlog() < cls.thresh and g.ta - g.clock < 30 and g.clock >= cls.last + cls.gap
            if kind == "rd0":
                return g.clock >= g.vmt[f"sd{key}"]
            return True

        @classmethod
        def step(cls, force=False):
            if not cls.ready(force):
                return False
            kind, key, fn = cls.ops[cls.idx]
            cls.idx += 1
            with g.hold():
                fn()
            if kind == "dma":
                cls.last = g.clock
            return True

        @classmethod
        def find(cls, kind, key):
            return max(i for i, (k, y, _) in enumerate(cls.ops) if y == key and k.startswith(kind)) + 1

        @classmethod
        def flush(cls, idx):
            cap, cls.cap = cls.cap, max(cls.cap, idx)
            while cls.idx < idx:
                cls.step(True)
            cls.cap = cap

        @classmethod
        def burst(cls, n):
            while n > 0 and cls.idx < min(cls.cap, len(cls.ops)):
                kind = cls.ops[cls.idx][0]
                if kind == "rd0" and not cls.ready():
                    break
                cls.step(True)
                n -= kind == "dma"

    def pump_on():
        g.pump = Bg.step

    def pump_off():
        g.pump = None

    class Ops:
        def __init__(self, items):
            self.items = list(items)

        def cost(self):
            it = self.items[0]
            return it[0] if isinstance(it, tuple) else 8 if it.startswith(("v_exp", "v_rcp", "v_sqrt")) else 4

        def emit(self):
            it = self.items.pop(0)
            it[1]() if isinstance(it, tuple) else g(it)

        def drain(self):
            while self.items:
                self.emit()

    def fill(fillers, over=0, reserve=0):
        while True:
            room = g.slack() - reserve + over
            if room >= 4 and Bg.step():
                continue
            live = [f for f in fillers if (f.items if isinstance(f, Ops) else True)]
            fillers[:] = live
            pick = None
            for f in live:
                if not isinstance(f, Ops):
                    pick = f if room >= 4 else None
                    break
                if f.cost() <= room and (pick is None or len(f.items) > len(pick.items)):
                    pick = f
            if pick is None:
                return
            if isinstance(pick, Ops):
                pick.emit()
            elif next(pick, 1) is not None:
                fillers.remove(pick)

    def drain(fillers):
        while fillers:
            f = fillers[0]
            if isinstance(f, Ops):
                others = [x for x in fillers if isinstance(x, Ops) and x.items]
                while others:
                    for x in others:
                        x.emit()
                    others = [x for x in others if x.items]
                fillers[:] = [x for x in fillers if not isinstance(x, Ops)]
            else:
                run(f)
                fillers.pop(0)

    g("s_cmp_ge_u32 s2, 256\ns_cbranch_scc1 L_end")
    if amp and amp[0] == "entry":
        g(f"s_memrealtime {sAmp.r(0,2)}")
    for n in names:
        g(f"s_load_dwordx2 {R[n].r(0,2)}, s[0:1], {ARG[n]}")
    g.smem = True
    vOne, vL16, vL4, vDum = (V.alloc(1) for _ in range(4))
    t0, t2, t3 = (V.alloc(1) for _ in range(3))
    if o.code_pf:
        pc = V.alloc(2)
        per = o.code_bytes // 32
        assert per <= 2048
        g(f"s_getpc_b64 {sT.r(0,2)}")
        g(f"s_lshr_b32 {sT[2]}, s2, 3\ns_mul_i32 {sT[2]}, {sT[2]}, {per}")
        g(f"v_lshl_add_u32 {t0}, v0, 3, {sT[2]}")
        g(f"v_min_u32 {t0}, L_end-L_pc, {t0}")
        g("L_pc:")
        g(f"v_mov_b32 {pc[1]}, {sT[1]}")
        g(f"v_add_co_u32 {pc[0]}, vcc, {sT[0]}, {t0}")
        g(f"s_nop 1\nv_addc_co_u32 {pc[1]}, vcc, 0, {pc[1]}, vcc")
        g.vm(f"global_load_dword {vDum}, {pc}, off", "pf")
        pc.free()
    g(f"v_lshrrev_b32 {t0}, 6, v0\nv_and_b32 v0, 63, v0\nv_readfirstlane_b32 {sW}, {t0}")
    g(f"s_and_b32 {sX}, s2, 7\ns_lshr_b32 {sT[0]}, s2, 3\ns_and_b32 {sJ}, {sT[0]}, 7\ns_lshr_b32 {sPP}, {sT[0]}, 3")
    g(f"s_lshl_b32 {sP}, {sX}, 2\ns_add_u32 {sP}, {sP}, {sPP}")

    def srd_words(ns):
        for n in ns:
            g(f"s_mov_b32 {R[n][2]}, {NBYTES[n]}\ns_mov_b32 {R[n][3]}, 0x00020000")
    srd_words(names[:4])
    vC, vKq, vR8, vS8 = (V.alloc(1) for _ in range(4))
    g(f"v_and_b32 {vC}, 15, v0\nv_lshrrev_b32 {vKq}, 4, v0\nv_lshrrev_b32 {vR8}, 3, v0\nv_lshlrev_b32 {vR8}, 10, {vR8}\nv_and_b32 {vS8}, 7, v0")
    sLdsW, sCol, sPan, sKV, sKV2, sC2 = (S.alloc(1) for _ in range(6))
    g(f"s_lshl_b32 {sLdsW}, {sW}, 14\ns_lshl_b32 {sCol}, {sJ}, 7\ns_lshl_b32 {sPan}, {sP}, 16\ns_add_u32 {sPan}, {sPan}, {sCol}")
    g(f"s_add_u32 {sKV}, {sLdsW}, {sPan}\ns_lshl_b32 {sC2}, {sW}, 11\ns_add_u32 {sKV2}, {sKV}, 7168")
    if o.stamps:
        g(f"v_mov_b32 {vStamp}, 0")
    g(f"s_lshr_b32 {sT[0]}, {sJ}, 2\ns_add_u32 {sT[0]}, {sT[0]}, 1\ns_sub_u32 {sT[1]}, 0, {sT[0]}")
    g(f"s_bitcmp1_b32 {sJ}, 1\ns_cselect_b32 {sT[0]}, {sT[0]}, {sT[1]}\ns_lshl_b32 {sT[0]}, {sT[0]}, 10")
    g(f"s_sub_u32 {sT[1]}, {sKV}, {sCol}\ns_add_u32 {sT[0]}, {sT[0]}, {sT[1]}")
    vQa, xd = V.alloc(2), V.alloc(2)
    g(f"v_xor_b32 {t0}, {vS8}, {vKq}\nv_lshl_add_u32 {vQa[0]}, {t0}, 4, {vR8}\nv_xor_b32 {vQa[1]}, 64, {vQa[0]}\nv_add_u32 {vQa[1]}, 7168, {vQa[1]}")
    g(f"v_add_u32 {xd[0]}, {sT[0]}, {vQa[0]}\nv_add_u32 {xd[1]}, {sT[0]}, {vQa[1]}")
    g.wait(lg="*")
    stamp("start_real", real=True)
    stamp("start")
    sM, sOff, sWo = S.alloc(1), S.alloc(1), S.alloc(1)
    wd = V.alloc(4, at=152)

    def x_dma(n, hh):
        if g.m0 != ("x", n):
            g(f"s_add_u32 m0, {sLdsW}, {LA + n*2048}\ns_xor_b32 {sWo}, {sCol}, {n << 7}")
            g.m0 = ("x", n)
        g.vm(f"buffer_load_dwordx4 {xd[hh]}, {R['q']}, {sWo} offen offset:{hh*1024} lds", f"x{n}")

    def w_dma(name, base, n, i):
        key = (name, n)
        sh = 2 if name == "w1" else 0
        if g.m0 != key:
            g(f"s_xor_b32 m0, {sM}, {base + (n << (12 + sh))}\ns_xor_b32 {sWo}, {sOff}, {n << (15 + sh)}")
            g.m0 = key
        g.vm(f"buffer_load_dwordx4 {wd[i]}, {R[name]}, {sWo} offen offset:{i*1024} lds", name + ("ab"[n >> 1] if sh else ""))

    for n in range(8):
        for hh in range(2):
            Bg.ops.append(("dma", f"x{n}", lambda n=n, hh=hh: x_dma(n, hh)))
    for n in range(4):
        for i in range(4):
            Bg.ops.append(("dma", "w1" + "ab"[n >> 1], lambda n=n, i=i: w_dma("w1", LB, n, i)))
    g.vm_lat = 1500

    def touch(n, bufs, sWo=sWo):
        g(f"s_lshl_b32 {sWo}, s2, 2\ns_add_u32 {sWo}, {sWo}, {sW}\ns_mul_i32 {sWo}, {sWo}, {n*128}\nv_min_u32 {vOne}, {n-1}, v0\nv_lshlrev_b32 {vOne}, 7, {vOne}")
        for b in bufs:
            g.vm(f"buffer_load_dword {vDum}, {vOne}, {R[b]}, {sWo} offen", "pf")
        g.m0 = None

    def touch3(n, bufs, sreg):
        g(f"s_lshr_b32 {sreg}, s2, 3\ns_lshl_b32 {sreg}, {sreg}, 2\ns_add_u32 {sreg}, {sreg}, {sW}\ns_mul_i32 {sreg}, {sreg}, {n*1024}")
        g(f"v_min_u32 {vOne}, {n-1}, v0\nv_lshlrev_b32 {vOne}, 10, {vOne}")
        for b in bufs:
            g.vm(f"buffer_load_dword {vDum}, {vOne}, {R[b]}, {sreg} offen offset:384", "pf")
        g.m0 = None
    if o.touch & 1:
        at = Bg.find("dma", o.touch1)
        Bg.ops[at:at] = [("dma", "tch0", lambda: touch(4, ("w1", "w2")))]

    def touchx(buf, n, part, sreg):
        g(f"s_lshr_b32 {sreg}, s2, 3\ns_lshl_b32 {sreg}, {sreg}, 2\ns_add_u32 {sreg}, {sreg}, {sW}\ns_mul_i32 {sreg}, {sreg}, {n*128}")
        if part:
            g(f"s_add_u32 {sreg}, {sreg}, {part*n*128*128}")
        g(f"v_min_u32 {vOne}, {n-1}, v0\nv_lshlrev_b32 {vOne}, 7, {vOne}")
        g.vm(f"buffer_load_dword {vDum}, {vOne}, {R[buf]}, {sreg} offen", "pf")
        g.m0 = None
    if o.tx1:
        at = Bg.find("dma", o.tx1) if o.tx1 != "0" else 0
        Bg.ops[at:at] = [("dma", "tx1", lambda: touchx("w1", 32, 0, sWo))]
    if o.tx2:
        at = Bg.find("dma", o.tx2)
        Bg.ops[at:at] = [("dma", "tx2", lambda: touchx("w2", 32, 0, sWo))]
    if o.t3 & 1:
        at = Bg.find("dma", o.t3_first)
        Bg.ops[at:at] = [("dma", "tch1", lambda: touch3(4, ("w1", "w2"), sWo))]
    Bg.flush(1)
    g.vm_lat = o.lat
    Bg.flush(Bg.find("dma", "x1"))
    sFp, sFl, sLp, sLf, sLead = (S.alloc(1) for _ in range(5))
    vP32 = V.alloc(1)
    z = V.alloc(4, at=160)
    g(f"v_and_b32 {vP32}, 31, v0\nv_lshlrev_b32 {vP32}, 2, {vP32}\ns_lshl_b32 {sFp}, {sP}, 12\nv_lshlrev_b32 {vL16}, 4, v0")
    g(f"v_mov_b32 {z[0]}, 0\nv_mov_b32 {z[1]}, 0\nv_mov_b32 {z[2]}, 0\nv_mov_b32 {z[3]}, 0\nv_lshlrev_b32 {t0}, 4, {vS8}")
    g(f"s_lshl_b32 {sLp}, {sP}, 7\ns_add_u32 {sLp}, {sLp}, {LFLAG}")
    g(f"s_lshl_b32 {sT[0]}, {sJ}, 2\ns_add_u32 {sT[0]}, {sT[0]}, {sW}\ns_lshl_b32 {sFl}, {sT[0]}, 7\ns_add_u32 {sFl}, {sFl}, {sFp}")
    g(f"s_lshl_b32 {sLf}, {sT[0]}, 2\ns_add_u32 {sLf}, {sLf}, {sLp}")
    g(f"s_lshl_b32 {sT[1]}, {sP}, 2\ns_cmp_eq_u32 {sT[0]}, 0\ns_cselect_b32 {sLead}, {sT[1]}, {OOB}\ns_cselect_b32 {sT[2]}, {sLp}, {OOB}")
    g(f"s_lshl_b32 {sT[1]}, {sW}, 10\ns_add_u32 {sT[1]}, {sT[1]}, {sFp}\ns_cmp_eq_u32 {sJ}, 0\ns_cselect_b32 {sT[3]}, {sT[1]}, {OOB}")
    g.vm(f"buffer_store_dwordx4 {z}, {vL16}, {R['ws']}, {sT[3]} offen sc1", "clr", cost=30)
    g.vm(f"buffer_store_dwordx4 {z}, {t0}, {R['ws']}, {sT[2]} offen sc1", "clr", cost=30)
    z.free()
    Bg.cap = Bg.find("dma", o.cap0)
    Bg.thresh = o.thresh1
    pump_on()
    srd_words(names[4:])
    g(f"v_and_b32 {t0}, 1, {vKq}\nv_lshlrev_b32 {t0}, 1, {t0}\nv_xor_b32 {t0}, {t0}, {vS8}\nv_lshl_add_u32 {wd[0]}, {t0}, 4, {vR8}")
    g(f"v_xor_b32 {t0}, 64, {wd[0]}\nv_add_u32 {wd[1]}, 7168, {t0}\nv_add_u32 {wd[2]}, 14336, {wd[0]}\nv_add_u32 {wd[3]}, 21504, {t0}")
    g(f"s_and_b32 {sT[0]}, {sPP}, 1\ns_lshl_b32 {sT[0]}, {sT[0]}, 2\ns_add_u32 {sT[0]}, {sT[0]}, {sW}\ns_lshl_b32 {sM}, {sT[0]}, 12")
    g(f"s_lshl_b32 {sT[1]}, {sJ}, 1\ns_xor_b32 {sT[0]}, {sT[0]}, {sT[1]}\ns_lshl_b32 {sOff}, {sT[0]}, 15\ns_add_u32 {sOff}, {sOff}, {sCol}")
    vW2, vV, vK0, vSk = V.alloc(1), V.alloc(2), V.alloc(1), V.alloc(1)
    sK0, sSk = S.alloc(1), S.alloc(1)
    g(f"v_lshlrev_b32 {t0}, 1, {vKq}\nv_xor_b32 {t0}, {t0}, {vS8}\nv_lshl_add_u32 {vW2}, {t0}, 4, {vR8}")
    g(f"v_lshrrev_b32 {t2}, 5, v0\nv_lshlrev_b32 {t2}, 1, {t2}\nv_xor_b32 {t2}, {t2}, {vS8}\nv_lshl_add_u32 {vV[0]}, {t2}, 4, {vR8}\nv_xor_b32 {vV[1]}, 64, {vV[0]}")
    g(f"s_sub_u32 {sT[0]}, {sPan}, 8192\ns_add_u32 {sT[1]}, {sC2}, {C_Q}\ns_cmp_eq_u32 {sW}, 0\n"
      f"s_cselect_b32 {sT[0]}, {sT[0]}, {OOB}\ns_cselect_b32 {sK0}, {C_K}, {sT[1]}\nv_add_u32 {vK0}, {sT[0]}, {vW2}")
    g(f"v_lshlrev_b32 {vSk}, 3, {vC}\ns_lshl_b32 {sT[2]}, {sJ}, 9\ns_lshl_b32 {sT[3]}, {sW}, 7\ns_add_u32 {sSk}, {sT[2]}, {sT[3]}")
    vR8.free()
    g(f"s_mov_b32 {sOnes}, 0x3f803f80\ns_mov_b32 {sLo1}, 0x00003f80\ns_mov_b32 {sHi1}, 0x3f800000")
    g(f"s_mov_b32 {sMask}, 0xffff0000\ns_mov_b32 {sTmo}, 0x40000")
    g(f"v_lshlrev_b32 {vL4}, 2, v0")

    vR4, vC8 = V.alloc(1), V.alloc(1)
    g(f"v_bfe_u32 {vR4}, v0, 2, 2\nv_and_b32 {vC8}, 3, v0\nv_lshlrev_b32 {vC8}, 3, {vC8}")
    ka = V.alloc(3)
    for m in range(2):
        g(f"v_sub_u32 {t0}, {vKq}, {vR4}\nv_add_u32 {t0}, {8 + 4*m}, {t0}\nv_bfe_u32 {t2}, {t0}, 1, 2\nv_xor_b32 {t2}, {sW}, {t2}")
        g(f"v_lshl_add_u32 {t2}, {t2}, 5, {vC8}\nv_lshl_add_u32 {t2}, {t0}, 7, {t2}\nv_add_u32 {ka[m]}, {C_K}, {t2}")
    g(f"v_lshl_add_u32 {t0}, {vR4}, 2, {vKq}\nv_xor_b32 {t2}, {sW}, {vR4}\nv_lshl_add_u32 {t2}, {t2}, 5, {vC8}")
    g(f"v_lshl_add_u32 {t2}, {t0}, 7, {t2}\nv_add_u32 {ka[2]}, {C_V}, {t2}")
    sQ = S.alloc(1)
    ua = V.alloc(2)
    g(f"s_add_u32 {sQ}, {sC2}, {C_Q}")
    g(f"v_and_b32 {t0}, 7, {vC}\nv_lshlrev_b32 {t2}, 1, {vKq}\nv_xor_b32 {t0}, {t0}, {t2}\nv_lshlrev_b32 {t0}, 4, {t0}")
    g(f"v_lshl_add_u32 {t0}, {vC}, 7, {t0}\nv_add_u32 {ua[0]}, {sQ}, {t0}")
    g(f"v_lshrrev_b32 {t0}, 3, v0\nv_xor_b32 {t2}, {t0}, {vS8}\nv_lshlrev_b32 {t2}, 4, {t2}")
    g(f"v_lshl_add_u32 {t2}, {t0}, 7, {t2}\nv_add_u32 {ua[1]}, {sQ}, {t2}")
    vT4k = V.alloc(1)
    g(f"v_lshlrev_b32 {t3}, 4, {vS8}\nv_lshl_add_u32 {vT4k}, {t0}, 12, {t3}")
    xa = V.alloc(2)
    g(f"v_lshrrev_b32 {t0}, 1, {vC}\nv_xor_b32 {t0}, {t0}, {vKq}\nv_lshlrev_b32 {t0}, 4, {t0}\nv_lshl_add_u32 {t0}, {vC}, 7, {t0}")
    g(f"v_add_u32 {xa[0]}, {sLdsW}, {t0}\nv_xor_b32 {xa[1]}, 64, {xa[0]}")
    wa = V.alloc(8, at=144)
    g(f"v_lshl_add_u32 {t0}, {vKq}, 3, {vR4}\nv_lshl_add_u32 {t0}, {t0}, 7, {vC8}")
    g(f"v_lshrrev_b32 {t2}, 1, {vR4}\nv_and_b32 {t3}, 1, {vKq}\nv_lshl_or_b32 {t2}, {t3}, 1, {t2}")
    g(f"v_xor_b32 {t2}, {sW}, {t2}\nv_lshl_add_u32 {t0}, {t2}, 5, {t0}\nv_add_u32 {wa[0]}, {LB}, {t0}")
    for T in range(1, 4):
        g(f"v_xor_b32 {wa[T]}, {32*T}, {wa[0]}")
    sCh, sHo = S.alloc(1), S.alloc(1)
    sHs = S.alloc(2)
    g(f"s_lshr_b32 {sT[2]}, {sW}, 1\ns_and_b32 {sT[3]}, {sW}, 1")
    g(f"s_lshl_b32 {sCh}, {sJ}, 5\ns_add_u32 {sCh}, {sCh}, {sP}\ns_lshl_b32 {sCh}, {sCh}, 1\ns_add_u32 {sCh}, {sCh}, {sT[2]}")
    g(f"s_sub_u32 {sHo}, {sKV}, {sCol}\ns_lshl_b32 {sT[0]}, {sJ}, 11\ns_add_u32 {sHo}, {sHo}, {sT[0]}\ns_add_u32 {sHo}, {sHo}, {HBUF}")
    g(f"s_lshl_b32 {sT[0]}, {sT[2]}, 10\ns_add_u32 {sHs[0]}, {sHo}, {sT[0]}\ns_xor_b32 {sHs[1]}, {sHs[0]}, 1024")
    sL, sW3, sRot3, sIdle, sRing, sSt = (S.alloc(1) for _ in range(6))
    g(f"s_lshr_b32 {sT[0]}, {sJ}, 1\ns_mul_i32 {sL}, {sT[0]}, 7\ns_and_b32 {sT[1]}, {sJ}, 1\ns_lshl_b32 {sT[2]}, {sT[1]}, 2")
    g(f"s_add_u32 {sT[2]}, {sT[2]}, {sW}\ns_add_u32 {sL}, {sL}, {sT[2]}")
    g(f"s_cmp_eq_u32 {sT[2]}, 7\ns_cselect_b32 {sIdle}, {OOB}, 0")
    g(f"s_lshl_b32 {sW3}, {sL}, 7\ns_add_u32 {sW3}, {sW3}, {sIdle}")
    if o.rot:
        g(f"s_lshl_b32 {sRot3}, {sX}, 1")
        if o.rotj & 2:
            g(f"s_lshl_b32 {sT[0]}, {sJ}, 1\ns_xor_b32 {sRot3}, {sRot3}, {sT[0]}")
    g(f"s_add_u32 {sRing}, {sLdsW}, {LB}")
    if o.fake & 1:
        g(f"s_mov_b32 {sW3}, {OOB}")
    d3, ra = V.alloc(4), V.alloc(2)
    g(f"v_lshrrev_b32 {t0}, 3, v0\nv_and_b32 {t2}, 1, {vKq}\nv_lshlrev_b32 {t2}, 2, {t2}")
    g(f"v_xor_b32 {t3}, {t2}, {vS8}\nv_lshlrev_b32 {t3}, 4, {t3}")
    g(f"v_mul_u32_u24 {d3[0]}, 3584, {t0}\nv_add_u32 {d3[0]}, {d3[0]}, {t3}")
    for i in range(1, 4):
        g(f"v_add_u32 {d3[i]}, {i*(8*3584-1024)}, {d3[0]}")
    g(f"v_lshrrev_b32 {t0}, 5, v0\nv_lshl_add_u32 {t0}, {t0}, 2, {vR4}\nv_lshl_add_u32 {t0}, {t0}, 7, {vC8}")
    g(f"v_and_b32 {t2}, 1, {vKq}\nv_lshl_add_u32 {t0}, {t2}, 5, {t0}\nv_lshrrev_b32 {t2}, 1, {vR4}\nv_lshl_add_u32 {t0}, {t2}, 6, {t0}")
    g(f"v_add_u32 {ra[0]}, {sRing}, {t0}\nv_xor_b32 {ra[1]}, 64, {ra[0]}")
    xf = V.alloc(64, at=48)
    tmp = V.alloc(8, at=112)
    st, gk1 = V.alloc(4, at=120), V.alloc(4, at=124)
    cs, ones = V.alloc(16, at=160), V.alloc(4, at=176)
    wf, acc = V.alloc(48, at=192), V.alloc(16, at=240)
    vCs = V.alloc(1)
    for i in range(4):
        g(f"v_mov_b32 {st[i]}, 0\nv_mov_b32 {ones[i]}, {sOnes}")
    g(f"s_lshl_b32 {sT[0]}, {sW}, 6\ns_add_u32 {sT[0]}, {sT[0]}, {C_CS}\nv_lshl_add_u32 {vCs}, {vKq}, 4, {sT[0]}")
    pump_off()
    Bg.flush(Bg.cap)
    stamp("setup")

    def x_reads(n):
        Bg.flush(Bg.find("dma", f"x{n}"))
        g.wait(vm=f"x{n}")
        for b in range(2):
            g.ds(f"ds_read_b128 {xf.r(8*n + 4*b, 4)}, {xa[b]} offset:{LA + n*2048}", f"x{n}")

    def stats(n):
        g.wait(lg=f"x{n}")
        for i in range(0 if o.abl & 16 else 8):
            g(f"v_dot2c_f32_bf16 {st[i & 1]}, {sOnes}, {xf[8*n+i]}")
            g(f"v_dot2c_f32_bf16 {st[2 + (i & 1)]}, {xf[8*n+i]}, {xf[8*n+i]}")

    def ready_store():
        g.wait(vm="clr")
        g(f"s_mov_b64 exec, 1\nv_mov_b32 {vOne}, 1")
        g.vm(f"buffer_store_dword {vOne}, off, {R['dbg']}, {sLead} sc1", "clr")
        g("s_mov_b64 exec, -1")

    if o.touch & 2 and o.touch2 not in ("par", "w2", "h"):
        at = Bg.find("dma", o.touch2)
        Bg.ops[at:at] = [("dma", "tch", lambda: touch(14, ("w3", "w4") if o.touch4 < 0 else ("w3",)))]
    Bg.cap = len(Bg.ops)
    pump_on()
    x_reads(0)
    for n in range(1, 8):
        x_reads(n)
        mark(4, f"p_x{n}")
        stats(n - 1)
    stats(7)
    xa.free(); xd.free()
    stamp("x_in")
    g(f"v_add_f32 {st[0]}, {st[0]}, {st[1]}\nv_add_f32 {st[2]}, {st[2]}, {st[3]}")
    for sw in ("32", "16"):
        g(f"v_mov_b32 {st[1]}, {st[0]}\nv_mov_b32 {st[3]}, {st[2]}")
        g(f"v_permlane{sw}_swap_b32 {st[0]}, {st[1]}\nv_permlane{sw}_swap_b32 {st[2]}, {st[3]}")
        g(f"v_add_f32 {st[0]}, {st[0]}, {st[1]}\nv_add_f32 {st[2]}, {st[2]}, {st[3]}")
    run(ln_stats(st[0], st[2], st[1], gk1))
    pump_off()
    mark(4, "p_ln")
    Bg.flush(len(Bg.ops))
    mark(4, "p_w1iss")
    Bg.thresh = o.thresh

    gw, vD, shk = V.alloc(8, at=136), V.alloc(1), V.alloc(2)
    for i in range(4):
        g(f"v_add_u32 {wd[i]}, {i*7168}, {vW2}")
    g(f"s_lshl_b32 {sT[0]}, {sW}, 2\ns_xor_b32 {sT[0]}, {sT[0]}, {sPP}\ns_lshl_b32 {sM}, {sT[0]}, 12")
    g(f"s_lshl_b32 {sT[1]}, {sJ}, 1\ns_xor_b32 {sT[0]}, {sT[0]}, {sT[1]}\ns_lshl_b32 {sOff}, {sT[0]}, 15\ns_add_u32 {sOff}, {sOff}, {sCol}")
    g(f"s_lshl_b32 {sT[3]}, {sCh}, 1\nv_lshlrev_b32 {t3}, 3, {vKq}\nv_mov_b32 {vD}, 0")

    def one_dma(key, m0, text, tag):
        def fn():
            if g.m0 != key:
                g(m0)
                g.m0 = key
            g.vm(text, tag)
        return ("dma", tag, fn)
    Bg.ops.append(one_dma("k0", f"s_mov_b32 m0, {sK0}", f"buffer_load_dwordx4 {vK0}, {R['k']}, 0 offen {o.nt_once} lds", "par"))
    for i in range(2):
        Bg.ops.append(one_dma("k", f"s_add_u32 m0, {sC2}, {C_K + 1024}", f"buffer_load_dwordx4 {vW2}, {R['k']}, {(sKV, sKV2)[i]} offen offset:{i*1024} {o.nt_once} lds", "par"))
    for i in range(2):
        Bg.ops.append(one_dma("v", f"s_add_u32 m0, {sC2}, {C_V}", f"buffer_load_dwordx4 {vV[i]}, {R['v']}, {(sKV, sKV2)[i]} offen offset:{i*1024} {o.nt_once} lds", "par"))
    Bg.ops.append(("dma", "par", lambda: g.vm(f"buffer_load_dwordx2 {shk}, {vSk}, {R['shift_k']}, {sSk} offen", "par")))
    for i in range(2):
        Bg.ops.append(one_dma("q", f"s_mov_b32 m0, {sQ}", f"buffer_load_dwordx4 {vQa[i]}, {R['q']}, {sKV} offen offset:{i*1024} lds", "par"))
    for T in range(4):
        Bg.ops.append(("dma", "par", lambda T=T: g.vm(f"buffer_load_dwordx2 {gw.r(2*T,2)}, {t3}, {R['gate_w']}, {sCol} offen offset:{32*T}", "par")))
    Bg.ops.append(("dma", "par", lambda: g.vm(f"buffer_load_short_d16_hi {vD}, off, {R['ssm_D']}, {sT[3]}", "par")))
    for n in range(4):
        for i in range(4):
            Bg.ops.append(("dma", "w2", lambda n=n, i=i: w_dma("w2", LA, n, i)))
    if o.touch & 2 and o.touch2 in ("par", "w2"):
        at = Bg.find("dma", o.touch2)
        Bg.ops[at:at] = [("dma", "w2" if o.touch2 == "w2" else "tch", lambda: touch(14, ("w3", "w4")))]
    w3r = A.alloc(256)
    sG4 = []
    d4 = Reg(V, d3.base, 4)

    def w4home(n, ft, e2=None):
        k, b = ("v", 160 + 8*n + 4*ft) if n < 12 else ("a", 8*(n-12) + 4*ft)
        return f"{k}[{b}:{b+3}]" if e2 is None else f"{k}[{b+2*e2}:{b+2*e2+1}]"

    rx, sRx = [], []
    prev = lambda n: n - 4 if n < 26 else None if n < 28 else n - 6
    slot = lambda n: (n & 3) if n < 26 else n - 26

    def d4_setup():
        g(f"v_and_b32 {d4[1]}, 127, {d3[0]}\nv_lshrrev_b32 {d4[0]}, 3, v0\nv_lshl_add_u32 {d4[0]}, {d4[0]}, 10, {d4[1]}")
        for i in range(1, 4):
            g(f"v_add_u32 {d4[i]}, {i*7168}, {d4[0]}")

    def st_setup(n):
        def fn():
            if n == 26:
                rx.append(V.alloc(2))
                sRx.append(S.alloc(1))
                g(f"s_lshl_b32 {sRx[0]}, {sW}, 13\ns_sub_u32 {sSt}, {sRx[0]}, {sRing}\nv_add_u32 {rx[0][0]}, {sSt}, {ra[0]}\nv_add_u32 {rx[0][1]}, {sSt}, {ra[1]}")
            if not o.rot:
                if n == 16:
                    d4_setup()
                g(f"s_add_u32 {sSt}, {sW3 if n < 16 else sW4}, {n*32*3584 if n < 16 else (n-16)*32768}")
            elif n < 16:
                g(f"s_xor_b32 {sSt}, {sRot3}, {n}\ns_mul_i32 {sSt}, {sSt}, {32*3584}\ns_add_u32 {sSt}, {sSt}, {sW3}")
            else:
                if n == 16:
                    d4_setup()
                g(f"s_lshl_b32 {sSt}, {sG4[n-16]}, 4\ns_add_u32 {sSt}, {sSt}, {sW4}")
        return ("set", n, fn)

    def st_dma(n, i):
        def fn():
            if i == 0 and n >= 4 and prev(n) is not None:
                g.wait(lg=f"sr{prev(n)}")
            if g.m0 != ("st", n):
                g(f"s_add_u32 m0, {sRx[0] if n in (26, 27) else sRing}, {slot(n)*4096}")
                g.m0 = ("st", n)
            g.vm(f"buffer_load_dwordx4 {d3[i]}, {R['w3' if n < 16 else 'w4']}, {sSt} offen offset:{i*1024} lds", f"sd{n}")
        return ("dma", n, fn)

    def st_rd(n, u, ft, e2):
        def fn():
            g.wait(vm=f"sd{n}")
            if n < 16:
                dst, off = w3r.r(16*n + 8*u + 4*ft + 2*e2, 2), e2 * 2048 + u * 1024
            else:
                dst, off = w4home(2*(n-16) + u, ft, e2), u * 2048 + e2 * 1024
            if not o.abl & 32:
                g.ds(f"ds_read_b64_tr_b16 {dst}, {(rx[0] if n in (26, 27) else ra)[ft]} offset:{slot(n)*4096 + off}", f"sr{n}")
        return ("rd0" if (u, ft, e2) == (0, 0, 0) else "rd", n, fn)
    allrd = lambda n: [st_rd(n, u, ft, e2) for u in range(2) for ft in range(2) for e2 in range(2)]
    alldma = lambda n: [st_setup(n)] + [st_dma(n, i) for i in range(4)]
    for n in range(25):
        rds = allrd(n - 3) if n >= 3 else []
        Bg.ops.append(st_setup(n))
        for i in range(4):
            Bg.ops.append(st_dma(n, i))
            Bg.ops += rds[4*i:4*i+4]
    for k, (buf, part) in enumerate((("w3", 0), ("w3", 1), ("w4", 0), ("w4", 1))):
        pos = o.tx34.split(":")[k] if o.tx34 else ""
        if pos:
            at = Bg.find("dma", int(pos) if pos.isdigit() else pos)
            Bg.ops[at:at] = [("dma", f"tx3{k}", lambda buf=buf, part=part: touchx(buf, 56, part, sSt))]
    if o.touch4 >= 0:
        at = Bg.find("dma", o.touch4)
        Bg.ops[at:at] = [("dma", "tch4", lambda: touch(14, ("w4",), sSt))]
    if o.t3 & 2:
        at = Bg.find("dma", o.t3_at)
        Bg.ops[at:at] = [("dma", "tch3", lambda: touch3(14, ("w4",), sSt))]
    Bg.ops += alldma(25) + alldma(26) + alldma(27)
    Bg.ops += allrd(22) + allrd(23)[:4] + alldma(28) + allrd(23)[4:] + allrd(24)[:4] + alldma(29) + allrd(24)[4:]
    for n in range(25, 30):
        Bg.ops += allrd(n)

    def wfrag(ks, T, first):
        if not first and o.pre2 and ks >= 8:
            return f"a[{128 + 16*(ks-8) + 4*T}:{128 + 16*(ks-8) + 4*T + 3}]"
        return wf.r(16*(ks % 3) + 4*T, 4)

    def wreads(ks, first):
        if not first and o.pre2 and ks >= 8:
            return
        for T in range(4):
            for e2 in range(2):
                ad, off = (wa[T], ks*4096 + e2*512) if first else (wa[2*T + e2], ks*4096)
                g.ds(f"ds_read_b64_tr_b16 {wf.r(16*(ks % 3) + 4*T + 2*e2, 2)}, {ad} offset:{off}", f"w{ks}")
            yield

    def gemm16(tok, first, vmtag=None, hook=None, pre=None):
        order = list(range(16))
        if not first and o.pre2:
            order = [k for i in range(8) for k in (i, i + 8)]
        slow = [k for k in order if first or not o.pre2 or k < 8]
        for pos, ks in enumerate(order):
            if pre:
                pre(ks)
            if first or not o.pre2:
                nxt = wreads(ks + 2, first) if ks < 14 else iter(())
            elif ks < 8:
                both = wreads(ks + 2, first) if ks < 6 else iter(())
                nxt = (next(both, None) if i % 2 else None for i in range(4))
            else:
                nxt = (next(both, None) if i % 2 else None for i in range(4))
            g.wait(vm=vmtag and f"{vmtag}{ks}", lg=f"w{ks}")
            for T in range(4):
                g(f"v_mfma_f32_16x16x32_bf16 {acc.r(4*T,4)}, {wfrag(ks, T, first)}, {tok.r(4*ks,4)}, {acc.r(4*T,4) if pos else 0}")
                next(nxt, None)
            if first:
                g(f"v_mfma_f32_16x16x32_bf16 {cs.r(0,4)}, {wf.r(16*(ks % 3), 4)}, {ones}, {cs.r(0,4) if ks else 0}")
            if hook:
                hook(pos)

    Bg.cap = Bg.find("dma", "w2")
    g.wait(vm="w1a")
    g("s_barrier")
    stamp("w1_in")
    run(wreads(0, True))
    run(wreads(1, True))
    ready_store()
    sLead.free()
    pd = Poll(R["dbg"], vP32, 0, 1)

    def pre1(ks):
        if ks in (0, 3, 6, 10, 13):
            mark(4, f"p_k{ks}")
        if ks == 6:
            g.wait(vm="w1b")
            g("s_barrier")
            mark(4, "p_w1b")

    def hook1(ks):
        if ks == o.dpoll_at:
            pd.issue()
        Bg.step()
    gemm16(xf, True, hook=hook1, pre=pre1)
    mark(4, "p_loop")
    ones.free(); R["w1"].free()
    g.ds(f"ds_write_b128 {vCs}, {cs.r(0,4)}", "csw")
    Bg.flush(Bg.find("dma", "par"))
    for r in (R["q"], R["k"], R["v"], R["shift_k"], R["ssm_D"], R["gate_w"], vQa, sKV, sKV2, sC2, vW2, vV, vK0, vSk, sK0, sSk):
        r.free()
    for i in range(4):
        g(f"v_fmac_f32 {acc[i]}, {st[1]}, {cs[i]}")
    g.wait(lg="csw")
    g("s_barrier")
    stamp("g1_mfma")
    for i in range(1, 4):
        g(f"v_xor_b32 {t0}, {64*i}, {vCs}")
        g.ds(f"ds_read_b128 {cs.r(4*i,4)}, {t0}", f"cs{i}")
    vCs.free()
    hp = V.alloc(8, at=128)
    Bg.cap = Bg.find("dma", "w2")
    pump_on()
    for i in range(1, 4):
        g.wait(lg=f"cs{i}")
        for e in range(4):
            g(f"v_fmac_f32 {acc[4*i+e]}, {st[1]}, {cs[4*i+e]}")
    st.free(); cs.free()

    def h_store(gg):
        if gg == 0 and o.dpoll_at == 16:
            pd.issue()
        g.vm(f"buffer_store_dwordx4 {hp.r(4*gg,4)}, {vL16}, {R['ws']}, {sHs[gg]} offen sc1", "hst")
    gelu_pk(acc, 16, gk1, hp, tmp, h_store)
    if o.touch & 2 and o.touch2 == "h":
        with g.hold():
            touch(14, ("w3", "w4"))
    gk1.free(); sHs.free(); acc.free()
    stamp("h_st")

    qp = V.alloc(8, at=120)
    g(f"v_lshrrev_b32 {t0}, 1, {vC}\nv_lshrrev_b32 {t2}, 1, {vKq}\nv_xor_b32 {t0}, {t0}, {t2}\nv_lshlrev_b32 {t0}, 4, {t0}")
    g(f"v_lshl_add_u32 {t0}, {vC}, 7, {t0}\nv_and_b32 {t2}, 1, {vKq}\nv_lshl_add_u32 {t0}, {t2}, 3, {t0}\nv_add_u32 {t0}, {sQ}, {t0}")
    Bg.cap = Bg.find("dma", o.bg_a)
    mark(2, "a_pre")
    g.wait(vm="par")
    mark(2, "a_par")
    g("s_barrier")
    mark(2, "a_bar")
    for T in range(4):
        g(f"v_xor_b32 {t2}, {32*T}, {t0}")
        g.ds(f"ds_read_b64 {qp.r(2*T,2)}, {t2}", "q")
    sQ.free()
    up = V.alloc(8, at=160)
    kk = xf

    def kv_reads(m0):
        g.ds(f"ds_read_b64_tr_b16 {kk.r(32 + m0//2, 2)}, {ka[2]} offset:{m0*512}", f"k{m0}")
        for m in range(m0, m0 + 4):
            g.ds(f"ds_read_b64_tr_b16 {kk.r(2*m, 2)}, {ka[m & 1]} offset:{(m >> 1)*1024}", f"k{m0}")
    def hflag():
        pd.check()
        R["dbg"].free()
        if o.local:
            g.vm(f"buffer_load_dword {vDum}, off, {R['ws']}, {sLp} sc1", "pf")
        g.wait(vm="hst")
        flag_set(F_H)
        if o.l2pf & 1:
            with g.hold():
                g(f"v_lshlrev_b32 {vOne}, 7, {vC}")
                g.vm(f"buffer_load_dword {vDum}, {vOne}, {R['ws']}, {sHo} offen sc1", "pf")
        hp.free()
    mark(2, "a_pd")
    kv_reads(0)
    kv_reads(4)
    for m0 in range(0, 16, 4):
        g.wait(lg=f"k{m0}")
        if m0 + 8 < 16:
            kv_reads(m0 + 8)
        for m in range(m0, m0 + 4):
            g(f"v_dot2_f32_bf16 {kk[40+m]}, {kk[2*m]}, {shk[0]}, 0")
        for m in range(m0, m0 + 4):
            g(f"v_dot2_f32_bf16 {kk[40+m]}, {kk[2*m+1]}, {shk[1]}, {kk[40+m]}")
        for i in range(2):
            g(f"v_lshlrev_b32 {tmp[2*i]}, 16, {kk[32 + m0//2 + i]}\nv_and_b32 {tmp[2*i+1]}, {sMask}, {kk[32 + m0//2 + i]}")
        for i in range(2):
            g(f"v_pk_mul_f32 {tmp.r(2*i,2)}, {tmp.r(2*i,2)}, {kk.r(40 + m0 + 2*i, 2)}")
        for i in range(2):
            g(f"v_cvt_pk_bf16_f32 {up[m0//2 + i]}, {tmp[2*i]}, {tmp[2*i+1]}")
        mark(2, f"a_kv{m0}")
        if m0 == o.hflag_m:
            hflag()
            mark(2, "a_hflag")
        if m0 == 4:
            g.ds(f"ds_write_b128 {ua[0]}, {up.r(0,4)}", "uw")
            g(f"v_xor_b32 {ua[0]}, 16, {ua[0]}")
    g.ds(f"ds_write_b128 {ua[0]}, {up.r(4,4)}", "uw")
    shk.free(); ka.free()

    sTr = S.alloc(1)
    g(f"s_lshl_b32 {sT[0]}, {sJ}, 18\ns_lshl_b32 {sT[1]}, {sW}, 16\ns_add_u32 {sTr}, {sT[0]}, {sT[1]}\ns_lshl_b32 {sT[0]}, {sP}, 7\ns_add_u32 {sTr}, {sTr}, {sT[0]}")
    g(f"s_add_u32 {sT[0]}, {sTr}, {UBUF}\ns_add_u32 {sT[1]}, {sTr}, {UBUF + 32768}")
    g.wait(lg="uw")
    g.ds(f"ds_read_b128 {up.r(0,4)}, {ua[1]}", "ur")
    g.ds(f"ds_read_b128 {up.r(4,4)}, {ua[1]} offset:1024", "ur")
    ua.free()
    if o.hflag_m >= 16:
        hflag()
    stamp("h_out")
    g.wait(lg="ur")
    for i in range(2):
        g.vm(f"buffer_store_dwordx4 {up.r(4*i,4)}, {vT4k}, {R['ws']}, {sT[i]} offen sc1", "ust")
    g(f"v_lshl_add_u32 {t0}, {vKq}, 2, {vR4}\nv_bfe_u32 {t2}, {t0}, 1, 2\nv_lshl_add_u32 {t0}, {t0}, 7, {vC8}")
    g(f"s_and_b32 {sT[0]}, {sW}, 1\ns_lshl_b32 {sT[0]}, {sT[0]}, 11\nv_lshl_add_u32 {t0}, {t2}, 5, {t0}\nv_add_u32 {wa[0]}, {sT[0]}, {t0}")
    for i in range(1, 8):
        g(f"v_xor_b32 {wa[i]}, {32*(i >> 1) + 2048*(i & 1)}, {wa[0]}")
    vP8 = V.alloc(1)
    g(f"s_lshl_b32 {sT[0]}, {sW}, 2\nv_lshl_add_u32 {vP8}, {vS8}, 4, {sT[0]}")
    ph = Poll(R["ws"], vP8, None, F_H, local=True)
    cA = xf
    pump_off()
    mark(2, "a_set")
    Bg.flush(Bg.find("dma", "w2"))
    mark(2, "a_w2iss")
    for r in (R["w2"], sM, sOff, sWo, wd):
        r.free()

    keys = ("vmq", "lgq", "vmt", "lgt", "clock", "mfree", "m0", "q", "lq", "last_done", "ta")

    def two_paths(body, before=None):
        lodd, ljoin = g.label("odd"), g.label("join")
        g(f"s_bitcmp1_b32 {sW}, 0\ns_cbranch_scc1 {lodd}")
        saved = (copy.deepcopy({k: getattr(g, k) for k in keys}), Bg.idx)
        ends = []
        for par in range(2):
            if par:
                g(f"{lodd}:")
                for k, v in copy.deepcopy(saved[0]).items():
                    setattr(g, k, v)
                Bg.idx = saved[1]
            extra = body(par)
            ends.append((Bg.idx, list(g.vmq), list(g.lgq), extra, g.clock))
            if not par:
                g(f"s_branch {ljoin}")
        g(f"{ljoin}:")
        assert ends[0][0] == ends[1][0]
        g.vmq = merge_queues(ends[0][1], ends[1][1])
        g.lgq = merge_queues(ends[0][2], ends[1][2])
        g.clock = max(ends[0][4], ends[1][4])
        g.m0 = None

    def conv_all(par, events, spare=None):
        tiles = TILES[par]
        top = max(tiles)
        seq = [(d, mp) for d in (0, 1, 2, 3) for mp in range(-1, 2 * top + 1)]

        def bread(i):
            d, mp = seq[i]
            for e2 in range(2):
                if not o.abl & 2:
                    g.ds(f"ds_read_b64 {cBr(i, 2*e2, 2)}, {aB} offset:{d*UP + 64*(mp+1) + 8*e2}", f"B{i}")
                yield
        for i in range(o.bdist):
            run(bread(i))
        started = set()
        cnt = 0
        ndma = sum(1 for x in Bg.ops[Bg.idx:Bg.cap] if x[0] == "dma")
        per = max(1, 138 // max(ndma, 1))
        done = [-per]
        for i, (d, mp) in enumerate(seq):
            rd = bread(i + o.bdist) if i + o.bdist < len(seq) else iter(())
            if i % 2 == 0:
                g.wait(lg=f"B{min(i + 1, len(seq) - 1)}")
            for ti, jb in enumerate(tiles):
                m = 2 * jb - mp
                if m < 0:
                    continue
                c = (pp, qq)[d & 1].r(6*ti + (d & 2), 4)
                first = d < 2 and (d, ti) not in started
                started.add((d, ti))
                if not o.abl & 1:
                    g(f"v_mfma_f32_16x16x32_bf16 {c}, {cA.r(4*m,4)}, {cBr(i, 0, 4)}, {0 if first else c}")
                cnt += 1
                next(rd, None)
                if cnt in events:
                    mark(5, f"c{cnt}a")
                    events[cnt]()
                    mark(5, f"c{cnt}b")
                if spare and cnt > 144 - 2 * len(spare) - 8 and cnt % 2:
                    spare.pop(0)()
                for _ in range(2):
                    if Bg.idx < Bg.cap and (Bg.ops[Bg.idx][0] != "dma" or cnt - done[0] >= per):
                        if Bg.ops[Bg.idx][0] == "dma":
                            done[0] = cnt
                        Bg.step(True)
                        if g.slack() < 4:
                            break
            run(rd)
        Bg.flush(Bg.cap)

    sCH, sCU, sUl, sFu = (S.alloc(1) for _ in range(4))
    g(f"s_lshr_b32 {sT[2]}, {sW}, 1\ns_and_b32 {sT[3]}, {sW}, 1")
    g(f"s_mul_i32 {sCH}, {sT[2]}, {HP}\ns_add_u32 {sCH}, {sCH}, {C_H}\ns_mul_i32 {sCU}, {sT[2]}, {4*UP}\ns_add_u32 {sCU}, {sCU}, {C_U}")
    g(f"s_lshl_b32 {sT[1]}, {sCh}, 12")
    Bg.flush(Bg.find("dma", o.bg_a))
    mark(2, "a_bga")
    if o.hpoll == 0:
        ph.issue()
    Bg.cap = Bg.find("dma", o.cap_p2)
    Bg.flush(Bg.find("dma", o.bg_b))
    mark(2, "a_bgb")
    g.wait(vm="w2")
    g("s_barrier")
    stamp("u_out")
    if o.hpoll == 1:
        ph.issue()
    g(f"s_add_u32 m0, {sCH}, 32\ns_nop 0")
    fl = (g.vm(f"buffer_load_dwordx4 {vL16}, {R['ssm_k']}, {sT[1]} offen offset:{i*1024} {o.nt_once} lds", "fin") for i in range(4))
    if o.hpoll < 2:
        next(fl)
        g.pump = lambda: next(fl, None) if g.ta - g.clock < 0 else None
    if o.pre2:
        assert o.cap_p2 <= 10
        for ks in range(8, 16):
            for T in range(4):
                for e2 in range(2):
                    b = 128 + 16*(ks-8) + 4*T + 2*e2
                    g.ds(f"ds_read_b64_tr_b16 a[{b}:{b+1}], {wa[2*T + e2]} offset:{ks*4096}", "wpre")
            if o.hpoll >= 2 and ks == 6 + o.hpoll:
                ph.issue()
                g.pump = lambda: next(fl, None) if g.ta - g.clock < 0 else None
    run(wreads(0, False))
    run(wreads(1, False))

    g.pump = None
    run(fl)
    R["ssm_k"].free()
    ph.check(then=lambda: flag_set(F_U))
    up.free(); vP8.free()
    stamp("h_flag")
    sHl2 = S.alloc(2)
    acc = V.alloc(16, at=240)

    def h1_load(pos):
        ks = (pos >> 1) + 8 * (pos & 1) if o.pre2 else pos
        so = sHl2[ks >> 3]
        if ks & 1 == 0:
            g(f"s_xor_b32 {so}, {sHo}, {ks << 10}")
        g.vm(f"buffer_load_dwordx4 {xf.r(4*ks,4)}, {vL16}, {R['ws']}, {so} offen offset:{(ks & 1)*1024} sc1", f"h{ks}")
    hl = (h1_load(ks) for ks in range(9))
    next(hl)
    g.pump = lambda: next(hl, None) if g.ta - g.clock < 30 else None
    gs = V.alloc(4)
    g(f"v_mov_b32 {gs[1]}, 0\nv_mov_b32 {gs[3]}, 0")
    g.wait(lg="q")
    for i in range(8):
        g(f"v_dot2c_f32_bf16 {gs[1]}, {qp[i]}, {gw[i]}")
    gw.free()
    g(f"s_lshl_b32 {sUl}, {sCh}, 12\ns_add_u32 {sUl}, {sUl}, {UBUF}")
    g(f"s_lshr_b32 {sT[0]}, {sP}, 3\ns_lshl_b32 {sT[0]}, {sT[0]}, 7\ns_lshl_b32 {sFu}, {sJ}, 9\ns_add_u32 {sFu}, {sFu}, {sT[0]}")
    aA, aB = V.alloc(1), V.alloc(1)
    g(f"v_lshlrev_b32 {t0}, 6, {vKq}\nv_add_u32 {t0}, {t0}, {vC8}\nv_lshlrev_b32 {t2}, 3, {vR4}\nv_sub_u32 {t0}, {t0}, {t2}")
    g(f"s_add_u32 {sT[0]}, {sCH}, 32\nv_add_u32 {aA}, {sT[0]}, {t0}")
    g(f"v_lshlrev_b32 {t0}, 3, {vC}\nv_lshlrev_b32 {t2}, 4, {vKq}\nv_sub_u32 {t0}, {t0}, {t2}\ns_add_u32 {sT[0]}, {sCU}, 56\nv_add_u32 {aB}, {sT[0]}, {t0}")
    sW4 = S.alloc(1)
    g(f"s_mul_i32 {sW4}, {sW}, {448*1024}\ns_add_u32 {sW4}, {sW4}, {sCol}")
    if o.fake & 2:
        g(f"s_mov_b32 {sW4}, {OOB}")
    if o.rot:
        sG4 += [S.alloc(1) for _ in range(14)]
        if o.rotj & 1:
            g(f"s_add_u32 {sT[0]}, {sX}, {sJ}\ns_and_b32 {sT[0]}, {sT[0]}, 7\ns_mul_i32 {sT[0]}, {sT[0]}, 7\ns_lshr_b32 {sT[0]}, {sT[0]}, 2\ns_lshl_b32 {sG4[0]}, {sT[0]}, 11")
        else:
            g(f"s_mul_i32 {sT[0]}, {sX}, 7\ns_lshr_b32 {sT[0]}, {sT[0]}, 2\ns_lshl_b32 {sG4[0]}, {sT[0]}, 11")
        for n in range(1, 14):
            g(f"s_add_u32 {sG4[n]}, {sG4[n-1]}, 2048\ns_cmp_eq_u32 {sG4[n]}, {14*2048}\ns_cselect_b32 {sG4[n]}, 0, {sG4[n]}")
    g(f"v_mov_b32 {tmp[0]}, 0\nv_mov_b32 {tmp[1]}, 0")
    g(f"v_mul_u32_u24 {t0}, {UP}, {vKq}\nv_lshl_add_u32 {t0}, {vC}, 3, {t0}\nv_add_u32 {t0}, {sCU}, {t0}\nv_add_u32 {t2}, {sCH}, {vC8}")
    g.ds(f"ds_write_b64 {t0}, {tmp.r(0,2)}")
    g.ds(f"ds_write_b64 {t2}, {tmp.r(0,2)}")
    sX1s, sX1l, sSto, sSto2, sStw, sY, sXo, sH2, sHst, sFy = (S.alloc(1) for _ in range(10))
    aN, aU, aY, vSt, vSw, vXs, vN0 = (V.alloc(1) for _ in range(7))
    g(f"s_lshr_b32 {sT[0]}, {sW}, 1\ns_mul_i32 {sT[1]}, {sT[0]}, {NP}\ns_add_u32 {sT[1]}, {sT[1]}, {A_N}\nv_mov_b32 {vN0}, {sT[1]}")
    g.ds(f"ds_write2st64_b32 {vN0}, {tmp[0]}, {tmp[0]} offset0:0 offset1:9")
    g.ds(f"ds_write_b32 {vN0}, {tmp[0]} offset:{18*256}")
    g(f"v_lshl_add_u32 {t0}, {vC}, 2, {vKq}\nv_lshl_add_u32 {aN}, {t0}, 2, {sT[1]}")
    g(f"s_add_u32 {sT[1]}, {sCU}, 128\nv_lshl_add_u32 {aU}, {t0}, 1, {sT[1]}")
    g(f"v_lshrrev_b32 {t0}, 2, {vC}\nv_lshlrev_b32 {t0}, 7, {t0}")
    g(f"v_lshl_add_u32 {t0}, {vKq}, 5, {t0}\nv_add_u32 {aY}, {t0}, {vC8}")
    g(f"s_lshl_b32 {sT[3]}, {sP}, 16\ns_add_u32 {sT[3]}, {sT[3]}, {X1BUF}")
    g(f"s_lshl_b32 {sT[0]}, {sT[0]}, 15\ns_and_b32 {sT[1]}, {sW}, 1\ns_lshl_b32 {sT[2]}, {sT[1]}, 8\ns_add_u32 {sT[0]}, {sT[0]}, {sT[2]}")
    g(f"s_lshl_b32 {sT[2]}, {sJ}, 12\ns_add_u32 {sT[0]}, {sT[0]}, {sT[2]}\ns_add_u32 {sX1s}, {sT[0]}, {sT[3]}")
    if o.rot:
        g(f"s_lshl_b32 {sX1l}, {sW}, 2\ns_xor_b32 {sX1l}, {sX1l}, {sRot3}\ns_lshl_b32 {sX1l}, {sX1l}, 11\ns_add_u32 {sX1l}, {sX1l}, {sT[3]}")
    else:
        g(f"s_lshl_b32 {sX1l}, {sW}, 13\ns_add_u32 {sX1l}, {sX1l}, {sT[3]}")
    g(f"s_lshl_b32 {sSto}, {sP}, 13\ns_add_u32 {sSto}, {sSto}, {STATS}\ns_add_u32 {sSto2}, {sSto}, 4096")
    g(f"s_lshl_b32 {sT[0]}, {sJ}, 10\ns_lshl_b32 {sT[2]}, {sW}, 8\ns_add_u32 {sT[0]}, {sT[0]}, {sT[2]}\ns_add_u32 {sStw}, {sT[0]}, {sSto}")
    g(f"s_lshl_b32 {sY}, {sCh}, 12\ns_add_u32 {sY}, {sY}, {YBUF}")
    g(f"v_lshlrev_b32 {t0}, 9, {vKq}\nv_lshl_add_u32 {vXs}, {vC}, 4, {t0}")
    g(f"v_lshrrev_b32 {t2}, 5, v0\nv_and_b32 {t3}, 1, {vKq}")
    g(f"v_lshlrev_b32 {t0}, 10, {t2}\nv_lshl_add_u32 {t0}, {t3}, 8, {t0}\nv_lshl_add_u32 {vSt}, {vC}, 3, {t0}")
    g(f"v_lshlrev_b32 {t0}, 2, {t2}\nv_lshl_add_u32 {t0}, {vC}, 3, {t0}")
    g(f"v_lshlrev_b32 {t2}, 6, {t2}\nv_lshl_add_u32 {t2}, {vC}, 2, {t2}\nv_add_u32 {t2}, 128, {t2}")
    g(f"v_cmp_eq_u32 vcc, 0, {t3}\ns_nop 1\nv_cndmask_b32 {vSw}, {t2}, {t0}, vcc")
    g(f"s_mul_i32 {sH2}, {sP}, 229376\ns_add_u32 {sH2}, {sH2}, {H2BUF}")
    g(f"s_lshl_b32 {sHst}, {sL}, 12\ns_add_u32 {sHst}, {sHst}, {sH2}\ns_add_u32 {sHst}, {sHst}, {sIdle}")
    g(f"s_lshr_b32 {sT[0]}, {sP}, 2\ns_lshr_b32 {sT[1]}, 0x3b, {sT[0]}\ns_and_b32 {sT[1]}, {sT[1]}, 1\ns_lshl_b32 {sT[1]}, {sT[1]}, 7")
    g(f"s_lshl_b32 {sT[0]}, {sW}, 15\ns_add_u32 {sT[1]}, {sT[1]}, {sT[0]}\ns_lshl_b32 {sT[0]}, {sJ}, 9\ns_add_u32 {sFy}, {sT[1]}, {sT[0]}")
    g(f"v_mov_b32 {gs[0]}, 0\nv_mov_b32 {gs[2]}, 0")
    vPu = V.alloc(1)
    pu = Poll(R["ws"], vPu, sFu, F_U)
    g(f"v_lshlrev_b32 {vPu}, 10, {vP32}")
    g(f"s_mov_b32 {sT[0]}, {sCU}")
    g(f"v_lshrrev_b32 {t3}, 1, v0\nv_and_b32 {t2}, 1, v0\nv_lshlrev_b32 {t2}, 4, {t2}\nv_lshl_add_u32 {t3}, {t3}, 7, {t2}")
    for r in (sL, sIdle, sCh, sCH, sCU):
        r.free()
    mark(2, "b_set")
    g.pump = None
    run(hl)
    mark(2, "b_iss")

    def u_load(i):
        if i == 0:
            pu.check()
        g(f"s_add_u32 m0, {sT[0]}, {128 + i*(UP - 32)}\ns_nop 0")
        g.vm(f"buffer_load_dwordx4 {t3}, {R['ws']}, {sUl} offen offset:{32*i} sc1 lds", "cin")

    def hook2(ks):
        if ks in (0, 4, 8, 12):
            mark(2, f"b_k{ks}")
        if ks == o.upoll_at:
            pu.issue()
        if ks + 9 < 16:
            h1_load(ks + 9)
        elif ks >= o.ucheck_at:
            u_load(ks - o.ucheck_at)
        else:
            Bg.step()
            Bg.step()
    gemm16(xf, False, vmtag="h", hook=hook2)
    sHl2.free(); sHo.free()
    stamp("g2_mfma")
    wa.free(); wf.free()
    g.wait(vm="fin")
    areads = [f"ds_read_b64_tr_b16 {xf.r(4*m + 2*e2, 2)}, {aA} offset:{256*m + 32 - 32*e2}" for m in range(15, -1, -1) for e2 in range(2)]
    g.pump = lambda: g.ds(areads.pop(0), "A") if areads else None
    x1p = V.alloc(8, at=128)
    for T in range(0, 4, 2):
        for i in range(4):
            g(f"v_dot2_f32_bf16 {tmp[2*i]}, {qp[2*T+i]}, {sLo1}, {acc[4*T+2*i]}")
            g(f"v_dot2_f32_bf16 {tmp[2*i+1]}, {qp[2*T+i]}, {sHi1}, {acc[4*T+2*i+1]}")
        for i in range(4):
            g(f"v_cvt_pk_bf16_f32 {x1p[2*T+i]}, {tmp[2*i]}, {tmp[2*i+1]}")
        g.vm(f"buffer_store_dwordx4 {x1p.r(2*T,4)}, {vXs}, {R['ws']}, {sX1s} offen offset:{T*1024} sc1", "xst")
    acc.free(); vXs.free()
    with g.hold():
        for i in range(max(0, 16 - o.ucheck_at), 4):
            u_load(i)
        sUl.free(); sFu.free(); vPu.free()

    for i in range(8):
        g(f"v_dot2c_f32_bf16 {gs[0]}, {sOnes}, {x1p[i]}")
        g(f"v_dot2c_f32_bf16 {gs[2]}, {x1p[i]}, {x1p[i]}")
    g(f"v_permlane32_swap_b32 {gs[0]}, {gs[2]}\nv_permlane32_swap_b32 {gs[1]}, {gs[3]}")
    g(f"v_add_f32 {gs[0]}, {gs[0]}, {gs[2]}\nv_add_f32 {gs[1]}, {gs[1]}, {gs[3]}")
    g(f"v_permlane16_swap_b32 {gs[0]}, {gs[1]}\nv_add_f32 {gs[0]}, {gs[0]}, {gs[1]}")
    g.vm(f"buffer_store_dword {gs[0]}, {vSw}, {R['ws']}, {sStw} offen sc1", "xst")
    sStw.free(); vSw.free()
    stamp("x1_st")

    pp = V.alloc(30, at=160)
    qq = V.alloc(30, at=190)
    uu = V.alloc(20, at=220)
    cB, cB2 = V.alloc(16, at=240), V.alloc(16, at=136)
    cBr = lambda i, k, n: (cB, cB2)[(i >> 2) & 1].r(4*(i & 3) + k, n)
    for ti in range(5):
        g(f"v_mov_b32 {qq[6*ti + 4]}, 0\nv_mov_b32 {qq[6*ti + 5]}, 0\nv_mov_b32 {pp[6*ti + 4]}, 0\nv_mov_b32 {pp[6*ti + 5]}, 0")
    pump_off()
    while areads:
        g.ds(areads.pop(0), "A")
    px = Poll(R["ws"], vP32, None, F_X1, local=True)
    sv = [Reg(V, 152, 8), Reg(V, 248, 8)]
    gate = V.alloc(2)
    nb = [Reg(V, xf.base + 32, 32), Reg(V, xf.base, 32)]

    def st_loads(th):
        for i in range(4):
            g.vm(f"buffer_load_dwordx2 {sv[th].r(2*i, 2)}, {vSt}, {R['ws']}, {(sSto, sSto2)[i >> 1]} offen offset:{(i & 1)*2048 + th*512} sc1", f"s{th}")
            yield

    def x1_loads(th):
        for i in range(7, -1, -1):
            if i & 1:
                g(f"s_xor_b32 {sXo}, {sX1l}, {(i >> 1) << 11 | th << 15}")
            g.vm(f"buffer_load_dwordx4 {nb[th].r(4*i, 4)}, {vL16}, {R['ws']}, {sXo} offen offset:{(i & 1)*1024} sc1", f"n{th}_{i}")
            yield

    def fold(r, t):
        for sw in ("32", "16"):
            g(f"v_mov_b32 {t}, {r}\ns_nop 1\nv_permlane{sw}_swap_b32 {r}, {t}")
            yield
            g(f"v_add_f32 {r}, {r}, {t}")
            yield

    def gate_calc():
        g.wait(vm="gl")
        g(f"v_add_f32 {gate[0]}, {gate[0]}, {gate[1]}")
        yield
        yield from fold(gate[0], gate[1])
        yield from round_bf16(gate[0])
        for t in (f"v_mul_f32 {gate[0]}, {fbits(-LOG2E)}, {gate[0]}", f"v_exp_f32 {gate[0]}, {gate[0]}\ns_nop 0", f"v_add_f32 {gate[0]}, 1.0, {gate[0]}",
                  f"v_rcp_f32 {gate[0]}, {gate[0]}\ns_nop 0"):
            g(t)
            yield
        yield from round_bf16(gate[0])
        g(f"v_sub_f32 {gate[1]}, 1.0, {gate[0]}")
        yield
        yield from round_bf16(gate[1])

    def xflag():
        g.wait(vm="xst")
        flag_set(F_X1)
        if o.l2pf & 2:
            g(f"v_lshrrev_b32 {vOne}, 1, {vC}\nv_lshlrev_b32 {vOne}, 9, {vOne}\nv_and_b32 {t2}, 1, v0\nv_lshl_add_u32 {vOne}, {t2}, 7, {vOne}")
            g.vm(f"buffer_load_dword {vDum}, {vOne}, {R['ws']}, {sX1s} offen sc1", "pf")

    Bg.flush(Bg.find("dma", o.bg_u))
    Bg.cap = Bg.find("dma", o.cap2)

    def half2(par):
        tiles = TILES[par]
        ur = [lambda ti=ti, jb=jb, m=m: g.ds(f"ds_read_u16_d16_hi {uu[4*ti + m]}, {aU} offset:{m*UP + 128*jb}", f"U{ti}")
              for ti, jb in enumerate(tiles) for m in range(4)]
        g.wait(vm="cin")
        stamp("u_in"); idle("u_in")
        l0 = chain(st_loads(0), x1_loads(0))
        ev = {o.xflag_at: xflag, o.xpoll_at: px.issue, o.xcheck_at: lambda: px.check(free=par)}
        for i in range(4):
            ev[o.xcheck_at + 1 + 2*i] = lambda: next(l0)
        conv_all(par, ev, ur)
        if o.fine:
            stamp("cv_mfma")
        next(l0)
        g.pump = lambda: next(l0, None) if g.ta - g.clock < 30 else None
        for f in ur:
            f()
        g(f"v_add_u32 {vN0}, 4, {aN}")
        for ti, jb in enumerate(tiles):
            b = 6 * ti
            g(f"v_add_f32 {pp[b+4]}, {pp[b+4]}, {qq[b+3]}\nv_add_f32 {pp[b+5]}, {pp[b+5]}, {qq[b+4]}")
            g.ds(f"ds_write2st64_b32 {vN0}, {pp[b+4]}, {pp[b+5]} offset0:{jb} offset1:{jb + 9}", "Nw")
            g.ds(f"ds_write_b32 {vN0}, {qq[b+5]} offset:{(jb + 18)*256}", "Nw")
        for ti, jb in enumerate(tiles):
            b = 6 * ti
            g(f"v_add_f32 {pp[b+1]}, {pp[b+1]}, {qq[b]}\nv_add_f32 {pp[b+2]}, {pp[b+2]}, {qq[b+1]}\nv_add_f32 {pp[b+3]}, {pp[b+3]}, {qq[b+2]}")
        mark(5, "c_add")
        g.wait(lg="Nw")
        g("s_barrier")
        mark(5, "c_bar")
        for ti, jb in enumerate(tiles):
            g.ds(f"ds_read2st64_b32 {qq.r(6*ti,2)}, {aN} offset0:{jb} offset1:{jb + 9}", f"N{ti}")
            g.ds(f"ds_read_b32 {qq[6*ti+2]}, {aN} offset:{(jb + 18)*256}", f"N{ti}")
        for ti, jb in enumerate(tiles):
            for m in range(4):
                g(f"v_fmac_f32 {pp[6*ti+m]}, {vD}, {uu[4*ti + m]}")
        for ti, jb in enumerate(tiles):
            b = 6 * ti
            g.wait(lg=f"N{ti}")
            for m in range(3):
                g(f"v_add_f32 {pp[b+m]}, {pp[b+m]}, {qq[b+m]}")
            g(f"v_cvt_pk_bf16_f32 {pp[b]}, {pp[b]}, {pp[b+1]}\nv_cvt_pk_bf16_f32 {pp[b+1]}, {pp[b+2]}, {pp[b+3]}")
        mark(5, "c_cvt")
        g.pump = None
        run(l0)
        mark(5, "c_l0")
        for ti, jb in enumerate(tiles):
            g.vm(f"buffer_store_dwordx2 {pp.r(6*ti,2)}, {aY}, {R['ws']}, {sY} offen offset:{512*jb} sc1", "yst")
        return len(tiles)
    two_paths(half2)
    for r in (aA, aB, aN, aU, aY, vD, gs, vN0, sY, pp, qq, uu, cB, cB2, sX1s):
        r.free()
    w4v = V.alloc(96, at=160)
    stamp("conv2")

    gk3 = [V.alloc(4), V.alloc(4)]
    vXw = V.alloc(1)
    g(f"s_lshl_b32 {sT[0]}, {sW}, 13\nv_add_u32 {vXw}, {sT[0]}, {vL16}")

    def norm(th, center):
        g.wait(vm=f"s{th}")
        r = sv[th]
        for d, s_ in ((0, 2), (1, 3), (4, 6), (5, 7), (0, 4), (1, 5)):
            g(f"v_add_f32 {r[d]}, {r[d]}, {r[s_]}")
            yield
        g(f"s_nop 1\nv_permlane32_swap_b32 {r[0]}, {r[1]}")
        yield
        g(f"v_add_f32 {r[0]}, {r[0]}, {r[1]}\nv_mov_b32 {r[1]}, {r[0]}")
        yield
        g(f"s_nop 1\nv_permlane32_swap_b32 {r[0]}, {r[1]}")
        yield
        yield from ln_mean(r[0], r[2])
        for i in range(7, -1, -1):
            g.wait(vm=f"n{th}_{i}")
            if th == 0 and i % 4 == 3:
                mark(3, f"n_{i}")
            if not (o.abl & 8 and th):
                yield from center([nb[th][4*i + q] for q in range(4)], r[2], tmp)
            g.ds(f"ds_write_b128 {vXw}, {nb[th].r(4*i, 4)} offset:{LA + th*32768 + i*1024}", f"xw{th}")
            yield

    def gate_loads():
        g(f"v_lshlrev_b32 {t0}, 11, {vKq}\nv_lshl_add_u32 {t0}, {vC}, 2, {t0}\ns_lshl_b32 {sT[0]}, {sW}, 8\ns_add_u32 {sT[0]}, {sT[0]}, {sSto}")
        for i in range(2):
            g.vm(f"buffer_load_dword {gate[i]}, {t0}, {R['ws']}, {sT[0]} offen offset:{128 + i*1024} sc1", "gl")
            yield
    l1 = chain(st_loads(1), x1_loads(1), gate_loads())
    cnt1 = [0]

    def pump1():
        if g.ta - g.clock < 0 and cnt1[0] < o.l1_early:
            cnt1[0] += 1
            next(l1, None)
    g.pump = pump1
    run(norm(0, center_dot))
    g.pump = None
    Bg.cap = Bg.idx
    g.wait(lg="xw0")
    g("s_barrier")
    stamp("xn0"); idle("xn0")
    accs = [nb[0], nb[1]]
    tf = V.alloc(16, at=136)
    hq = V.alloc(8, at=152)

    def h_store2(th):
        def fn(f):
            if f == 0 and th:
                g(f"s_add_u32 {sHst}, {sHst}, {112*1024}")
            g.vm(f"buffer_store_dwordx4 {hq.r(4*(f & 1),4)}, {vL16}, {R['ws']}, {sHst} offen offset:{f*1024} sc1", f"Hst{th}")
        return fn

    def g3_pass(th, fillers, over, hook=None):
        def tread(ks):
            g.ds(f"ds_read_b128 {tf.r(4*(ks & 3), 4)}, {vL16} offset:{LA + th*32768 + ks*1024}", f"t{ks}")
        for ks in range(3):
            tread(ks)
        for ks in range(32):
            if th == 0 and ks % 2 == 0:
                Bg.flush(Bg.find("rd", ks // 2))
                g.wait(lg=f"sr{ks//2}")
            g.wait(lg=f"t{ks}")
            for ft in range(2):
                c = accs[th].r(16*ft, 16)
                if not (o.abl & 64 and ft):
                    g(f"v_mfma_f32_32x32x16_bf16 {c}, {w3r.r(8*ks + 4*ft, 4)}, {tf.r(4*(ks & 3), 4)}, {c if ks else 0}")
                if ft == 1 and ks + 3 < 32:
                    tread(ks + 3)
                if ft == 0 and ks % 4 == 0 and ks:
                    mark(3, f"g{th}_k{ks}")
                if hook:
                    hook(2*ks + ft)
                fill(fillers, over, reserve=4 * ft)
        mark(3, f"g{th}_loop")
        drain(fillers)
        mark(3, f"g{th}_drain")

    def scale(th):
        yield from ln_std(sv[th][0], sv[th][1], gk3[th][2])
        yield from ln_scale(gk3[th])
    f0 = [scale(0)]

    def hook0(i):
        if i % 2 == 0 and next(l1, 1) is not None:
            Bg.cap = Bg.find("dma", o.cap_a)
        if i == o.norm1_at:
            f0.append(chain(norm(1, center_plain), scale(1)))
        if i == o.yflag_at:
            g.wait(vm="yst")
            flag_set(F_Y)
    g3_pass(0, f0, o.q3a, hook0)
    for r in (sXo, sX1l, vSt, sSto2):
        r.free()
    g.wait(lg="xw1")
    g("s_barrier")
    stamp("g3a"); idle("g3a")
    Bg.cap = Bg.find("dma", o.cap_b)
    vP16, vP7 = V.alloc(1), V.alloc(1)
    py = Poll(R["ws"], vP16, sFy, F_Y)

    def hook3(i):
        if i == 2:
            g(f"v_lshrrev_b32 {vP16}, 1, {vC}\nv_lshlrev_b32 {vP16}, 12, {vP16}\nv_and_b32 {vP7}, 1, v0\nv_lshl_add_u32 {vP16}, {vP7}, 8, {vP16}")
        if i == 3:
            g(f"v_min_u32 {vP7}, 6, v0\ns_lshl_b32 {sT[0]}, {sW}, 5\nv_lshl_add_u32 {vP7}, {vP7}, 2, {sT[0]}")
            py.issue()
        if i == 24:
            py.check()
            g(f"s_add_u32 {sT[0]}, {sTr}, {YBUF}\ns_add_u32 {sT[1]}, {sTr}, {YBUF + 32768 - 1024}\ns_lshl_b32 {sT[2]}, {sW}, 11\ns_add_u32 m0, {sT[2]}, {C_Y}")
        if i == 25:
            g.vm(f"buffer_load_dwordx4 {vT4k}, {R['ws']}, {sT[0]} offen sc1 lds", "y")
            g.vm(f"buffer_load_dwordx4 {vT4k}, {R['ws']}, {sT[1]} offen offset:1024 sc1 lds", "y")

    nd = [sum(1 for x in Bg.ops[Bg.idx:Bg.cap] if x[0] == "dma"), 0]

    def hook3h(i):
        hook3(i)
        if i not in (24, 25) and nd[1] < nd[0] * i // 58 and Bg.idx < Bg.cap:
            nd[1] += Bg.ops[Bg.idx][0] == "dma"
            Bg.step(True)
        if i == 24:
            Bg.saved_cap, Bg.cap = Bg.cap, 0
        if i == 25:
            Bg.cap = Bg.saved_cap
    g3_pass(1, [Ops(x) for x in gelu_plain(accs[0], 32, gk3[0], hq, tmp, h_store2(0))], o.q3b, hook3h)
    vP16.free()
    stamp("g3b"); idle("g3b")
    Bg.cap = Bg.find("dma", 29)
    Bg.flush(Bg.find("dma", 27))
    pa = Poll(R["ws"], vP7, None, F_HA, local=True)
    pb = Poll(R["ws"], vP7, None, F_HB, local=True)
    if o.tail_bg:
        pump_on()
    st1 = h_store2(1)

    def done1(f):
        if f == o.haflag_at:
            g.wait(vm="Hst0")
            flag_set(F_HA)
            if o.l2pf & 4:
                with g.hold():
                    g(f"v_lshlrev_b32 {vOne}, 5, {vP32}\ns_sub_u32 {sT[0]}, {sHst}, {112*1024 if f else 0}")
                    g.vm(f"buffer_load_dword {vDum}, {vOne}, {R['ws']}, {sT[0]} offen sc1", "pf")
        if o.apoll_at == 6:
            if f < 2:
                st1(f)
            if f == 3:
                pa.issue()
                st1(2)
                st1(3)
        else:
            st1(f)
        if f == o.apoll_at:
            pa.issue()
        mark(3, f"H_f{f}")
    gelu_pk(accs[1], 32, gk3[1], hq, tmp, done1)
    stamp("H_st")
    tf.free(); vXw.free()
    for r in gk3:
        r.free()
    sv = V.alloc(16, at=136)
    g.wait(vm="y")
    g("s_barrier")
    if o.apoll_at == 4:
        pa.issue()

    g(f"v_lshl_add_u32 {t0}, {vKq}, 2, {vR4}\nv_lshlrev_b32 {t0}, 7, {t0}\nv_lshl_add_u32 {t0}, {vC8}, 2, {t0}\ns_lshl_b32 {sT[0]}, {sW}, 3\ns_add_u32 {sT[0]}, {sT[0]}, {C_Y}\nv_add_u32 {t0}, {sT[0]}, {t0}")
    for T in range(4):
        g.ds(f"ds_read_b64_tr_b16 {sv.r(8 + 2*T, 2)}, {t0} offset:{T*2048}", f"y{T}")
    vHl = V.alloc(1)
    hb = Reg(A, 128, 128)
    sSt2 = S.alloc(1)

    def h_load(m):
        th, n = divmod(m, 28)
        if o.rot:
            if m == 28:
                g(f"v_add_u32 {vHl}, {112*1024}, {vHl}")
            so, off = sG4[n >> 1], (n & 1) * 1024
        else:
            if n % 4 == 0:
                g(f"s_mov_b32 {sSt2}, {th*112*1024 + n*1024}")
            so, off = sSt2, (n & 3) * 1024
        g.vm(f"buffer_load_dwordx4 {hb.r(4*(m & 31), 4)}, {vHl}, {R['ws']}, {so} offen offset:{off} sc1", f"H{m}")

    g(f"s_mul_i32 {sT[0]}, {sW}, {28*1024}\ns_add_u32 {sT[0]}, {sT[0]}, {sH2}\nv_add_u32 {vHl}, {sT[0]}, {vL16}")
    if o.fake & 4:
        g(f"v_mov_b32 {vHl}, {OOB}")
    pump_off()
    Bg.flush(Bg.find("dma", 28))
    if o.apoll_at == 5:
        pa.issue()
    Bg.flush(max(Bg.find("dma", 29), Bg.find("rd", o.rd_ha)))
    def hbflag():
        g.wait(vm="Hst1")
        flag_set(F_HB)
        if o.l2pf & 8:
            g(f"v_lshlrev_b32 {vOne}, 5, {vP32}")
            g.vm(f"buffer_load_dword {vDum}, {vOne}, {R['ws']}, {sHst} offen sc1", "pf")
    pa.check(then=hbflag if o.hbflag_at < 0 else None)
    stamp("HA_flag")
    nxt = o.ahead
    hl = (h_load(m) for m in range(nxt))
    next(hl)
    g.pump = lambda: next(hl, None) if g.ta - g.clock < 30 else None
    run(gate_calc())
    g(f"s_lshl_b32 {sT[0]}, {sW}, 6\ns_add_u32 {sT[0]}, {sT[0]}, {C_OMG}\nv_lshl_add_u32 {t2}, {vC}, 2, {sT[0]}")
    g.ds(f"ds_write_b32 {t2}, {gate[1]}")
    g(f"v_xor_b32 {t0}, {vKq}, {vC}\nv_lshlrev_b32 {t0}, 4, {t0}\nv_lshl_add_u32 {t0}, {vC}, 8, {t0}\ns_lshl_b32 {sT[0]}, {sW}, 12\ns_add_u32 {sT[0]}, {sT[0]}, {C_BASE}\nv_add_u32 {t0}, {sT[0]}, {t0}")
    bq = Reg(V, accs[1].base, 32)
    for T in range(4):
        g.wait(lg=f"y{T}")
        for i in range(2):
            for src, d in ((sv[8 + 2*T + i], 0), (qp[2*T + i], 4), (x1p[2*T + i], 8)):
                g(f"v_lshlrev_b32 {bq[d + 2*i]}, 16, {src}\nv_and_b32 {bq[d + 2*i + 1]}, {sMask}, {src}")
        for i in (0, 2):
            g(f"v_pk_mul_f32 {bq.r(i,2)}, {bq.r(i,2)}, {bq.r(4+i,2)}")
            g(f"v_pk_mul_f32 {bq.r(8+i,2)}, {bq.r(8+i,2)}, {gate} op_sel:[0,1] op_sel_hi:[1,1]")
        for i in (0, 2):
            g(f"v_pk_fma_f32 {bq.r(12 + 4*T + i, 2)}, {bq.r(i,2)}, {gate}, {bq.r(8+i,2)} op_sel_hi:[1,0,1]")
        g(f"v_xor_b32 {t2}, {64*T}, {t0}")
        g.ds(f"ds_write_b128 {t2}, {bq.r(12 + 4*T, 4)}", "bw")
    qp.free(); x1p.free(); hq.free()
    vPw, vPr, vOut, vOm = (V.alloc(1) for _ in range(4))
    stamp("base")
    class Fin:
        @staticmethod
        def r(i, n=1):
            return accs[0].r(i, n) if i < 32 else tmp.r(i - 32, n)

        def __getitem__(self, i):
            return self.r(i)
    fin = Fin()

    def partial_out(th):
        for ft in range(2):
            for q in range(4):
                g(f"v_xor_b32 {t2}, {128*ft + 32*q}, {vPw}")
                g.ds(f"ds_write_b128 {t2}, {accs[th].r(16*ft + 4*q, 4)} offset:{LA + th*32768}", f"pw{th}")
                yield

    def final(th, packed):
        g(f"v_xor_b32 {t0}, 16, {vPr}")
        for x, ad in enumerate((vPr, t0)):
            for w in range(4):
                g.ds(f"ds_read_b128 {fin.r(16*x + 4*w, 4)}, {ad} offset:{LA + th*32768 + w*8192}", f"f{x}")
                yield
        g(f"v_add_u32 {t2}, {C_BASE + th*8192}, {vPr}\nv_add_u32 {t3}, {C_BASE + th*8192}, {t0}")
        yield
        g.ds(f"ds_read_b128 {fin.r(32,4)}, {t2}", "fb")
        g.ds(f"ds_read_b128 {fin.r(36,4)}, {t3}", "fb")
        yield
        g(f"v_add_u32 {t2}, {C_OMG + th*128}, {vOm}")
        g.ds(f"ds_read_b32 {sv[0]}, {t2}", "fb")
        yield
        for x in range(2):
            g.wait(lg=f"f{x}")
            b = 16 * x
            for d, s in ((0, 4), (8, 12), (0, 8)):
                if packed:
                    for i in (0, 2):
                        g(f"v_pk_add_f32 {fin.r(b+d+i,2)}, {fin.r(b+d+i,2)}, {fin.r(b+s+i,2)}")
                else:
                    for i in range(4):
                        g(f"v_add_f32 {fin[b+d+i]}, {fin[b+d+i]}, {fin[b+s+i]}")
                        yield
        g.wait(lg="fb")
        for x in range(2):
            for i in range(4):
                g(f"v_fma_f32 {fin[16*x+i]}, {fin[16*x+i]}, {sv[0]}, {fin[32+4*x+i]}")
                yield
        for x in range(2):
            for i in range(2):
                g(f"v_cvt_pk_bf16_f32 {fin[4 + 2*x + i]}, {fin[16*x + 2*i]}, {fin[16*x + 2*i + 1]}")
                yield
        g(f"s_add_u32 {sT[0]}, {sPan}, {th*32768}")
        g.vm(f"buffer_store_dwordx4 {fin.r(4,4)}, {vOut}, {R['out']}, {sT[0]} offen {o.out_pol}", "out")
        yield

    def barrier_after(tag):
        g.wait(lg=tag)
        g("s_barrier")
        yield

    Bg.cap = len(Bg.ops)
    g.pump = None
    run(hl)
    setup_ops = [f"v_and_b32 {t0}, 31, v0", f"v_lshrrev_b32 {t2}, 5, v0", f"v_xor_b32 {t2}, {t2}, {vC}", f"v_lshlrev_b32 {t2}, 4, {t2}", f"v_lshl_add_u32 {t0}, {t0}, 8, {t2}", f"s_lshl_b32 {sT[0]}, {sW}, 13", f"v_add_u32 {vPw}, {sT[0]}, {t0}", f"v_lshrrev_b32 {t0}, 3, v0", f"s_lshl_b32 {sT[0]}, {sW}, 3", f"v_add_u32 {t0}, {sT[0]}, {t0}", f"v_lshlrev_b32 {t3}, 4, {vS8}", f"v_lshl_add_u32 {vOut}, {t0}, 10, {t3}", f"v_lshlrev_b32 {t2}, 1, {vS8}", f"v_and_b32 {t3}, 15, {t0}", f"v_xor_b32 {t2}, {t2}, {t3}", f"v_lshlrev_b32 {t2}, 4, {t2}", f"v_lshl_add_u32 {vPr}, {t0}, 8, {t2}", f"v_lshlrev_b32 {vOm}, 2, {t0}"]
    fillers = [Ops(setup_ops)]
    for m in range(56):
        th, n = divmod(m, 28)
        if n % 2 == 0 and th == 0:
            Bg.flush(Bg.find("rd", 16 + n // 2))
            g.wait(lg=f"sr{16 + n//2}")
        if m == 28:
            stamp("g4_0"); idle("g4_0")
            drain(fillers)
            po = partial_out(0)
        if 29 <= m < 37:
            next(po)
        if m == o.bar_at:
            drain(fillers)
            fillers = [barrier_after("pw0"), final(0, False)]
        if m == o.hbflag_at:
            hbflag()
        if m % 7 == 0:
            mark(3, f"m{m}")
        g.wait(vm=f"H{m}")
        for ft in range(2):
            c = accs[th].r(16*ft, 16)
            if not (o.abl & 128 and ft):
                g(f"v_mfma_f32_32x32x16_bf16 {c}, {w4home(n, ft)}, {hb.r(4*(m & 31), 4)}, {c if n else 0}")
            if ft == 0:
                if m == o.bpoll_at:
                    pb.issue()
                if nxt == 28:
                    pb.check()
                if nxt < 56:
                    h_load(nxt)
                    nxt += 1
            if not (m == 28 and ft == 0):
                fill(fillers, 0, reserve=4 * ft)
    drain(fillers)
    stamp("g4_1")
    run(partial_out(1))
    run(barrier_after("pw1"))
    if o.bar_at >= 56:
        run(final(0, True))
    run(final(1, True))
    stamp("end")
    stamp("end_real", real=True)
    if o.stamps:
        g(f"s_lshl_b32 {sT[0]}, s2, 2\ns_add_u32 {sT[0]}, {sT[0]}, {sW}\ns_lshl_b32 {sT[0]}, {sT[0]}, 8\ns_add_u32 {sT[0]}, {sT[0]}, {STAMPS}")
        g(f"buffer_store_dword {vStamp}, {vL4}, {R['ws']}, {sT[0]} offen")
    if amp:
        g(f"s_cmp_lg_u32 s2, 77\ns_cbranch_scc1 L_end")
        g(f"s_sub_u32 {sAmp[2]}, {sAmp[2]}, {sAmp[0]}\ns_mul_i32 {sAmp[2]}, {sAmp[2]}, {amp[2]}\ns_min_u32 {sAmp[2]}, {sAmp[2]}, 100000")
        g(f"s_memrealtime {sAmp.r(0,2)}\ns_waitcnt lgkmcnt(0)")
        g(f"L_amp:\ns_memrealtime {sStamp}\ns_waitcnt lgkmcnt(0)\ns_sub_u32 {sStamp[0]}, {sStamp[0]}, {sAmp[0]}")
        g(f"s_cmp_lt_u32 {sStamp[0]}, {sAmp[2]}\ns_cbranch_scc1 L_amp")
    g("s_endpgm")
    for t in tail:
        g(t)
    g("L_end:\ns_endpgm")
    body = g.text(o.align)
    info = dict(nops=g.nops, vhigh=V.high, shigh=S.high, stamps=stamp_names, lines=len(g.lines), clock=g.clock, model=model, bgat=bgat)
    return file_text([(KNAME, 256, 256, LDS_BYTES)], [(KNAME, body, 512, 256, 102)]), info


REF = "gated_mix__ssm_conv_h3__mixer_s_mlp__prompt.s.ref"
HEADER = open(REF).read().split("; Override launch")[0] if os.path.exists(REF) else ""


def set_opts(args):
    for kv in args:
        k, v = kv.split("=")
        cur = getattr(Opt, k)
        setattr(Opt, k, type(cur)(int(v)) if isinstance(cur, (bool, int)) else v)


if __name__ == "__main__":
    out = sys.argv[1] if len(sys.argv) > 1 else "k.s"
    set_opts(sys.argv[2:])
    text, info = build(Opt)
    open(out, "w").write(HEADER + text)
    print(info)
```

```python
import copy
import os
import struct
import sys
from asmlib import ARG, NBYTES, KNAME, file_text
from kgen import Gen, Reg, merge_queues

F_H, F_U, F_X1, F_Y, F_HA, F_HB = 1, 2, 3, 4, 5, 6
LFLAG = 0x20000
STATS = 0x40000
HBUF, X1BUF, UBUF, YBUF, H2BUF = 0x100000, 0x300000, 0x500000, 0x700000, 0x900000
STAMPS = 0x2000000
OOB = 0x40000000

LA, LB, LC = 0, 65536, 131072
C_K, C_V, C_Q, C_CS = LC, LC + 9216, LC + 17920, LC + 26112
C_H, C_U = LC, LC + 8448
HP, UP = 4224, 1152
C_Y, C_BASE, C_OMG, C_STD = LC, LC + 8192, LC + 24576, LC + 26624
A_N = LC + 17920
NP = 6912
LDS_BYTES = 163840

GELU_C0 = -2.302208198144325
GELU_C1 = GELU_C0 * 0.044715
LOG2E = 1.4426950408889634

TILES = ([7, 6, 2], [5, 4, 3, 1, 0])


def fbits(x):
    return "0x%08x" % struct.unpack("<I", struct.pack("<f", x))[0]


class Opt:
    stamps = 0
    fine = 0
    amp = ""
    nt_once = ""
    out_pol = "sc1"
    code_pf = True
    code_bytes = 40960
    align = True
    nap = 0
    period = 85
    lat = 700
    thresh = 100
    thresh1 = 500
    fake = 0
    t3 = 3
    fast_end = True
    noglobal = 0
    abl = 0
    tail_bg = False
    hpoll = 2
    idle = ""
    touch4 = 6
    rotj = 0
    rotp = 0
    tx1 = ""
    tx2 = ""
    tx34 = ""
    t3_at = 10
    cap0 = "x3"
    t3_first = "x0"
    touch1 = "x0"
    bg_u = 4
    rd_ha = 24
    touch = 3
    touch2 = "w1b"
    pre2 = True
    local = True
    dpoll_at = 16
    bg_a = 0
    bg_b = 1
    cap_p2 = 6
    l2pf = 0
    cap2 = 15
    upoll_at = 11
    ucheck_at = 16
    bdist = 6
    hflag_m = 8
    bar_at = 46
    yflag_at = 10
    rot = False
    xflag_at = 24
    xpoll_at = 104
    xcheck_at = 126
    norm1_at = 10
    cap_a = 23
    l1_early = 8
    cap_b = 27
    q3a = 0
    q3b = 0
    haflag_at = 1
    hbflag_at = -1
    apoll_at = 4
    bpoll_at = 10
    ahead = 9


def build(o=Opt):
    g = Gen()
    g.vm_cost, g.vm_lat, g.vm_win = o.period, o.lat, 8 * o.period
    V, A, S = g.V, g.A, g.S
    names = ["q", "ws", "w1", "w2", "dbg", "k", "v", "shift_k", "ssm_D", "gate_w", "w3", "w4", "ssm_k", "out"]
    R = {n: S.alloc(4, align=4) for n in names}
    sW, sJ, sP, sPP, sX = (S.alloc(1) for _ in range(5))
    sT = S.alloc(4, align=2)
    sOnes, sLo1, sHi1, sMask, sTmo = (S.alloc(1) for _ in range(5))
    sStamp = S.alloc(2, align=2) if (o.stamps or o.amp) else None
    vStamp = V.alloc(1)
    stamp_names = []
    amp = o.amp.split(",") if o.amp else None
    sAmp = S.alloc(4, align=2) if amp else None
    tail = []

    model, bgat = {}, {}

    def stamp(name, real=False):
        model[name] = g.clock
        bgat[name] = "%s%s" % Bg.ops[Bg.idx][:2] if Bg.idx < len(Bg.ops) else "end"
        with g.hold():
            if amp and name in amp[:2]:
                g(f"s_memrealtime {sAmp.r(2*amp.index(name), 2)}")
                g.smem = True
                g.wait(lg="*")
            if o.stamps in (1, 3) or (o.stamps == 2 and real):
                g(f"s_mem{'real' if real or o.stamps == 3 else ''}time {sStamp}")
                g.smem = True
                g.wait(lg="*")
                if name not in stamp_names:
                    stamp_names.append(name)
                g(f"v_writelane_b32 {vStamp}, {sStamp[0]}, {stamp_names.index(name)}")

    def idle(name):
        if name in o.idle.split(":"):
            g("s_sleep 16")

    def mark(level, name):
        if o.fine == level:
            stamp(name)

    def flag_set(val):
        with g.hold():
            g(f"s_mov_b64 exec, 1\nv_mov_b32 {vOne}, {val}")
            if o.local and val not in (F_U, F_Y):
                g.vm(f"buffer_store_dword {vOne}, off, {R['ws']}, {sLf}", "flag")
            if not (o.noglobal and val not in (F_U, F_Y)):
                g.vm(f"buffer_store_dword {vOne}, off, {R['ws']}, {sFl} sc1", "flag")
            g("s_mov_b64 exec, -1")

    class Poll:
        def __init__(self, srd, vaddr, soff, need, local=False):
            self.t = V.alloc(1)
            self.tag = g.label("poll")
            self.cmp = f"v_cmp_gt_u32 vcc, {need}, {self.t}"
            self.ld = f"buffer_load_dword {self.t}, {vaddr}, {srd}, {soff} offen sc1"
            self.first = self.ld
            self.pre = ""
            if local:
                self.ld = f"v_lshlrev_b32 {self.t}, 5, {vaddr}\nbuffer_load_dword {self.t}, {self.t}, {srd}, {sFp} offen sc1"
                self.first = self.ld
                if o.local:
                    self.first = f"buffer_load_dword {self.t}, {vaddr}, {srd}, {sLp} offen sc1"
                    self.pre = self.first

        def issue(self):
            with g.hold():
                g.vm(self.first, self.tag)

        def check(self, free=True, then=None):
            n = g.label("chk")
            with g.hold():
                g.wait(vm=self.tag)
                if then:
                    then()
                g(f"{self.cmp}\ns_cbranch_vccnz {n}_slow\n{n}_ok:")
                if o.stamps == 4:
                    if self.tag not in stamp_names:
                        stamp_names.append(self.tag)
                    g(f"v_writelane_b32 {vStamp}, {sTmo}, {stamp_names.index(self.tag)}")
            nap = f"s_sleep {o.nap}\n" if o.nap else ""
            for _ in range(3 if self.pre else 0):
                nap += (f"s_sub_u32 {sTmo}, {sTmo}, 1\n" if o.stamps == 4 else "") + f"{self.pre}\ns_waitcnt vmcnt(0)\n{self.cmp}\ns_cbranch_vccz {n}_ok\n"
            tail.append(f"{n}_slow:\ns_sub_u32 {sTmo}, {sTmo}, 1\ns_cbranch_scc1 {n}_out\n{nap}{self.ld}\ns_waitcnt vmcnt(0)\n"
                        f"{self.cmp}\ns_cbranch_vccnz {n}_slow\ns_branch {n}_ok\n"
                        f"{n}_out:\ns_mov_b32 {sTmo}, 0\ns_branch {n}_ok")
            if free:
                self.t.free()

    def round_bf16(r):
        g(f"v_cvt_pk_bf16_f32 {r}, {r}, {r}")
        yield
        g(f"v_and_b32 {r}, {sMask}, {r}")
        yield

    def ln_mean(s1, negmu):
        g(f"v_mul_f32 {negmu}, {fbits(-1.0/512)}, {s1}")
        yield
        yield from round_bf16(negmu)

    def ln_std(s1, s2, std):
        for t in (f"v_mul_f32 {s1}, {fbits(1.0/512)}, {s1}", f"v_mul_f32 {s2}, {fbits(1.0/512)}, {s2}",
                  f"v_fma_f32 {s2}, -{s1}, {s1}, {s2}", f"v_max_f32 {s2}, 0, {s2}"):
            g(t)
            yield
        yield from round_bf16(s2)
        g(f"v_add_f32 {s2}, {fbits(1e-5)}, {s2}")
        yield
        yield from round_bf16(s2)
        g(f"v_sqrt_f32 {std}, {s2}\ns_nop 0")
        yield
        yield from round_bf16(std)

    def ln_scale(gk):
        g(f"v_rcp_f32 {gk[3]}, {gk[2]}\ns_nop 0")
        yield
        for t in (f"v_mul_f32 {gk[1]}, {fbits(GELU_C0)}, {gk[3]}", f"v_mul_f32 {gk[0]}, {gk[3]}, {gk[3]}",
                  f"v_mul_f32 {gk[0]}, {gk[0]}, {gk[3]}", f"v_mul_f32 {gk[0]}, {fbits(GELU_C1)}, {gk[0]}"):
            g(t)
            yield

    def ln_stats(s1, s2, negmu, gk):
        for t in (f"v_mul_f32 {negmu}, {fbits(-1.0/512)}, {s1}", f"v_mul_f32 {s2}, {fbits(1.0/512)}, {s2}",
                  f"v_fma_f32 {s2}, -{negmu}, {negmu}, {s2}", f"v_max_f32 {s2}, 0, {s2}"):
            g(t)
            yield
        yield from round_bf16(s2)
        g(f"v_add_f32 {s2}, {fbits(1e-5)}, {s2}")
        yield
        yield from round_bf16(s2)
        g(f"v_sqrt_f32 {gk[2]}, {s2}")
        yield
        yield from round_bf16(negmu)
        yield from round_bf16(gk[2])
        g(f"v_rcp_f32 {s2}, {gk[2]}\ns_nop 0")
        yield
        for t in (f"v_mul_f32 {gk[1]}, {fbits(GELU_C0)}, {s2}", f"v_mul_f32 {gk[0]}, {s2}, {s2}",
                  f"v_mul_f32 {gk[0]}, {gk[0]}, {s2}", f"v_mul_f32 {gk[0]}, {fbits(GELU_C1)}, {gk[0]}"):
            g(t)
            yield

    def center_dot(regs, negmu, tmp):
        for b in range(0, len(regs), 4):
            for i in range(4):
                g(f"v_dot2_f32_bf16 {tmp[2*i]}, {regs[b+i]}, {sLo1}, {negmu}")
                g(f"v_dot2_f32_bf16 {tmp[2*i+1]}, {regs[b+i]}, {sHi1}, {negmu}")
            for i in range(4):
                g(f"v_cvt_pk_bf16_f32 {regs[b+i]}, {tmp[2*i]}, {tmp[2*i+1]}")
            yield

    def center_plain(regs, negmu, tmp):
        for i, r in enumerate(regs):
            a, b = tmp[2*(i & 1)], tmp[2*(i & 1) + 1]
            for t in (f"v_lshlrev_b32 {a}, 16, {r}", f"v_and_b32 {b}, {sMask}, {r}", f"v_add_f32 {a}, {a}, {negmu}",
                      f"v_add_f32 {b}, {b}, {negmu}", f"v_cvt_pk_bf16_f32 {r}, {a}, {b}"):
                g(t)
                yield

    def gelu_pk(acc, n, gk, out, tmp, done=None):
        kk, ss = gk.r(0, 2), gk.r(2, 2)
        for b in range(0, n, 8):
            P = range(0, 8, 2)
            if (o.abl & 256 and n == 16) or (o.abl & 512 and n == 32):
                for i in P:
                    g(f"v_cvt_pk_bf16_f32 {out[(b+i)//2 % out.n]}, {acc[b+i]}, {acc[b+i+1]}")
                if done:
                    done(b // 8)
                continue
            for i in P:
                g(f"v_pk_mul_f32 {tmp.r(i,2)}, {acc.r(b+i,2)}, {acc.r(b+i,2)}")
            for i in P:
                g(f"v_pk_fma_f32 {tmp.r(i,2)}, {tmp.r(i,2)}, {kk}, {kk} op_sel:[0,0,1] op_sel_hi:[1,0,1]")
            for i in P:
                g(f"v_pk_mul_f32 {tmp.r(i,2)}, {tmp.r(i,2)}, {acc.r(b+i,2)}")
            for i in range(8):
                g(f"v_exp_f32 {tmp[i]}, {tmp[i]}")
            for i in P:
                g(f"v_pk_fma_f32 {tmp.r(i,2)}, {tmp.r(i,2)}, {ss}, {ss} op_sel_hi:[1,0,0]")
            for i in range(8):
                g(f"v_rcp_f32 {tmp[i]}, {tmp[i]}")
            for i in P:
                g(f"v_pk_mul_f32 {tmp.r(i,2)}, {tmp.r(i,2)}, {acc.r(b+i,2)}")
            for i in P:
                g(f"v_cvt_pk_bf16_f32 {out[(b+i)//2 % out.n]}, {tmp[i]}, {tmp[i+1]}")
            if done:
                done(b // 8)

    def gelu_plain(acc, n, gk, out, tmp, done):
        streams = [[], []]
        left = {}
        for b in range(0, n, 4):
            h = (b // 4) & 1
            T = [tmp[4*h + i] for i in range(4)]
            Q = range(4)
            ops = [f"v_mul_f32 {T[i]}, {acc[b+i]}, {acc[b+i]}" for i in Q]
            ops += [f"v_fma_f32 {T[i]}, {T[i]}, {gk[0]}, {gk[1]}" for i in Q]
            ops += [f"v_mul_f32 {T[i]}, {T[i]}, {acc[b+i]}" for i in Q]
            ops += [f"v_exp_f32 {T[i]}, {T[i]}" for i in Q]
            ops += [f"v_fma_f32 {T[i]}, {T[i]}, {gk[2]}, {gk[2]}" for i in Q]
            ops += [f"v_rcp_f32 {T[i]}, {T[i]}" for i in Q]
            ops += [f"v_mul_f32 {T[i]}, {T[i]}, {acc[b+i]}" for i in Q]
            f = b // 8
            left[f] = 2

            def guard(f=f):
                assert left.get(f - 2, 0) == 0
            ops += [(0, guard)] + [f"v_cvt_pk_bf16_f32 {out[(b+i)//2 % out.n]}, {T[i]}, {T[i+1]}" for i in (0, 2)]

            def fin(f=f):
                left[f] -= 1
                if left[f] == 0:
                    done(f)
            streams[h] += (ops[-3:] if o.abl & 4 else ops) + [(4, fin)]
        streams[1] = [(0, lambda: None)] * 12 + streams[1]
        return streams

    def run(it):
        for _ in it:
            pass

    def chain(*its):
        for it in its:
            yield from it

    class Bg:
        ops, idx, cap = [], 0, 0
        dma_on = True
        last, gap = 0, 0
        thresh = o.thresh

        @classmethod
        def ready(cls, force=False):
            if cls.idx >= min(cls.cap, len(cls.ops)):
                return False
            kind, key, _ = cls.ops[cls.idx]
            if force:
                return True
            if kind == "dma":
                return cls.dma_on and g.backlog() < cls.thresh and g.ta - g.clock < 30 and g.clock >= cls.last + cls.gap
            if kind == "rd0":
                return g.clock >= g.vmt[f"sd{key}"]
            return True

        @classmethod
        def step(cls, force=False):
            if not cls.ready(force):
                return False
            kind, key, fn = cls.ops[cls.idx]
            cls.idx += 1
            with g.hold():
                fn()
            if kind == "dma":
                cls.last = g.clock
            return True

        @classmethod
        def find(cls, kind, key):
            return max(i for i, (k, y, _) in enumerate(cls.ops) if y == key and k.startswith(kind)) + 1

        @classmethod
        def flush(cls, idx):
            cap, cls.cap = cls.cap, max(cls.cap, idx)
            while cls.idx < idx:
                cls.step(True)
            cls.cap = cap

        @classmethod
        def burst(cls, n):
            while n > 0 and cls.idx < min(cls.cap, len(cls.ops)):
                kind = cls.ops[cls.idx][0]
                if kind == "rd0" and not cls.ready():
                    break
                cls.step(True)
                n -= kind == "dma"

    def pump_on():
        g.pump = Bg.step

    def pump_off():
        g.pump = None

    class Ops:
        def __init__(self, items):
            self.items = list(items)

        def cost(self):
            it = self.items[0]
            return it[0] if isinstance(it, tuple) else 8 if it.startswith(("v_exp", "v_rcp", "v_sqrt")) else 4

        def emit(self):
            it = self.items.pop(0)
            it[1]() if isinstance(it, tuple) else g(it)

        def drain(self):
            while self.items:
                self.emit()

    def fill(fillers, over=0, reserve=0):
        while True:
            room = g.slack() - reserve + over
            if room >= 4 and Bg.step():
                continue
            live = [f for f in fillers if (f.items if isinstance(f, Ops) else True)]
            fillers[:] = live
            pick = None
            for f in live:
                if not isinstance(f, Ops):
                    pick = f if room >= 4 else None
                    break
                if f.cost() <= room and (pick is None or len(f.items) > len(pick.items)):
                    pick = f
            if pick is None:
                return
            if isinstance(pick, Ops):
                pick.emit()
            elif next(pick, 1) is not None:
                fillers.remove(pick)

    def drain(fillers):
        while fillers:
            f = fillers[0]
            if isinstance(f, Ops):
                others = [x for x in fillers if isinstance(x, Ops) and x.items]
                while others:
                    for x in others:
                        x.emit()
                    others = [x for x in others if x.items]
                fillers[:] = [x for x in fillers if not isinstance(x, Ops)]
            else:
                run(f)
                fillers.pop(0)

    g("s_cmp_ge_u32 s2, 256\ns_cbranch_scc1 L_end")
    if amp and amp[0] == "entry":
        g(f"s_memrealtime {sAmp.r(0,2)}")
    for n in names:
        g(f"s_load_dwordx2 {R[n].r(0,2)}, s[0:1], {ARG[n]}")
    g.smem = True
    vOne, vL16, vL4, vDum = (V.alloc(1) for _ in range(4))
    t0, t2, t3 = (V.alloc(1) for _ in range(3))
    if o.code_pf:
        pc = V.alloc(2)
        per = o.code_bytes // 32
        assert per <= 2048
        g(f"s_getpc_b64 {sT.r(0,2)}")
        g(f"s_lshr_b32 {sT[2]}, s2, 3\ns_mul_i32 {sT[2]}, {sT[2]}, {per}")
        g(f"v_lshl_add_u32 {t0}, v0, 3, {sT[2]}")
        g(f"v_min_u32 {t0}, L_end-L_pc, {t0}")
        g("L_pc:")
        g(f"v_mov_b32 {pc[1]}, {sT[1]}")
        g(f"v_add_co_u32 {pc[0]}, vcc, {sT[0]}, {t0}")
        g(f"s_nop 1\nv_addc_co_u32 {pc[1]}, vcc, 0, {pc[1]}, vcc")
        g.vm(f"global_load_dword {vDum}, {pc}, off", "pf")
        pc.free()
    g(f"v_lshrrev_b32 {t0}, 6, v0\nv_and_b32 v0, 63, v0\nv_readfirstlane_b32 {sW}, {t0}")
    g(f"s_and_b32 {sX}, s2, 7\ns_lshr_b32 {sT[0]}, s2, 3\ns_and_b32 {sJ}, {sT[0]}, 7\ns_lshr_b32 {sPP}, {sT[0]}, 3")
    g(f"s_lshl_b32 {sP}, {sX}, 2\ns_add_u32 {sP}, {sP}, {sPP}")

    def srd_words(ns):
        for n in ns:
            g(f"s_mov_b32 {R[n][2]}, {NBYTES[n]}\ns_mov_b32 {R[n][3]}, 0x00020000")
    srd_words(names[:4])
    vC, vKq, vR8, vS8 = (V.alloc(1) for _ in range(4))
    g(f"v_and_b32 {vC}, 15, v0\nv_lshrrev_b32 {vKq}, 4, v0\nv_lshrrev_b32 {vR8}, 3, v0\nv_lshlrev_b32 {vR8}, 10, {vR8}\nv_and_b32 {vS8}, 7, v0")
    sLdsW, sCol, sPan, sKV, sKV2, sC2 = (S.alloc(1) for _ in range(6))
    g(f"s_lshl_b32 {sLdsW}, {sW}, 14\ns_lshl_b32 {sCol}, {sJ}, 7\ns_lshl_b32 {sPan}, {sP}, 16\ns_add_u32 {sPan}, {sPan}, {sCol}")
    g(f"s_add_u32 {sKV}, {sLdsW}, {sPan}\ns_lshl_b32 {sC2}, {sW}, 11\ns_add_u32 {sKV2}, {sKV}, 7168")
    if o.stamps:
        g(f"v_mov_b32 {vStamp}, 0")
    g(f"s_lshr_b32 {sT[0]}, {sJ}, 2\ns_add_u32 {sT[0]}, {sT[0]}, 1\ns_sub_u32 {sT[1]}, 0, {sT[0]}")
    g(f"s_bitcmp1_b32 {sJ}, 1\ns_cselect_b32 {sT[0]}, {sT[0]}, {sT[1]}\ns_lshl_b32 {sT[0]}, {sT[0]}, 10")
    g(f"s_sub_u32 {sT[1]}, {sKV}, {sCol}\ns_add_u32 {sT[0]}, {sT[0]}, {sT[1]}")
    vQa, xd = V.alloc(2), V.alloc(2)
    g(f"v_xor_b32 {t0}, {vS8}, {vKq}\nv_lshl_add_u32 {vQa[0]}, {t0}, 4, {vR8}\nv_xor_b32 {vQa[1]}, 64, {vQa[0]}\nv_add_u32 {vQa[1]}, 7168, {vQa[1]}")
    g(f"v_add_u32 {xd[0]}, {sT[0]}, {vQa[0]}\nv_add_u32 {xd[1]}, {sT[0]}, {vQa[1]}")
    g.wait(lg="*")
    stamp("start_real", real=True)
    stamp("start")
    sM, sOff, sWo = S.alloc(1), S.alloc(1), S.alloc(1)
    wd = V.alloc(4, at=152)

    def x_dma(n, hh):
        if g.m0 != ("x", n):
            g(f"s_add_u32 m0, {sLdsW}, {LA + n*2048}\ns_xor_b32 {sWo}, {sCol}, {n << 7}")
            g.m0 = ("x", n)
        g.vm(f"buffer_load_dwordx4 {xd[hh]}, {R['q']}, {sWo} offen offset:{hh*1024} lds", f"x{n}")

    def w_dma(name, base, n, i):
        key = (name, n)
        sh = 2 if name == "w1" else 0
        if g.m0 != key:
            g(f"s_xor_b32 m0, {sM}, {base + (n << (12 + sh))}\ns_xor_b32 {sWo}, {sOff}, {n << (15 + sh)}")
            g.m0 = key
        g.vm(f"buffer_load_dwordx4 {wd[i]}, {R[name]}, {sWo} offen offset:{i*1024} lds", name + ("ab"[n >> 1] if sh else ""))

    for n in range(8):
        for hh in range(2):
            Bg.ops.append(("dma", f"x{n}", lambda n=n, hh=hh: x_dma(n, hh)))
    for n in range(4):
        for i in range(4):
            Bg.ops.append(("dma", "w1" + "ab"[n >> 1], lambda n=n, i=i: w_dma("w1", LB, n, i)))
    g.vm_lat = 1500

    def touch(n, bufs, sWo=sWo):
        g(f"s_lshl_b32 {sWo}, s2, 2\ns_add_u32 {sWo}, {sWo}, {sW}\ns_mul_i32 {sWo}, {sWo}, {n*128}\nv_min_u32 {vOne}, {n-1}, v0\nv_lshlrev_b32 {vOne}, 7, {vOne}")
        for b in bufs:
            g.vm(f"buffer_load_dword {vDum}, {vOne}, {R[b]}, {sWo} offen", "pf")
        g.m0 = None

    def touch3(n, bufs, sreg):
        g(f"s_lshr_b32 {sreg}, s2, 3\ns_lshl_b32 {sreg}, {sreg}, 2\ns_add_u32 {sreg}, {sreg}, {sW}\ns_mul_i32 {sreg}, {sreg}, {n*1024}")
        g(f"v_min_u32 {vOne}, {n-1}, v0\nv_lshlrev_b32 {vOne}, 10, {vOne}")
        for b in bufs:
            g.vm(f"buffer_load_dword {vDum}, {vOne}, {R[b]}, {sreg} offen offset:384", "pf")
        g.m0 = None
    if o.touch & 1:
        at = Bg.find("dma", o.touch1)
        Bg.ops[at:at] = [("dma", "tch0", lambda: touch(4, ("w1", "w2")))]

    def touchx(buf, n, part, sreg):
        g(f"s_lshr_b32 {sreg}, s2, 3\ns_lshl_b32 {sreg}, {sreg}, 2\ns_add_u32 {sreg}, {sreg}, {sW}\ns_mul_i32 {sreg}, {sreg}, {n*128}")
        if part:
            g(f"s_add_u32 {sreg}, {sreg}, {part*n*128*128}")
        g(f"v_min_u32 {vOne}, {n-1}, v0\nv_lshlrev_b32 {vOne}, 7, {vOne}")
        g.vm(f"buffer_load_dword {vDum}, {vOne}, {R[buf]}, {sreg} offen", "pf")
        g.m0 = None
    if o.tx1:
        at = Bg.find("dma", o.tx1) if o.tx1 != "0" else 0
        Bg.ops[at:at] = [("dma", "tx1", lambda: touchx("w1", 32, 0, sWo))]
    if o.tx2:
        at = Bg.find("dma", o.tx2)
        Bg.ops[at:at] = [("dma", "tx2", lambda: touchx("w2", 32, 0, sWo))]
    if o.t3 & 1:
        at = Bg.find("dma", o.t3_first)
        Bg.ops[at:at] = [("dma", "tch1", lambda: touch3(4, ("w1", "w2"), sWo))]
    Bg.flush(1)
    g.vm_lat = o.lat
    Bg.flush(Bg.find("dma", "x1"))
    sFp, sFl, sLp, sLf, sLead = (S.alloc(1) for _ in range(5))
    vP32 = V.alloc(1)
    z = V.alloc(4, at=160)
    g(f"v_and_b32 {vP32}, 31, v0\nv_lshlrev_b32 {vP32}, 2, {vP32}\ns_lshl_b32 {sFp}, {sP}, 12\nv_lshlrev_b32 {vL16}, 4, v0")
    g(f"v_mov_b32 {z[0]}, 0\nv_mov_b32 {z[1]}, 0\nv_mov_b32 {z[2]}, 0\nv_mov_b32 {z[3]}, 0\nv_lshlrev_b32 {t0}, 4, {vS8}")
    g(f"s_lshl_b32 {sLp}, {sP}, 7\ns_add_u32 {sLp}, {sLp}, {LFLAG}")
    g(f"s_lshl_b32 {sT[0]}, {sJ}, 2\ns_add_u32 {sT[0]}, {sT[0]}, {sW}\ns_lshl_b32 {sFl}, {sT[0]}, 7\ns_add_u32 {sFl}, {sFl}, {sFp}")
    g(f"s_lshl_b32 {sLf}, {sT[0]}, 2\ns_add_u32 {sLf}, {sLf}, {sLp}")
    g(f"s_lshl_b32 {sT[1]}, {sP}, 2\ns_cmp_eq_u32 {sT[0]}, 0\ns_cselect_b32 {sLead}, {sT[1]}, {OOB}\ns_cselect_b32 {sT[2]}, {sLp}, {OOB}")
    g(f"s_lshl_b32 {sT[1]}, {sW}, 10\ns_add_u32 {sT[1]}, {sT[1]}, {sFp}\ns_cmp_eq_u32 {sJ}, 0\ns_cselect_b32 {sT[3]}, {sT[1]}, {OOB}")
    g.vm(f"buffer_store_dwordx4 {z}, {vL16}, {R['ws']}, {sT[3]} offen sc1", "clr", cost=30)
    g.vm(f"buffer_store_dwordx4 {z}, {t0}, {R['ws']}, {sT[2]} offen sc1", "clr", cost=30)
    z.free()
    Bg.cap = Bg.find("dma", o.cap0)
    Bg.thresh = o.thresh1
    pump_on()
    srd_words(names[4:])
    g(f"v_and_b32 {t0}, 1, {vKq}\nv_lshlrev_b32 {t0}, 1, {t0}\nv_xor_b32 {t0}, {t0}, {vS8}\nv_lshl_add_u32 {wd[0]}, {t0}, 4, {vR8}")
    g(f"v_xor_b32 {t0}, 64, {wd[0]}\nv_add_u32 {wd[1]}, 7168, {t0}\nv_add_u32 {wd[2]}, 14336, {wd[0]}\nv_add_u32 {wd[3]}, 21504, {t0}")
    g(f"s_and_b32 {sT[0]}, {sPP}, 1\ns_lshl_b32 {sT[0]}, {sT[0]}, 2\ns_add_u32 {sT[0]}, {sT[0]}, {sW}\ns_lshl_b32 {sM}, {sT[0]}, 12")
    g(f"s_lshl_b32 {sT[1]}, {sJ}, 1\ns_xor_b32 {sT[0]}, {sT[0]}, {sT[1]}\ns_lshl_b32 {sOff}, {sT[0]}, 15\ns_add_u32 {sOff}, {sOff}, {sCol}")
    vW2, vV, vK0, vSk = V.alloc(1), V.alloc(2), V.alloc(1), V.alloc(1)
    sK0, sSk = S.alloc(1), S.alloc(1)
    g(f"v_lshlrev_b32 {t0}, 1, {vKq}\nv_xor_b32 {t0}, {t0}, {vS8}\nv_lshl_add_u32 {vW2}, {t0}, 4, {vR8}")
    g(f"v_lshrrev_b32 {t2}, 5, v0\nv_lshlrev_b32 {t2}, 1, {t2}\nv_xor_b32 {t2}, {t2}, {vS8}\nv_lshl_add_u32 {vV[0]}, {t2}, 4, {vR8}\nv_xor_b32 {vV[1]}, 64, {vV[0]}")
    g(f"s_sub_u32 {sT[0]}, {sPan}, 8192\ns_add_u32 {sT[1]}, {sC2}, {C_Q}\ns_cmp_eq_u32 {sW}, 0\n"
      f"s_cselect_b32 {sT[0]}, {sT[0]}, {OOB}\ns_cselect_b32 {sK0}, {C_K}, {sT[1]}\nv_add_u32 {vK0}, {sT[0]}, {vW2}")
    g(f"v_lshlrev_b32 {vSk}, 3, {vC}\ns_lshl_b32 {sT[2]}, {sJ}, 9\ns_lshl_b32 {sT[3]}, {sW}, 7\ns_add_u32 {sSk}, {sT[2]}, {sT[3]}")
    vR8.free()
    g(f"s_mov_b32 {sOnes}, 0x3f803f80\ns_mov_b32 {sLo1}, 0x00003f80\ns_mov_b32 {sHi1}, 0x3f800000")
    g(f"s_mov_b32 {sMask}, 0xffff0000\ns_mov_b32 {sTmo}, 0x40000")
    g(f"v_lshlrev_b32 {vL4}, 2, v0")

    vR4, vC8 = V.alloc(1), V.alloc(1)
    g(f"v_bfe_u32 {vR4}, v0, 2, 2\nv_and_b32 {vC8}, 3, v0\nv_lshlrev_b32 {vC8}, 3, {vC8}")
    ka = V.alloc(3)
    for m in range(2):
        g(f"v_sub_u32 {t0}, {vKq}, {vR4}\nv_add_u32 {t0}, {8 + 4*m}, {t0}\nv_bfe_u32 {t2}, {t0}, 1, 2\nv_xor_b32 {t2}, {sW}, {t2}")
        g(f"v_lshl_add_u32 {t2}, {t2}, 5, {vC8}\nv_lshl_add_u32 {t2}, {t0}, 7, {t2}\nv_add_u32 {ka[m]}, {C_K}, {t2}")
    g(f"v_lshl_add_u32 {t0}, {vR4}, 2, {vKq}\nv_xor_b32 {t2}, {sW}, {vR4}\nv_lshl_add_u32 {t2}, {t2}, 5, {vC8}")
    g(f"v_lshl_add_u32 {t2}, {t0}, 7, {t2}\nv_add_u32 {ka[2]}, {C_V}, {t2}")
    sQ = S.alloc(1)
    ua = V.alloc(2)
    g(f"s_add_u32 {sQ}, {sC2}, {C_Q}")
    g(f"s_lshr_b32 {sT[0]}, {sP}, 1\nv_add_u32 {t2}, {sT[0]}, {vKq}\nv_and_b32 {t2}, 3, {t2}\nv_lshlrev_b32 {t2}, 1, {t2}")
    g(f"v_and_b32 {t0}, 7, {vC}\nv_xor_b32 {t0}, {t0}, {t2}\nv_lshlrev_b32 {t0}, 4, {t0}")
    g(f"v_lshl_add_u32 {t0}, {vC}, 7, {t0}\nv_add_u32 {ua[0]}, {sQ}, {t0}")
    g(f"v_lshrrev_b32 {t0}, 3, v0\nv_xor_b32 {t2}, {t0}, {vS8}\nv_lshlrev_b32 {t2}, 4, {t2}")
    g(f"v_lshl_add_u32 {t2}, {t0}, 7, {t2}\nv_add_u32 {ua[1]}, {sQ}, {t2}")
    vT4k = V.alloc(1)
    g(f"v_lshlrev_b32 {t3}, 4, {vS8}\nv_lshl_add_u32 {vT4k}, {t0}, 12, {t3}")
    xa = V.alloc(2)
    g(f"v_lshrrev_b32 {t0}, 1, {vC}\nv_xor_b32 {t0}, {t0}, {vKq}\nv_lshlrev_b32 {t0}, 4, {t0}\nv_lshl_add_u32 {t0}, {vC}, 7, {t0}")
    g(f"v_add_u32 {xa[0]}, {sLdsW}, {t0}\nv_xor_b32 {xa[1]}, 64, {xa[0]}")
    wa = V.alloc(8, at=144)
    g(f"v_lshl_add_u32 {t0}, {vKq}, 3, {vR4}\nv_lshl_add_u32 {t0}, {t0}, 7, {vC8}")
    g(f"v_lshrrev_b32 {t2}, 1, {vR4}\nv_and_b32 {t3}, 1, {vKq}\nv_lshl_or_b32 {t2}, {t3}, 1, {t2}")
    g(f"v_xor_b32 {t2}, {sW}, {t2}\nv_lshl_add_u32 {t0}, {t2}, 5, {t0}\nv_add_u32 {wa[0]}, {LB}, {t0}")
    for T in range(1, 4):
        g(f"v_xor_b32 {wa[T]}, {32*T}, {wa[0]}")
    sCh, sHo = S.alloc(1), S.alloc(1)
    sHs = S.alloc(2)
    g(f"s_lshr_b32 {sT[2]}, {sW}, 1\ns_and_b32 {sT[3]}, {sW}, 1")
    g(f"s_lshl_b32 {sCh}, {sJ}, 5\ns_add_u32 {sCh}, {sCh}, {sP}\ns_lshl_b32 {sCh}, {sCh}, 1\ns_add_u32 {sCh}, {sCh}, {sT[2]}")
    g(f"s_sub_u32 {sHo}, {sKV}, {sCol}\ns_lshl_b32 {sT[0]}, {sJ}, 11\ns_add_u32 {sHo}, {sHo}, {sT[0]}\ns_add_u32 {sHo}, {sHo}, {HBUF}")
    g(f"s_lshl_b32 {sT[0]}, {sT[2]}, 10\ns_add_u32 {sHs[0]}, {sHo}, {sT[0]}\ns_xor_b32 {sHs[1]}, {sHs[0]}, 1024")
    sL, sW3, sRot3, sIdle, sRing, sSt = (S.alloc(1) for _ in range(6))
    g(f"s_lshr_b32 {sT[0]}, {sJ}, 1\ns_mul_i32 {sL}, {sT[0]}, 7\ns_and_b32 {sT[1]}, {sJ}, 1\ns_lshl_b32 {sT[2]}, {sT[1]}, 2")
    g(f"s_add_u32 {sT[2]}, {sT[2]}, {sW}\ns_add_u32 {sL}, {sL}, {sT[2]}")
    g(f"s_cmp_eq_u32 {sT[2]}, 7\ns_cselect_b32 {sIdle}, {OOB}, 0")
    g(f"s_lshl_b32 {sW3}, {sL}, 7\ns_add_u32 {sW3}, {sW3}, {sIdle}")
    if o.rot:
        g(f"s_lshl_b32 {sRot3}, {sX}, 1")
        if o.rotp & 1:
            g(f"s_lshl_b32 {sRot3}, {sPP}, 2")
        if o.rotp & 4:
            g(f"s_mov_b32 {sRot3}, 0")
        if o.rotj & 2:
            g(f"s_lshl_b32 {sT[0]}, {sJ}, 1\ns_xor_b32 {sRot3}, {sRot3}, {sT[0]}")
    g(f"s_add_u32 {sRing}, {sLdsW}, {LB}")
    if o.fake & 1:
        g(f"s_mov_b32 {sW3}, {OOB}")
    d3, ra = V.alloc(4), V.alloc(2)
    g(f"v_lshrrev_b32 {t0}, 3, v0\nv_and_b32 {t2}, 1, {vKq}\nv_lshlrev_b32 {t2}, 2, {t2}")
    g(f"v_xor_b32 {t3}, {t2}, {vS8}\nv_lshlrev_b32 {t3}, 4, {t3}")
    g(f"v_mul_u32_u24 {d3[0]}, 3584, {t0}\nv_add_u32 {d3[0]}, {d3[0]}, {t3}")
    for i in range(1, 4):
        g(f"v_add_u32 {d3[i]}, {i*(8*3584-1024)}, {d3[0]}")
    g(f"v_lshrrev_b32 {t0}, 5, v0\nv_lshl_add_u32 {t0}, {t0}, 2, {vR4}\nv_lshl_add_u32 {t0}, {t0}, 7, {vC8}")
    g(f"v_and_b32 {t2}, 1, {vKq}\nv_lshl_add_u32 {t0}, {t2}, 5, {t0}\nv_lshrrev_b32 {t2}, 1, {vR4}\nv_lshl_add_u32 {t0}, {t2}, 6, {t0}")
    g(f"v_add_u32 {ra[0]}, {sRing}, {t0}\nv_xor_b32 {ra[1]}, 64, {ra[0]}")
    xf = V.alloc(64, at=48)
    tmp = V.alloc(8, at=112)
    st, gk1 = V.alloc(4, at=120), V.alloc(4, at=124)
    cs, ones = V.alloc(16, at=160), V.alloc(4, at=176)
    wf, acc = V.alloc(48, at=192), V.alloc(16, at=240)
    vCs = V.alloc(1)
    for i in range(4):
        g(f"v_mov_b32 {st[i]}, 0\nv_mov_b32 {ones[i]}, {sOnes}")
    g(f"s_lshl_b32 {sT[0]}, {sW}, 6\ns_add_u32 {sT[0]}, {sT[0]}, {C_CS}\nv_lshl_add_u32 {vCs}, {vKq}, 4, {sT[0]}")
    pump_off()
    Bg.flush(Bg.cap)
    stamp("setup")

    def x_reads(n):
        Bg.flush(Bg.find("dma", f"x{n}"))
        g.wait(vm=f"x{n}")
        for b in range(2):
            g.ds(f"ds_read_b128 {xf.r(8*n + 4*b, 4)}, {xa[b]} offset:{LA + n*2048}", f"x{n}")

    def stats(n):
        g.wait(lg=f"x{n}")
        for i in range(0 if o.abl & 16 else 8):
            g(f"v_dot2c_f32_bf16 {st[i & 1]}, {sOnes}, {xf[8*n+i]}")
            g(f"v_dot2c_f32_bf16 {st[2 + (i & 1)]}, {xf[8*n+i]}, {xf[8*n+i]}")

    def ready_store():
        g.wait(vm="clr")
        g(f"s_mov_b64 exec, 1\nv_mov_b32 {vOne}, 1")
        g.vm(f"buffer_store_dword {vOne}, off, {R['dbg']}, {sLead} sc1", "clr")
        g("s_mov_b64 exec, -1")

    if o.touch & 2 and o.touch2 not in ("par", "w2", "h"):
        at = Bg.find("dma", o.touch2)
        Bg.ops[at:at] = [("dma", "tch", lambda: touch(14, ("w3", "w4") if o.touch4 < 0 else ("w3",)))]
    Bg.cap = len(Bg.ops)
    pump_on()
    x_reads(0)
    for n in range(1, 8):
        x_reads(n)
        mark(4, f"p_x{n}")
        stats(n - 1)
    stats(7)
    xa.free(); xd.free()
    stamp("x_in")
    g(f"v_add_f32 {st[0]}, {st[0]}, {st[1]}\nv_add_f32 {st[2]}, {st[2]}, {st[3]}")
    for sw in ("32", "16"):
        g(f"v_mov_b32 {st[1]}, {st[0]}\nv_mov_b32 {st[3]}, {st[2]}")
        g(f"v_permlane{sw}_swap_b32 {st[0]}, {st[1]}\nv_permlane{sw}_swap_b32 {st[2]}, {st[3]}")
        g(f"v_add_f32 {st[0]}, {st[0]}, {st[1]}\nv_add_f32 {st[2]}, {st[2]}, {st[3]}")
    run(ln_stats(st[0], st[2], st[1], gk1))
    pump_off()
    mark(4, "p_ln")
    Bg.flush(len(Bg.ops))
    mark(4, "p_w1iss")
    Bg.thresh = o.thresh

    gw, vD, shk = V.alloc(8, at=136), V.alloc(1), V.alloc(2)
    for i in range(4):
        g(f"v_add_u32 {wd[i]}, {i*7168}, {vW2}")
    g(f"s_lshl_b32 {sT[0]}, {sW}, 2\ns_xor_b32 {sT[0]}, {sT[0]}, {sPP}\ns_lshl_b32 {sM}, {sT[0]}, 12")
    g(f"s_lshl_b32 {sT[1]}, {sJ}, 1\ns_xor_b32 {sT[0]}, {sT[0]}, {sT[1]}\ns_lshl_b32 {sOff}, {sT[0]}, 15\ns_add_u32 {sOff}, {sOff}, {sCol}")
    g(f"s_lshl_b32 {sT[3]}, {sCh}, 1\nv_lshlrev_b32 {t3}, 3, {vKq}\nv_mov_b32 {vD}, 0")

    def one_dma(key, m0, text, tag):
        def fn():
            if g.m0 != key:
                g(m0)
                g.m0 = key
            g.vm(text, tag)
        return ("dma", tag, fn)
    Bg.ops.append(one_dma("k0", f"s_mov_b32 m0, {sK0}", f"buffer_load_dwordx4 {vK0}, {R['k']}, 0 offen {o.nt_once} lds", "par"))
    for i in range(2):
        Bg.ops.append(one_dma("k", f"s_add_u32 m0, {sC2}, {C_K + 1024}", f"buffer_load_dwordx4 {vW2}, {R['k']}, {(sKV, sKV2)[i]} offen offset:{i*1024} {o.nt_once} lds", "par"))
    for i in range(2):
        Bg.ops.append(one_dma("v", f"s_add_u32 m0, {sC2}, {C_V}", f"buffer_load_dwordx4 {vV[i]}, {R['v']}, {(sKV, sKV2)[i]} offen offset:{i*1024} {o.nt_once} lds", "par"))
    Bg.ops.append(("dma", "par", lambda: g.vm(f"buffer_load_dwordx2 {shk}, {vSk}, {R['shift_k']}, {sSk} offen", "par")))
    for i in range(2):
        Bg.ops.append(one_dma("q", f"s_mov_b32 m0, {sQ}", f"buffer_load_dwordx4 {vQa[i]}, {R['q']}, {sKV} offen offset:{i*1024} lds", "par"))
    for T in range(4):
        Bg.ops.append(("dma", "par", lambda T=T: g.vm(f"buffer_load_dwordx2 {gw.r(2*T,2)}, {t3}, {R['gate_w']}, {sCol} offen offset:{32*T}", "par")))
    Bg.ops.append(("dma", "par", lambda: g.vm(f"buffer_load_short_d16_hi {vD}, off, {R['ssm_D']}, {sT[3]}", "par")))
    for n in range(4):
        for i in range(4):
            Bg.ops.append(("dma", "w2", lambda n=n, i=i: w_dma("w2", LA, n, i)))
    if o.touch & 2 and o.touch2 in ("par", "w2"):
        at = Bg.find("dma", o.touch2)
        Bg.ops[at:at] = [("dma", "w2" if o.touch2 == "w2" else "tch", lambda: touch(14, ("w3", "w4")))]
    w3r = A.alloc(256)
    sG4 = []
    d4 = Reg(V, d3.base, 4)

    def w4home(n, ft, e2=None):
        k, b = ("v", 160 + 8*n + 4*ft) if n < 12 else ("a", 8*(n-12) + 4*ft)
        return f"{k}[{b}:{b+3}]" if e2 is None else f"{k}[{b+2*e2}:{b+2*e2+1}]"

    rx, sRx = [], []
    prev = lambda n: n - 4 if n < 26 else None if n < 28 else n - 6
    slot = lambda n: (n & 3) if n < 26 else n - 26

    def d4_setup():
        g(f"v_and_b32 {d4[1]}, 127, {d3[0]}\nv_lshrrev_b32 {d4[0]}, 3, v0\nv_lshl_add_u32 {d4[0]}, {d4[0]}, 10, {d4[1]}")
        for i in range(1, 4):
            g(f"v_add_u32 {d4[i]}, {i*7168}, {d4[0]}")

    def st_setup(n):
        def fn():
            if n == 26:
                rx.append(V.alloc(2))
                sRx.append(S.alloc(1))
                g(f"s_lshl_b32 {sRx[0]}, {sW}, 13\ns_sub_u32 {sSt}, {sRx[0]}, {sRing}\nv_add_u32 {rx[0][0]}, {sSt}, {ra[0]}\nv_add_u32 {rx[0][1]}, {sSt}, {ra[1]}")
            if not o.rot:
                if n == 16:
                    d4_setup()
                g(f"s_add_u32 {sSt}, {sW3 if n < 16 else sW4}, {n*32*3584 if n < 16 else (n-16)*32768}")
            elif n < 16:
                g(f"s_xor_b32 {sSt}, {sRot3}, {n}\ns_mul_i32 {sSt}, {sSt}, {32*3584}\ns_add_u32 {sSt}, {sSt}, {sW3}")
            else:
                if n == 16:
                    d4_setup()
                g(f"s_lshl_b32 {sSt}, {sG4[n-16]}, 4\ns_add_u32 {sSt}, {sSt}, {sW4}")
        return ("set", n, fn)

    def st_dma(n, i):
        def fn():
            if i == 0 and n >= 4 and prev(n) is not None:
                g.wait(lg=f"sr{prev(n)}")
            if g.m0 != ("st", n):
                g(f"s_add_u32 m0, {sRx[0] if n in (26, 27) else sRing}, {slot(n)*4096}")
                g.m0 = ("st", n)
            g.vm(f"buffer_load_dwordx4 {d3[i]}, {R['w3' if n < 16 else 'w4']}, {sSt} offen offset:{i*1024} lds", f"sd{n}")
        return ("dma", n, fn)

    def st_rd(n, u, ft, e2):
        def fn():
            g.wait(vm=f"sd{n}")
            if n < 16:
                dst, off = w3r.r(16*n + 8*u + 4*ft + 2*e2, 2), e2 * 2048 + u * 1024
            else:
                dst, off = w4home(2*(n-16) + u, ft, e2), u * 2048 + e2 * 1024
            if not o.abl & 32:
                g.ds(f"ds_read_b64_tr_b16 {dst}, {(rx[0] if n in (26, 27) else ra)[ft]} offset:{slot(n)*4096 + off}", f"sr{n}")
        return ("rd0" if (u, ft, e2) == (0, 0, 0) else "rd", n, fn)
    allrd = lambda n: [st_rd(n, u, ft, e2) for u in range(2) for ft in range(2) for e2 in range(2)]
    alldma = lambda n: [st_setup(n)] + [st_dma(n, i) for i in range(4)]
    for n in range(25):
        rds = allrd(n - 3) if n >= 3 else []
        Bg.ops.append(st_setup(n))
        for i in range(4):
            Bg.ops.append(st_dma(n, i))
            Bg.ops += rds[4*i:4*i+4]
    for k, (buf, part) in enumerate((("w3", 0), ("w3", 1), ("w4", 0), ("w4", 1))):
        pos = o.tx34.split(":")[k] if o.tx34 else ""
        if pos:
            at = Bg.find("dma", int(pos) if pos.isdigit() else pos)
            Bg.ops[at:at] = [("dma", f"tx3{k}", lambda buf=buf, part=part: touchx(buf, 56, part, sSt))]
    if o.touch4 >= 0:
        at = Bg.find("dma", o.touch4)
        Bg.ops[at:at] = [("dma", "tch4", lambda: touch(14, ("w4",), sSt))]
    if o.t3 & 2:
        at = Bg.find("dma", o.t3_at)
        Bg.ops[at:at] = [("dma", "tch3", lambda: touch3(14, ("w4",), sSt))]
    Bg.ops += alldma(25) + alldma(26) + alldma(27)
    Bg.ops += allrd(22) + allrd(23)[:4] + alldma(28) + allrd(23)[4:] + allrd(24)[:4] + alldma(29) + allrd(24)[4:]
    for n in range(25, 30):
        Bg.ops += allrd(n)

    def wfrag(ks, T, first):
        if not first and o.pre2 and ks >= 8:
            return f"a[{128 + 16*(ks-8) + 4*T}:{128 + 16*(ks-8) + 4*T + 3}]"
        return wf.r(16*(ks % 3) + 4*T, 4)

    def wreads(ks, first):
        if not first and o.pre2 and ks >= 8:
            return
        for T in range(4):
            for e2 in range(2):
                if o.abl & 1024 and first and T >= 2:
                    continue
                ad, off = (wa[T], ks*4096 + e2*512) if first else (wa[2*T + e2], ks*4096)
                g.ds(f"ds_read_b64_tr_b16 {wf.r(16*(ks % 3) + 4*T + 2*e2, 2)}, {ad} offset:{off}", f"w{ks}")
            yield

    def gemm16(tok, first, vmtag=None, hook=None, pre=None):
        order = list(range(16))
        if not first and o.pre2:
            order = [k for i in range(8) for k in (i, i + 8)]
        slow = [k for k in order if first or not o.pre2 or k < 8]
        for pos, ks in enumerate(order):
            if pre:
                pre(ks)
            if first or not o.pre2:
                nxt = wreads(ks + 2, first) if ks < 14 else iter(())
            elif ks < 8:
                both = wreads(ks + 2, first) if ks < 6 else iter(())
                nxt = (next(both, None) if i % 2 else None for i in range(4))
            else:
                nxt = (next(both, None) if i % 2 else None for i in range(4))
            g.wait(vm=vmtag and f"{vmtag}{ks}", lg=f"w{ks}")
            for T in range(4):
                g(f"v_mfma_f32_16x16x32_bf16 {acc.r(4*T,4)}, {wfrag(ks, T, first)}, {tok.r(4*ks,4)}, {acc.r(4*T,4) if pos else 0}")
                next(nxt, None)
            if first:
                g(f"v_mfma_f32_16x16x32_bf16 {cs.r(0,4)}, {wf.r(16*(ks % 3), 4)}, {ones}, {cs.r(0,4) if ks else 0}")
            if hook:
                hook(pos)

    Bg.cap = Bg.find("dma", "w2")
    g.wait(vm="w1a")
    g("s_barrier")
    stamp("w1_in")
    run(wreads(0, True))
    run(wreads(1, True))
    ready_store()
    sLead.free()
    pd = Poll(R["dbg"], vP32, 0, 1)

    def pre1(ks):
        if ks in (0, 3, 6, 10, 13):
            mark(4, f"p_k{ks}")
        if ks == 6:
            g.wait(vm="w1b")
            g("s_barrier")
            mark(4, "p_w1b")

    def hook1(ks):
        if ks == o.dpoll_at:
            pd.issue()
        Bg.step()
    gemm16(xf, True, hook=hook1, pre=pre1)
    mark(4, "p_loop")
    ones.free(); R["w1"].free()
    g.ds(f"ds_write_b128 {vCs}, {cs.r(0,4)}", "csw")
    Bg.flush(Bg.find("dma", "par"))
    for r in (R["q"], R["k"], R["v"], R["shift_k"], R["ssm_D"], R["gate_w"], vQa, sKV, sKV2, sC2, vW2, vV, vK0, vSk, sK0, sSk):
        r.free()
    for i in range(4):
        g(f"v_fmac_f32 {acc[i]}, {st[1]}, {cs[i]}")
    g.wait(lg="csw")
    g("s_barrier")
    stamp("g1_mfma")
    for i in range(1, 4):
        g(f"v_xor_b32 {t0}, {64*i}, {vCs}")
        g.ds(f"ds_read_b128 {cs.r(4*i,4)}, {t0}", f"cs{i}")
    vCs.free()
    hp = V.alloc(8, at=128)
    Bg.cap = Bg.find("dma", "w2")
    pump_on()
    for i in range(1, 4):
        g.wait(lg=f"cs{i}")
        for e in range(4):
            g(f"v_fmac_f32 {acc[4*i+e]}, {st[1]}, {cs[4*i+e]}")
    st.free(); cs.free()

    def h_store(gg):
        if gg == 0 and o.dpoll_at == 16:
            pd.issue()
        g.vm(f"buffer_store_dwordx4 {hp.r(4*gg,4)}, {vL16}, {R['ws']}, {sHs[gg]} offen sc1", "hst")
    gelu_pk(acc, 16, gk1, hp, tmp, h_store)
    if o.touch & 2 and o.touch2 == "h":
        with g.hold():
            touch(14, ("w3", "w4"))
    gk1.free(); sHs.free(); acc.free()
    stamp("h_st")

    qp = V.alloc(8, at=120)
    g(f"v_lshrrev_b32 {t0}, 1, {vC}\nv_lshrrev_b32 {t2}, 1, {vKq}\nv_xor_b32 {t0}, {t0}, {t2}\nv_lshlrev_b32 {t0}, 4, {t0}")
    g(f"v_lshl_add_u32 {t0}, {vC}, 7, {t0}\nv_and_b32 {t2}, 1, {vKq}\nv_lshl_add_u32 {t0}, {t2}, 3, {t0}\nv_add_u32 {t0}, {sQ}, {t0}")
    Bg.cap = Bg.find("dma", o.bg_a)
    mark(2, "a_pre")
    g.wait(vm="par")
    mark(2, "a_par")
    g("s_barrier")
    mark(2, "a_bar")
    for T in range(4):
        g(f"v_xor_b32 {t2}, {32*T}, {t0}")
        g.ds(f"ds_read_b64 {qp.r(2*T,2)}, {t2}", "q")
    sQ.free()
    up = V.alloc(8, at=160)
    kk = xf

    def kv_reads(m0):
        g.ds(f"ds_read_b64_tr_b16 {kk.r(32 + m0//2, 2)}, {ka[2]} offset:{m0*512}", f"k{m0}")
        for m in range(m0, m0 + 4):
            g.ds(f"ds_read_b64_tr_b16 {kk.r(2*m, 2)}, {ka[m & 1]} offset:{(m >> 1)*1024}", f"k{m0}")
    def hflag():
        pd.check()
        R["dbg"].free()
        if o.local:
            g.vm(f"buffer_load_dword {vDum}, off, {R['ws']}, {sLp} sc1", "pf")
        g.wait(vm="hst")
        flag_set(F_H)
        if o.l2pf & 1:
            with g.hold():
                g(f"v_lshlrev_b32 {vOne}, 7, {vC}")
                g.vm(f"buffer_load_dword {vDum}, {vOne}, {R['ws']}, {sHo} offen sc1", "pf")
        hp.free()
    mark(2, "a_pd")
    kv_reads(0)
    kv_reads(4)
    for m0 in range(0, 16, 4):
        g.wait(lg=f"k{m0}")
        if m0 + 8 < 16:
            kv_reads(m0 + 8)
        for m in range(m0, m0 + (0 if o.abl & 2048 else 4)):
            g(f"v_dot2_f32_bf16 {kk[40+m]}, {kk[2*m]}, {shk[0]}, 0")
        for m in range(m0, m0 + (0 if o.abl & 2048 else 4)):
            g(f"v_dot2_f32_bf16 {kk[40+m]}, {kk[2*m+1]}, {shk[1]}, {kk[40+m]}")
        for i in range(2):
            g(f"v_lshlrev_b32 {tmp[2*i]}, 16, {kk[32 + m0//2 + i]}\nv_and_b32 {tmp[2*i+1]}, {sMask}, {kk[32 + m0//2 + i]}")
        for i in range(2):
            g(f"v_pk_mul_f32 {tmp.r(2*i,2)}, {tmp.r(2*i,2)}, {kk.r(40 + m0 + 2*i, 2)}")
        for i in range(2):
            g(f"v_cvt_pk_bf16_f32 {up[m0//2 + i]}, {tmp[2*i]}, {tmp[2*i+1]}")
        mark(2, f"a_kv{m0}")
        if m0 == o.hflag_m:
            hflag()
            mark(2, "a_hflag")
        if m0 == 4:
            g.ds(f"ds_write_b128 {ua[0]}, {up.r(0,4)}", "uw")
            g(f"v_xor_b32 {ua[0]}, 16, {ua[0]}")
    g.ds(f"ds_write_b128 {ua[0]}, {up.r(4,4)}", "uw")
    shk.free(); ka.free()

    sTr = S.alloc(1)
    g(f"s_lshl_b32 {sT[0]}, {sJ}, 18\ns_lshl_b32 {sT[1]}, {sW}, 16\ns_add_u32 {sTr}, {sT[0]}, {sT[1]}\ns_lshl_b32 {sT[0]}, {sP}, 7\ns_add_u32 {sTr}, {sTr}, {sT[0]}")
    g(f"s_add_u32 {sT[0]}, {sTr}, {UBUF}\ns_add_u32 {sT[1]}, {sTr}, {UBUF + 32768}")
    g.wait(lg="uw")
    g.ds(f"ds_read_b128 {up.r(0,4)}, {ua[1]}", "ur")
    g.ds(f"ds_read_b128 {up.r(4,4)}, {ua[1]} offset:1024", "ur")
    ua.free()
    if o.hflag_m >= 16:
        hflag()
    stamp("h_out")
    g.wait(lg="ur")
    for i in range(2):
        g.vm(f"buffer_store_dwordx4 {up.r(4*i,4)}, {vT4k}, {R['ws']}, {sT[i]} offen sc1", "ust")
    g(f"v_lshl_add_u32 {t0}, {vKq}, 2, {vR4}\nv_bfe_u32 {t2}, {t0}, 1, 2\nv_lshl_add_u32 {t0}, {t0}, 7, {vC8}")
    g(f"s_and_b32 {sT[0]}, {sW}, 1\ns_lshl_b32 {sT[0]}, {sT[0]}, 11\nv_lshl_add_u32 {t0}, {t2}, 5, {t0}\nv_add_u32 {wa[0]}, {sT[0]}, {t0}")
    for i in range(1, 8):
        g(f"v_xor_b32 {wa[i]}, {32*(i >> 1) + 2048*(i & 1)}, {wa[0]}")
    vP8 = V.alloc(1)
    g(f"s_lshl_b32 {sT[0]}, {sW}, 2\nv_lshl_add_u32 {vP8}, {vS8}, 4, {sT[0]}")
    ph = Poll(R["ws"], vP8, None, F_H, local=True)
    cA = xf
    pump_off()
    mark(2, "a_set")
    Bg.flush(Bg.find("dma", "w2"))
    mark(2, "a_w2iss")
    for r in (R["w2"], sM, sOff, sWo, wd):
        r.free()

    keys = ("vmq", "lgq", "vmt", "lgt", "clock", "mfree", "m0", "q", "lq", "last_done", "ta")

    def two_paths(body, before=None):
        lodd, ljoin = g.label("odd"), g.label("join")
        g(f"s_bitcmp1_b32 {sW}, 0\ns_cbranch_scc1 {lodd}")
        saved = (copy.deepcopy({k: getattr(g, k) for k in keys}), Bg.idx)
        ends = []
        for par in range(2):
            if par:
                g(f"{lodd}:")
                for k, v in copy.deepcopy(saved[0]).items():
                    setattr(g, k, v)
                Bg.idx = saved[1]
            extra = body(par)
            ends.append((Bg.idx, list(g.vmq), list(g.lgq), extra, g.clock))
            if not par:
                g(f"s_branch {ljoin}")
        g(f"{ljoin}:")
        assert ends[0][0] == ends[1][0]
        g.vmq = merge_queues(ends[0][1], ends[1][1])
        g.lgq = merge_queues(ends[0][2], ends[1][2])
        g.clock = max(ends[0][4], ends[1][4])
        g.m0 = None

    def conv_all(par, events, spare=None):
        tiles = TILES[par]
        top = max(tiles)
        seq = [(d, mp) for d in (0, 1, 2, 3) for mp in range(-1, 2 * top + 1)]

        def bread(i):
            d, mp = seq[i]
            for e2 in range(2):
                if not o.abl & 2:
                    g.ds(f"ds_read_b64 {cBr(i, 2*e2, 2)}, {aB[4*e2 + ((d + mp - 1) & 3)]} offset:{256*(mp+1)}", f"B{i}")
                yield
        for i in range(o.bdist):
            run(bread(i))
        started = set()
        cnt = 0
        ndma = sum(1 for x in Bg.ops[Bg.idx:Bg.cap] if x[0] == "dma")
        per = max(1, 138 // max(ndma, 1))
        done = [-per]
        for i, (d, mp) in enumerate(seq):
            rd = bread(i + o.bdist) if i + o.bdist < len(seq) else iter(())
            if i % 2 == 0:
                g.wait(lg=f"B{min(i + 1, len(seq) - 1)}")
            for ti, jb in enumerate(tiles):
                m = 2 * jb - mp
                if m < 0:
                    continue
                c = (pp, qq)[d & 1].r(6*ti + (d & 2), 4)
                first = d < 2 and (d, ti) not in started
                started.add((d, ti))
                if not o.abl & 1:
                    g(f"v_mfma_f32_16x16x32_bf16 {c}, {cA.r(4*m,4)}, {cBr(i, 0, 4)}, {0 if first else c}")
                cnt += 1
                next(rd, None)
                if cnt in events:
                    mark(5, f"c{cnt}a")
                    events[cnt]()
                    mark(5, f"c{cnt}b")
                if spare and cnt > 144 - 2 * len(spare) - 8 and cnt % 2:
                    spare.pop(0)()
                for _ in range(2):
                    if Bg.idx < Bg.cap and (Bg.ops[Bg.idx][0] != "dma" or cnt - done[0] >= per):
                        if Bg.ops[Bg.idx][0] == "dma":
                            done[0] = cnt
                        Bg.step(True)
                        if g.slack() < 4:
                            break
            run(rd)
        Bg.flush(Bg.cap)

    sCH, sCU, sUl, sFu = (S.alloc(1) for _ in range(4))
    g(f"s_lshr_b32 {sT[2]}, {sW}, 1\ns_and_b32 {sT[3]}, {sW}, 1")
    g(f"s_mul_i32 {sCH}, {sT[2]}, {HP}\ns_add_u32 {sCH}, {sCH}, {C_H}\ns_mul_i32 {sCU}, {sT[2]}, {4*UP}\ns_add_u32 {sCU}, {sCU}, {C_U}")
    g(f"s_lshl_b32 {sT[1]}, {sCh}, 12")
    Bg.flush(Bg.find("dma", o.bg_a))
    mark(2, "a_bga")
    if o.hpoll == 0:
        ph.issue()
    Bg.cap = Bg.find("dma", o.cap_p2)
    Bg.flush(Bg.find("dma", o.bg_b))
    mark(2, "a_bgb")
    g.wait(vm="w2")
    g("s_barrier")
    stamp("u_out")
    if o.hpoll == 1:
        ph.issue()
    g(f"s_add_u32 m0, {sCH}, 32\ns_nop 0")
    fl = (g.vm(f"buffer_load_dwordx4 {vL16}, {R['ssm_k']}, {sT[1]} offen offset:{i*1024} {o.nt_once} lds", "fin") for i in range(4))
    if o.hpoll < 2:
        next(fl)
        g.pump = lambda: next(fl, None) if g.ta - g.clock < 0 else None
    if o.pre2:
        assert o.cap_p2 <= 10
        for ks in range(8, 16):
            for T in range(4):
                for e2 in range(2):
                    b = 128 + 16*(ks-8) + 4*T + 2*e2
                    g.ds(f"ds_read_b64_tr_b16 a[{b}:{b+1}], {wa[2*T + e2]} offset:{ks*4096}", "wpre")
            if o.hpoll >= 2 and ks == 6 + o.hpoll:
                ph.issue()
                g.pump = lambda: next(fl, None) if g.ta - g.clock < 0 else None
    run(wreads(0, False))
    run(wreads(1, False))

    g.pump = None
    run(fl)
    R["ssm_k"].free()
    ph.check(then=lambda: flag_set(F_U))
    up.free(); vP8.free()
    stamp("h_flag")
    sHl2 = S.alloc(2)
    acc = V.alloc(16, at=240)

    def h1_load(pos):
        ks = (pos >> 1) + 8 * (pos & 1) if o.pre2 else pos
        so = sHl2[ks >> 3]
        if ks & 1 == 0:
            g(f"s_xor_b32 {so}, {sHo}, {ks << 10}")
        g.vm(f"buffer_load_dwordx4 {xf.r(4*ks,4)}, {vL16}, {R['ws']}, {so} offen offset:{(ks & 1)*1024} sc1", f"h{ks}")
    hl = (h1_load(ks) for ks in range(9))
    next(hl)
    g.pump = lambda: next(hl, None) if g.ta - g.clock < 30 else None
    gs = V.alloc(4)
    g(f"v_mov_b32 {gs[1]}, 0\nv_mov_b32 {gs[3]}, 0")
    g.wait(lg="q")
    for i in range(8):
        g(f"v_dot2c_f32_bf16 {gs[1]}, {qp[i]}, {gw[i]}")
    gw.free()
    g(f"s_lshl_b32 {sUl}, {sCh}, 12\ns_add_u32 {sUl}, {sUl}, {UBUF}")
    g(f"s_lshr_b32 {sT[0]}, {sP}, 3\ns_lshl_b32 {sT[0]}, {sT[0]}, 7\ns_lshl_b32 {sFu}, {sJ}, 9\ns_add_u32 {sFu}, {sFu}, {sT[0]}")
    aA = V.alloc(1)
    g(f"v_lshlrev_b32 {t0}, 6, {vKq}\nv_add_u32 {t0}, {t0}, {vC8}\nv_lshlrev_b32 {t2}, 3, {vR4}\nv_sub_u32 {t0}, {t0}, {t2}")
    g(f"s_add_u32 {sT[0]}, {sCH}, 32\nv_add_u32 {aA}, {sT[0]}, {t0}")
    sW4 = S.alloc(1)
    g(f"s_mul_i32 {sW4}, {sW}, {448*1024}\ns_add_u32 {sW4}, {sW4}, {sCol}")
    if o.fake & 2:
        g(f"s_mov_b32 {sW4}, {OOB}")
    if o.rot:
        sG4 += [S.alloc(1) for _ in range(14)]
        if o.rotp & 2:
            g(f"s_mul_i32 {sT[0]}, {sPP}, 7\ns_lshr_b32 {sT[0]}, {sT[0]}, 1\ns_lshl_b32 {sG4[0]}, {sT[0]}, 11")
        elif o.rotp & 8:
            g(f"s_mov_b32 {sG4[0]}, 0")
        elif o.rotj & 1:
            g(f"s_add_u32 {sT[0]}, {sX}, {sJ}\ns_and_b32 {sT[0]}, {sT[0]}, 7\ns_mul_i32 {sT[0]}, {sT[0]}, 7\ns_lshr_b32 {sT[0]}, {sT[0]}, 2\ns_lshl_b32 {sG4[0]}, {sT[0]}, 11")
        else:
            g(f"s_mul_i32 {sT[0]}, {sX}, 7\ns_lshr_b32 {sT[0]}, {sT[0]}, 2\ns_lshl_b32 {sG4[0]}, {sT[0]}, 11")
        for n in range(1, 14):
            g(f"s_add_u32 {sG4[n]}, {sG4[n-1]}, 2048\ns_cmp_eq_u32 {sG4[n]}, {14*2048}\ns_cselect_b32 {sG4[n]}, 0, {sG4[n]}")
    g(f"v_mov_b32 {tmp[0]}, 0\nv_mov_b32 {tmp[1]}, 0")
    g(f"v_lshl_add_u32 {t0}, v0, 3, {sCU}\nv_add_u32 {t2}, {sCH}, {vC8}")
    g.ds(f"ds_write_b64 {t0}, {tmp.r(0,2)}")
    g.ds(f"ds_write_b64 {t2}, {tmp.r(0,2)}")
    sX1s, sX1l, sSto, sSto2, sStw, sY, sXo, sH2, sHst, sFy = (S.alloc(1) for _ in range(10))
    aN, aY, vSt, vSw, vXs, vN0 = (V.alloc(1) for _ in range(6))
    g(f"s_lshr_b32 {sT[0]}, {sW}, 1\ns_mul_i32 {sT[1]}, {sT[0]}, {NP}\ns_add_u32 {sT[1]}, {sT[1]}, {A_N}\nv_mov_b32 {vN0}, {sT[1]}")
    g.ds(f"ds_write2st64_b32 {vN0}, {tmp[0]}, {tmp[0]} offset0:0 offset1:9")
    g.ds(f"ds_write_b32 {vN0}, {tmp[0]} offset:{18*256}")
    g(f"v_lshl_add_u32 {t0}, {vC}, 2, {vKq}\nv_lshl_add_u32 {aN}, {t0}, 2, {sT[1]}")
    g(f"v_lshrrev_b32 {t0}, 2, {vC}\nv_lshlrev_b32 {t0}, 7, {t0}")
    g(f"v_lshl_add_u32 {t0}, {vKq}, 5, {t0}\nv_add_u32 {aY}, {t0}, {vC8}")
    g(f"s_lshl_b32 {sT[3]}, {sP}, 16\ns_add_u32 {sT[3]}, {sT[3]}, {X1BUF}")
    g(f"s_lshl_b32 {sT[0]}, {sT[0]}, 15\ns_and_b32 {sT[1]}, {sW}, 1\ns_lshl_b32 {sT[2]}, {sT[1]}, 8\ns_add_u32 {sT[0]}, {sT[0]}, {sT[2]}")
    g(f"s_lshl_b32 {sT[2]}, {sJ}, 12\ns_add_u32 {sT[0]}, {sT[0]}, {sT[2]}\ns_add_u32 {sX1s}, {sT[0]}, {sT[3]}")
    if o.rot:
        g(f"s_lshl_b32 {sX1l}, {sW}, 2\ns_xor_b32 {sX1l}, {sX1l}, {sRot3}\ns_lshl_b32 {sX1l}, {sX1l}, 11\ns_add_u32 {sX1l}, {sX1l}, {sT[3]}")
    else:
        g(f"s_lshl_b32 {sX1l}, {sW}, 13\ns_add_u32 {sX1l}, {sX1l}, {sT[3]}")
    g(f"s_lshl_b32 {sSto}, {sP}, 13\ns_add_u32 {sSto}, {sSto}, {STATS}\ns_add_u32 {sSto2}, {sSto}, 4096")
    g(f"s_lshl_b32 {sT[0]}, {sJ}, 10\ns_lshl_b32 {sT[2]}, {sW}, 8\ns_add_u32 {sT[0]}, {sT[0]}, {sT[2]}\ns_add_u32 {sStw}, {sT[0]}, {sSto}")
    g(f"s_lshl_b32 {sY}, {sCh}, 12\ns_add_u32 {sY}, {sY}, {YBUF}")
    g(f"v_lshlrev_b32 {t0}, 9, {vKq}\nv_lshl_add_u32 {vXs}, {vC}, 4, {t0}")
    g(f"v_lshrrev_b32 {t2}, 5, v0\nv_and_b32 {t3}, 1, {vKq}")
    g(f"v_lshlrev_b32 {t0}, 10, {t2}\nv_lshl_add_u32 {t0}, {t3}, 8, {t0}\nv_lshl_add_u32 {vSt}, {vC}, 3, {t0}")
    g(f"v_lshlrev_b32 {t0}, 2, {t2}\nv_lshl_add_u32 {t0}, {vC}, 3, {t0}")
    g(f"v_lshlrev_b32 {t2}, 6, {t2}\nv_lshl_add_u32 {t2}, {vC}, 2, {t2}\nv_add_u32 {t2}, 128, {t2}")
    g(f"v_cmp_eq_u32 vcc, 0, {t3}\ns_nop 1\nv_cndmask_b32 {vSw}, {t2}, {t0}, vcc")
    g(f"s_mul_i32 {sH2}, {sP}, 229376\ns_add_u32 {sH2}, {sH2}, {H2BUF}")
    g(f"s_lshl_b32 {sHst}, {sL}, 12\ns_add_u32 {sHst}, {sHst}, {sH2}\ns_add_u32 {sHst}, {sHst}, {sIdle}")
    g(f"s_lshr_b32 {sT[0]}, {sP}, 2\ns_lshr_b32 {sT[1]}, 0x3b, {sT[0]}\ns_and_b32 {sT[1]}, {sT[1]}, 1\ns_lshl_b32 {sT[1]}, {sT[1]}, 7")
    g(f"s_lshl_b32 {sT[0]}, {sW}, 15\ns_add_u32 {sT[1]}, {sT[1]}, {sT[0]}\ns_lshl_b32 {sT[0]}, {sJ}, 9\ns_add_u32 {sFy}, {sT[1]}, {sT[0]}")
    g(f"v_mov_b32 {gs[0]}, 0\nv_mov_b32 {gs[2]}, 0")
    vPu = V.alloc(1)
    pu = Poll(R["ws"], vPu, sFu, F_U)
    g(f"v_lshlrev_b32 {vPu}, 10, {vP32}")
    for r in (sL, sIdle, sCh, sCH):
        r.free()
    mark(2, "b_set")
    g.pump = None
    run(hl)
    mark(2, "b_iss")

    def u_load(i):
        if i == 0:
            pu.check()
        if g.m0 != "u":
            g(f"s_add_u32 m0, {sCU}, 512\ns_nop 0")
            g.m0 = "u"
        g.vm(f"buffer_load_dwordx4 {vL16}, {R['ws']}, {sUl} offen offset:{1024*i} sc1 lds", "cin")

    def hook2(ks):
        if ks in (0, 4, 8, 12):
            mark(2, f"b_k{ks}")
        if ks == o.upoll_at:
            pu.issue()
        if ks + 9 < 16:
            h1_load(ks + 9)
        elif ks >= o.ucheck_at:
            u_load(ks - o.ucheck_at)
        else:
            Bg.step()
            Bg.step()
    gemm16(xf, False, vmtag="h", hook=hook2)
    sHl2.free(); sHo.free()
    stamp("g2_mfma")
    wa.free(); wf.free()
    g.wait(vm="fin")
    areads = [f"ds_read_b64_tr_b16 {xf.r(4*m + 2*e2, 2)}, {aA} offset:{256*m + 32 - 32*e2}" for m in range(15, -1, -1) for e2 in range(2)]
    g.pump = lambda: g.ds(areads.pop(0), "A") if areads else None
    x1p = V.alloc(8, at=128)
    for T in range(0, 4, 2):
        for i in range(4):
            g(f"v_dot2_f32_bf16 {tmp[2*i]}, {qp[2*T+i]}, {sLo1}, {acc[4*T+2*i]}")
            g(f"v_dot2_f32_bf16 {tmp[2*i+1]}, {qp[2*T+i]}, {sHi1}, {acc[4*T+2*i+1]}")
        for i in range(4):
            g(f"v_cvt_pk_bf16_f32 {x1p[2*T+i]}, {tmp[2*i]}, {tmp[2*i+1]}")
        g.vm(f"buffer_store_dwordx4 {x1p.r(2*T,4)}, {vXs}, {R['ws']}, {sX1s} offen offset:{T*1024} sc1", "xst")
    acc.free(); vXs.free()
    with g.hold():
        for i in range(max(0, 16 - o.ucheck_at), 4):
            u_load(i)
        sUl.free(); sFu.free(); vPu.free()

    for i in range(8):
        g(f"v_dot2c_f32_bf16 {gs[0]}, {sOnes}, {x1p[i]}")
        g(f"v_dot2c_f32_bf16 {gs[2]}, {x1p[i]}, {x1p[i]}")
    g(f"v_permlane32_swap_b32 {gs[0]}, {gs[2]}\nv_permlane32_swap_b32 {gs[1]}, {gs[3]}")
    g(f"v_add_f32 {gs[0]}, {gs[0]}, {gs[2]}\nv_add_f32 {gs[1]}, {gs[1]}, {gs[3]}")
    g(f"v_permlane16_swap_b32 {gs[0]}, {gs[1]}\nv_add_f32 {gs[0]}, {gs[0]}, {gs[1]}")
    g.vm(f"buffer_store_dword {gs[0]}, {vSw}, {R['ws']}, {sStw} offen sc1", "xst")
    sStw.free(); vSw.free()
    stamp("x1_st")

    pp = V.alloc(30, at=160)
    qq = V.alloc(30, at=190)
    uu = V.alloc(20, at=220)
    cB, cB2 = V.alloc(16, at=240), V.alloc(16, at=136)
    cBr = lambda i, k, n: (cB, cB2)[(i >> 2) & 1].r(4*(i & 3) + k, n)
    for ti in range(5):
        g(f"v_mov_b32 {qq[6*ti + 4]}, 0\nv_mov_b32 {qq[6*ti + 5]}, 0\nv_mov_b32 {pp[6*ti + 4]}, 0\nv_mov_b32 {pp[6*ti + 5]}, 0")
    aB = tmp
    aU = V.alloc(4)
    for e2 in range(2):
        g(f"v_lshlrev_b32 {t0}, 1, {vKq}\nv_sub_u32 {t0}, {vC}, {t0}\nv_add_u32 {t0}, {7 + e2}, {t0}")
        g(f"v_lshrrev_b32 {t2}, 2, {t0}\nv_lshl_add_u32 {t2}, {t2}, 7, {sCU}\nv_and_b32 {t3}, 3, {t0}\nv_lshl_add_u32 {t2}, {t3}, 3, {t2}\nv_lshrrev_b32 {t0}, 3, {t0}")
        for t in range(4):
            g(f"v_add_u32 {t3}, {t}, {t0}\nv_and_b32 {t3}, 3, {t3}\nv_lshl_add_u32 {aB[4*e2 + t]}, {t3}, 5, {t2}")
    g(f"v_lshrrev_b32 {t2}, 2, {vC}\nv_lshl_add_u32 {t2}, {t2}, 7, {sCU}\nv_add_u32 {t2}, {t2}, {vC8}\nv_lshl_add_u32 {t2}, {vKq}, 1, {t2}")
    g(f"v_add_u32 {t2}, 512, {t2}\nv_lshrrev_b32 {t0}, 3, {vC}")
    for t in range(4):
        g(f"v_add_u32 {t3}, {t}, {t0}\nv_and_b32 {t3}, 3, {t3}\nv_lshl_add_u32 {aU[t]}, {t3}, 5, {t2}")
    sCU.free()
    pump_off()
    while areads:
        g.ds(areads.pop(0), "A")
    px = Poll(R["ws"], vP32, None, F_X1, local=True)
    sv = [Reg(V, 152, 8), Reg(V, 248, 8)]
    gate = V.alloc(2)
    nb = [Reg(V, xf.base + 32, 32), Reg(V, xf.base, 32)]

    def st_loads(th):
        for i in range(4):
            g.vm(f"buffer_load_dwordx2 {sv[th].r(2*i, 2)}, {vSt}, {R['ws']}, {(sSto, sSto2)[i >> 1]} offen offset:{(i & 1)*2048 + th*512} sc1", f"s{th}")
            yield

    def x1_loads(th):
        for i in range(7, -1, -1):
            if i & 1:
                g(f"s_xor_b32 {sXo}, {sX1l}, {(i >> 1) << 11 | th << 15}")
            g.vm(f"buffer_load_dwordx4 {nb[th].r(4*i, 4)}, {vL16}, {R['ws']}, {sXo} offen offset:{(i & 1)*1024} sc1", f"n{th}_{i}")
            yield

    def fold(r, t):
        for sw in ("32", "16"):
            g(f"v_mov_b32 {t}, {r}\ns_nop 1\nv_permlane{sw}_swap_b32 {r}, {t}")
            yield
            g(f"v_add_f32 {r}, {r}, {t}")
            yield

    def gate_calc():
        g.wait(vm="gl")
        g(f"v_add_f32 {gate[0]}, {gate[0]}, {gate[1]}")
        yield
        yield from fold(gate[0], gate[1])
        yield from round_bf16(gate[0])
        for t in (f"v_mul_f32 {gate[0]}, {fbits(-LOG2E)}, {gate[0]}", f"v_exp_f32 {gate[0]}, {gate[0]}\ns_nop 0", f"v_add_f32 {gate[0]}, 1.0, {gate[0]}",
                  f"v_rcp_f32 {gate[0]}, {gate[0]}\ns_nop 0"):
            g(t)
            yield
        yield from round_bf16(gate[0])
        g(f"v_sub_f32 {gate[1]}, 1.0, {gate[0]}")
        yield
        yield from round_bf16(gate[1])

    def xflag():
        g.wait(vm="xst")
        flag_set(F_X1)
        if o.l2pf & 2:
            g(f"v_lshrrev_b32 {vOne}, 1, {vC}\nv_lshlrev_b32 {vOne}, 9, {vOne}\nv_and_b32 {t2}, 1, v0\nv_lshl_add_u32 {vOne}, {t2}, 7, {vOne}")
            g.vm(f"buffer_load_dword {vDum}, {vOne}, {R['ws']}, {sX1s} offen sc1", "pf")

    Bg.flush(Bg.find("dma", o.bg_u))
    Bg.cap = Bg.find("dma", o.cap2)

    def half2(par):
        tiles = TILES[par]
        ur = [lambda ti=ti, jb=jb, m=m: g.ds(f"ds_read_u16_d16_hi {uu[4*ti + m]}, {aU[(m + 2*jb) & 3]} offset:{512*jb}", f"U{ti}")
              for ti, jb in enumerate(tiles) for m in range(4)]
        g.wait(vm="cin")
        stamp("u_in"); idle("u_in")
        l0 = chain(st_loads(0), x1_loads(0))
        ev = {o.xflag_at: xflag, o.xpoll_at: px.issue, o.xcheck_at: lambda: px.check(free=par)}
        for i in range(4):
            ev[o.xcheck_at + 1 + 2*i] = lambda: next(l0)
        conv_all(par, ev, ur)
        if o.fine:
            stamp("cv_mfma")
        next(l0)
        g.pump = lambda: next(l0, None) if g.ta - g.clock < 30 else None
        for f in ur:
            f()
        g(f"v_add_u32 {vN0}, 4, {aN}")
        for ti, jb in enumerate(tiles):
            b = 6 * ti
            g(f"v_add_f32 {pp[b+4]}, {pp[b+4]}, {qq[b+3]}\nv_add_f32 {pp[b+5]}, {pp[b+5]}, {qq[b+4]}")
            g.ds(f"ds_write2st64_b32 {vN0}, {pp[b+4]}, {pp[b+5]} offset0:{jb} offset1:{jb + 9}", "Nw")
            g.ds(f"ds_write_b32 {vN0}, {qq[b+5]} offset:{(jb + 18)*256}", "Nw")
        for ti, jb in enumerate(tiles):
            b = 6 * ti
            g(f"v_add_f32 {pp[b+1]}, {pp[b+1]}, {qq[b]}\nv_add_f32 {pp[b+2]}, {pp[b+2]}, {qq[b+1]}\nv_add_f32 {pp[b+3]}, {pp[b+3]}, {qq[b+2]}")
        mark(5, "c_add")
        g.wait(lg="Nw")
        g("s_barrier")
        mark(5, "c_bar")
        for ti, jb in enumerate(tiles):
            g.ds(f"ds_read2st64_b32 {qq.r(6*ti,2)}, {aN} offset0:{jb} offset1:{jb + 9}", f"N{ti}")
            g.ds(f"ds_read_b32 {qq[6*ti+2]}, {aN} offset:{(jb + 18)*256}", f"N{ti}")
        for ti, jb in enumerate(tiles):
            for m in range(4):
                g(f"v_fmac_f32 {pp[6*ti+m]}, {vD}, {uu[4*ti + m]}")
        for ti, jb in enumerate(tiles):
            b = 6 * ti
            g.wait(lg=f"N{ti}")
            for m in range(3):
                g(f"v_add_f32 {pp[b+m]}, {pp[b+m]}, {qq[b+m]}")
            g(f"v_cvt_pk_bf16_f32 {pp[b]}, {pp[b]}, {pp[b+1]}\nv_cvt_pk_bf16_f32 {pp[b+1]}, {pp[b+2]}, {pp[b+3]}")
        mark(5, "c_cvt")
        g.pump = None
        run(l0)
        mark(5, "c_l0")
        for ti, jb in enumerate(tiles):
            g.vm(f"buffer_store_dwordx2 {pp.r(6*ti,2)}, {aY}, {R['ws']}, {sY} offen offset:{512*jb} sc1", "yst")
        return len(tiles)
    two_paths(half2)
    for r in (aA, aN, aU, aY, vD, gs, vN0, sY, pp, qq, uu, cB, cB2, sX1s):
        r.free()
    w4v = V.alloc(96, at=160)
    stamp("conv2")

    gk3 = [V.alloc(4), V.alloc(4)]
    vXw = V.alloc(1)
    g(f"s_lshl_b32 {sT[0]}, {sW}, 13\nv_add_u32 {vXw}, {sT[0]}, {vL16}")

    def norm(th, center):
        g.wait(vm=f"s{th}")
        r = sv[th]
        for d, s_ in ((0, 2), (1, 3), (4, 6), (5, 7), (0, 4), (1, 5)):
            g(f"v_add_f32 {r[d]}, {r[d]}, {r[s_]}")
            yield
        g(f"s_nop 1\nv_permlane32_swap_b32 {r[0]}, {r[1]}")
        yield
        g(f"v_add_f32 {r[0]}, {r[0]}, {r[1]}\nv_mov_b32 {r[1]}, {r[0]}")
        yield
        g(f"s_nop 1\nv_permlane32_swap_b32 {r[0]}, {r[1]}")
        yield
        yield from ln_mean(r[0], r[2])
        for i in range(7, -1, -1):
            g.wait(vm=f"n{th}_{i}")
            if th == 0 and i % 4 == 3:
                mark(3, f"n_{i}")
            if not ((o.abl & 8 and th) or (o.abl & 4096 and not th)):
                yield from center([nb[th][4*i + q] for q in range(4)], r[2], tmp)
            g.ds(f"ds_write_b128 {vXw}, {nb[th].r(4*i, 4)} offset:{LA + th*32768 + i*1024}", f"xw{th}")
            yield

    def gate_loads():
        g(f"v_lshlrev_b32 {t0}, 11, {vKq}\nv_lshl_add_u32 {t0}, {vC}, 2, {t0}\ns_lshl_b32 {sT[0]}, {sW}, 8\ns_add_u32 {sT[0]}, {sT[0]}, {sSto}")
        for i in range(2):
            g.vm(f"buffer_load_dword {gate[i]}, {t0}, {R['ws']}, {sT[0]} offen offset:{128 + i*1024} sc1", "gl")
            yield
    l1 = chain(st_loads(1), x1_loads(1), gate_loads())
    cnt1 = [0]

    def pump1():
        if g.ta - g.clock < 0 and cnt1[0] < o.l1_early:
            cnt1[0] += 1
            next(l1, None)
    g.pump = pump1
    run(norm(0, center_dot))
    g.pump = None
    Bg.cap = Bg.idx
    g.wait(lg="xw0")
    g("s_barrier")
    stamp("xn0"); idle("xn0")
    accs = [nb[0], nb[1]]
    tf = V.alloc(16, at=136)
    hq = V.alloc(8, at=152)

    def h_store2(th):
        def fn(f):
            if f == 0 and th:
                g(f"s_add_u32 {sHst}, {sHst}, {112*1024}")
            g.vm(f"buffer_store_dwordx4 {hq.r(4*(f & 1),4)}, {vL16}, {R['ws']}, {sHst} offen offset:{f*1024} sc1", f"Hst{th}")
        return fn

    def g3_pass(th, fillers, over, hook=None):
        def tread(ks):
            g.ds(f"ds_read_b128 {tf.r(4*(ks & 3), 4)}, {vL16} offset:{LA + th*32768 + ks*1024}", f"t{ks}")
        for ks in range(3):
            tread(ks)
        for ks in range(32):
            if th == 0 and ks % 2 == 0:
                Bg.flush(Bg.find("rd", ks // 2))
                g.wait(lg=f"sr{ks//2}")
            g.wait(lg=f"t{ks}")
            for ft in range(2):
                c = accs[th].r(16*ft, 16)
                if not (o.abl & 64 and ft):
                    g(f"v_mfma_f32_32x32x16_bf16 {c}, {w3r.r(8*ks + 4*ft, 4)}, {tf.r(4*(ks & 3), 4)}, {c if ks else 0}")
                if ft == 1 and ks + 3 < 32:
                    tread(ks + 3)
                if ft == 0 and ks % 4 == 0 and ks:
                    mark(3, f"g{th}_k{ks}")
                if hook:
                    hook(2*ks + ft)
                fill(fillers, over, reserve=4 * ft)
        mark(3, f"g{th}_loop")
        drain(fillers)
        mark(3, f"g{th}_drain")

    def scale(th):
        yield from ln_std(sv[th][0], sv[th][1], gk3[th][2])
        yield from ln_scale(gk3[th])
    f0 = [scale(0)]

    def hook0(i):
        if i % 2 == 0 and next(l1, 1) is not None:
            Bg.cap = Bg.find("dma", o.cap_a)
        if i == o.norm1_at:
            f0.append(chain(norm(1, center_plain), scale(1)))
        if i == o.yflag_at:
            g.wait(vm="yst")
            flag_set(F_Y)
    g3_pass(0, f0, o.q3a, hook0)
    for r in (sXo, sX1l, vSt, sSto2):
        r.free()
    g.wait(lg="xw1")
    g("s_barrier")
    stamp("g3a"); idle("g3a")
    Bg.cap = Bg.find("dma", o.cap_b)
    vP16, vP7 = V.alloc(1), V.alloc(1)
    py = Poll(R["ws"], vP16, sFy, F_Y)

    def hook3(i):
        if i == 2:
            g(f"v_lshrrev_b32 {vP16}, 1, {vC}\nv_lshlrev_b32 {vP16}, 12, {vP16}\nv_and_b32 {vP7}, 1, v0\nv_lshl_add_u32 {vP16}, {vP7}, 8, {vP16}")
        if i == 3:
            g(f"v_min_u32 {vP7}, 6, v0\ns_lshl_b32 {sT[0]}, {sW}, 5\nv_lshl_add_u32 {vP7}, {vP7}, 2, {sT[0]}")
            py.issue()
        if i == 24:
            py.check()
            g(f"s_add_u32 {sT[0]}, {sTr}, {YBUF}\ns_add_u32 {sT[1]}, {sTr}, {YBUF + 32768 - 1024}\ns_lshl_b32 {sT[2]}, {sW}, 11\ns_add_u32 m0, {sT[2]}, {C_Y}")
        if i == 25:
            g.vm(f"buffer_load_dwordx4 {vT4k}, {R['ws']}, {sT[0]} offen sc1 lds", "y")
            g.vm(f"buffer_load_dwordx4 {vT4k}, {R['ws']}, {sT[1]} offen offset:1024 sc1 lds", "y")

    nd = [sum(1 for x in Bg.ops[Bg.idx:Bg.cap] if x[0] == "dma"), 0]

    def hook3h(i):
        hook3(i)
        if i not in (24, 25) and nd[1] < nd[0] * i // 58 and Bg.idx < Bg.cap:
            nd[1] += Bg.ops[Bg.idx][0] == "dma"
            Bg.step(True)
        if i == 24:
            Bg.saved_cap, Bg.cap = Bg.cap, 0
        if i == 25:
            Bg.cap = Bg.saved_cap
    g3_pass(1, [Ops(x) for x in gelu_plain(accs[0], 32, gk3[0], hq, tmp, h_store2(0))], o.q3b, hook3h)
    vP16.free()
    stamp("g3b"); idle("g3b")
    Bg.cap = Bg.find("dma", 29)
    Bg.flush(Bg.find("dma", 27))
    pa = Poll(R["ws"], vP7, None, F_HA, local=True)
    pb = Poll(R["ws"], vP7, None, F_HB, local=True)
    if o.tail_bg:
        pump_on()
    st1 = h_store2(1)

    def done1(f):
        if f == o.haflag_at:
            g.wait(vm="Hst0")
            flag_set(F_HA)
            if o.l2pf & 4:
                with g.hold():
                    g(f"v_lshlrev_b32 {vOne}, 5, {vP32}\ns_sub_u32 {sT[0]}, {sHst}, {112*1024 if f else 0}")
                    g.vm(f"buffer_load_dword {vDum}, {vOne}, {R['ws']}, {sT[0]} offen sc1", "pf")
        if o.apoll_at == 6:
            if f < 2:
                st1(f)
            if f == 3:
                pa.issue()
                st1(2)
                st1(3)
        else:
            st1(f)
        if f == o.apoll_at:
            pa.issue()
        mark(3, f"H_f{f}")
    gelu_pk(accs[1], 32, gk3[1], hq, tmp, done1)
    stamp("H_st")
    tf.free(); vXw.free()
    for r in gk3:
        r.free()
    sv = V.alloc(16, at=136)
    g.wait(vm="y")
    g("s_barrier")
    if o.apoll_at == 4:
        pa.issue()

    g(f"v_lshl_add_u32 {t0}, {vKq}, 2, {vR4}\nv_lshlrev_b32 {t0}, 7, {t0}\nv_lshl_add_u32 {t0}, {vC8}, 2, {t0}\ns_lshl_b32 {sT[0]}, {sW}, 3\ns_add_u32 {sT[0]}, {sT[0]}, {C_Y}\nv_add_u32 {t0}, {sT[0]}, {t0}")
    for T in range(4):
        g.ds(f"ds_read_b64_tr_b16 {sv.r(8 + 2*T, 2)}, {t0} offset:{T*2048}", f"y{T}")
    vHl = V.alloc(1)
    hb = Reg(A, 128, 128)
    sSt2 = S.alloc(1)

    def h_load(m):
        th, n = divmod(m, 28)
        if o.rot:
            if m == 28:
                g(f"v_add_u32 {vHl}, {112*1024}, {vHl}")
            so, off = sG4[n >> 1], (n & 1) * 1024
        else:
            if n % 4 == 0:
                g(f"s_mov_b32 {sSt2}, {th*112*1024 + n*1024}")
            so, off = sSt2, (n & 3) * 1024
        g.vm(f"buffer_load_dwordx4 {hb.r(4*(m & 31), 4)}, {vHl}, {R['ws']}, {so} offen offset:{off} sc1", f"H{m}")

    g(f"s_mul_i32 {sT[0]}, {sW}, {28*1024}\ns_add_u32 {sT[0]}, {sT[0]}, {sH2}\nv_add_u32 {vHl}, {sT[0]}, {vL16}")
    if o.fake & 4:
        g(f"v_mov_b32 {vHl}, {OOB}")
    pump_off()
    Bg.flush(Bg.find("dma", 28))
    if o.apoll_at == 5:
        pa.issue()
    Bg.flush(max(Bg.find("dma", 29), Bg.find("rd", o.rd_ha)))
    def hbflag():
        g.wait(vm="Hst1")
        flag_set(F_HB)
        if o.l2pf & 8:
            g(f"v_lshlrev_b32 {vOne}, 5, {vP32}")
            g.vm(f"buffer_load_dword {vDum}, {vOne}, {R['ws']}, {sHst} offen sc1", "pf")
    pa.check(then=hbflag if o.hbflag_at < 0 else None)
    stamp("HA_flag")
    nxt = o.ahead
    hl = (h_load(m) for m in range(nxt))
    next(hl)
    g.pump = lambda: next(hl, None) if g.ta - g.clock < 30 else None
    run(gate_calc())
    g(f"s_lshl_b32 {sT[0]}, {sW}, 6\ns_add_u32 {sT[0]}, {sT[0]}, {C_OMG}\nv_lshl_add_u32 {t2}, {vC}, 2, {sT[0]}")
    g.ds(f"ds_write_b32 {t2}, {gate[1]}")
    g(f"v_xor_b32 {t0}, {vKq}, {vC}\nv_lshlrev_b32 {t0}, 4, {t0}\nv_lshl_add_u32 {t0}, {vC}, 8, {t0}\ns_lshl_b32 {sT[0]}, {sW}, 12\ns_add_u32 {sT[0]}, {sT[0]}, {C_BASE}\nv_add_u32 {t0}, {sT[0]}, {t0}")
    bq = Reg(V, accs[1].base, 32)
    for T in range(4):
        g.wait(lg=f"y{T}")
        for i in range(0 if o.abl & 8192 else 2):
            for src, d in ((sv[8 + 2*T + i], 0), (qp[2*T + i], 4), (x1p[2*T + i], 8)):
                g(f"v_lshlrev_b32 {bq[d + 2*i]}, 16, {src}\nv_and_b32 {bq[d + 2*i + 1]}, {sMask}, {src}")
        for i in (0, 2):
            g(f"v_pk_mul_f32 {bq.r(i,2)}, {bq.r(i,2)}, {bq.r(4+i,2)}")
            g(f"v_pk_mul_f32 {bq.r(8+i,2)}, {bq.r(8+i,2)}, {gate} op_sel:[0,1] op_sel_hi:[1,1]")
        for i in (0, 2):
            g(f"v_pk_fma_f32 {bq.r(12 + 4*T + i, 2)}, {bq.r(i,2)}, {gate}, {bq.r(8+i,2)} op_sel_hi:[1,0,1]")
        g(f"v_xor_b32 {t2}, {64*T}, {t0}")
        g.ds(f"ds_write_b128 {t2}, {bq.r(12 + 4*T, 4)}", "bw")
    qp.free(); x1p.free(); hq.free()
    vPw, vPr, vOut, vOm = (V.alloc(1) for _ in range(4))
    stamp("base")
    class Fin:
        @staticmethod
        def r(i, n=1):
            return accs[0].r(i, n) if i < 32 else tmp.r(i - 32, n)

        def __getitem__(self, i):
            return self.r(i)
    fin = Fin()

    def partial_out(th):
        for ft in range(2):
            for q in range(4):
                if o.fast_end:
                    g.ds(f"ds_write_b128 {pwa[4*ft + q]}, {accs[th].r(16*ft + 4*q, 4)} offset:{LA + th*32768}", f"pw{th}")
                else:
                    g(f"v_xor_b32 {t2}, {128*ft + 32*q}, {vPw}")
                    g.ds(f"ds_write_b128 {t2}, {accs[th].r(16*ft + 4*q, 4)} offset:{LA + th*32768}", f"pw{th}")
                yield

    def final_head(th):
        g(f"v_xor_b32 {t0}, 16, {vPr}")
        g(f"v_add_u32 {t2}, {C_BASE + th*8192}, {vPr}\nv_add_u32 {t3}, {C_BASE + th*8192}, {t0}")
        g.ds(f"ds_read_b128 {fin.r(32,4)}, {t2}", "fb")
        g.ds(f"ds_read_b128 {fin.r(36,4)}, {t3}", "fb")
        g(f"v_add_u32 {t2}, {C_OMG + th*128}, {vOm}")
        g.ds(f"ds_read_b32 {sv[0]}, {t2}", "fb")
        g(f"s_add_u32 {sT[0]}, {sPan}, {th*32768}")

    def final(th, packed, head=True):
        if head:
            g(f"v_xor_b32 {t0}, 16, {vPr}")
        for x, ad in enumerate((vPr, t0)):
            for w in range(4):
                g.ds(f"ds_read_b128 {fin.r(16*x + 4*w, 4)}, {ad} offset:{LA + th*32768 + w*8192}", f"f{x}")
                yield
        if head:
            g(f"v_add_u32 {t2}, {C_BASE + th*8192}, {vPr}\nv_add_u32 {t3}, {C_BASE + th*8192}, {t0}")
            yield
            g.ds(f"ds_read_b128 {fin.r(32,4)}, {t2}", "fb")
            g.ds(f"ds_read_b128 {fin.r(36,4)}, {t3}", "fb")
            yield
            g(f"v_add_u32 {t2}, {C_OMG + th*128}, {vOm}")
            g.ds(f"ds_read_b32 {sv[0]}, {t2}", "fb")
            yield
        for x in range(2):
            g.wait(lg=f"f{x}")
            b = 16 * x
            for d, s in ((0, 4), (8, 12), (0, 8)):
                if packed:
                    for i in (0, 2):
                        g(f"v_pk_add_f32 {fin.r(b+d+i,2)}, {fin.r(b+d+i,2)}, {fin.r(b+s+i,2)}")
                else:
                    for i in range(4):
                        g(f"v_add_f32 {fin[b+d+i]}, {fin[b+d+i]}, {fin[b+s+i]}")
                        yield
        g.wait(lg="fb")
        for x in range(2):
            if packed:
                for i in (0, 2):
                    g(f"v_pk_fma_f32 {fin.r(16*x+i,2)}, {fin.r(16*x+i,2)}, {sv.r(0,2)}, {fin.r(32+4*x+i,2)} op_sel_hi:[1,0,1]")
                continue
            for i in range(4):
                g(f"v_fma_f32 {fin[16*x+i]}, {fin[16*x+i]}, {sv[0]}, {fin[32+4*x+i]}")
                yield
        for x in range(2):
            for i in range(2):
                g(f"v_cvt_pk_bf16_f32 {fin[4 + 2*x + i]}, {fin[16*x + 2*i]}, {fin[16*x + 2*i + 1]}")
                yield
        if head:
            g(f"s_add_u32 {sT[0]}, {sPan}, {th*32768}")
        g.vm(f"buffer_store_dwordx4 {fin.r(4,4)}, {vOut}, {R['out']}, {sT[0]} offen {o.out_pol}", "out")
        yield

    def barrier_after(tag):
        g.wait(lg=tag)
        g("s_barrier")
        yield

    Bg.cap = len(Bg.ops)
    g.pump = None
    run(hl)
    setup_ops = [f"v_and_b32 {t0}, 31, v0", f"v_lshrrev_b32 {t2}, 5, v0", f"v_xor_b32 {t2}, {t2}, {vC}", f"v_lshlrev_b32 {t2}, 4, {t2}", f"v_lshl_add_u32 {t0}, {t0}, 8, {t2}", f"s_lshl_b32 {sT[0]}, {sW}, 13", f"v_add_u32 {vPw}, {sT[0]}, {t0}", f"v_lshrrev_b32 {t0}, 3, v0", f"s_lshl_b32 {sT[0]}, {sW}, 3", f"v_add_u32 {t0}, {sT[0]}, {t0}", f"v_lshlrev_b32 {t3}, 4, {vS8}", f"v_lshl_add_u32 {vOut}, {t0}, 10, {t3}", f"v_lshlrev_b32 {t2}, 1, {vS8}", f"v_and_b32 {t3}, 15, {t0}", f"v_xor_b32 {t2}, {t2}, {t3}", f"v_lshlrev_b32 {t2}, 4, {t2}", f"v_lshl_add_u32 {vPr}, {t0}, 8, {t2}", f"v_lshlrev_b32 {vOm}, 2, {t0}"]
    pwa = V.alloc(8, at=152)
    if o.fast_end:
        setup_ops += [f"v_xor_b32 {pwa[i]}, {32*i}, {vPw}" for i in range(8)]
    fillers = [Ops(setup_ops)]
    for m in range(56):
        th, n = divmod(m, 28)
        if n % 2 == 0 and th == 0:
            Bg.flush(Bg.find("rd", 16 + n // 2))
            g.wait(lg=f"sr{16 + n//2}")
        if m == 28:
            stamp("g4_0"); idle("g4_0")
            drain(fillers)
            po = partial_out(0)
        if 29 <= m < 37:
            next(po)
        if m == o.bar_at:
            drain(fillers)
            fillers = [barrier_after("pw0"), final(0, False)]
        if m == o.hbflag_at:
            hbflag()
        if m % 7 == 0:
            mark(3, f"m{m}")
        if o.fast_end and m == 54:
            assert o.bar_at < 56
            drain(fillers)
            final_head(1)
            g.wait(vm="H55")
            po = partial_out(1)
            for ft in range(2):
                for mm in (54, 55):
                    c = accs[1].r(16*ft, 16)
                    g(f"v_mfma_f32_32x32x16_bf16 {c}, {w4home(mm - 28, ft)}, {hb.r(4*(mm & 31), 4)}, {c}")
            for _ in range(8):
                next(po)
            break
        g.wait(vm=f"H{m}")
        for ft in range(2):
            c = accs[th].r(16*ft, 16)
            if not (o.abl & 128 and ft):
                g(f"v_mfma_f32_32x32x16_bf16 {c}, {w4home(n, ft)}, {hb.r(4*(m & 31), 4)}, {c if n else 0}")
            if ft == 0:
                if m == o.bpoll_at:
                    pb.issue()
                if nxt == 28:
                    pb.check()
                if nxt < 56:
                    h_load(nxt)
                    nxt += 1
            if not (m == 28 and ft == 0):
                fill(fillers, 0, reserve=4 * ft)
    drain(fillers)
    stamp("g4_1")
    if not o.fast_end:
        run(partial_out(1))
    run(barrier_after("pw1"))
    if o.bar_at >= 56:
        run(final(0, True))
    run(final(1, True, head=not o.fast_end))
    stamp("end")
    stamp("end_real", real=True)
    if o.stamps:
        g(f"s_lshl_b32 {sT[0]}, s2, 2\ns_add_u32 {sT[0]}, {sT[0]}, {sW}\ns_lshl_b32 {sT[0]}, {sT[0]}, 8\ns_add_u32 {sT[0]}, {sT[0]}, {STAMPS}")
        g(f"buffer_store_dword {vStamp}, {vL4}, {R['ws']}, {sT[0]} offen")
    if amp:
        g(f"s_cmp_lg_u32 s2, 77\ns_cbranch_scc1 L_end")
        g(f"s_sub_u32 {sAmp[2]}, {sAmp[2]}, {sAmp[0]}\ns_mul_i32 {sAmp[2]}, {sAmp[2]}, {amp[2]}\ns_min_u32 {sAmp[2]}, {sAmp[2]}, 100000")
        g(f"s_memrealtime {sAmp.r(0,2)}\ns_waitcnt lgkmcnt(0)")
        g(f"L_amp:\ns_memrealtime {sStamp}\ns_waitcnt lgkmcnt(0)\ns_sub_u32 {sStamp[0]}, {sStamp[0]}, {sAmp[0]}")
        g(f"s_cmp_lt_u32 {sStamp[0]}, {sAmp[2]}\ns_cbranch_scc1 L_amp")
    g("s_endpgm")
    for t in tail:
        g(t)
    g("L_end:\ns_endpgm")
    body = g.text(o.align)
    info = dict(nops=g.nops, vhigh=V.high, shigh=S.high, stamps=stamp_names, lines=len(g.lines), clock=g.clock, model=model, bgat=bgat)
    return file_text([(KNAME, 256, 256, LDS_BYTES)], [(KNAME, body, 512, 256, 102)]), info


REF = "gated_mix__ssm_conv_h3__mixer_s_mlp__prompt.s.ref"
HEADER = open(REF).read().split("; Override launch")[0] if os.path.exists(REF) else ""


def set_opts(args):
    for kv in args:
        k, v = kv.split("=")
        cur = getattr(Opt, k)
        setattr(Opt, k, type(cur)(int(v)) if isinstance(cur, (bool, int)) else v)


if __name__ == "__main__":
    out = sys.argv[1] if len(sys.argv) > 1 else "k.s"
    set_opts(sys.argv[2:])
    text, info = build(Opt)
    open(out, "w").write(HEADER + text)
    print(info)
```

```python
import copy
import os
import struct
import sys
from asmlib import ARG, NBYTES, KNAME, file_text
from kgen import Gen, Reg, merge_queues

F_H, F_U, F_X1, F_Y, F_HA, F_HB = 1, 2, 3, 4, 5, 6
LFLAG = 0x20000
STATS = 0x40000
HBUF, X1BUF, UBUF, YBUF, H2BUF = 0x100000, 0x300000, 0x500000, 0x700000, 0x900000
STAMPS = 0x2000000
OOB = 0x40000000

LA, LB, LC = 0, 65536, 131072
C_K, C_V, C_Q, C_CS = LC, LC + 9216, LC + 17920, LC + 26112
C_H, C_U = LC, LC + 8448
HP, UP = 4224, 1152
C_Y, C_BASE, C_OMG, C_STD = LC, LC + 8192, LC + 24576, LC + 26624
A_N = LC + 17920
NP = 6912
LDS_BYTES = 163840

GELU_C0 = -2.302208198144325
GELU_C1 = GELU_C0 * 0.044715
LOG2E = 1.4426950408889634

TILES = ([7, 6, 2], [5, 4, 3, 1, 0])


def fbits(x):
    return "0x%08x" % struct.unpack("<I", struct.pack("<f", x))[0]


class Opt:
    stamps = 0
    fine = 0
    amp = ""
    nt_once = ""
    out_pol = "sc1"
    code_pf = True
    code_bytes = 40960
    align = True
    nap = 0
    period = 85
    lat = 700
    thresh = 100
    thresh1 = 500
    fake = 0
    t3 = 3
    fast_end = True
    noglobal = 0
    abl = 0
    tail_bg = False
    hpoll = 2
    idle = ""
    touch4 = 6
    rotj = 0
    rotp = 0
    tx1 = ""
    tx2 = ""
    tx34 = ""
    t3_at = 10
    cap0 = "x3"
    t3_first = "x0"
    touch1 = "x0"
    bg_u = 4
    rd_ha = 24
    touch = 3
    touch2 = "w1b"
    pre2 = True
    local = True
    dpoll_at = 16
    bg_a = 0
    bg_b = 1
    cap_p2 = 6
    l2pf = 0
    cap2 = 15
    upoll_at = 11
    ucheck_at = 16
    bdist = 6
    hflag_m = 8
    bar_at = 46
    yflag_at = 10
    rot = False
    xflag_at = 24
    xpoll_at = 104
    xcheck_at = 126
    norm1_at = 10
    cap_a = 23
    l1_early = 8
    cap_b = 27
    q3a = 0
    q3b = 0
    haflag_at = 1
    hbflag_at = -1
    apoll_at = 4
    bpoll_at = 10
    ahead = 9


def build(o=Opt):
    g = Gen()
    g.vm_cost, g.vm_lat, g.vm_win = o.period, o.lat, 8 * o.period
    V, A, S = g.V, g.A, g.S
    names = ["q", "ws", "w1", "w2", "dbg", "k", "v", "shift_k", "ssm_D", "gate_w", "w3", "w4", "ssm_k", "out"]
    R = {n: S.alloc(4, align=4) for n in names}
    sW, sJ, sP, sPP, sX = (S.alloc(1) for _ in range(5))
    sT = S.alloc(4, align=2)
    sOnes, sLo1, sHi1, sMask, sTmo = (S.alloc(1) for _ in range(5))
    sStamp = S.alloc(2, align=2) if (o.stamps or o.amp) else None
    vStamp = V.alloc(1)
    stamp_names = []
    amp = o.amp.split(",") if o.amp else None
    tail = []

    model, bgat = {}, {}

    def stamp(name, real=False):
        model[name] = g.clock
        bgat[name] = "%s%s" % Bg.ops[Bg.idx][:2] if Bg.idx < len(Bg.ops) else "end"
        with g.hold():
            if amp and name in amp[:2]:
                g(f"s_memrealtime {sStamp}")
                g.smem = True
                g.wait(lg="*")
                g(f"v_writelane_b32 {vStamp}, {sStamp[0]}, {62 + amp.index(name)}")
            if o.stamps in (1, 3) or (o.stamps == 2 and real):
                g(f"s_mem{'real' if real or o.stamps == 3 else ''}time {sStamp}")
                g.smem = True
                g.wait(lg="*")
                if name not in stamp_names:
                    stamp_names.append(name)
                g(f"v_writelane_b32 {vStamp}, {sStamp[0]}, {stamp_names.index(name)}")

    def idle(name):
        if name in o.idle.split(":"):
            g("s_sleep 16")

    def mark(level, name):
        if o.fine == level:
            stamp(name)

    def flag_set(val):
        with g.hold():
            g(f"s_mov_b64 exec, 1\nv_mov_b32 {vOne}, {val}")
            if o.local and val not in (F_U, F_Y):
                g.vm(f"buffer_store_dword {vOne}, off, {R['ws']}, {sLf}", "flag")
            if not (o.noglobal and val not in (F_U, F_Y)):
                g.vm(f"buffer_store_dword {vOne}, off, {R['ws']}, {sFl} sc1", "flag")
            g("s_mov_b64 exec, -1")

    class Poll:
        def __init__(self, srd, vaddr, soff, need, local=False):
            self.t = V.alloc(1)
            self.tag = g.label("poll")
            self.cmp = f"v_cmp_gt_u32 vcc, {need}, {self.t}"
            self.ld = f"buffer_load_dword {self.t}, {vaddr}, {srd}, {soff} offen sc1"
            self.first = self.ld
            self.pre = ""
            if local:
                self.ld = f"v_lshlrev_b32 {self.t}, 5, {vaddr}\nbuffer_load_dword {self.t}, {self.t}, {srd}, {sFp} offen sc1"
                self.first = self.ld
                if o.local:
                    self.first = f"buffer_load_dword {self.t}, {vaddr}, {srd}, {sLp} offen sc1"
                    self.pre = self.first

        def issue(self):
            with g.hold():
                g.vm(self.first, self.tag)

        def check(self, free=True, then=None):
            n = g.label("chk")
            with g.hold():
                g.wait(vm=self.tag)
                if then:
                    then()
                g(f"{self.cmp}\ns_cbranch_vccnz {n}_slow\n{n}_ok:")
                if o.stamps == 4:
                    if self.tag not in stamp_names:
                        stamp_names.append(self.tag)
                    g(f"v_writelane_b32 {vStamp}, {sTmo}, {stamp_names.index(self.tag)}")
            nap = f"s_sleep {o.nap}\n" if o.nap else ""
            for _ in range(3 if self.pre else 0):
                nap += (f"s_sub_u32 {sTmo}, {sTmo}, 1\n" if o.stamps == 4 else "") + f"{self.pre}\ns_waitcnt vmcnt(0)\n{self.cmp}\ns_cbranch_vccz {n}_ok\n"
            tail.append(f"{n}_slow:\ns_sub_u32 {sTmo}, {sTmo}, 1\ns_cbranch_scc1 {n}_out\n{nap}{self.ld}\ns_waitcnt vmcnt(0)\n"
                        f"{self.cmp}\ns_cbranch_vccnz {n}_slow\ns_branch {n}_ok\n"
                        f"{n}_out:\ns_mov_b32 {sTmo}, 0\ns_branch {n}_ok")
            if free:
                self.t.free()

    def round_bf16(r):
        g(f"v_cvt_pk_bf16_f32 {r}, {r}, {r}")
        yield
        g(f"v_and_b32 {r}, {sMask}, {r}")
        yield

    def ln_mean(s1, negmu):
        g(f"v_mul_f32 {negmu}, {fbits(-1.0/512)}, {s1}")
        yield
        yield from round_bf16(negmu)

    def ln_std(s1, s2, std):
        for t in (f"v_mul_f32 {s1}, {fbits(1.0/512)}, {s1}", f"v_mul_f32 {s2}, {fbits(1.0/512)}, {s2}",
                  f"v_fma_f32 {s2}, -{s1}, {s1}, {s2}", f"v_max_f32 {s2}, 0, {s2}"):
            g(t)
            yield
        yield from round_bf16(s2)
        g(f"v_add_f32 {s2}, {fbits(1e-5)}, {s2}")
        yield
        yield from round_bf16(s2)
        g(f"v_sqrt_f32 {std}, {s2}\ns_nop 0")
        yield
        yield from round_bf16(std)

    def ln_scale(gk):
        g(f"v_rcp_f32 {gk[3]}, {gk[2]}\ns_nop 0")
        yield
        for t in (f"v_mul_f32 {gk[1]}, {fbits(GELU_C0)}, {gk[3]}", f"v_mul_f32 {gk[0]}, {gk[3]}, {gk[3]}",
                  f"v_mul_f32 {gk[0]}, {gk[0]}, {gk[3]}", f"v_mul_f32 {gk[0]}, {fbits(GELU_C1)}, {gk[0]}"):
            g(t)
            yield

    def ln_stats(s1, s2, negmu, gk):
        for t in (f"v_mul_f32 {negmu}, {fbits(-1.0/512)}, {s1}", f"v_mul_f32 {s2}, {fbits(1.0/512)}, {s2}",
                  f"v_fma_f32 {s2}, -{negmu}, {negmu}, {s2}", f"v_max_f32 {s2}, 0, {s2}"):
            g(t)
            yield
        yield from round_bf16(s2)
        g(f"v_add_f32 {s2}, {fbits(1e-5)}, {s2}")
        yield
        yield from round_bf16(s2)
        g(f"v_sqrt_f32 {gk[2]}, {s2}")
        yield
        yield from round_bf16(negmu)
        yield from round_bf16(gk[2])
        g(f"v_rcp_f32 {s2}, {gk[2]}\ns_nop 0")
        yield
        for t in (f"v_mul_f32 {gk[1]}, {fbits(GELU_C0)}, {s2}", f"v_mul_f32 {gk[0]}, {s2}, {s2}",
                  f"v_mul_f32 {gk[0]}, {gk[0]}, {s2}", f"v_mul_f32 {gk[0]}, {fbits(GELU_C1)}, {gk[0]}"):
            g(t)
            yield

    def center_dot(regs, negmu, tmp):
        for b in range(0, len(regs), 4):
            for i in range(4):
                g(f"v_dot2_f32_bf16 {tmp[2*i]}, {regs[b+i]}, {sLo1}, {negmu}")
                g(f"v_dot2_f32_bf16 {tmp[2*i+1]}, {regs[b+i]}, {sHi1}, {negmu}")
            for i in range(4):
                g(f"v_cvt_pk_bf16_f32 {regs[b+i]}, {tmp[2*i]}, {tmp[2*i+1]}")
            yield

    def center_plain(regs, negmu, tmp):
        for i, r in enumerate(regs):
            a, b = tmp[2*(i & 1)], tmp[2*(i & 1) + 1]
            for t in (f"v_lshlrev_b32 {a}, 16, {r}", f"v_and_b32 {b}, {sMask}, {r}", f"v_add_f32 {a}, {a}, {negmu}",
                      f"v_add_f32 {b}, {b}, {negmu}", f"v_cvt_pk_bf16_f32 {r}, {a}, {b}"):
                g(t)
                yield

    def gelu_pk(acc, n, gk, out, tmp, done=None):
        kk, ss = gk.r(0, 2), gk.r(2, 2)
        for b in range(0, n, 8):
            P = range(0, 8, 2)
            if (o.abl & 256 and n == 16) or (o.abl & 512 and n == 32):
                for i in P:
                    g(f"v_cvt_pk_bf16_f32 {out[(b+i)//2 % out.n]}, {acc[b+i]}, {acc[b+i+1]}")
                if done:
                    done(b // 8)
                continue
            for i in P:
                g(f"v_pk_mul_f32 {tmp.r(i,2)}, {acc.r(b+i,2)}, {acc.r(b+i,2)}")
            for i in P:
                g(f"v_pk_fma_f32 {tmp.r(i,2)}, {tmp.r(i,2)}, {kk}, {kk} op_sel:[0,0,1] op_sel_hi:[1,0,1]")
            for i in P:
                g(f"v_pk_mul_f32 {tmp.r(i,2)}, {tmp.r(i,2)}, {acc.r(b+i,2)}")
            for i in range(8):
                g(f"v_exp_f32 {tmp[i]}, {tmp[i]}")
            for i in P:
                g(f"v_pk_fma_f32 {tmp.r(i,2)}, {tmp.r(i,2)}, {ss}, {ss} op_sel_hi:[1,0,0]")
            for i in range(8):
                g(f"v_rcp_f32 {tmp[i]}, {tmp[i]}")
            for i in P:
                g(f"v_pk_mul_f32 {tmp.r(i,2)}, {tmp.r(i,2)}, {acc.r(b+i,2)}")
            for i in P:
                g(f"v_cvt_pk_bf16_f32 {out[(b+i)//2 % out.n]}, {tmp[i]}, {tmp[i+1]}")
            if done:
                done(b // 8)

    def gelu_plain(acc, n, gk, out, tmp, done):
        streams = [[], []]
        left = {}
        for b in range(0, n, 4):
            h = (b // 4) & 1
            T = [tmp[4*h + i] for i in range(4)]
            Q = range(4)
            ops = [f"v_mul_f32 {T[i]}, {acc[b+i]}, {acc[b+i]}" for i in Q]
            ops += [f"v_fma_f32 {T[i]}, {T[i]}, {gk[0]}, {gk[1]}" for i in Q]
            ops += [f"v_mul_f32 {T[i]}, {T[i]}, {acc[b+i]}" for i in Q]
            ops += [f"v_exp_f32 {T[i]}, {T[i]}" for i in Q]
            ops += [f"v_fma_f32 {T[i]}, {T[i]}, {gk[2]}, {gk[2]}" for i in Q]
            ops += [f"v_rcp_f32 {T[i]}, {T[i]}" for i in Q]
            ops += [f"v_mul_f32 {T[i]}, {T[i]}, {acc[b+i]}" for i in Q]
            f = b // 8
            left[f] = 2

            def guard(f=f):
                assert left.get(f - 2, 0) == 0
            ops += [(0, guard)] + [f"v_cvt_pk_bf16_f32 {out[(b+i)//2 % out.n]}, {T[i]}, {T[i+1]}" for i in (0, 2)]

            def fin(f=f):
                left[f] -= 1
                if left[f] == 0:
                    done(f)
            streams[h] += (ops[-3:] if o.abl & 4 else ops) + [(4, fin)]
        streams[1] = [(0, lambda: None)] * 12 + streams[1]
        return streams

    def run(it):
        for _ in it:
            pass

    def chain(*its):
        for it in its:
            yield from it

    class Bg:
        ops, idx, cap = [], 0, 0
        dma_on = True
        last, gap = 0, 0
        thresh = o.thresh

        @classmethod
        def ready(cls, force=False):
            if cls.idx >= min(cls.cap, len(cls.ops)):
                return False
            kind, key, _ = cls.ops[cls.idx]
            if force:
                return True
            if kind == "dma":
                return cls.dma_on and g.backlog() < cls.thresh and g.ta - g.clock < 30 and g.clock >= cls.last + cls.gap
            if kind == "rd0":
                return g.clock >= g.vmt[f"sd{key}"]
            return True

        @classmethod
        def step(cls, force=False):
            if not cls.ready(force):
                return False
            kind, key, fn = cls.ops[cls.idx]
            cls.idx += 1
            with g.hold():
                fn()
            if kind == "dma":
                cls.last = g.clock
            return True

        @classmethod
        def find(cls, kind, key):
            return max(i for i, (k, y, _) in enumerate(cls.ops) if y == key and k.startswith(kind)) + 1

        @classmethod
        def flush(cls, idx):
            cap, cls.cap = cls.cap, max(cls.cap, idx)
            while cls.idx < idx:
                cls.step(True)
            cls.cap = cap

        @classmethod
        def burst(cls, n):
            while n > 0 and cls.idx < min(cls.cap, len(cls.ops)):
                kind = cls.ops[cls.idx][0]
                if kind == "rd0" and not cls.ready():
                    break
                cls.step(True)
                n -= kind == "dma"

    def pump_on():
        g.pump = Bg.step

    def pump_off():
        g.pump = None

    class Ops:
        def __init__(self, items):
            self.items = list(items)

        def cost(self):
            it = self.items[0]
            return it[0] if isinstance(it, tuple) else 8 if it.startswith(("v_exp", "v_rcp", "v_sqrt")) else 4

        def emit(self):
            it = self.items.pop(0)
            it[1]() if isinstance(it, tuple) else g(it)

        def drain(self):
            while self.items:
                self.emit()

    def fill(fillers, over=0, reserve=0):
        while True:
            room = g.slack() - reserve + over
            if room >= 4 and Bg.step():
                continue
            live = [f for f in fillers if (f.items if isinstance(f, Ops) else True)]
            fillers[:] = live
            pick = None
            for f in live:
                if not isinstance(f, Ops):
                    pick = f if room >= 4 else None
                    break
                if f.cost() <= room and (pick is None or len(f.items) > len(pick.items)):
                    pick = f
            if pick is None:
                return
            if isinstance(pick, Ops):
                pick.emit()
            elif next(pick, 1) is not None:
                fillers.remove(pick)

    def drain(fillers):
        while fillers:
            f = fillers[0]
            if isinstance(f, Ops):
                others = [x for x in fillers if isinstance(x, Ops) and x.items]
                while others:
                    for x in others:
                        x.emit()
                    others = [x for x in others if x.items]
                fillers[:] = [x for x in fillers if not isinstance(x, Ops)]
            else:
                run(f)
                fillers.pop(0)

    g("s_cmp_ge_u32 s2, 256\ns_cbranch_scc1 L_end")
    for n in names:
        g(f"s_load_dwordx2 {R[n].r(0,2)}, s[0:1], {ARG[n]}")
    g.smem = True
    vOne, vL16, vL4, vDum = (V.alloc(1) for _ in range(4))
    t0, t2, t3 = (V.alloc(1) for _ in range(3))
    if o.code_pf:
        pc = V.alloc(2)
        per = o.code_bytes // 32
        assert per <= 2048
        g(f"s_getpc_b64 {sT.r(0,2)}")
        g(f"s_lshr_b32 {sT[2]}, s2, 3\ns_mul_i32 {sT[2]}, {sT[2]}, {per}")
        g(f"v_lshl_add_u32 {t0}, v0, 3, {sT[2]}")
        g(f"v_min_u32 {t0}, L_end-L_pc, {t0}")
        g("L_pc:")
        g(f"v_mov_b32 {pc[1]}, {sT[1]}")
        g(f"v_add_co_u32 {pc[0]}, vcc, {sT[0]}, {t0}")
        g(f"s_nop 1\nv_addc_co_u32 {pc[1]}, vcc, 0, {pc[1]}, vcc")
        g.vm(f"global_load_dword {vDum}, {pc}, off", "pf")
        pc.free()
    g(f"v_lshrrev_b32 {t0}, 6, v0\nv_and_b32 v0, 63, v0\nv_readfirstlane_b32 {sW}, {t0}")
    g(f"s_and_b32 {sX}, s2, 7\ns_lshr_b32 {sT[0]}, s2, 3\ns_and_b32 {sJ}, {sT[0]}, 7\ns_lshr_b32 {sPP}, {sT[0]}, 3")
    g(f"s_lshl_b32 {sP}, {sX}, 2\ns_add_u32 {sP}, {sP}, {sPP}")

    def srd_words(ns):
        for n in ns:
            g(f"s_mov_b32 {R[n][2]}, {NBYTES[n]}\ns_mov_b32 {R[n][3]}, 0x00020000")
    srd_words(names[:4])
    vC, vKq, vR8, vS8 = (V.alloc(1) for _ in range(4))
    g(f"v_and_b32 {vC}, 15, v0\nv_lshrrev_b32 {vKq}, 4, v0\nv_lshrrev_b32 {vR8}, 3, v0\nv_lshlrev_b32 {vR8}, 10, {vR8}\nv_and_b32 {vS8}, 7, v0")
    sLdsW, sCol, sPan, sKV, sKV2, sC2 = (S.alloc(1) for _ in range(6))
    g(f"s_lshl_b32 {sLdsW}, {sW}, 14\ns_lshl_b32 {sCol}, {sJ}, 7\ns_lshl_b32 {sPan}, {sP}, 16\ns_add_u32 {sPan}, {sPan}, {sCol}")
    g(f"s_add_u32 {sKV}, {sLdsW}, {sPan}\ns_lshl_b32 {sC2}, {sW}, 11\ns_add_u32 {sKV2}, {sKV}, 7168")
    if o.stamps:
        g(f"v_mov_b32 {vStamp}, 0")
    g(f"s_lshr_b32 {sT[0]}, {sJ}, 2\ns_add_u32 {sT[0]}, {sT[0]}, 1\ns_sub_u32 {sT[1]}, 0, {sT[0]}")
    g(f"s_bitcmp1_b32 {sJ}, 1\ns_cselect_b32 {sT[0]}, {sT[0]}, {sT[1]}\ns_lshl_b32 {sT[0]}, {sT[0]}, 10")
    g(f"s_sub_u32 {sT[1]}, {sKV}, {sCol}\ns_add_u32 {sT[0]}, {sT[0]}, {sT[1]}")
    vQa, xd = V.alloc(2), V.alloc(2)
    g(f"v_xor_b32 {t0}, {vS8}, {vKq}\nv_lshl_add_u32 {vQa[0]}, {t0}, 4, {vR8}\nv_xor_b32 {vQa[1]}, 64, {vQa[0]}\nv_add_u32 {vQa[1]}, 7168, {vQa[1]}")
    g(f"v_add_u32 {xd[0]}, {sT[0]}, {vQa[0]}\nv_add_u32 {xd[1]}, {sT[0]}, {vQa[1]}")
    g.wait(lg="*")
    stamp("start_real", real=True)
    stamp("start")
    sM, sOff, sWo = S.alloc(1), S.alloc(1), S.alloc(1)
    wd = V.alloc(4, at=152)

    def x_dma(n, hh):
        if g.m0 != ("x", n):
            g(f"s_add_u32 m0, {sLdsW}, {LA + n*2048}\ns_xor_b32 {sWo}, {sCol}, {n << 7}")
            g.m0 = ("x", n)
        g.vm(f"buffer_load_dwordx4 {xd[hh]}, {R['q']}, {sWo} offen offset:{hh*1024} lds", f"x{n}")

    def w_dma(name, base, n, i):
        key = (name, n)
        sh = 2 if name == "w1" else 0
        if g.m0 != key:
            g(f"s_xor_b32 m0, {sM}, {base + (n << (12 + sh))}\ns_xor_b32 {sWo}, {sOff}, {n << (15 + sh)}")
            g.m0 = key
        g.vm(f"buffer_load_dwordx4 {wd[i]}, {R[name]}, {sWo} offen offset:{i*1024} lds", name + ("ab"[n >> 1] if sh else ""))

    for n in range(8):
        for hh in range(2):
            Bg.ops.append(("dma", f"x{n}", lambda n=n, hh=hh: x_dma(n, hh)))
    for n in range(4):
        for i in range(4):
            Bg.ops.append(("dma", "w1" + "ab"[n >> 1], lambda n=n, i=i: w_dma("w1", LB, n, i)))
    g.vm_lat = 1500

    def touch(n, bufs, sWo=sWo):
        g(f"s_lshl_b32 {sWo}, s2, 2\ns_add_u32 {sWo}, {sWo}, {sW}\ns_mul_i32 {sWo}, {sWo}, {n*128}\nv_min_u32 {vOne}, {n-1}, v0\nv_lshlrev_b32 {vOne}, 7, {vOne}")
        for b in bufs:
            g.vm(f"buffer_load_dword {vDum}, {vOne}, {R[b]}, {sWo} offen", "pf")
        g.m0 = None

    def touch3(n, bufs, sreg):
        g(f"s_lshr_b32 {sreg}, s2, 3\ns_lshl_b32 {sreg}, {sreg}, 2\ns_add_u32 {sreg}, {sreg}, {sW}\ns_mul_i32 {sreg}, {sreg}, {n*1024}")
        g(f"v_min_u32 {vOne}, {n-1}, v0\nv_lshlrev_b32 {vOne}, 10, {vOne}")
        for b in bufs:
            g.vm(f"buffer_load_dword {vDum}, {vOne}, {R[b]}, {sreg} offen offset:384", "pf")
        g.m0 = None
    if o.touch & 1:
        at = Bg.find("dma", o.touch1)
        Bg.ops[at:at] = [("dma", "tch0", lambda: touch(4, ("w1", "w2")))]

    def touchx(buf, n, part, sreg):
        g(f"s_lshr_b32 {sreg}, s2, 3\ns_lshl_b32 {sreg}, {sreg}, 2\ns_add_u32 {sreg}, {sreg}, {sW}\ns_mul_i32 {sreg}, {sreg}, {n*128}")
        if part:
            g(f"s_add_u32 {sreg}, {sreg}, {part*n*128*128}")
        g(f"v_min_u32 {vOne}, {n-1}, v0\nv_lshlrev_b32 {vOne}, 7, {vOne}")
        g.vm(f"buffer_load_dword {vDum}, {vOne}, {R[buf]}, {sreg} offen", "pf")
        g.m0 = None
    if o.tx1:
        at = Bg.find("dma", o.tx1) if o.tx1 != "0" else 0
        Bg.ops[at:at] = [("dma", "tx1", lambda: touchx("w1", 32, 0, sWo))]
    if o.tx2:
        at = Bg.find("dma", o.tx2)
        Bg.ops[at:at] = [("dma", "tx2", lambda: touchx("w2", 32, 0, sWo))]
    if o.t3 & 1:
        at = Bg.find("dma", o.t3_first)
        Bg.ops[at:at] = [("dma", "tch1", lambda: touch3(4, ("w1", "w2"), sWo))]
    Bg.flush(1)
    g.vm_lat = o.lat
    Bg.flush(Bg.find("dma", "x1"))
    sFp, sFl, sLp, sLf, sLead = (S.alloc(1) for _ in range(5))
    vP32 = V.alloc(1)
    z = V.alloc(4, at=160)
    g(f"v_and_b32 {vP32}, 31, v0\nv_lshlrev_b32 {vP32}, 2, {vP32}\ns_lshl_b32 {sFp}, {sP}, 12\nv_lshlrev_b32 {vL16}, 4, v0")
    g(f"v_mov_b32 {z[0]}, 0\nv_mov_b32 {z[1]}, 0\nv_mov_b32 {z[2]}, 0\nv_mov_b32 {z[3]}, 0\nv_lshlrev_b32 {t0}, 4, {vS8}")
    g(f"s_lshl_b32 {sLp}, {sP}, 7\ns_add_u32 {sLp}, {sLp}, {LFLAG}")
    g(f"s_lshl_b32 {sT[0]}, {sJ}, 2\ns_add_u32 {sT[0]}, {sT[0]}, {sW}\ns_lshl_b32 {sFl}, {sT[0]}, 7\ns_add_u32 {sFl}, {sFl}, {sFp}")
    g(f"s_lshl_b32 {sLf}, {sT[0]}, 2\ns_add_u32 {sLf}, {sLf}, {sLp}")
    g(f"s_lshl_b32 {sT[1]}, {sP}, 2\ns_cmp_eq_u32 {sT[0]}, 0\ns_cselect_b32 {sLead}, {sT[1]}, {OOB}\ns_cselect_b32 {sT[2]}, {sLp}, {OOB}")
    g(f"s_lshl_b32 {sT[1]}, {sW}, 10\ns_add_u32 {sT[1]}, {sT[1]}, {sFp}\ns_cmp_eq_u32 {sJ}, 0\ns_cselect_b32 {sT[3]}, {sT[1]}, {OOB}")
    g.vm(f"buffer_store_dwordx4 {z}, {vL16}, {R['ws']}, {sT[3]} offen sc1", "clr", cost=30)
    g.vm(f"buffer_store_dwordx4 {z}, {t0}, {R['ws']}, {sT[2]} offen sc1", "clr", cost=30)
    z.free()
    Bg.cap = Bg.find("dma", o.cap0)
    Bg.thresh = o.thresh1
    pump_on()
    srd_words(names[4:])
    g(f"v_and_b32 {t0}, 1, {vKq}\nv_lshlrev_b32 {t0}, 1, {t0}\nv_xor_b32 {t0}, {t0}, {vS8}\nv_lshl_add_u32 {wd[0]}, {t0}, 4, {vR8}")
    g(f"v_xor_b32 {t0}, 64, {wd[0]}\nv_add_u32 {wd[1]}, 7168, {t0}\nv_add_u32 {wd[2]}, 14336, {wd[0]}\nv_add_u32 {wd[3]}, 21504, {t0}")
    g(f"s_and_b32 {sT[0]}, {sPP}, 1\ns_lshl_b32 {sT[0]}, {sT[0]}, 2\ns_add_u32 {sT[0]}, {sT[0]}, {sW}\ns_lshl_b32 {sM}, {sT[0]}, 12")
    g(f"s_lshl_b32 {sT[1]}, {sJ}, 1\ns_xor_b32 {sT[0]}, {sT[0]}, {sT[1]}\ns_lshl_b32 {sOff}, {sT[0]}, 15\ns_add_u32 {sOff}, {sOff}, {sCol}")
    vW2, vV, vK0, vSk = V.alloc(1), V.alloc(2), V.alloc(1), V.alloc(1)
    sK0, sSk = S.alloc(1), S.alloc(1)
    g(f"v_lshlrev_b32 {t0}, 1, {vKq}\nv_xor_b32 {t0}, {t0}, {vS8}\nv_lshl_add_u32 {vW2}, {t0}, 4, {vR8}")
    g(f"v_lshrrev_b32 {t2}, 5, v0\nv_lshlrev_b32 {t2}, 1, {t2}\nv_xor_b32 {t2}, {t2}, {vS8}\nv_lshl_add_u32 {vV[0]}, {t2}, 4, {vR8}\nv_xor_b32 {vV[1]}, 64, {vV[0]}")
    g(f"s_sub_u32 {sT[0]}, {sPan}, 8192\ns_add_u32 {sT[1]}, {sC2}, {C_Q}\ns_cmp_eq_u32 {sW}, 0\n"
      f"s_cselect_b32 {sT[0]}, {sT[0]}, {OOB}\ns_cselect_b32 {sK0}, {C_K}, {sT[1]}\nv_add_u32 {vK0}, {sT[0]}, {vW2}")
    g(f"v_lshlrev_b32 {vSk}, 3, {vC}\ns_lshl_b32 {sT[2]}, {sJ}, 9\ns_lshl_b32 {sT[3]}, {sW}, 7\ns_add_u32 {sSk}, {sT[2]}, {sT[3]}")
    vR8.free()
    g(f"s_mov_b32 {sOnes}, 0x3f803f80\ns_mov_b32 {sLo1}, 0x00003f80\ns_mov_b32 {sHi1}, 0x3f800000")
    g(f"s_mov_b32 {sMask}, 0xffff0000\ns_mov_b32 {sTmo}, 0x40000")
    g(f"v_lshlrev_b32 {vL4}, 2, v0")

    vR4, vC8 = V.alloc(1), V.alloc(1)
    g(f"v_bfe_u32 {vR4}, v0, 2, 2\nv_and_b32 {vC8}, 3, v0\nv_lshlrev_b32 {vC8}, 3, {vC8}")
    ka = V.alloc(3)
    for m in range(2):
        g(f"v_sub_u32 {t0}, {vKq}, {vR4}\nv_add_u32 {t0}, {8 + 4*m}, {t0}\nv_bfe_u32 {t2}, {t0}, 1, 2\nv_xor_b32 {t2}, {sW}, {t2}")
        g(f"v_lshl_add_u32 {t2}, {t2}, 5, {vC8}\nv_lshl_add_u32 {t2}, {t0}, 7, {t2}\nv_add_u32 {ka[m]}, {C_K}, {t2}")
    g(f"v_lshl_add_u32 {t0}, {vR4}, 2, {vKq}\nv_xor_b32 {t2}, {sW}, {vR4}\nv_lshl_add_u32 {t2}, {t2}, 5, {vC8}")
    g(f"v_lshl_add_u32 {t2}, {t0}, 7, {t2}\nv_add_u32 {ka[2]}, {C_V}, {t2}")
    sQ = S.alloc(1)
    ua = V.alloc(2)
    g(f"s_add_u32 {sQ}, {sC2}, {C_Q}")
    g(f"s_lshr_b32 {sT[0]}, {sP}, 1\nv_add_u32 {t2}, {sT[0]}, {vKq}\nv_and_b32 {t2}, 3, {t2}\nv_lshlrev_b32 {t2}, 1, {t2}")
    g(f"v_and_b32 {t0}, 7, {vC}\nv_xor_b32 {t0}, {t0}, {t2}\nv_lshlrev_b32 {t0}, 4, {t0}")
    g(f"v_lshl_add_u32 {t0}, {vC}, 7, {t0}\nv_add_u32 {ua[0]}, {sQ}, {t0}")
    g(f"v_lshrrev_b32 {t0}, 3, v0\nv_xor_b32 {t2}, {t0}, {vS8}\nv_lshlrev_b32 {t2}, 4, {t2}")
    g(f"v_lshl_add_u32 {t2}, {t0}, 7, {t2}\nv_add_u32 {ua[1]}, {sQ}, {t2}")
    vT4k = V.alloc(1)
    g(f"v_lshlrev_b32 {t3}, 4, {vS8}\nv_lshl_add_u32 {vT4k}, {t0}, 12, {t3}")
    xa = V.alloc(2)
    g(f"v_lshrrev_b32 {t0}, 1, {vC}\nv_xor_b32 {t0}, {t0}, {vKq}\nv_lshlrev_b32 {t0}, 4, {t0}\nv_lshl_add_u32 {t0}, {vC}, 7, {t0}")
    g(f"v_add_u32 {xa[0]}, {sLdsW}, {t0}\nv_xor_b32 {xa[1]}, 64, {xa[0]}")
    wa = V.alloc(8, at=144)
    g(f"v_lshl_add_u32 {t0}, {vKq}, 3, {vR4}\nv_lshl_add_u32 {t0}, {t0}, 7, {vC8}")
    g(f"v_lshrrev_b32 {t2}, 1, {vR4}\nv_and_b32 {t3}, 1, {vKq}\nv_lshl_or_b32 {t2}, {t3}, 1, {t2}")
    g(f"v_xor_b32 {t2}, {sW}, {t2}\nv_lshl_add_u32 {t0}, {t2}, 5, {t0}\nv_add_u32 {wa[0]}, {LB}, {t0}")
    for T in range(1, 4):
        g(f"v_xor_b32 {wa[T]}, {32*T}, {wa[0]}")
    sCh, sHo = S.alloc(1), S.alloc(1)
    sHs = S.alloc(2)
    g(f"s_lshr_b32 {sT[2]}, {sW}, 1\ns_and_b32 {sT[3]}, {sW}, 1")
    g(f"s_lshl_b32 {sCh}, {sJ}, 5\ns_add_u32 {sCh}, {sCh}, {sP}\ns_lshl_b32 {sCh}, {sCh}, 1\ns_add_u32 {sCh}, {sCh}, {sT[2]}")
    g(f"s_sub_u32 {sHo}, {sKV}, {sCol}\ns_lshl_b32 {sT[0]}, {sJ}, 11\ns_add_u32 {sHo}, {sHo}, {sT[0]}\ns_add_u32 {sHo}, {sHo}, {HBUF}")
    g(f"s_lshl_b32 {sT[0]}, {sT[2]}, 10\ns_add_u32 {sHs[0]}, {sHo}, {sT[0]}\ns_xor_b32 {sHs[1]}, {sHs[0]}, 1024")
    sL, sW3, sRot3, sIdle, sRing, sSt = (S.alloc(1) for _ in range(6))
    g(f"s_lshr_b32 {sT[0]}, {sJ}, 1\ns_mul_i32 {sL}, {sT[0]}, 7\ns_and_b32 {sT[1]}, {sJ}, 1\ns_lshl_b32 {sT[2]}, {sT[1]}, 2")
    g(f"s_add_u32 {sT[2]}, {sT[2]}, {sW}\ns_add_u32 {sL}, {sL}, {sT[2]}")
    g(f"s_cmp_eq_u32 {sT[2]}, 7\ns_cselect_b32 {sIdle}, {OOB}, 0")
    g(f"s_lshl_b32 {sW3}, {sL}, 7\ns_add_u32 {sW3}, {sW3}, {sIdle}")
    if o.rot:
        g(f"s_lshl_b32 {sRot3}, {sX}, 1")
        if o.rotp & 1:
            g(f"s_lshl_b32 {sRot3}, {sPP}, 2")
        if o.rotp & 4:
            g(f"s_mov_b32 {sRot3}, 0")
        if o.rotj & 2:
            g(f"s_lshl_b32 {sT[0]}, {sJ}, 1\ns_xor_b32 {sRot3}, {sRot3}, {sT[0]}")
    g(f"s_add_u32 {sRing}, {sLdsW}, {LB}")
    if o.fake & 1:
        g(f"s_mov_b32 {sW3}, {OOB}")
    d3, ra = V.alloc(4), V.alloc(2)
    g(f"v_lshrrev_b32 {t0}, 3, v0\nv_and_b32 {t2}, 1, {vKq}\nv_lshlrev_b32 {t2}, 2, {t2}")
    g(f"v_xor_b32 {t3}, {t2}, {vS8}\nv_lshlrev_b32 {t3}, 4, {t3}")
    g(f"v_mul_u32_u24 {d3[0]}, 3584, {t0}\nv_add_u32 {d3[0]}, {d3[0]}, {t3}")
    for i in range(1, 4):
        g(f"v_add_u32 {d3[i]}, {i*(8*3584-1024)}, {d3[0]}")
    g(f"v_lshrrev_b32 {t0}, 5, v0\nv_lshl_add_u32 {t0}, {t0}, 2, {vR4}\nv_lshl_add_u32 {t0}, {t0}, 7, {vC8}")
    g(f"v_and_b32 {t2}, 1, {vKq}\nv_lshl_add_u32 {t0}, {t2}, 5, {t0}\nv_lshrrev_b32 {t2}, 1, {vR4}\nv_lshl_add_u32 {t0}, {t2}, 6, {t0}")
    g(f"v_add_u32 {ra[0]}, {sRing}, {t0}\nv_xor_b32 {ra[1]}, 64, {ra[0]}")
    xf = V.alloc(64, at=48)
    tmp = V.alloc(8, at=112)
    st, gk1 = V.alloc(4, at=120), V.alloc(4, at=124)
    cs, ones = V.alloc(16, at=160), V.alloc(4, at=176)
    wf, acc = V.alloc(48, at=192), V.alloc(16, at=240)
    vCs = V.alloc(1)
    for i in range(4):
        g(f"v_mov_b32 {st[i]}, 0\nv_mov_b32 {ones[i]}, {sOnes}")
    g(f"s_lshl_b32 {sT[0]}, {sW}, 6\ns_add_u32 {sT[0]}, {sT[0]}, {C_CS}\nv_lshl_add_u32 {vCs}, {vKq}, 4, {sT[0]}")
    pump_off()
    Bg.flush(Bg.cap)
    stamp("setup")

    def x_reads(n):
        Bg.flush(Bg.find("dma", f"x{n}"))
        g.wait(vm=f"x{n}")
        for b in range(2):
            g.ds(f"ds_read_b128 {xf.r(8*n + 4*b, 4)}, {xa[b]} offset:{LA + n*2048}", f"x{n}")

    def stats(n):
        g.wait(lg=f"x{n}")
        for i in range(0 if o.abl & 16 else 8):
            g(f"v_dot2c_f32_bf16 {st[i & 1]}, {sOnes}, {xf[8*n+i]}")
            g(f"v_dot2c_f32_bf16 {st[2 + (i & 1)]}, {xf[8*n+i]}, {xf[8*n+i]}")

    def ready_store():
        g.wait(vm="clr")
        g(f"s_mov_b64 exec, 1\nv_mov_b32 {vOne}, 1")
        g.vm(f"buffer_store_dword {vOne}, off, {R['dbg']}, {sLead} sc1", "clr")
        g("s_mov_b64 exec, -1")

    if o.touch & 2 and o.touch2 not in ("par", "w2", "h"):
        at = Bg.find("dma", o.touch2)
        Bg.ops[at:at] = [("dma", "tch", lambda: touch(14, ("w3", "w4") if o.touch4 < 0 else ("w3",)))]
    Bg.cap = len(Bg.ops)
    pump_on()
    x_reads(0)
    for n in range(1, 8):
        x_reads(n)
        mark(4, f"p_x{n}")
        stats(n - 1)
    stats(7)
    xa.free(); xd.free()
    stamp("x_in")
    g(f"v_add_f32 {st[0]}, {st[0]}, {st[1]}\nv_add_f32 {st[2]}, {st[2]}, {st[3]}")
    for sw in ("32", "16"):
        g(f"v_mov_b32 {st[1]}, {st[0]}\nv_mov_b32 {st[3]}, {st[2]}")
        g(f"v_permlane{sw}_swap_b32 {st[0]}, {st[1]}\nv_permlane{sw}_swap_b32 {st[2]}, {st[3]}")
        g(f"v_add_f32 {st[0]}, {st[0]}, {st[1]}\nv_add_f32 {st[2]}, {st[2]}, {st[3]}")
    run(ln_stats(st[0], st[2], st[1], gk1))
    pump_off()
    mark(4, "p_ln")
    Bg.flush(len(Bg.ops))
    mark(4, "p_w1iss")
    Bg.thresh = o.thresh

    gw, vD, shk = V.alloc(8, at=136), V.alloc(1), V.alloc(2)
    for i in range(4):
        g(f"v_add_u32 {wd[i]}, {i*7168}, {vW2}")
    g(f"s_lshl_b32 {sT[0]}, {sW}, 2\ns_xor_b32 {sT[0]}, {sT[0]}, {sPP}\ns_lshl_b32 {sM}, {sT[0]}, 12")
    g(f"s_lshl_b32 {sT[1]}, {sJ}, 1\ns_xor_b32 {sT[0]}, {sT[0]}, {sT[1]}\ns_lshl_b32 {sOff}, {sT[0]}, 15\ns_add_u32 {sOff}, {sOff}, {sCol}")
    g(f"s_lshl_b32 {sT[3]}, {sCh}, 1\nv_lshlrev_b32 {t3}, 3, {vKq}\nv_mov_b32 {vD}, 0")

    def one_dma(key, m0, text, tag):
        def fn():
            if g.m0 != key:
                g(m0)
                g.m0 = key
            g.vm(text, tag)
        return ("dma", tag, fn)
    Bg.ops.append(one_dma("k0", f"s_mov_b32 m0, {sK0}", f"buffer_load_dwordx4 {vK0}, {R['k']}, 0 offen {o.nt_once} lds", "par"))
    for i in range(2):
        Bg.ops.append(one_dma("k", f"s_add_u32 m0, {sC2}, {C_K + 1024}", f"buffer_load_dwordx4 {vW2}, {R['k']}, {(sKV, sKV2)[i]} offen offset:{i*1024} {o.nt_once} lds", "par"))
    for i in range(2):
        Bg.ops.append(one_dma("v", f"s_add_u32 m0, {sC2}, {C_V}", f"buffer_load_dwordx4 {vV[i]}, {R['v']}, {(sKV, sKV2)[i]} offen offset:{i*1024} {o.nt_once} lds", "par"))
    Bg.ops.append(("dma", "par", lambda: g.vm(f"buffer_load_dwordx2 {shk}, {vSk}, {R['shift_k']}, {sSk} offen", "par")))
    for i in range(2):
        Bg.ops.append(one_dma("q", f"s_mov_b32 m0, {sQ}", f"buffer_load_dwordx4 {vQa[i]}, {R['q']}, {sKV} offen offset:{i*1024} lds", "par"))
    for T in range(4):
        Bg.ops.append(("dma", "par", lambda T=T: g.vm(f"buffer_load_dwordx2 {gw.r(2*T,2)}, {t3}, {R['gate_w']}, {sCol} offen offset:{32*T}", "par")))
    Bg.ops.append(("dma", "par", lambda: g.vm(f"buffer_load_short_d16_hi {vD}, off, {R['ssm_D']}, {sT[3]}", "par")))
    for n in range(4):
        for i in range(4):
            Bg.ops.append(("dma", "w2", lambda n=n, i=i: w_dma("w2", LA, n, i)))
    if o.touch & 2 and o.touch2 in ("par", "w2"):
        at = Bg.find("dma", o.touch2)
        Bg.ops[at:at] = [("dma", "w2" if o.touch2 == "w2" else "tch", lambda: touch(14, ("w3", "w4")))]
    w3r = A.alloc(256)
    sG4 = []
    d4 = Reg(V, d3.base, 4)

    def w4home(n, ft, e2=None):
        k, b = ("v", 160 + 8*n + 4*ft) if n < 12 else ("a", 8*(n-12) + 4*ft)
        return f"{k}[{b}:{b+3}]" if e2 is None else f"{k}[{b+2*e2}:{b+2*e2+1}]"

    rx, sRx = [], []
    prev = lambda n: n - 4 if n < 26 else None if n < 28 else n - 6
    slot = lambda n: (n & 3) if n < 26 else n - 26

    def d4_setup():
        g(f"v_and_b32 {d4[1]}, 127, {d3[0]}\nv_lshrrev_b32 {d4[0]}, 3, v0\nv_lshl_add_u32 {d4[0]}, {d4[0]}, 10, {d4[1]}")
        for i in range(1, 4):
            g(f"v_add_u32 {d4[i]}, {i*7168}, {d4[0]}")

    def st_setup(n):
        def fn():
            if n == 26:
                rx.append(V.alloc(2))
                sRx.append(S.alloc(1))
                g(f"s_lshl_b32 {sRx[0]}, {sW}, 13\ns_sub_u32 {sSt}, {sRx[0]}, {sRing}\nv_add_u32 {rx[0][0]}, {sSt}, {ra[0]}\nv_add_u32 {rx[0][1]}, {sSt}, {ra[1]}")
            if not o.rot:
                if n == 16:
                    d4_setup()
                g(f"s_add_u32 {sSt}, {sW3 if n < 16 else sW4}, {n*32*3584 if n < 16 else (n-16)*32768}")
            elif n < 16:
                g(f"s_xor_b32 {sSt}, {sRot3}, {n}\ns_mul_i32 {sSt}, {sSt}, {32*3584}\ns_add_u32 {sSt}, {sSt}, {sW3}")
            else:
                if n == 16:
                    d4_setup()
                g(f"s_lshl_b32 {sSt}, {sG4[n-16]}, 4\ns_add_u32 {sSt}, {sSt}, {sW4}")
        return ("set", n, fn)

    def st_dma(n, i):
        def fn():
            if i == 0 and n >= 4 and prev(n) is not None:
                g.wait(lg=f"sr{prev(n)}")
            if g.m0 != ("st", n):
                g(f"s_add_u32 m0, {sRx[0] if n in (26, 27) else sRing}, {slot(n)*4096}")
                g.m0 = ("st", n)
            g.vm(f"buffer_load_dwordx4 {d3[i]}, {R['w3' if n < 16 else 'w4']}, {sSt} offen offset:{i*1024} lds", f"sd{n}")
        return ("dma", n, fn)

    def st_rd(n, u, ft, e2):
        def fn():
            g.wait(vm=f"sd{n}")
            if n < 16:
                dst, off = w3r.r(16*n + 8*u + 4*ft + 2*e2, 2), e2 * 2048 + u * 1024
            else:
                dst, off = w4home(2*(n-16) + u, ft, e2), u * 2048 + e2 * 1024
            if not o.abl & 32:
                g.ds(f"ds_read_b64_tr_b16 {dst}, {(rx[0] if n in (26, 27) else ra)[ft]} offset:{slot(n)*4096 + off}", f"sr{n}")
        return ("rd0" if (u, ft, e2) == (0, 0, 0) else "rd", n, fn)
    allrd = lambda n: [st_rd(n, u, ft, e2) for u in range(2) for ft in range(2) for e2 in range(2)]
    alldma = lambda n: [st_setup(n)] + [st_dma(n, i) for i in range(4)]
    for n in range(25):
        rds = allrd(n - 3) if n >= 3 else []
        Bg.ops.append(st_setup(n))
        for i in range(4):
            Bg.ops.append(st_dma(n, i))
            Bg.ops += rds[4*i:4*i+4]
    for k, (buf, part) in enumerate((("w3", 0), ("w3", 1), ("w4", 0), ("w4", 1))):
        pos = o.tx34.split(":")[k] if o.tx34 else ""
        if pos:
            at = Bg.find("dma", int(pos) if pos.isdigit() else pos)
            Bg.ops[at:at] = [("dma", f"tx3{k}", lambda buf=buf, part=part: touchx(buf, 56, part, sSt))]
    if o.touch4 >= 0:
        at = Bg.find("dma", o.touch4)
        Bg.ops[at:at] = [("dma", "tch4", lambda: touch(14, ("w4",), sSt))]
    if o.t3 & 2:
        at = Bg.find("dma", o.t3_at)
        Bg.ops[at:at] = [("dma", "tch3", lambda: touch3(14, ("w4",), sSt))]
    Bg.ops += alldma(25) + alldma(26) + alldma(27)
    Bg.ops += allrd(22) + allrd(23)[:4] + alldma(28) + allrd(23)[4:] + allrd(24)[:4] + alldma(29) + allrd(24)[4:]
    for n in range(25, 30):
        Bg.ops += allrd(n)

    def wfrag(ks, T, first):
        if not first and o.pre2 and ks >= 8:
            return f"a[{128 + 16*(ks-8) + 4*T}:{128 + 16*(ks-8) + 4*T + 3}]"
        return wf.r(16*(ks % 3) + 4*T, 4)

    def wreads(ks, first):
        if not first and o.pre2 and ks >= 8:
            return
        for T in range(4):
            for e2 in range(2):
                if o.abl & 1024 and first and T >= 2:
                    continue
                ad, off = (wa[T], ks*4096 + e2*512) if first else (wa[2*T + e2], ks*4096)
                g.ds(f"ds_read_b64_tr_b16 {wf.r(16*(ks % 3) + 4*T + 2*e2, 2)}, {ad} offset:{off}", f"w{ks}")
            yield

    def gemm16(tok, first, vmtag=None, hook=None, pre=None):
        order = list(range(16))
        if not first and o.pre2:
            order = [k for i in range(8) for k in (i, i + 8)]
        slow = [k for k in order if first or not o.pre2 or k < 8]
        for pos, ks in enumerate(order):
            if pre:
                pre(ks)
            if first or not o.pre2:
                nxt = wreads(ks + 2, first) if ks < 14 else iter(())
            elif ks < 8:
                both = wreads(ks + 2, first) if ks < 6 else iter(())
                nxt = (next(both, None) if i % 2 else None for i in range(4))
            else:
                nxt = (next(both, None) if i % 2 else None for i in range(4))
            g.wait(vm=vmtag and f"{vmtag}{ks}", lg=f"w{ks}")
            for T in range(4):
                g(f"v_mfma_f32_16x16x32_bf16 {acc.r(4*T,4)}, {wfrag(ks, T, first)}, {tok.r(4*ks,4)}, {acc.r(4*T,4) if pos else 0}")
                next(nxt, None)
            if first:
                g(f"v_mfma_f32_16x16x32_bf16 {cs.r(0,4)}, {wf.r(16*(ks % 3), 4)}, {ones}, {cs.r(0,4) if ks else 0}")
            if hook:
                hook(pos)

    Bg.cap = Bg.find("dma", "w2")
    g.wait(vm="w1a")
    g("s_barrier")
    stamp("w1_in")
    run(wreads(0, True))
    run(wreads(1, True))
    ready_store()
    sLead.free()
    pd = Poll(R["dbg"], vP32, 0, 1)

    def pre1(ks):
        if ks in (0, 3, 6, 10, 13):
            mark(4, f"p_k{ks}")
        if ks == 6:
            g.wait(vm="w1b")
            g("s_barrier")
            mark(4, "p_w1b")

    def hook1(ks):
        if ks == o.dpoll_at:
            pd.issue()
        Bg.step()
    gemm16(xf, True, hook=hook1, pre=pre1)
    mark(4, "p_loop")
    ones.free(); R["w1"].free()
    g.ds(f"ds_write_b128 {vCs}, {cs.r(0,4)}", "csw")
    Bg.flush(Bg.find("dma", "par"))
    for r in (R["q"], R["k"], R["v"], R["shift_k"], R["ssm_D"], R["gate_w"], vQa, sKV, sKV2, sC2, vW2, vV, vK0, vSk, sK0, sSk):
        r.free()
    for i in range(4):
        g(f"v_fmac_f32 {acc[i]}, {st[1]}, {cs[i]}")
    g.wait(lg="csw")
    g("s_barrier")
    stamp("g1_mfma")
    for i in range(1, 4):
        g(f"v_xor_b32 {t0}, {64*i}, {vCs}")
        g.ds(f"ds_read_b128 {cs.r(4*i,4)}, {t0}", f"cs{i}")
    vCs.free()
    hp = V.alloc(8, at=128)
    Bg.cap = Bg.find("dma", "w2")
    pump_on()
    for i in range(1, 4):
        g.wait(lg=f"cs{i}")
        for e in range(4):
            g(f"v_fmac_f32 {acc[4*i+e]}, {st[1]}, {cs[4*i+e]}")
    st.free(); cs.free()

    def h_store(gg):
        if gg == 0 and o.dpoll_at == 16:
            pd.issue()
        g.vm(f"buffer_store_dwordx4 {hp.r(4*gg,4)}, {vL16}, {R['ws']}, {sHs[gg]} offen sc1", "hst")
    gelu_pk(acc, 16, gk1, hp, tmp, h_store)
    if o.touch & 2 and o.touch2 == "h":
        with g.hold():
            touch(14, ("w3", "w4"))
    gk1.free(); sHs.free(); acc.free()
    stamp("h_st")

    qp = V.alloc(8, at=120)
    g(f"v_lshrrev_b32 {t0}, 1, {vC}\nv_lshrrev_b32 {t2}, 1, {vKq}\nv_xor_b32 {t0}, {t0}, {t2}\nv_lshlrev_b32 {t0}, 4, {t0}")
    g(f"v_lshl_add_u32 {t0}, {vC}, 7, {t0}\nv_and_b32 {t2}, 1, {vKq}\nv_lshl_add_u32 {t0}, {t2}, 3, {t0}\nv_add_u32 {t0}, {sQ}, {t0}")
    Bg.cap = Bg.find("dma", o.bg_a)
    mark(2, "a_pre")
    g.wait(vm="par")
    mark(2, "a_par")
    g("s_barrier")
    mark(2, "a_bar")
    for T in range(4):
        g(f"v_xor_b32 {t2}, {32*T}, {t0}")
        g.ds(f"ds_read_b64 {qp.r(2*T,2)}, {t2}", "q")
    sQ.free()
    up = V.alloc(8, at=160)
    kk = xf

    def kv_reads(m0):
        g.ds(f"ds_read_b64_tr_b16 {kk.r(32 + m0//2, 2)}, {ka[2]} offset:{m0*512}", f"k{m0}")
        for m in range(m0, m0 + 4):
            g.ds(f"ds_read_b64_tr_b16 {kk.r(2*m, 2)}, {ka[m & 1]} offset:{(m >> 1)*1024}", f"k{m0}")
    def hflag():
        pd.check()
        R["dbg"].free()
        if o.local:
            g.vm(f"buffer_load_dword {vDum}, off, {R['ws']}, {sLp} sc1", "pf")
        g.wait(vm="hst")
        flag_set(F_H)
        if o.l2pf & 1:
            with g.hold():
                g(f"v_lshlrev_b32 {vOne}, 7, {vC}")
                g.vm(f"buffer_load_dword {vDum}, {vOne}, {R['ws']}, {sHo} offen sc1", "pf")
        hp.free()
    mark(2, "a_pd")
    kv_reads(0)
    kv_reads(4)
    for m0 in range(0, 16, 4):
        g.wait(lg=f"k{m0}")
        if m0 + 8 < 16:
            kv_reads(m0 + 8)
        for m in range(m0, m0 + (0 if o.abl & 2048 else 4)):
            g(f"v_dot2_f32_bf16 {kk[40+m]}, {kk[2*m]}, {shk[0]}, 0")
        for m in range(m0, m0 + (0 if o.abl & 2048 else 4)):
            g(f"v_dot2_f32_bf16 {kk[40+m]}, {kk[2*m+1]}, {shk[1]}, {kk[40+m]}")
        for i in range(2):
            g(f"v_lshlrev_b32 {tmp[2*i]}, 16, {kk[32 + m0//2 + i]}\nv_and_b32 {tmp[2*i+1]}, {sMask}, {kk[32 + m0//2 + i]}")
        for i in range(2):
            g(f"v_pk_mul_f32 {tmp.r(2*i,2)}, {tmp.r(2*i,2)}, {kk.r(40 + m0 + 2*i, 2)}")
        for i in range(2):
            g(f"v_cvt_pk_bf16_f32 {up[m0//2 + i]}, {tmp[2*i]}, {tmp[2*i+1]}")
        mark(2, f"a_kv{m0}")
        if m0 == o.hflag_m:
            hflag()
            mark(2, "a_hflag")
        if m0 == 4:
            g.ds(f"ds_write_b128 {ua[0]}, {up.r(0,4)}", "uw")
            g(f"v_xor_b32 {ua[0]}, 16, {ua[0]}")
    g.ds(f"ds_write_b128 {ua[0]}, {up.r(4,4)}", "uw")
    shk.free(); ka.free()

    sTr = S.alloc(1)
    g(f"s_lshl_b32 {sT[0]}, {sJ}, 18\ns_lshl_b32 {sT[1]}, {sW}, 16\ns_add_u32 {sTr}, {sT[0]}, {sT[1]}\ns_lshl_b32 {sT[0]}, {sP}, 7\ns_add_u32 {sTr}, {sTr}, {sT[0]}")
    g(f"s_add_u32 {sT[0]}, {sTr}, {UBUF}\ns_add_u32 {sT[1]}, {sTr}, {UBUF + 32768}")
    g.wait(lg="uw")
    g.ds(f"ds_read_b128 {up.r(0,4)}, {ua[1]}", "ur")
    g.ds(f"ds_read_b128 {up.r(4,4)}, {ua[1]} offset:1024", "ur")
    ua.free()
    if o.hflag_m >= 16:
        hflag()
    stamp("h_out")
    g.wait(lg="ur")
    for i in range(2):
        g.vm(f"buffer_store_dwordx4 {up.r(4*i,4)}, {vT4k}, {R['ws']}, {sT[i]} offen sc1", "ust")
    g(f"v_lshl_add_u32 {t0}, {vKq}, 2, {vR4}\nv_bfe_u32 {t2}, {t0}, 1, 2\nv_lshl_add_u32 {t0}, {t0}, 7, {vC8}")
    g(f"s_and_b32 {sT[0]}, {sW}, 1\ns_lshl_b32 {sT[0]}, {sT[0]}, 11\nv_lshl_add_u32 {t0}, {t2}, 5, {t0}\nv_add_u32 {wa[0]}, {sT[0]}, {t0}")
    for i in range(1, 8):
        g(f"v_xor_b32 {wa[i]}, {32*(i >> 1) + 2048*(i & 1)}, {wa[0]}")
    vP8 = V.alloc(1)
    g(f"s_lshl_b32 {sT[0]}, {sW}, 2\nv_lshl_add_u32 {vP8}, {vS8}, 4, {sT[0]}")
    ph = Poll(R["ws"], vP8, None, F_H, local=True)
    cA = xf
    pump_off()
    mark(2, "a_set")
    Bg.flush(Bg.find("dma", "w2"))
    mark(2, "a_w2iss")
    for r in (R["w2"], sM, sOff, sWo, wd):
        r.free()

    keys = ("vmq", "lgq", "vmt", "lgt", "clock", "mfree", "m0", "q", "lq", "last_done", "ta")

    def two_paths(body, before=None):
        lodd, ljoin = g.label("odd"), g.label("join")
        g(f"s_bitcmp1_b32 {sW}, 0\ns_cbranch_scc1 {lodd}")
        saved = (copy.deepcopy({k: getattr(g, k) for k in keys}), Bg.idx)
        ends = []
        for par in range(2):
            if par:
                g(f"{lodd}:")
                for k, v in copy.deepcopy(saved[0]).items():
                    setattr(g, k, v)
                Bg.idx = saved[1]
            extra = body(par)
            ends.append((Bg.idx, list(g.vmq), list(g.lgq), extra, g.clock))
            if not par:
                g(f"s_branch {ljoin}")
        g(f"{ljoin}:")
        assert ends[0][0] == ends[1][0]
        g.vmq = merge_queues(ends[0][1], ends[1][1])
        g.lgq = merge_queues(ends[0][2], ends[1][2])
        g.clock = max(ends[0][4], ends[1][4])
        g.m0 = None

    def conv_all(par, events, spare=None):
        tiles = TILES[par]
        top = max(tiles)
        seq = [(d, mp) for d in (0, 1, 2, 3) for mp in range(-1, 2 * top + 1)]

        def bread(i):
            d, mp = seq[i]
            for e2 in range(2):
                if not o.abl & 2:
                    g.ds(f"ds_read_b64 {cBr(i, 2*e2, 2)}, {aB[4*e2 + ((d + mp - 1) & 3)]} offset:{256*(mp+1)}", f"B{i}")
                yield
        for i in range(o.bdist):
            run(bread(i))
        started = set()
        cnt = 0
        ndma = sum(1 for x in Bg.ops[Bg.idx:Bg.cap] if x[0] == "dma")
        per = max(1, 138 // max(ndma, 1))
        done = [-per]
        for i, (d, mp) in enumerate(seq):
            rd = bread(i + o.bdist) if i + o.bdist < len(seq) else iter(())
            if i % 2 == 0:
                g.wait(lg=f"B{min(i + 1, len(seq) - 1)}")
            for ti, jb in enumerate(tiles):
                m = 2 * jb - mp
                if m < 0:
                    continue
                c = (pp, qq)[d & 1].r(6*ti + (d & 2), 4)
                first = d < 2 and (d, ti) not in started
                started.add((d, ti))
                if not o.abl & 1:
                    g(f"v_mfma_f32_16x16x32_bf16 {c}, {cA.r(4*m,4)}, {cBr(i, 0, 4)}, {0 if first else c}")
                cnt += 1
                next(rd, None)
                if cnt in events:
                    mark(5, f"c{cnt}a")
                    events[cnt]()
                    mark(5, f"c{cnt}b")
                if spare and cnt > 144 - 2 * len(spare) - 8 and cnt % 2:
                    spare.pop(0)()
                for _ in range(2):
                    if Bg.idx < Bg.cap and (Bg.ops[Bg.idx][0] != "dma" or cnt - done[0] >= per):
                        if Bg.ops[Bg.idx][0] == "dma":
                            done[0] = cnt
                        Bg.step(True)
                        if g.slack() < 4:
                            break
            run(rd)
        Bg.flush(Bg.cap)

    sCH, sCU, sUl, sFu = (S.alloc(1) for _ in range(4))
    g(f"s_lshr_b32 {sT[2]}, {sW}, 1\ns_and_b32 {sT[3]}, {sW}, 1")
    g(f"s_mul_i32 {sCH}, {sT[2]}, {HP}\ns_add_u32 {sCH}, {sCH}, {C_H}\ns_mul_i32 {sCU}, {sT[2]}, {4*UP}\ns_add_u32 {sCU}, {sCU}, {C_U}")
    g(f"s_lshl_b32 {sT[1]}, {sCh}, 12")
    Bg.flush(Bg.find("dma", o.bg_a))
    mark(2, "a_bga")
    if o.hpoll == 0:
        ph.issue()
    Bg.cap = Bg.find("dma", o.cap_p2)
    Bg.flush(Bg.find("dma", o.bg_b))
    mark(2, "a_bgb")
    g.wait(vm="w2")
    g("s_barrier")
    stamp("u_out")
    if o.hpoll == 1:
        ph.issue()
    g(f"s_add_u32 m0, {sCH}, 32\ns_nop 0")
    fl = (g.vm(f"buffer_load_dwordx4 {vL16}, {R['ssm_k']}, {sT[1]} offen offset:{i*1024} {o.nt_once} lds", "fin") for i in range(4))
    if o.hpoll < 2:
        next(fl)
        g.pump = lambda: next(fl, None) if g.ta - g.clock < 0 else None
    if o.pre2:
        assert o.cap_p2 <= 10
        for ks in range(8, 16):
            for T in range(4):
                for e2 in range(2):
                    b = 128 + 16*(ks-8) + 4*T + 2*e2
                    g.ds(f"ds_read_b64_tr_b16 a[{b}:{b+1}], {wa[2*T + e2]} offset:{ks*4096}", "wpre")
            if o.hpoll >= 2 and ks == 6 + o.hpoll:
                ph.issue()
                g.pump = lambda: next(fl, None) if g.ta - g.clock < 0 else None
    run(wreads(0, False))
    run(wreads(1, False))

    g.pump = None
    run(fl)
    R["ssm_k"].free()
    ph.check(then=lambda: flag_set(F_U))
    up.free(); vP8.free()
    stamp("h_flag")
    sHl2 = S.alloc(2)
    acc = V.alloc(16, at=240)

    def h1_load(pos):
        ks = (pos >> 1) + 8 * (pos & 1) if o.pre2 else pos
        so = sHl2[ks >> 3]
        if ks & 1 == 0:
            g(f"s_xor_b32 {so}, {sHo}, {ks << 10}")
        g.vm(f"buffer_load_dwordx4 {xf.r(4*ks,4)}, {vL16}, {R['ws']}, {so} offen offset:{(ks & 1)*1024} sc1", f"h{ks}")
    hl = (h1_load(ks) for ks in range(9))
    next(hl)
    g.pump = lambda: next(hl, None) if g.ta - g.clock < 30 else None
    gs = V.alloc(4)
    g(f"v_mov_b32 {gs[1]}, 0\nv_mov_b32 {gs[3]}, 0")
    g.wait(lg="q")
    for i in range(8):
        g(f"v_dot2c_f32_bf16 {gs[1]}, {qp[i]}, {gw[i]}")
    gw.free()
    g(f"s_lshl_b32 {sUl}, {sCh}, 12\ns_add_u32 {sUl}, {sUl}, {UBUF}")
    g(f"s_lshr_b32 {sT[0]}, {sP}, 3\ns_lshl_b32 {sT[0]}, {sT[0]}, 7\ns_lshl_b32 {sFu}, {sJ}, 9\ns_add_u32 {sFu}, {sFu}, {sT[0]}")
    aA = V.alloc(1)
    g(f"v_lshlrev_b32 {t0}, 6, {vKq}\nv_add_u32 {t0}, {t0}, {vC8}\nv_lshlrev_b32 {t2}, 3, {vR4}\nv_sub_u32 {t0}, {t0}, {t2}")
    g(f"s_add_u32 {sT[0]}, {sCH}, 32\nv_add_u32 {aA}, {sT[0]}, {t0}")
    sW4 = S.alloc(1)
    g(f"s_mul_i32 {sW4}, {sW}, {448*1024}\ns_add_u32 {sW4}, {sW4}, {sCol}")
    if o.fake & 2:
        g(f"s_mov_b32 {sW4}, {OOB}")
    if o.rot:
        sG4 += [S.alloc(1) for _ in range(14)]
        if o.rotp & 2:
            g(f"s_mul_i32 {sT[0]}, {sPP}, 7\ns_lshr_b32 {sT[0]}, {sT[0]}, 1\ns_lshl_b32 {sG4[0]}, {sT[0]}, 11")
        elif o.rotp & 8:
            g(f"s_mov_b32 {sG4[0]}, 0")
        elif o.rotj & 1:
            g(f"s_add_u32 {sT[0]}, {sX}, {sJ}\ns_and_b32 {sT[0]}, {sT[0]}, 7\ns_mul_i32 {sT[0]}, {sT[0]}, 7\ns_lshr_b32 {sT[0]}, {sT[0]}, 2\ns_lshl_b32 {sG4[0]}, {sT[0]}, 11")
        else:
            g(f"s_mul_i32 {sT[0]}, {sX}, 7\ns_lshr_b32 {sT[0]}, {sT[0]}, 2\ns_lshl_b32 {sG4[0]}, {sT[0]}, 11")
        for n in range(1, 14):
            g(f"s_add_u32 {sG4[n]}, {sG4[n-1]}, 2048\ns_cmp_eq_u32 {sG4[n]}, {14*2048}\ns_cselect_b32 {sG4[n]}, 0, {sG4[n]}")
    g(f"v_mov_b32 {tmp[0]}, 0\nv_mov_b32 {tmp[1]}, 0")
    g(f"v_lshl_add_u32 {t0}, v0, 3, {sCU}\nv_add_u32 {t2}, {sCH}, {vC8}")
    g.ds(f"ds_write_b64 {t0}, {tmp.r(0,2)}")
    g.ds(f"ds_write_b64 {t2}, {tmp.r(0,2)}")
    sX1s, sX1l, sSto, sSto2, sStw, sY, sXo, sH2, sHst, sFy = (S.alloc(1) for _ in range(10))
    aN, aY, vSt, vSw, vXs, vN0 = (V.alloc(1) for _ in range(6))
    g(f"s_lshr_b32 {sT[0]}, {sW}, 1\ns_mul_i32 {sT[1]}, {sT[0]}, {NP}\ns_add_u32 {sT[1]}, {sT[1]}, {A_N}\nv_mov_b32 {vN0}, {sT[1]}")
    g.ds(f"ds_write2st64_b32 {vN0}, {tmp[0]}, {tmp[0]} offset0:0 offset1:9")
    g.ds(f"ds_write_b32 {vN0}, {tmp[0]} offset:{18*256}")
    g(f"v_lshl_add_u32 {t0}, {vC}, 2, {vKq}\nv_lshl_add_u32 {aN}, {t0}, 2, {sT[1]}")
    g(f"v_lshrrev_b32 {t0}, 2, {vC}\nv_lshlrev_b32 {t0}, 7, {t0}")
    g(f"v_lshl_add_u32 {t0}, {vKq}, 5, {t0}\nv_add_u32 {aY}, {t0}, {vC8}")
    g(f"s_lshl_b32 {sT[3]}, {sP}, 16\ns_add_u32 {sT[3]}, {sT[3]}, {X1BUF}")
    g(f"s_lshl_b32 {sT[0]}, {sT[0]}, 15\ns_and_b32 {sT[1]}, {sW}, 1\ns_lshl_b32 {sT[2]}, {sT[1]}, 8\ns_add_u32 {sT[0]}, {sT[0]}, {sT[2]}")
    g(f"s_lshl_b32 {sT[2]}, {sJ}, 12\ns_add_u32 {sT[0]}, {sT[0]}, {sT[2]}\ns_add_u32 {sX1s}, {sT[0]}, {sT[3]}")
    if o.rot:
        g(f"s_lshl_b32 {sX1l}, {sW}, 2\ns_xor_b32 {sX1l}, {sX1l}, {sRot3}\ns_lshl_b32 {sX1l}, {sX1l}, 11\ns_add_u32 {sX1l}, {sX1l}, {sT[3]}")
    else:
        g(f"s_lshl_b32 {sX1l}, {sW}, 13\ns_add_u32 {sX1l}, {sX1l}, {sT[3]}")
    g(f"s_lshl_b32 {sSto}, {sP}, 13\ns_add_u32 {sSto}, {sSto}, {STATS}\ns_add_u32 {sSto2}, {sSto}, 4096")
    g(f"s_lshl_b32 {sT[0]}, {sJ}, 10\ns_lshl_b32 {sT[2]}, {sW}, 8\ns_add_u32 {sT[0]}, {sT[0]}, {sT[2]}\ns_add_u32 {sStw}, {sT[0]}, {sSto}")
    g(f"s_lshl_b32 {sY}, {sCh}, 12\ns_add_u32 {sY}, {sY}, {YBUF}")
    g(f"v_lshlrev_b32 {t0}, 9, {vKq}\nv_lshl_add_u32 {vXs}, {vC}, 4, {t0}")
    g(f"v_lshrrev_b32 {t2}, 5, v0\nv_and_b32 {t3}, 1, {vKq}")
    g(f"v_lshlrev_b32 {t0}, 10, {t2}\nv_lshl_add_u32 {t0}, {t3}, 8, {t0}\nv_lshl_add_u32 {vSt}, {vC}, 3, {t0}")
    g(f"v_lshlrev_b32 {t0}, 2, {t2}\nv_lshl_add_u32 {t0}, {vC}, 3, {t0}")
    g(f"v_lshlrev_b32 {t2}, 6, {t2}\nv_lshl_add_u32 {t2}, {vC}, 2, {t2}\nv_add_u32 {t2}, 128, {t2}")
    g(f"v_cmp_eq_u32 vcc, 0, {t3}\ns_nop 1\nv_cndmask_b32 {vSw}, {t2}, {t0}, vcc")
    g(f"s_mul_i32 {sH2}, {sP}, 229376\ns_add_u32 {sH2}, {sH2}, {H2BUF}")
    g(f"s_lshl_b32 {sHst}, {sL}, 12\ns_add_u32 {sHst}, {sHst}, {sH2}\ns_add_u32 {sHst}, {sHst}, {sIdle}")
    g(f"s_lshr_b32 {sT[0]}, {sP}, 2\ns_lshr_b32 {sT[1]}, 0x3b, {sT[0]}\ns_and_b32 {sT[1]}, {sT[1]}, 1\ns_lshl_b32 {sT[1]}, {sT[1]}, 7")
    g(f"s_lshl_b32 {sT[0]}, {sW}, 15\ns_add_u32 {sT[1]}, {sT[1]}, {sT[0]}\ns_lshl_b32 {sT[0]}, {sJ}, 9\ns_add_u32 {sFy}, {sT[1]}, {sT[0]}")
    g(f"v_mov_b32 {gs[0]}, 0\nv_mov_b32 {gs[2]}, 0")
    vPu = V.alloc(1)
    pu = Poll(R["ws"], vPu, sFu, F_U)
    g(f"v_lshlrev_b32 {vPu}, 10, {vP32}")
    for r in (sL, sIdle, sCh, sCH):
        r.free()
    mark(2, "b_set")
    g.pump = None
    run(hl)
    mark(2, "b_iss")

    def u_load(i):
        if i == 0:
            pu.check()
        if g.m0 != "u":
            g(f"s_add_u32 m0, {sCU}, 512\ns_nop 0")
            g.m0 = "u"
        g.vm(f"buffer_load_dwordx4 {vL16}, {R['ws']}, {sUl} offen offset:{1024*i} sc1 lds", "cin")

    def hook2(ks):
        if ks in (0, 4, 8, 12):
            mark(2, f"b_k{ks}")
        if ks == o.upoll_at:
            pu.issue()
        if ks + 9 < 16:
            h1_load(ks + 9)
        elif ks >= o.ucheck_at:
            u_load(ks - o.ucheck_at)
        else:
            Bg.step()
            Bg.step()
    gemm16(xf, False, vmtag="h", hook=hook2)
    sHl2.free(); sHo.free()
    stamp("g2_mfma")
    wa.free(); wf.free()
    g.wait(vm="fin")
    areads = [f"ds_read_b64_tr_b16 {xf.r(4*m + 2*e2, 2)}, {aA} offset:{256*m + 32 - 32*e2}" for m in range(15, -1, -1) for e2 in range(2)]
    g.pump = lambda: g.ds(areads.pop(0), "A") if areads else None
    x1p = V.alloc(8, at=128)
    for T in range(0, 4, 2):
        for i in range(4):
            g(f"v_dot2_f32_bf16 {tmp[2*i]}, {qp[2*T+i]}, {sLo1}, {acc[4*T+2*i]}")
            g(f"v_dot2_f32_bf16 {tmp[2*i+1]}, {qp[2*T+i]}, {sHi1}, {acc[4*T+2*i+1]}")
        for i in range(4):
            g(f"v_cvt_pk_bf16_f32 {x1p[2*T+i]}, {tmp[2*i]}, {tmp[2*i+1]}")
        g.vm(f"buffer_store_dwordx4 {x1p.r(2*T,4)}, {vXs}, {R['ws']}, {sX1s} offen offset:{T*1024} sc1", "xst")
    acc.free(); vXs.free()
    with g.hold():
        for i in range(max(0, 16 - o.ucheck_at), 4):
            u_load(i)
        sUl.free(); sFu.free(); vPu.free()

    for i in range(8):
        g(f"v_dot2c_f32_bf16 {gs[0]}, {sOnes}, {x1p[i]}")
        g(f"v_dot2c_f32_bf16 {gs[2]}, {x1p[i]}, {x1p[i]}")
    g(f"v_permlane32_swap_b32 {gs[0]}, {gs[2]}\nv_permlane32_swap_b32 {gs[1]}, {gs[3]}")
    g(f"v_add_f32 {gs[0]}, {gs[0]}, {gs[2]}\nv_add_f32 {gs[1]}, {gs[1]}, {gs[3]}")
    g(f"v_permlane16_swap_b32 {gs[0]}, {gs[1]}\nv_add_f32 {gs[0]}, {gs[0]}, {gs[1]}")
    g.vm(f"buffer_store_dword {gs[0]}, {vSw}, {R['ws']}, {sStw} offen sc1", "xst")
    sStw.free(); vSw.free()
    stamp("x1_st")

    pp = V.alloc(30, at=160)
    qq = V.alloc(30, at=190)
    uu = V.alloc(20, at=220)
    cB, cB2 = V.alloc(16, at=240), V.alloc(16, at=136)
    cBr = lambda i, k, n: (cB, cB2)[(i >> 2) & 1].r(4*(i & 3) + k, n)
    for ti in range(5):
        g(f"v_mov_b32 {qq[6*ti + 4]}, 0\nv_mov_b32 {qq[6*ti + 5]}, 0\nv_mov_b32 {pp[6*ti + 4]}, 0\nv_mov_b32 {pp[6*ti + 5]}, 0")
    aB = tmp
    aU = V.alloc(4)
    for e2 in range(2):
        g(f"v_lshlrev_b32 {t0}, 1, {vKq}\nv_sub_u32 {t0}, {vC}, {t0}\nv_add_u32 {t0}, {7 + e2}, {t0}")
        g(f"v_lshrrev_b32 {t2}, 2, {t0}\nv_lshl_add_u32 {t2}, {t2}, 7, {sCU}\nv_and_b32 {t3}, 3, {t0}\nv_lshl_add_u32 {t2}, {t3}, 3, {t2}\nv_lshrrev_b32 {t0}, 3, {t0}")
        for t in range(4):
            g(f"v_add_u32 {t3}, {t}, {t0}\nv_and_b32 {t3}, 3, {t3}\nv_lshl_add_u32 {aB[4*e2 + t]}, {t3}, 5, {t2}")
    g(f"v_lshrrev_b32 {t2}, 2, {vC}\nv_lshl_add_u32 {t2}, {t2}, 7, {sCU}\nv_add_u32 {t2}, {t2}, {vC8}\nv_lshl_add_u32 {t2}, {vKq}, 1, {t2}")
    g(f"v_add_u32 {t2}, 512, {t2}\nv_lshrrev_b32 {t0}, 3, {vC}")
    for t in range(4):
        g(f"v_add_u32 {t3}, {t}, {t0}\nv_and_b32 {t3}, 3, {t3}\nv_lshl_add_u32 {aU[t]}, {t3}, 5, {t2}")
    sCU.free()
    pump_off()
    while areads:
        g.ds(areads.pop(0), "A")
    px = Poll(R["ws"], vP32, None, F_X1, local=True)
    sv = [Reg(V, 152, 8), Reg(V, 248, 8)]
    gate = V.alloc(2)
    nb = [Reg(V, xf.base + 32, 32), Reg(V, xf.base, 32)]

    def st_loads(th):
        for i in range(4):
            g.vm(f"buffer_load_dwordx2 {sv[th].r(2*i, 2)}, {vSt}, {R['ws']}, {(sSto, sSto2)[i >> 1]} offen offset:{(i & 1)*2048 + th*512} sc1", f"s{th}")
            yield

    def x1_loads(th):
        for i in range(7, -1, -1):
            if i & 1:
                g(f"s_xor_b32 {sXo}, {sX1l}, {(i >> 1) << 11 | th << 15}")
            g.vm(f"buffer_load_dwordx4 {nb[th].r(4*i, 4)}, {vL16}, {R['ws']}, {sXo} offen offset:{(i & 1)*1024} sc1", f"n{th}_{i}")
            yield

    def fold(r, t):
        for sw in ("32", "16"):
            g(f"v_mov_b32 {t}, {r}\ns_nop 1\nv_permlane{sw}_swap_b32 {r}, {t}")
            yield
            g(f"v_add_f32 {r}, {r}, {t}")
            yield

    def gate_calc():
        g.wait(vm="gl")
        g(f"v_add_f32 {gate[0]}, {gate[0]}, {gate[1]}")
        yield
        yield from fold(gate[0], gate[1])
        yield from round_bf16(gate[0])
        for t in (f"v_mul_f32 {gate[0]}, {fbits(-LOG2E)}, {gate[0]}", f"v_exp_f32 {gate[0]}, {gate[0]}\ns_nop 0", f"v_add_f32 {gate[0]}, 1.0, {gate[0]}",
                  f"v_rcp_f32 {gate[0]}, {gate[0]}\ns_nop 0"):
            g(t)
            yield
        yield from round_bf16(gate[0])
        g(f"v_sub_f32 {gate[1]}, 1.0, {gate[0]}")
        yield
        yield from round_bf16(gate[1])

    def xflag():
        g.wait(vm="xst")
        flag_set(F_X1)
        if o.l2pf & 2:
            g(f"v_lshrrev_b32 {vOne}, 1, {vC}\nv_lshlrev_b32 {vOne}, 9, {vOne}\nv_and_b32 {t2}, 1, v0\nv_lshl_add_u32 {vOne}, {t2}, 7, {vOne}")
            g.vm(f"buffer_load_dword {vDum}, {vOne}, {R['ws']}, {sX1s} offen sc1", "pf")

    Bg.flush(Bg.find("dma", o.bg_u))
    Bg.cap = Bg.find("dma", o.cap2)

    def half2(par):
        tiles = TILES[par]
        ur = [lambda ti=ti, jb=jb, m=m: g.ds(f"ds_read_u16_d16_hi {uu[4*ti + m]}, {aU[(m + 2*jb) & 3]} offset:{512*jb}", f"U{ti}")
              for ti, jb in enumerate(tiles) for m in range(4)]
        g.wait(vm="cin")
        stamp("u_in"); idle("u_in")
        l0 = chain(st_loads(0), x1_loads(0))
        ev = {o.xflag_at: xflag, o.xpoll_at: px.issue, o.xcheck_at: lambda: px.check(free=par)}
        for i in range(4):
            ev[o.xcheck_at + 1 + 2*i] = lambda: next(l0)
        conv_all(par, ev, ur)
        if o.fine:
            stamp("cv_mfma")
        next(l0)
        g.pump = lambda: next(l0, None) if g.ta - g.clock < 30 else None
        for f in ur:
            f()
        g(f"v_add_u32 {vN0}, 4, {aN}")
        for ti, jb in enumerate(tiles):
            b = 6 * ti
            g(f"v_add_f32 {pp[b+4]}, {pp[b+4]}, {qq[b+3]}\nv_add_f32 {pp[b+5]}, {pp[b+5]}, {qq[b+4]}")
            g.ds(f"ds_write2st64_b32 {vN0}, {pp[b+4]}, {pp[b+5]} offset0:{jb} offset1:{jb + 9}", "Nw")
            g.ds(f"ds_write_b32 {vN0}, {qq[b+5]} offset:{(jb + 18)*256}", "Nw")
        for ti, jb in enumerate(tiles):
            b = 6 * ti
            g(f"v_add_f32 {pp[b+1]}, {pp[b+1]}, {qq[b]}\nv_add_f32 {pp[b+2]}, {pp[b+2]}, {qq[b+1]}\nv_add_f32 {pp[b+3]}, {pp[b+3]}, {qq[b+2]}")
        mark(5, "c_add")
        g.wait(lg="Nw")
        g("s_barrier")
        mark(5, "c_bar")
        for ti, jb in enumerate(tiles):
            g.ds(f"ds_read2st64_b32 {qq.r(6*ti,2)}, {aN} offset0:{jb} offset1:{jb + 9}", f"N{ti}")
            g.ds(f"ds_read_b32 {qq[6*ti+2]}, {aN} offset:{(jb + 18)*256}", f"N{ti}")
        for ti, jb in enumerate(tiles):
            for m in range(4):
                g(f"v_fmac_f32 {pp[6*ti+m]}, {vD}, {uu[4*ti + m]}")
        for ti, jb in enumerate(tiles):
            b = 6 * ti
            g.wait(lg=f"N{ti}")
            for m in range(3):
                g(f"v_add_f32 {pp[b+m]}, {pp[b+m]}, {qq[b+m]}")
            g(f"v_cvt_pk_bf16_f32 {pp[b]}, {pp[b]}, {pp[b+1]}\nv_cvt_pk_bf16_f32 {pp[b+1]}, {pp[b+2]}, {pp[b+3]}")
        mark(5, "c_cvt")
        g.pump = None
        run(l0)
        mark(5, "c_l0")
        for ti, jb in enumerate(tiles):
            g.vm(f"buffer_store_dwordx2 {pp.r(6*ti,2)}, {aY}, {R['ws']}, {sY} offen offset:{512*jb} sc1", "yst")
        return len(tiles)
    two_paths(half2)
    for r in (aA, aN, aU, aY, vD, gs, vN0, sY, pp, qq, uu, cB, cB2, sX1s):
        r.free()
    w4v = V.alloc(96, at=160)
    stamp("conv2")

    gk3 = [V.alloc(4), V.alloc(4)]
    vXw = V.alloc(1)
    g(f"s_lshl_b32 {sT[0]}, {sW}, 13\nv_add_u32 {vXw}, {sT[0]}, {vL16}")

    def norm(th, center):
        g.wait(vm=f"s{th}")
        r = sv[th]
        for d, s_ in ((0, 2), (1, 3), (4, 6), (5, 7), (0, 4), (1, 5)):
            g(f"v_add_f32 {r[d]}, {r[d]}, {r[s_]}")
            yield
        g(f"s_nop 1\nv_permlane32_swap_b32 {r[0]}, {r[1]}")
        yield
        g(f"v_add_f32 {r[0]}, {r[0]}, {r[1]}\nv_mov_b32 {r[1]}, {r[0]}")
        yield
        g(f"s_nop 1\nv_permlane32_swap_b32 {r[0]}, {r[1]}")
        yield
        yield from ln_mean(r[0], r[2])
        for i in range(7, -1, -1):
            g.wait(vm=f"n{th}_{i}")
            if th == 0 and i % 4 == 3:
                mark(3, f"n_{i}")
            if not ((o.abl & 8 and th) or (o.abl & 4096 and not th)):
                yield from center([nb[th][4*i + q] for q in range(4)], r[2], tmp)
            g.ds(f"ds_write_b128 {vXw}, {nb[th].r(4*i, 4)} offset:{LA + th*32768 + i*1024}", f"xw{th}")
            yield

    def gate_loads():
        g(f"v_lshlrev_b32 {t0}, 11, {vKq}\nv_lshl_add_u32 {t0}, {vC}, 2, {t0}\ns_lshl_b32 {sT[0]}, {sW}, 8\ns_add_u32 {sT[0]}, {sT[0]}, {sSto}")
        for i in range(2):
            g.vm(f"buffer_load_dword {gate[i]}, {t0}, {R['ws']}, {sT[0]} offen offset:{128 + i*1024} sc1", "gl")
            yield
    l1 = chain(st_loads(1), x1_loads(1), gate_loads())
    cnt1 = [0]

    def pump1():
        if g.ta - g.clock < 0 and cnt1[0] < o.l1_early:
            cnt1[0] += 1
            next(l1, None)
    g.pump = pump1
    run(norm(0, center_dot))
    g.pump = None
    Bg.cap = Bg.idx
    g.wait(lg="xw0")
    g("s_barrier")
    stamp("xn0"); idle("xn0")
    accs = [nb[0], nb[1]]
    tf = V.alloc(16, at=136)
    hq = V.alloc(8, at=152)

    def h_store2(th):
        def fn(f):
            if f == 0 and th:
                g(f"s_add_u32 {sHst}, {sHst}, {112*1024}")
            g.vm(f"buffer_store_dwordx4 {hq.r(4*(f & 1),4)}, {vL16}, {R['ws']}, {sHst} offen offset:{f*1024} sc1", f"Hst{th}")
        return fn

    def g3_pass(th, fillers, over, hook=None):
        def tread(ks):
            g.ds(f"ds_read_b128 {tf.r(4*(ks & 3), 4)}, {vL16} offset:{LA + th*32768 + ks*1024}", f"t{ks}")
        for ks in range(3):
            tread(ks)
        for ks in range(32):
            if th == 0 and ks % 2 == 0:
                Bg.flush(Bg.find("rd", ks // 2))
                g.wait(lg=f"sr{ks//2}")
            g.wait(lg=f"t{ks}")
            for ft in range(2):
                c = accs[th].r(16*ft, 16)
                if not (o.abl & 64 and ft):
                    g(f"v_mfma_f32_32x32x16_bf16 {c}, {w3r.r(8*ks + 4*ft, 4)}, {tf.r(4*(ks & 3), 4)}, {c if ks else 0}")
                if ft == 1 and ks + 3 < 32:
                    tread(ks + 3)
                if ft == 0 and ks % 4 == 0 and ks:
                    mark(3, f"g{th}_k{ks}")
                if hook:
                    hook(2*ks + ft)
                fill(fillers, over, reserve=4 * ft)
        mark(3, f"g{th}_loop")
        drain(fillers)
        mark(3, f"g{th}_drain")

    def scale(th):
        yield from ln_std(sv[th][0], sv[th][1], gk3[th][2])
        yield from ln_scale(gk3[th])
    f0 = [scale(0)]

    def hook0(i):
        if i % 2 == 0 and next(l1, 1) is not None:
            Bg.cap = Bg.find("dma", o.cap_a)
        if i == o.norm1_at:
            f0.append(chain(norm(1, center_plain), scale(1)))
        if i == o.yflag_at:
            g.wait(vm="yst")
            flag_set(F_Y)
    g3_pass(0, f0, o.q3a, hook0)
    for r in (sXo, sX1l, vSt, sSto2):
        r.free()
    g.wait(lg="xw1")
    g("s_barrier")
    stamp("g3a"); idle("g3a")
    Bg.cap = Bg.find("dma", o.cap_b)
    vP16, vP7 = V.alloc(1), V.alloc(1)
    py = Poll(R["ws"], vP16, sFy, F_Y)

    def hook3(i):
        if i == 2:
            g(f"v_lshrrev_b32 {vP16}, 1, {vC}\nv_lshlrev_b32 {vP16}, 12, {vP16}\nv_and_b32 {vP7}, 1, v0\nv_lshl_add_u32 {vP16}, {vP7}, 8, {vP16}")
        if i == 3:
            g(f"v_min_u32 {vP7}, 6, v0\ns_lshl_b32 {sT[0]}, {sW}, 5\nv_lshl_add_u32 {vP7}, {vP7}, 2, {sT[0]}")
            py.issue()
        if i == 24:
            py.check()
            g(f"s_add_u32 {sT[0]}, {sTr}, {YBUF}\ns_add_u32 {sT[1]}, {sTr}, {YBUF + 32768 - 1024}\ns_lshl_b32 {sT[2]}, {sW}, 11\ns_add_u32 m0, {sT[2]}, {C_Y}")
        if i == 25:
            g.vm(f"buffer_load_dwordx4 {vT4k}, {R['ws']}, {sT[0]} offen sc1 lds", "y")
            g.vm(f"buffer_load_dwordx4 {vT4k}, {R['ws']}, {sT[1]} offen offset:1024 sc1 lds", "y")

    nd = [sum(1 for x in Bg.ops[Bg.idx:Bg.cap] if x[0] == "dma"), 0]

    def hook3h(i):
        hook3(i)
        if i not in (24, 25) and nd[1] < nd[0] * i // 58 and Bg.idx < Bg.cap:
            nd[1] += Bg.ops[Bg.idx][0] == "dma"
            Bg.step(True)
        if i == 24:
            Bg.saved_cap, Bg.cap = Bg.cap, 0
        if i == 25:
            Bg.cap = Bg.saved_cap
    g3_pass(1, [Ops(x) for x in gelu_plain(accs[0], 32, gk3[0], hq, tmp, h_store2(0))], o.q3b, hook3h)
    vP16.free()
    stamp("g3b"); idle("g3b")
    Bg.cap = Bg.find("dma", 29)
    Bg.flush(Bg.find("dma", 27))
    pa = Poll(R["ws"], vP7, None, F_HA, local=True)
    pb = Poll(R["ws"], vP7, None, F_HB, local=True)
    if o.tail_bg:
        pump_on()
    st1 = h_store2(1)

    def done1(f):
        if f == o.haflag_at:
            g.wait(vm="Hst0")
            flag_set(F_HA)
            if o.l2pf & 4:
                with g.hold():
                    g(f"v_lshlrev_b32 {vOne}, 5, {vP32}\ns_sub_u32 {sT[0]}, {sHst}, {112*1024 if f else 0}")
                    g.vm(f"buffer_load_dword {vDum}, {vOne}, {R['ws']}, {sT[0]} offen sc1", "pf")
        if o.apoll_at == 6:
            if f < 2:
                st1(f)
            if f == 3:
                pa.issue()
                st1(2)
                st1(3)
        else:
            st1(f)
        if f == o.apoll_at:
            pa.issue()
        mark(3, f"H_f{f}")
    gelu_pk(accs[1], 32, gk3[1], hq, tmp, done1)
    stamp("H_st")
    tf.free(); vXw.free()
    for r in gk3:
        r.free()
    sv = V.alloc(16, at=136)
    g.wait(vm="y")
    g("s_barrier")
    if o.apoll_at == 4:
        pa.issue()

    g(f"v_lshl_add_u32 {t0}, {vKq}, 2, {vR4}\nv_lshlrev_b32 {t0}, 7, {t0}\nv_lshl_add_u32 {t0}, {vC8}, 2, {t0}\ns_lshl_b32 {sT[0]}, {sW}, 3\ns_add_u32 {sT[0]}, {sT[0]}, {C_Y}\nv_add_u32 {t0}, {sT[0]}, {t0}")
    for T in range(4):
        g.ds(f"ds_read_b64_tr_b16 {sv.r(8 + 2*T, 2)}, {t0} offset:{T*2048}", f"y{T}")
    vHl = V.alloc(1)
    hb = Reg(A, 128, 128)
    sSt2 = S.alloc(1)

    def h_load(m):
        th, n = divmod(m, 28)
        if o.rot:
            if m == 28:
                g(f"v_add_u32 {vHl}, {112*1024}, {vHl}")
            so, off = sG4[n >> 1], (n & 1) * 1024
        else:
            if n % 4 == 0:
                g(f"s_mov_b32 {sSt2}, {th*112*1024 + n*1024}")
            so, off = sSt2, (n & 3) * 1024
        g.vm(f"buffer_load_dwordx4 {hb.r(4*(m & 31), 4)}, {vHl}, {R['ws']}, {so} offen offset:{off} sc1", f"H{m}")

    g(f"s_mul_i32 {sT[0]}, {sW}, {28*1024}\ns_add_u32 {sT[0]}, {sT[0]}, {sH2}\nv_add_u32 {vHl}, {sT[0]}, {vL16}")
    if o.fake & 4:
        g(f"v_mov_b32 {vHl}, {OOB}")
    pump_off()
    Bg.flush(Bg.find("dma", 28))
    if o.apoll_at == 5:
        pa.issue()
    Bg.flush(max(Bg.find("dma", 29), Bg.find("rd", o.rd_ha)))
    def hbflag():
        g.wait(vm="Hst1")
        flag_set(F_HB)
        if o.l2pf & 8:
            g(f"v_lshlrev_b32 {vOne}, 5, {vP32}")
            g.vm(f"buffer_load_dword {vDum}, {vOne}, {R['ws']}, {sHst} offen sc1", "pf")
    pa.check(then=hbflag if o.hbflag_at < 0 else None)
    stamp("HA_flag")
    nxt = o.ahead
    hl = (h_load(m) for m in range(nxt))
    next(hl)
    g.pump = lambda: next(hl, None) if g.ta - g.clock < 30 else None
    run(gate_calc())
    g(f"s_lshl_b32 {sT[0]}, {sW}, 6\ns_add_u32 {sT[0]}, {sT[0]}, {C_OMG}\nv_lshl_add_u32 {t2}, {vC}, 2, {sT[0]}")
    g.ds(f"ds_write_b32 {t2}, {gate[1]}")
    g(f"v_xor_b32 {t0}, {vKq}, {vC}\nv_lshlrev_b32 {t0}, 4, {t0}\nv_lshl_add_u32 {t0}, {vC}, 8, {t0}\ns_lshl_b32 {sT[0]}, {sW}, 12\ns_add_u32 {sT[0]}, {sT[0]}, {C_BASE}\nv_add_u32 {t0}, {sT[0]}, {t0}")
    bq = Reg(V, accs[1].base, 32)
    for T in range(4):
        g.wait(lg=f"y{T}")
        for i in range(0 if o.abl & 8192 else 2):
            for src, d in ((sv[8 + 2*T + i], 0), (qp[2*T + i], 4), (x1p[2*T + i], 8)):
                g(f"v_lshlrev_b32 {bq[d + 2*i]}, 16, {src}\nv_and_b32 {bq[d + 2*i + 1]}, {sMask}, {src}")
        for i in (0, 2):
            g(f"v_pk_mul_f32 {bq.r(i,2)}, {bq.r(i,2)}, {bq.r(4+i,2)}")
            g(f"v_pk_mul_f32 {bq.r(8+i,2)}, {bq.r(8+i,2)}, {gate} op_sel:[0,1] op_sel_hi:[1,1]")
        for i in (0, 2):
            g(f"v_pk_fma_f32 {bq.r(12 + 4*T + i, 2)}, {bq.r(i,2)}, {gate}, {bq.r(8+i,2)} op_sel_hi:[1,0,1]")
        g(f"v_xor_b32 {t2}, {64*T}, {t0}")
        g.ds(f"ds_write_b128 {t2}, {bq.r(12 + 4*T, 4)}", "bw")
    qp.free(); x1p.free(); hq.free()
    vPw, vPr, vOut, vOm = (V.alloc(1) for _ in range(4))
    stamp("base")
    class Fin:
        @staticmethod
        def r(i, n=1):
            return accs[0].r(i, n) if i < 32 else tmp.r(i - 32, n)

        def __getitem__(self, i):
            return self.r(i)
    fin = Fin()

    def partial_out(th):
        for ft in range(2):
            for q in range(4):
                if o.fast_end:
                    g.ds(f"ds_write_b128 {pwa[4*ft + q]}, {accs[th].r(16*ft + 4*q, 4)} offset:{LA + th*32768}", f"pw{th}")
                else:
                    g(f"v_xor_b32 {t2}, {128*ft + 32*q}, {vPw}")
                    g.ds(f"ds_write_b128 {t2}, {accs[th].r(16*ft + 4*q, 4)} offset:{LA + th*32768}", f"pw{th}")
                yield

    def final_head(th):
        g(f"v_xor_b32 {t0}, 16, {vPr}")
        g(f"v_add_u32 {t2}, {C_BASE + th*8192}, {vPr}\nv_add_u32 {t3}, {C_BASE + th*8192}, {t0}")
        g.ds(f"ds_read_b128 {fin.r(32,4)}, {t2}", "fb")
        g.ds(f"ds_read_b128 {fin.r(36,4)}, {t3}", "fb")
        g(f"v_add_u32 {t2}, {C_OMG + th*128}, {vOm}")
        g.ds(f"ds_read_b32 {sv[0]}, {t2}", "fb")
        g(f"s_add_u32 {sT[0]}, {sPan}, {th*32768}")

    def final(th, packed, head=True):
        if head:
            g(f"v_xor_b32 {t0}, 16, {vPr}")
        for x, ad in enumerate((vPr, t0)):
            for w in range(4):
                g.ds(f"ds_read_b128 {fin.r(16*x + 4*w, 4)}, {ad} offset:{LA + th*32768 + w*8192}", f"f{x}")
                yield
        if head:
            g(f"v_add_u32 {t2}, {C_BASE + th*8192}, {vPr}\nv_add_u32 {t3}, {C_BASE + th*8192}, {t0}")
            yield
            g.ds(f"ds_read_b128 {fin.r(32,4)}, {t2}", "fb")
            g.ds(f"ds_read_b128 {fin.r(36,4)}, {t3}", "fb")
            yield
            g(f"v_add_u32 {t2}, {C_OMG + th*128}, {vOm}")
            g.ds(f"ds_read_b32 {sv[0]}, {t2}", "fb")
            yield
        for x in range(2):
            g.wait(lg=f"f{x}")
            b = 16 * x
            for d, s in ((0, 4), (8, 12), (0, 8)):
                if packed:
                    for i in (0, 2):
                        g(f"v_pk_add_f32 {fin.r(b+d+i,2)}, {fin.r(b+d+i,2)}, {fin.r(b+s+i,2)}")
                else:
                    for i in range(4):
                        g(f"v_add_f32 {fin[b+d+i]}, {fin[b+d+i]}, {fin[b+s+i]}")
                        yield
        g.wait(lg="fb")
        for x in range(2):
            if packed:
                for i in (0, 2):
                    g(f"v_pk_fma_f32 {fin.r(16*x+i,2)}, {fin.r(16*x+i,2)}, {sv.r(0,2)}, {fin.r(32+4*x+i,2)} op_sel_hi:[1,0,1]")
                continue
            for i in range(4):
                g(f"v_fma_f32 {fin[16*x+i]}, {fin[16*x+i]}, {sv[0]}, {fin[32+4*x+i]}")
                yield
        for x in range(2):
            for i in range(2):
                g(f"v_cvt_pk_bf16_f32 {fin[4 + 2*x + i]}, {fin[16*x + 2*i]}, {fin[16*x + 2*i + 1]}")
                yield
        if head:
            g(f"s_add_u32 {sT[0]}, {sPan}, {th*32768}")
        g.vm(f"buffer_store_dwordx4 {fin.r(4,4)}, {vOut}, {R['out']}, {sT[0]} offen {o.out_pol}", "out")
        yield

    def barrier_after(tag):
        g.wait(lg=tag)
        g("s_barrier")
        yield

    Bg.cap = len(Bg.ops)
    g.pump = None
    run(hl)
    setup_ops = [f"v_and_b32 {t0}, 31, v0", f"v_lshrrev_b32 {t2}, 5, v0", f"v_xor_b32 {t2}, {t2}, {vC}", f"v_lshlrev_b32 {t2}, 4, {t2}", f"v_lshl_add_u32 {t0}, {t0}, 8, {t2}", f"s_lshl_b32 {sT[0]}, {sW}, 13", f"v_add_u32 {vPw}, {sT[0]}, {t0}", f"v_lshrrev_b32 {t0}, 3, v0", f"s_lshl_b32 {sT[0]}, {sW}, 3", f"v_add_u32 {t0}, {sT[0]}, {t0}", f"v_lshlrev_b32 {t3}, 4, {vS8}", f"v_lshl_add_u32 {vOut}, {t0}, 10, {t3}", f"v_lshlrev_b32 {t2}, 1, {vS8}", f"v_and_b32 {t3}, 15, {t0}", f"v_xor_b32 {t2}, {t2}, {t3}", f"v_lshlrev_b32 {t2}, 4, {t2}", f"v_lshl_add_u32 {vPr}, {t0}, 8, {t2}", f"v_lshlrev_b32 {vOm}, 2, {t0}"]
    pwa = V.alloc(8, at=152)
    if o.fast_end:
        setup_ops += [f"v_xor_b32 {pwa[i]}, {32*i}, {vPw}" for i in range(8)]
    fillers = [Ops(setup_ops)]
    for m in range(56):
        th, n = divmod(m, 28)
        if n % 2 == 0 and th == 0:
            Bg.flush(Bg.find("rd", 16 + n // 2))
            g.wait(lg=f"sr{16 + n//2}")
        if m == 28:
            stamp("g4_0"); idle("g4_0")
            drain(fillers)
            po = partial_out(0)
        if 29 <= m < 37:
            next(po)
        if m == o.bar_at:
            drain(fillers)
            fillers = [barrier_after("pw0"), final(0, False)]
        if m == o.hbflag_at:
            hbflag()
        if m % 7 == 0:
            mark(3, f"m{m}")
        if o.fast_end and m == 54:
            assert o.bar_at < 56
            drain(fillers)
            final_head(1)
            g.wait(vm="H55")
            po = partial_out(1)
            for ft in range(2):
                for mm in (54, 55):
                    c = accs[1].r(16*ft, 16)
                    g(f"v_mfma_f32_32x32x16_bf16 {c}, {w4home(mm - 28, ft)}, {hb.r(4*(mm & 31), 4)}, {c}")
            for _ in range(8):
                next(po)
            break
        g.wait(vm=f"H{m}")
        for ft in range(2):
            c = accs[th].r(16*ft, 16)
            if not (o.abl & 128 and ft):
                g(f"v_mfma_f32_32x32x16_bf16 {c}, {w4home(n, ft)}, {hb.r(4*(m & 31), 4)}, {c if n else 0}")
            if ft == 0:
                if m == o.bpoll_at:
                    pb.issue()
                if nxt == 28:
                    pb.check()
                if nxt < 56:
                    h_load(nxt)
                    nxt += 1
            if not (m == 28 and ft == 0):
                fill(fillers, 0, reserve=4 * ft)
    drain(fillers)
    stamp("g4_1")
    if not o.fast_end:
        run(partial_out(1))
    run(barrier_after("pw1"))
    if o.bar_at >= 56:
        run(final(0, True))
    run(final(1, True, head=not o.fast_end))
    stamp("end")
    stamp("end_real", real=True)
    if o.stamps:
        g(f"s_lshl_b32 {sT[0]}, s2, 2\ns_add_u32 {sT[0]}, {sT[0]}, {sW}\ns_lshl_b32 {sT[0]}, {sT[0]}, 8\ns_add_u32 {sT[0]}, {sT[0]}, {STAMPS}")
        g(f"buffer_store_dword {vStamp}, {vL4}, {R['ws']}, {sT[0]} offen")
    if amp:
        g(f"s_cmp_lg_u32 s2, {amp[3] if len(amp) > 3 else 77}\ns_cbranch_scc1 L_end")
        g(f"v_readlane_b32 {sT[0]}, {vStamp}, 62\nv_readlane_b32 {sT[2]}, {vStamp}, 63\ns_nop 3")
        g(f"s_sub_u32 {sT[2]}, {sT[2]}, {sT[0]}\ns_mul_i32 {sT[2]}, {sT[2]}, {amp[2]}\ns_min_u32 {sT[2]}, {sT[2]}, 100000")
        g(f"s_memrealtime {sT.r(0,2)}\ns_waitcnt lgkmcnt(0)")
        g(f"L_amp:\ns_memrealtime {sStamp}\ns_waitcnt lgkmcnt(0)\ns_sub_u32 {sStamp[0]}, {sStamp[0]}, {sT[0]}")
        g(f"s_cmp_lt_u32 {sStamp[0]}, {sT[2]}\ns_cbranch_scc1 L_amp")
    g("s_endpgm")
    for t in tail:
        g(t)
    g("L_end:\ns_endpgm")
    body = g.text(o.align)
    info = dict(nops=g.nops, vhigh=V.high, shigh=S.high, stamps=stamp_names, lines=len(g.lines), clock=g.clock, model=model, bgat=bgat)
    return file_text([(KNAME, 256, 256, LDS_BYTES)], [(KNAME, body, 512, 256, 102)]), info


REF = "gated_mix__ssm_conv_h3__mixer_s_mlp__prompt.s.ref"
HEADER = open(REF).read().split("; Override launch")[0] if os.path.exists(REF) else ""


def set_opts(args):
    for kv in args:
        k, v = kv.split("=")
        cur = getattr(Opt, k)
        setattr(Opt, k, type(cur)(int(v)) if isinstance(cur, (bool, int)) else v)


if __name__ == "__main__":
    out = sys.argv[1] if len(sys.argv) > 1 else "k.s"
    set_opts(sys.argv[2:])
    text, info = build(Opt)
    open(out, "w").write(HEADER + text)
    print(info)
```

```python
import copy
import os
import struct
import sys
from asmlib import ARG, NBYTES, KNAME, file_text
from kgen import Gen, Reg, merge_queues

F_H, F_U, F_X1, F_Y, F_HA, F_HB = 1, 2, 3, 4, 5, 6
LFLAG = 0x20000
STATS = 0x40000
HBUF, X1BUF, UBUF, YBUF, H2BUF = 0x100000, 0x300000, 0x500000, 0x700000, 0x900000
STAMPS = 0x2000000
OOB = 0x40000000

LA, LB, LC = 0, 65536, 131072
C_K, C_V, C_Q, C_CS = LC, LC + 9216, LC + 17920, LC + 26112
C_H, C_U = LC, LC + 8448
HP, UP = 4224, 1152
C_Y, C_BASE, C_OMG, C_STD = LC, LC + 8192, LC + 24576, LC + 26624
A_N = LC + 17920
NP = 6912
LDS_BYTES = 163840

GELU_C0 = -2.302208198144325
GELU_C1 = GELU_C0 * 0.044715
LOG2E = 1.4426950408889634

TILES = ([7, 6, 2], [5, 4, 3, 1, 0])


def fbits(x):
    return "0x%08x" % struct.unpack("<I", struct.pack("<f", x))[0]


class Opt:
    stamps = 0
    fine = 0
    amp = ""
    nt_once = "nt"
    out_pol = "nt"
    code_pf = True
    code_bytes = 40960
    align = True
    nap = 0
    period = 85
    lat = 700
    thresh = 100
    thresh1 = 500
    fake = 0
    t3 = 3
    fast_end = True
    noglobal = 0
    abl = 0
    tail_bg = 2
    pol_w = ""
    pol_y = ""
    pol_u = ""
    pol_q = ""
    pol_H = ""
    pol_st = ""
    hpoll = 2
    idle = ""
    touch4 = 6
    rotj = 0
    rotp = 0
    tx1 = ""
    tx2 = ""
    tx34 = ""
    t3_at = 10
    cap0 = "x3"
    t3_first = "x0"
    touch1 = "x0"
    bg_u = 4
    rd_ha = 24
    touch = 3
    touch2 = "w1b"
    pre2 = True
    local = True
    dpoll_at = 16
    bg_a = 0
    bg_b = 1
    cap_p2 = 6
    l2pf = 0
    cap2 = 14
    upoll_at = 11
    ucheck_at = 16
    bdist = 6
    hflag_m = 8
    bar_at = 46
    yflag_at = 10
    rot = False
    xflag_at = 24
    xpoll_at = 104
    xcheck_at = 126
    norm1_at = 10
    cap_a = 21
    l1_early = 8
    cap_b = 25
    q3a = 0
    q3b = 0
    haflag_at = 1
    hbflag_at = -1
    apoll_at = 4
    bpoll_at = 10
    ahead = 9


def build(o=Opt):
    g = Gen()
    g.vm_cost, g.vm_lat, g.vm_win = o.period, o.lat, 8 * o.period
    V, A, S = g.V, g.A, g.S
    names = ["q", "ws", "w1", "w2", "dbg", "k", "v", "shift_k", "ssm_D", "gate_w", "w3", "w4", "ssm_k", "out"]
    R = {n: S.alloc(4, align=4) for n in names}
    sW, sJ, sP, sPP, sX = (S.alloc(1) for _ in range(5))
    sT = S.alloc(4, align=2)
    sOnes, sLo1, sHi1, sMask, sTmo = (S.alloc(1) for _ in range(5))
    sStamp = S.alloc(2, align=2) if (o.stamps or o.amp) else None
    vStamp = V.alloc(1)
    stamp_names = []
    amp = o.amp.split(",") if o.amp else None
    tail = []

    model, bgat = {}, {}

    def stamp(name, real=False):
        model[name] = g.clock
        bgat[name] = "%s%s" % Bg.ops[Bg.idx][:2] if Bg.idx < len(Bg.ops) else "end"
        with g.hold():
            if amp and name in amp[:2]:
                g(f"s_memrealtime {sStamp}")
                g.smem = True
                g.wait(lg="*")
                g(f"v_writelane_b32 {vStamp}, {sStamp[0]}, {62 + amp.index(name)}")
            if o.stamps in (1, 3) or (o.stamps == 2 and real):
                g(f"s_mem{'real' if real or o.stamps == 3 else ''}time {sStamp}")
                g.smem = True
                g.wait(lg="*")
                if name not in stamp_names:
                    stamp_names.append(name)
                g(f"v_writelane_b32 {vStamp}, {sStamp[0]}, {stamp_names.index(name)}")

    def idle(name):
        if name in o.idle.split(":"):
            g("s_sleep 16")

    def mark(level, name):
        if o.fine == level:
            stamp(name)

    def flag_set(val):
        with g.hold():
            g(f"s_mov_b64 exec, 1\nv_mov_b32 {vOne}, {val}")
            if o.local and val not in (F_U, F_Y):
                g.vm(f"buffer_store_dword {vOne}, off, {R['ws']}, {sLf}", "flag")
            if not (o.noglobal and val not in (F_U, F_Y)):
                g.vm(f"buffer_store_dword {vOne}, off, {R['ws']}, {sFl} sc1", "flag")
            g("s_mov_b64 exec, -1")

    class Poll:
        def __init__(self, srd, vaddr, soff, need, local=False):
            self.t = V.alloc(1)
            self.tag = g.label("poll")
            self.cmp = f"v_cmp_gt_u32 vcc, {need}, {self.t}"
            self.ld = f"buffer_load_dword {self.t}, {vaddr}, {srd}, {soff} offen sc1"
            self.first = self.ld
            self.pre = ""
            if local:
                self.ld = f"v_lshlrev_b32 {self.t}, 5, {vaddr}\nbuffer_load_dword {self.t}, {self.t}, {srd}, {sFp} offen sc1"
                self.first = self.ld
                if o.local:
                    self.first = f"buffer_load_dword {self.t}, {vaddr}, {srd}, {sLp} offen sc1"
                    self.pre = self.first

        def issue(self):
            with g.hold():
                g.vm(self.first, self.tag)

        def check(self, free=True, then=None):
            n = g.label("chk")
            with g.hold():
                g.wait(vm=self.tag)
                if then:
                    then()
                g(f"{self.cmp}\ns_cbranch_vccnz {n}_slow\n{n}_ok:")
                if o.stamps == 4:
                    if self.tag not in stamp_names:
                        stamp_names.append(self.tag)
                    g(f"v_writelane_b32 {vStamp}, {sTmo}, {stamp_names.index(self.tag)}")
            nap = f"s_sleep {o.nap}\n" if o.nap else ""
            for _ in range(3 if self.pre else 0):
                nap += (f"s_sub_u32 {sTmo}, {sTmo}, 1\n" if o.stamps == 4 else "") + f"{self.pre}\ns_waitcnt vmcnt(0)\n{self.cmp}\ns_cbranch_vccz {n}_ok\n"
            tail.append(f"{n}_slow:\ns_sub_u32 {sTmo}, {sTmo}, 1\ns_cbranch_scc1 {n}_out\n{nap}{self.ld}\ns_waitcnt vmcnt(0)\n"
                        f"{self.cmp}\ns_cbranch_vccnz {n}_slow\ns_branch {n}_ok\n"
                        f"{n}_out:\ns_mov_b32 {sTmo}, 0\ns_branch {n}_ok")
            if free:
                self.t.free()

    def round_bf16(r):
        g(f"v_cvt_pk_bf16_f32 {r}, {r}, {r}")
        yield
        g(f"v_and_b32 {r}, {sMask}, {r}")
        yield

    def ln_mean(s1, negmu):
        g(f"v_mul_f32 {negmu}, {fbits(-1.0/512)}, {s1}")
        yield
        yield from round_bf16(negmu)

    def ln_std(s1, s2, std):
        for t in (f"v_mul_f32 {s1}, {fbits(1.0/512)}, {s1}", f"v_mul_f32 {s2}, {fbits(1.0/512)}, {s2}",
                  f"v_fma_f32 {s2}, -{s1}, {s1}, {s2}", f"v_max_f32 {s2}, 0, {s2}"):
            g(t)
            yield
        yield from round_bf16(s2)
        g(f"v_add_f32 {s2}, {fbits(1e-5)}, {s2}")
        yield
        yield from round_bf16(s2)
        g(f"v_sqrt_f32 {std}, {s2}\ns_nop 0")
        yield
        yield from round_bf16(std)

    def ln_scale(gk):
        g(f"v_rcp_f32 {gk[3]}, {gk[2]}\ns_nop 0")
        yield
        for t in (f"v_mul_f32 {gk[1]}, {fbits(GELU_C0)}, {gk[3]}", f"v_mul_f32 {gk[0]}, {gk[3]}, {gk[3]}",
                  f"v_mul_f32 {gk[0]}, {gk[0]}, {gk[3]}", f"v_mul_f32 {gk[0]}, {fbits(GELU_C1)}, {gk[0]}"):
            g(t)
            yield

    def ln_stats(s1, s2, negmu, gk):
        for t in (f"v_mul_f32 {negmu}, {fbits(-1.0/512)}, {s1}", f"v_mul_f32 {s2}, {fbits(1.0/512)}, {s2}",
                  f"v_fma_f32 {s2}, -{negmu}, {negmu}, {s2}", f"v_max_f32 {s2}, 0, {s2}"):
            g(t)
            yield
        yield from round_bf16(s2)
        g(f"v_add_f32 {s2}, {fbits(1e-5)}, {s2}")
        yield
        yield from round_bf16(s2)
        g(f"v_sqrt_f32 {gk[2]}, {s2}")
        yield
        yield from round_bf16(negmu)
        yield from round_bf16(gk[2])
        g(f"v_rcp_f32 {s2}, {gk[2]}\ns_nop 0")
        yield
        for t in (f"v_mul_f32 {gk[1]}, {fbits(GELU_C0)}, {s2}", f"v_mul_f32 {gk[0]}, {s2}, {s2}",
                  f"v_mul_f32 {gk[0]}, {gk[0]}, {s2}", f"v_mul_f32 {gk[0]}, {fbits(GELU_C1)}, {gk[0]}"):
            g(t)
            yield

    def center_dot(regs, negmu, tmp):
        for b in range(0, len(regs), 4):
            for i in range(4):
                g(f"v_dot2_f32_bf16 {tmp[2*i]}, {regs[b+i]}, {sLo1}, {negmu}")
                g(f"v_dot2_f32_bf16 {tmp[2*i+1]}, {regs[b+i]}, {sHi1}, {negmu}")
            for i in range(4):
                g(f"v_cvt_pk_bf16_f32 {regs[b+i]}, {tmp[2*i]}, {tmp[2*i+1]}")
            yield

    def center_plain(regs, negmu, tmp):
        for i, r in enumerate(regs):
            a, b = tmp[2*(i & 1)], tmp[2*(i & 1) + 1]
            for t in (f"v_lshlrev_b32 {a}, 16, {r}", f"v_and_b32 {b}, {sMask}, {r}", f"v_add_f32 {a}, {a}, {negmu}",
                      f"v_add_f32 {b}, {b}, {negmu}", f"v_cvt_pk_bf16_f32 {r}, {a}, {b}"):
                g(t)
                yield

    def gelu_pk(acc, n, gk, out, tmp, done=None):
        kk, ss = gk.r(0, 2), gk.r(2, 2)
        for b in range(0, n, 8):
            P = range(0, 8, 2)
            if (o.abl & 256 and n == 16) or (o.abl & 512 and n == 32):
                for i in P:
                    g(f"v_cvt_pk_bf16_f32 {out[(b+i)//2 % out.n]}, {acc[b+i]}, {acc[b+i+1]}")
                if done:
                    done(b // 8)
                continue
            for i in P:
                g(f"v_pk_mul_f32 {tmp.r(i,2)}, {acc.r(b+i,2)}, {acc.r(b+i,2)}")
            for i in P:
                g(f"v_pk_fma_f32 {tmp.r(i,2)}, {tmp.r(i,2)}, {kk}, {kk} op_sel:[0,0,1] op_sel_hi:[1,0,1]")
            for i in P:
                g(f"v_pk_mul_f32 {tmp.r(i,2)}, {tmp.r(i,2)}, {acc.r(b+i,2)}")
            for i in range(8):
                g(f"v_exp_f32 {tmp[i]}, {tmp[i]}")
            for i in P:
                g(f"v_pk_fma_f32 {tmp.r(i,2)}, {tmp.r(i,2)}, {ss}, {ss} op_sel_hi:[1,0,0]")
            for i in range(8):
                g(f"v_rcp_f32 {tmp[i]}, {tmp[i]}")
            for i in P:
                g(f"v_pk_mul_f32 {tmp.r(i,2)}, {tmp.r(i,2)}, {acc.r(b+i,2)}")
            for i in P:
                g(f"v_cvt_pk_bf16_f32 {out[(b+i)//2 % out.n]}, {tmp[i]}, {tmp[i+1]}")
            if done:
                done(b // 8)

    def gelu_plain(acc, n, gk, out, tmp, done):
        streams = [[], []]
        left = {}
        for b in range(0, n, 4):
            h = (b // 4) & 1
            T = [tmp[4*h + i] for i in range(4)]
            Q = range(4)
            ops = [f"v_mul_f32 {T[i]}, {acc[b+i]}, {acc[b+i]}" for i in Q]
            ops += [f"v_fma_f32 {T[i]}, {T[i]}, {gk[0]}, {gk[1]}" for i in Q]
            ops += [f"v_mul_f32 {T[i]}, {T[i]}, {acc[b+i]}" for i in Q]
            ops += [f"v_exp_f32 {T[i]}, {T[i]}" for i in Q]
            ops += [f"v_fma_f32 {T[i]}, {T[i]}, {gk[2]}, {gk[2]}" for i in Q]
            ops += [f"v_rcp_f32 {T[i]}, {T[i]}" for i in Q]
            ops += [f"v_mul_f32 {T[i]}, {T[i]}, {acc[b+i]}" for i in Q]
            f = b // 8
            left[f] = 2

            def guard(f=f):
                assert left.get(f - 2, 0) == 0
            ops += [(0, guard)] + [f"v_cvt_pk_bf16_f32 {out[(b+i)//2 % out.n]}, {T[i]}, {T[i+1]}" for i in (0, 2)]

            def fin(f=f):
                left[f] -= 1
                if left[f] == 0:
                    done(f)
            streams[h] += (ops[-3:] if o.abl & 4 else ops) + [(4, fin)]
        streams[1] = [(0, lambda: None)] * 12 + streams[1]
        return streams

    def run(it):
        for _ in it:
            pass

    def chain(*its):
        for it in its:
            yield from it

    class Bg:
        ops, idx, cap = [], 0, 0
        dma_on = True
        last, gap = 0, 0
        thresh = o.thresh

        @classmethod
        def ready(cls, force=False):
            if cls.idx >= min(cls.cap, len(cls.ops)):
                return False
            kind, key, _ = cls.ops[cls.idx]
            if force:
                return True
            if kind == "dma":
                return cls.dma_on and g.backlog() < cls.thresh and g.ta - g.clock < 30 and g.clock >= cls.last + cls.gap
            if kind == "rd0":
                return g.clock >= g.vmt[f"sd{key}"]
            return True

        @classmethod
        def step(cls, force=False):
            if not cls.ready(force):
                return False
            kind, key, fn = cls.ops[cls.idx]
            cls.idx += 1
            with g.hold():
                fn()
            if kind == "dma":
                cls.last = g.clock
            return True

        @classmethod
        def find(cls, kind, key):
            return max(i for i, (k, y, _) in enumerate(cls.ops) if y == key and k.startswith(kind)) + 1

        @classmethod
        def flush(cls, idx):
            cap, cls.cap = cls.cap, max(cls.cap, idx)
            while cls.idx < idx:
                cls.step(True)
            cls.cap = cap

        @classmethod
        def burst(cls, n):
            while n > 0 and cls.idx < min(cls.cap, len(cls.ops)):
                kind = cls.ops[cls.idx][0]
                if kind == "rd0" and not cls.ready():
                    break
                cls.step(True)
                n -= kind == "dma"

    def pump_on():
        g.pump = Bg.step

    def pump_off():
        g.pump = None

    class Ops:
        def __init__(self, items):
            self.items = list(items)

        def cost(self):
            it = self.items[0]
            return it[0] if isinstance(it, tuple) else 8 if it.startswith(("v_exp", "v_rcp", "v_sqrt")) else 4

        def emit(self):
            it = self.items.pop(0)
            it[1]() if isinstance(it, tuple) else g(it)

        def drain(self):
            while self.items:
                self.emit()

    def fill(fillers, over=0, reserve=0):
        while True:
            room = g.slack() - reserve + over
            if room >= 4 and Bg.step():
                continue
            live = [f for f in fillers if (f.items if isinstance(f, Ops) else True)]
            fillers[:] = live
            pick = None
            for f in live:
                if not isinstance(f, Ops):
                    pick = f if room >= 4 else None
                    break
                if f.cost() <= room and (pick is None or len(f.items) > len(pick.items)):
                    pick = f
            if pick is None:
                return
            if isinstance(pick, Ops):
                pick.emit()
            elif next(pick, 1) is not None:
                fillers.remove(pick)

    def drain(fillers):
        while fillers:
            f = fillers[0]
            if isinstance(f, Ops):
                others = [x for x in fillers if isinstance(x, Ops) and x.items]
                while others:
                    for x in others:
                        x.emit()
                    others = [x for x in others if x.items]
                fillers[:] = [x for x in fillers if not isinstance(x, Ops)]
            else:
                run(f)
                fillers.pop(0)

    g("s_cmp_ge_u32 s2, 256\ns_cbranch_scc1 L_end")
    for n in names:
        g(f"s_load_dwordx2 {R[n].r(0,2)}, s[0:1], {ARG[n]}")
    g.smem = True
    vOne, vL16, vL4, vDum = (V.alloc(1) for _ in range(4))
    t0, t2, t3 = (V.alloc(1) for _ in range(3))
    if o.code_pf:
        pc = V.alloc(2)
        per = o.code_bytes // 32
        assert per <= 2048
        g(f"s_getpc_b64 {sT.r(0,2)}")
        g(f"s_lshr_b32 {sT[2]}, s2, 3\ns_mul_i32 {sT[2]}, {sT[2]}, {per}")
        g(f"v_lshl_add_u32 {t0}, v0, 3, {sT[2]}")
        g(f"v_min_u32 {t0}, L_end-L_pc, {t0}")
        g("L_pc:")
        g(f"v_mov_b32 {pc[1]}, {sT[1]}")
        g(f"v_add_co_u32 {pc[0]}, vcc, {sT[0]}, {t0}")
        g(f"s_nop 1\nv_addc_co_u32 {pc[1]}, vcc, 0, {pc[1]}, vcc")
        g.vm(f"global_load_dword {vDum}, {pc}, off", "pf")
        pc.free()
    g(f"v_lshrrev_b32 {t0}, 6, v0\nv_and_b32 v0, 63, v0\nv_readfirstlane_b32 {sW}, {t0}")
    g(f"s_and_b32 {sX}, s2, 7\ns_lshr_b32 {sT[0]}, s2, 3\ns_and_b32 {sJ}, {sT[0]}, 7\ns_lshr_b32 {sPP}, {sT[0]}, 3")
    g(f"s_lshl_b32 {sP}, {sX}, 2\ns_add_u32 {sP}, {sP}, {sPP}")

    def srd_words(ns):
        for n in ns:
            g(f"s_mov_b32 {R[n][2]}, {NBYTES[n]}\ns_mov_b32 {R[n][3]}, 0x00020000")
    srd_words(names[:4])
    vC, vKq, vR8, vS8 = (V.alloc(1) for _ in range(4))
    g(f"v_and_b32 {vC}, 15, v0\nv_lshrrev_b32 {vKq}, 4, v0\nv_lshrrev_b32 {vR8}, 3, v0\nv_lshlrev_b32 {vR8}, 10, {vR8}\nv_and_b32 {vS8}, 7, v0")
    sLdsW, sCol, sPan, sKV, sKV2, sC2 = (S.alloc(1) for _ in range(6))
    g(f"s_lshl_b32 {sLdsW}, {sW}, 14\ns_lshl_b32 {sCol}, {sJ}, 7\ns_lshl_b32 {sPan}, {sP}, 16\ns_add_u32 {sPan}, {sPan}, {sCol}")
    g(f"s_add_u32 {sKV}, {sLdsW}, {sPan}\ns_lshl_b32 {sC2}, {sW}, 11\ns_add_u32 {sKV2}, {sKV}, 7168")
    if o.stamps:
        g(f"v_mov_b32 {vStamp}, 0")
    g(f"s_lshr_b32 {sT[0]}, {sJ}, 2\ns_add_u32 {sT[0]}, {sT[0]}, 1\ns_sub_u32 {sT[1]}, 0, {sT[0]}")
    g(f"s_bitcmp1_b32 {sJ}, 1\ns_cselect_b32 {sT[0]}, {sT[0]}, {sT[1]}\ns_lshl_b32 {sT[0]}, {sT[0]}, 10")
    g(f"s_sub_u32 {sT[1]}, {sKV}, {sCol}\ns_add_u32 {sT[0]}, {sT[0]}, {sT[1]}")
    vQa, xd = V.alloc(2), V.alloc(2)
    g(f"v_xor_b32 {t0}, {vS8}, {vKq}\nv_lshl_add_u32 {vQa[0]}, {t0}, 4, {vR8}\nv_xor_b32 {vQa[1]}, 64, {vQa[0]}\nv_add_u32 {vQa[1]}, 7168, {vQa[1]}")
    g(f"v_add_u32 {xd[0]}, {sT[0]}, {vQa[0]}\nv_add_u32 {xd[1]}, {sT[0]}, {vQa[1]}")
    g.wait(lg="*")
    stamp("start_real", real=True)
    stamp("start")
    sM, sOff, sWo = S.alloc(1), S.alloc(1), S.alloc(1)
    wd = V.alloc(4, at=152)

    def x_dma(n, hh):
        if g.m0 != ("x", n):
            g(f"s_add_u32 m0, {sLdsW}, {LA + n*2048}\ns_xor_b32 {sWo}, {sCol}, {n << 7}")
            g.m0 = ("x", n)
        g.vm(f"buffer_load_dwordx4 {xd[hh]}, {R['q']}, {sWo} offen offset:{hh*1024} lds", f"x{n}")

    def w_dma(name, base, n, i):
        key = (name, n)
        sh = 2 if name == "w1" else 0
        if g.m0 != key:
            g(f"s_xor_b32 m0, {sM}, {base + (n << (12 + sh))}\ns_xor_b32 {sWo}, {sOff}, {n << (15 + sh)}")
            g.m0 = key
        g.vm(f"buffer_load_dwordx4 {wd[i]}, {R[name]}, {sWo} offen offset:{i*1024} lds", name + ("ab"[n >> 1] if sh else ""))

    for n in range(8):
        for hh in range(2):
            Bg.ops.append(("dma", f"x{n}", lambda n=n, hh=hh: x_dma(n, hh)))
    for n in range(4):
        for i in range(4):
            Bg.ops.append(("dma", "w1" + "ab"[n >> 1], lambda n=n, i=i: w_dma("w1", LB, n, i)))
    g.vm_lat = 1500

    def touch(n, bufs, sWo=sWo):
        g(f"s_lshl_b32 {sWo}, s2, 2\ns_add_u32 {sWo}, {sWo}, {sW}\ns_mul_i32 {sWo}, {sWo}, {n*128}\nv_min_u32 {vOne}, {n-1}, v0\nv_lshlrev_b32 {vOne}, 7, {vOne}")
        for b in bufs:
            g.vm(f"buffer_load_dword {vDum}, {vOne}, {R[b]}, {sWo} offen", "pf")
        g.m0 = None

    def touch3(n, bufs, sreg):
        g(f"s_lshr_b32 {sreg}, s2, 3\ns_lshl_b32 {sreg}, {sreg}, 2\ns_add_u32 {sreg}, {sreg}, {sW}\ns_mul_i32 {sreg}, {sreg}, {n*1024}")
        g(f"v_min_u32 {vOne}, {n-1}, v0\nv_lshlrev_b32 {vOne}, 10, {vOne}")
        for b in bufs:
            g.vm(f"buffer_load_dword {vDum}, {vOne}, {R[b]}, {sreg} offen offset:384", "pf")
        g.m0 = None
    if o.touch & 1:
        at = Bg.find("dma", o.touch1)
        Bg.ops[at:at] = [("dma", "tch0", lambda: touch(4, ("w1", "w2")))]

    def touchx(buf, n, part, sreg):
        g(f"s_lshr_b32 {sreg}, s2, 3\ns_lshl_b32 {sreg}, {sreg}, 2\ns_add_u32 {sreg}, {sreg}, {sW}\ns_mul_i32 {sreg}, {sreg}, {n*128}")
        if part:
            g(f"s_add_u32 {sreg}, {sreg}, {part*n*128*128}")
        g(f"v_min_u32 {vOne}, {n-1}, v0\nv_lshlrev_b32 {vOne}, 7, {vOne}")
        g.vm(f"buffer_load_dword {vDum}, {vOne}, {R[buf]}, {sreg} offen", "pf")
        g.m0 = None
    if o.tx1:
        at = Bg.find("dma", o.tx1) if o.tx1 != "0" else 0
        Bg.ops[at:at] = [("dma", "tx1", lambda: touchx("w1", 32, 0, sWo))]
    if o.tx2:
        at = Bg.find("dma", o.tx2)
        Bg.ops[at:at] = [("dma", "tx2", lambda: touchx("w2", 32, 0, sWo))]
    if o.t3 & 1:
        at = Bg.find("dma", o.t3_first)
        Bg.ops[at:at] = [("dma", "tch1", lambda: touch3(4, ("w1", "w2"), sWo))]
    Bg.flush(1)
    g.vm_lat = o.lat
    Bg.flush(Bg.find("dma", "x1"))
    sFp, sFl, sLp, sLf, sLead = (S.alloc(1) for _ in range(5))
    vP32 = V.alloc(1)
    z = V.alloc(4, at=160)
    g(f"v_and_b32 {vP32}, 31, v0\nv_lshlrev_b32 {vP32}, 2, {vP32}\ns_lshl_b32 {sFp}, {sP}, 12\nv_lshlrev_b32 {vL16}, 4, v0")
    g(f"v_mov_b32 {z[0]}, 0\nv_mov_b32 {z[1]}, 0\nv_mov_b32 {z[2]}, 0\nv_mov_b32 {z[3]}, 0\nv_lshlrev_b32 {t0}, 4, {vS8}")
    g(f"s_lshl_b32 {sLp}, {sP}, 7\ns_add_u32 {sLp}, {sLp}, {LFLAG}")
    g(f"s_lshl_b32 {sT[0]}, {sJ}, 2\ns_add_u32 {sT[0]}, {sT[0]}, {sW}\ns_lshl_b32 {sFl}, {sT[0]}, 7\ns_add_u32 {sFl}, {sFl}, {sFp}")
    g(f"s_lshl_b32 {sLf}, {sT[0]}, 2\ns_add_u32 {sLf}, {sLf}, {sLp}")
    g(f"s_lshl_b32 {sT[1]}, {sP}, 2\ns_cmp_eq_u32 {sT[0]}, 0\ns_cselect_b32 {sLead}, {sT[1]}, {OOB}\ns_cselect_b32 {sT[2]}, {sLp}, {OOB}")
    g(f"s_lshl_b32 {sT[1]}, {sW}, 10\ns_add_u32 {sT[1]}, {sT[1]}, {sFp}\ns_cmp_eq_u32 {sJ}, 0\ns_cselect_b32 {sT[3]}, {sT[1]}, {OOB}")
    g.vm(f"buffer_store_dwordx4 {z}, {vL16}, {R['ws']}, {sT[3]} offen sc1", "clr", cost=30)
    g.vm(f"buffer_store_dwordx4 {z}, {t0}, {R['ws']}, {sT[2]} offen sc1", "clr", cost=30)
    z.free()
    Bg.cap = Bg.find("dma", o.cap0)
    Bg.thresh = o.thresh1
    pump_on()
    srd_words(names[4:])
    g(f"v_and_b32 {t0}, 1, {vKq}\nv_lshlrev_b32 {t0}, 1, {t0}\nv_xor_b32 {t0}, {t0}, {vS8}\nv_lshl_add_u32 {wd[0]}, {t0}, 4, {vR8}")
    g(f"v_xor_b32 {t0}, 64, {wd[0]}\nv_add_u32 {wd[1]}, 7168, {t0}\nv_add_u32 {wd[2]}, 14336, {wd[0]}\nv_add_u32 {wd[3]}, 21504, {t0}")
    g(f"s_and_b32 {sT[0]}, {sPP}, 1\ns_lshl_b32 {sT[0]}, {sT[0]}, 2\ns_add_u32 {sT[0]}, {sT[0]}, {sW}\ns_lshl_b32 {sM}, {sT[0]}, 12")
    g(f"s_lshl_b32 {sT[1]}, {sJ}, 1\ns_xor_b32 {sT[0]}, {sT[0]}, {sT[1]}\ns_lshl_b32 {sOff}, {sT[0]}, 15\ns_add_u32 {sOff}, {sOff}, {sCol}")
    vW2, vV, vK0, vSk = V.alloc(1), V.alloc(2), V.alloc(1), V.alloc(1)
    sK0, sSk = S.alloc(1), S.alloc(1)
    g(f"v_lshlrev_b32 {t0}, 1, {vKq}\nv_xor_b32 {t0}, {t0}, {vS8}\nv_lshl_add_u32 {vW2}, {t0}, 4, {vR8}")
    g(f"v_lshrrev_b32 {t2}, 5, v0\nv_lshlrev_b32 {t2}, 1, {t2}\nv_xor_b32 {t2}, {t2}, {vS8}\nv_lshl_add_u32 {vV[0]}, {t2}, 4, {vR8}\nv_xor_b32 {vV[1]}, 64, {vV[0]}")
    g(f"s_sub_u32 {sT[0]}, {sPan}, 8192\ns_add_u32 {sT[1]}, {sC2}, {C_Q}\ns_cmp_eq_u32 {sW}, 0\n"
      f"s_cselect_b32 {sT[0]}, {sT[0]}, {OOB}\ns_cselect_b32 {sK0}, {C_K}, {sT[1]}\nv_add_u32 {vK0}, {sT[0]}, {vW2}")
    g(f"v_lshlrev_b32 {vSk}, 3, {vC}\ns_lshl_b32 {sT[2]}, {sJ}, 9\ns_lshl_b32 {sT[3]}, {sW}, 7\ns_add_u32 {sSk}, {sT[2]}, {sT[3]}")
    vR8.free()
    g(f"s_mov_b32 {sOnes}, 0x3f803f80\ns_mov_b32 {sLo1}, 0x00003f80\ns_mov_b32 {sHi1}, 0x3f800000")
    g(f"s_mov_b32 {sMask}, 0xffff0000\ns_mov_b32 {sTmo}, 0x40000")
    g(f"v_lshlrev_b32 {vL4}, 2, v0")

    vR4, vC8 = V.alloc(1), V.alloc(1)
    g(f"v_bfe_u32 {vR4}, v0, 2, 2\nv_and_b32 {vC8}, 3, v0\nv_lshlrev_b32 {vC8}, 3, {vC8}")
    ka = V.alloc(3)
    for m in range(2):
        g(f"v_sub_u32 {t0}, {vKq}, {vR4}\nv_add_u32 {t0}, {8 + 4*m}, {t0}\nv_bfe_u32 {t2}, {t0}, 1, 2\nv_xor_b32 {t2}, {sW}, {t2}")
        g(f"v_lshl_add_u32 {t2}, {t2}, 5, {vC8}\nv_lshl_add_u32 {t2}, {t0}, 7, {t2}\nv_add_u32 {ka[m]}, {C_K}, {t2}")
    g(f"v_lshl_add_u32 {t0}, {vR4}, 2, {vKq}\nv_xor_b32 {t2}, {sW}, {vR4}\nv_lshl_add_u32 {t2}, {t2}, 5, {vC8}")
    g(f"v_lshl_add_u32 {t2}, {t0}, 7, {t2}\nv_add_u32 {ka[2]}, {C_V}, {t2}")
    sQ = S.alloc(1)
    ua = V.alloc(2)
    g(f"s_add_u32 {sQ}, {sC2}, {C_Q}")
    g(f"s_lshr_b32 {sT[0]}, {sP}, 1\nv_add_u32 {t2}, {sT[0]}, {vKq}\nv_and_b32 {t2}, 3, {t2}\nv_lshlrev_b32 {t2}, 1, {t2}")
    g(f"v_and_b32 {t0}, 7, {vC}\nv_xor_b32 {t0}, {t0}, {t2}\nv_lshlrev_b32 {t0}, 4, {t0}")
    g(f"v_lshl_add_u32 {t0}, {vC}, 7, {t0}\nv_add_u32 {ua[0]}, {sQ}, {t0}")
    g(f"v_lshrrev_b32 {t0}, 3, v0\nv_xor_b32 {t2}, {t0}, {vS8}\nv_lshlrev_b32 {t2}, 4, {t2}")
    g(f"v_lshl_add_u32 {t2}, {t0}, 7, {t2}\nv_add_u32 {ua[1]}, {sQ}, {t2}")
    vT4k = V.alloc(1)
    g(f"v_lshlrev_b32 {t3}, 4, {vS8}\nv_lshl_add_u32 {vT4k}, {t0}, 12, {t3}")
    xa = V.alloc(2)
    g(f"v_lshrrev_b32 {t0}, 1, {vC}\nv_xor_b32 {t0}, {t0}, {vKq}\nv_lshlrev_b32 {t0}, 4, {t0}\nv_lshl_add_u32 {t0}, {vC}, 7, {t0}")
    g(f"v_add_u32 {xa[0]}, {sLdsW}, {t0}\nv_xor_b32 {xa[1]}, 64, {xa[0]}")
    wa = V.alloc(8, at=144)
    g(f"v_lshl_add_u32 {t0}, {vKq}, 3, {vR4}\nv_lshl_add_u32 {t0}, {t0}, 7, {vC8}")
    g(f"v_lshrrev_b32 {t2}, 1, {vR4}\nv_and_b32 {t3}, 1, {vKq}\nv_lshl_or_b32 {t2}, {t3}, 1, {t2}")
    g(f"v_xor_b32 {t2}, {sW}, {t2}\nv_lshl_add_u32 {t0}, {t2}, 5, {t0}\nv_add_u32 {wa[0]}, {LB}, {t0}")
    for T in range(1, 4):
        g(f"v_xor_b32 {wa[T]}, {32*T}, {wa[0]}")
    sCh, sHo = S.alloc(1), S.alloc(1)
    sHs = S.alloc(2)
    g(f"s_lshr_b32 {sT[2]}, {sW}, 1\ns_and_b32 {sT[3]}, {sW}, 1")
    g(f"s_lshl_b32 {sCh}, {sJ}, 5\ns_add_u32 {sCh}, {sCh}, {sP}\ns_lshl_b32 {sCh}, {sCh}, 1\ns_add_u32 {sCh}, {sCh}, {sT[2]}")
    g(f"s_sub_u32 {sHo}, {sKV}, {sCol}\ns_lshl_b32 {sT[0]}, {sJ}, 11\ns_add_u32 {sHo}, {sHo}, {sT[0]}\ns_add_u32 {sHo}, {sHo}, {HBUF}")
    g(f"s_lshl_b32 {sT[0]}, {sT[2]}, 10\ns_add_u32 {sHs[0]}, {sHo}, {sT[0]}\ns_xor_b32 {sHs[1]}, {sHs[0]}, 1024")
    sL, sW3, sRot3, sIdle, sRing, sSt = (S.alloc(1) for _ in range(6))
    g(f"s_lshr_b32 {sT[0]}, {sJ}, 1\ns_mul_i32 {sL}, {sT[0]}, 7\ns_and_b32 {sT[1]}, {sJ}, 1\ns_lshl_b32 {sT[2]}, {sT[1]}, 2")
    g(f"s_add_u32 {sT[2]}, {sT[2]}, {sW}\ns_add_u32 {sL}, {sL}, {sT[2]}")
    g(f"s_cmp_eq_u32 {sT[2]}, 7\ns_cselect_b32 {sIdle}, {OOB}, 0")
    g(f"s_lshl_b32 {sW3}, {sL}, 7\ns_add_u32 {sW3}, {sW3}, {sIdle}")
    if o.rot:
        g(f"s_lshl_b32 {sRot3}, {sX}, 1")
        if o.rotp & 1:
            g(f"s_lshl_b32 {sRot3}, {sPP}, 2")
        if o.rotp & 4:
            g(f"s_mov_b32 {sRot3}, 0")
        if o.rotj & 2:
            g(f"s_lshl_b32 {sT[0]}, {sJ}, 1\ns_xor_b32 {sRot3}, {sRot3}, {sT[0]}")
    g(f"s_add_u32 {sRing}, {sLdsW}, {LB}")
    if o.fake & 1:
        g(f"s_mov_b32 {sW3}, {OOB}")
    d3, ra = V.alloc(4), V.alloc(2)
    g(f"v_lshrrev_b32 {t0}, 3, v0\nv_and_b32 {t2}, 1, {vKq}\nv_lshlrev_b32 {t2}, 2, {t2}")
    g(f"v_xor_b32 {t3}, {t2}, {vS8}\nv_lshlrev_b32 {t3}, 4, {t3}")
    g(f"v_mul_u32_u24 {d3[0]}, 3584, {t0}\nv_add_u32 {d3[0]}, {d3[0]}, {t3}")
    for i in range(1, 4):
        g(f"v_add_u32 {d3[i]}, {i*(8*3584-1024)}, {d3[0]}")
    g(f"v_lshrrev_b32 {t0}, 5, v0\nv_lshl_add_u32 {t0}, {t0}, 2, {vR4}\nv_lshl_add_u32 {t0}, {t0}, 7, {vC8}")
    g(f"v_and_b32 {t2}, 1, {vKq}\nv_lshl_add_u32 {t0}, {t2}, 5, {t0}\nv_lshrrev_b32 {t2}, 1, {vR4}\nv_lshl_add_u32 {t0}, {t2}, 6, {t0}")
    g(f"v_add_u32 {ra[0]}, {sRing}, {t0}\nv_xor_b32 {ra[1]}, 64, {ra[0]}")
    xf = V.alloc(64, at=48)
    tmp = V.alloc(8, at=112)
    st, gk1 = V.alloc(4, at=120), V.alloc(4, at=124)
    cs, ones = V.alloc(16, at=160), V.alloc(4, at=176)
    wf, acc = V.alloc(48, at=192), V.alloc(16, at=240)
    vCs = V.alloc(1)
    for i in range(4):
        g(f"v_mov_b32 {st[i]}, 0\nv_mov_b32 {ones[i]}, {sOnes}")
    g(f"s_lshl_b32 {sT[0]}, {sW}, 6\ns_add_u32 {sT[0]}, {sT[0]}, {C_CS}\nv_lshl_add_u32 {vCs}, {vKq}, 4, {sT[0]}")
    pump_off()
    Bg.flush(Bg.cap)
    stamp("setup")

    def x_reads(n):
        Bg.flush(Bg.find("dma", f"x{n}"))
        g.wait(vm=f"x{n}")
        for b in range(2):
            g.ds(f"ds_read_b128 {xf.r(8*n + 4*b, 4)}, {xa[b]} offset:{LA + n*2048}", f"x{n}")

    def stats(n):
        g.wait(lg=f"x{n}")
        for i in range(0 if o.abl & 16 else 8):
            g(f"v_dot2c_f32_bf16 {st[i & 1]}, {sOnes}, {xf[8*n+i]}")
            g(f"v_dot2c_f32_bf16 {st[2 + (i & 1)]}, {xf[8*n+i]}, {xf[8*n+i]}")

    def ready_store():
        g.wait(vm="clr")
        g(f"s_mov_b64 exec, 1\nv_mov_b32 {vOne}, 1")
        g.vm(f"buffer_store_dword {vOne}, off, {R['dbg']}, {sLead} sc1", "clr")
        g("s_mov_b64 exec, -1")

    if o.touch & 2 and o.touch2 not in ("par", "w2", "h"):
        at = Bg.find("dma", o.touch2)
        Bg.ops[at:at] = [("dma", "tch", lambda: touch(14, ("w3", "w4") if o.touch4 < 0 else ("w3",)))]
    Bg.cap = len(Bg.ops)
    pump_on()
    x_reads(0)
    for n in range(1, 8):
        x_reads(n)
        mark(4, f"p_x{n}")
        stats(n - 1)
    stats(7)
    xa.free(); xd.free()
    stamp("x_in")
    g(f"v_add_f32 {st[0]}, {st[0]}, {st[1]}\nv_add_f32 {st[2]}, {st[2]}, {st[3]}")
    for sw in ("32", "16"):
        g(f"v_mov_b32 {st[1]}, {st[0]}\nv_mov_b32 {st[3]}, {st[2]}")
        g(f"v_permlane{sw}_swap_b32 {st[0]}, {st[1]}\nv_permlane{sw}_swap_b32 {st[2]}, {st[3]}")
        g(f"v_add_f32 {st[0]}, {st[0]}, {st[1]}\nv_add_f32 {st[2]}, {st[2]}, {st[3]}")
    run(ln_stats(st[0], st[2], st[1], gk1))
    pump_off()
    mark(4, "p_ln")
    Bg.flush(len(Bg.ops))
    mark(4, "p_w1iss")
    Bg.thresh = o.thresh

    gw, vD, shk = V.alloc(8, at=136), V.alloc(1), V.alloc(2)
    for i in range(4):
        g(f"v_add_u32 {wd[i]}, {i*7168}, {vW2}")
    g(f"s_lshl_b32 {sT[0]}, {sW}, 2\ns_xor_b32 {sT[0]}, {sT[0]}, {sPP}\ns_lshl_b32 {sM}, {sT[0]}, 12")
    g(f"s_lshl_b32 {sT[1]}, {sJ}, 1\ns_xor_b32 {sT[0]}, {sT[0]}, {sT[1]}\ns_lshl_b32 {sOff}, {sT[0]}, 15\ns_add_u32 {sOff}, {sOff}, {sCol}")
    g(f"s_lshl_b32 {sT[3]}, {sCh}, 1\nv_lshlrev_b32 {t3}, 3, {vKq}\nv_mov_b32 {vD}, 0")

    def one_dma(key, m0, text, tag):
        def fn():
            if g.m0 != key:
                g(m0)
                g.m0 = key
            g.vm(text, tag)
        return ("dma", tag, fn)
    Bg.ops.append(one_dma("k0", f"s_mov_b32 m0, {sK0}", f"buffer_load_dwordx4 {vK0}, {R['k']}, 0 offen {o.nt_once} lds", "par"))
    for i in range(2):
        Bg.ops.append(one_dma("k", f"s_add_u32 m0, {sC2}, {C_K + 1024}", f"buffer_load_dwordx4 {vW2}, {R['k']}, {(sKV, sKV2)[i]} offen offset:{i*1024} {o.nt_once} lds", "par"))
    for i in range(2):
        Bg.ops.append(one_dma("v", f"s_add_u32 m0, {sC2}, {C_V}", f"buffer_load_dwordx4 {vV[i]}, {R['v']}, {(sKV, sKV2)[i]} offen offset:{i*1024} {o.nt_once} lds", "par"))
    Bg.ops.append(("dma", "par", lambda: g.vm(f"buffer_load_dwordx2 {shk}, {vSk}, {R['shift_k']}, {sSk} offen", "par")))
    for i in range(2):
        Bg.ops.append(one_dma("q", f"s_mov_b32 m0, {sQ}", f"buffer_load_dwordx4 {vQa[i]}, {R['q']}, {sKV} offen offset:{i*1024} {o.pol_q} lds", "par"))
    for T in range(4):
        Bg.ops.append(("dma", "par", lambda T=T: g.vm(f"buffer_load_dwordx2 {gw.r(2*T,2)}, {t3}, {R['gate_w']}, {sCol} offen offset:{32*T}", "par")))
    Bg.ops.append(("dma", "par", lambda: g.vm(f"buffer_load_short_d16_hi {vD}, off, {R['ssm_D']}, {sT[3]}", "par")))
    for n in range(4):
        for i in range(4):
            Bg.ops.append(("dma", "w2", lambda n=n, i=i: w_dma("w2", LA, n, i)))
    if o.touch & 2 and o.touch2 in ("par", "w2"):
        at = Bg.find("dma", o.touch2)
        Bg.ops[at:at] = [("dma", "w2" if o.touch2 == "w2" else "tch", lambda: touch(14, ("w3", "w4")))]
    w3r = A.alloc(256)
    sG4 = []
    d4 = Reg(V, d3.base, 4)

    def w4home(n, ft, e2=None):
        k, b = ("v", 160 + 8*n + 4*ft) if n < 12 else ("a", 8*(n-12) + 4*ft)
        return f"{k}[{b}:{b+3}]" if e2 is None else f"{k}[{b+2*e2}:{b+2*e2+1}]"

    rx, sRx = [], []
    prev = lambda n: n - 4 if n < 26 else None if n < 28 else n - 6
    slot = lambda n: (n & 3) if n < 26 else n - 26

    def d4_setup():
        g(f"v_and_b32 {d4[1]}, 127, {d3[0]}\nv_lshrrev_b32 {d4[0]}, 3, v0\nv_lshl_add_u32 {d4[0]}, {d4[0]}, 10, {d4[1]}")
        for i in range(1, 4):
            g(f"v_add_u32 {d4[i]}, {i*7168}, {d4[0]}")

    def st_setup(n):
        def fn():
            if n == 26:
                rx.append(V.alloc(2))
                sRx.append(S.alloc(1))
                g(f"s_lshl_b32 {sRx[0]}, {sW}, 13\ns_sub_u32 {sSt}, {sRx[0]}, {sRing}\nv_add_u32 {rx[0][0]}, {sSt}, {ra[0]}\nv_add_u32 {rx[0][1]}, {sSt}, {ra[1]}")
            if not o.rot:
                if n == 16:
                    d4_setup()
                g(f"s_add_u32 {sSt}, {sW3 if n < 16 else sW4}, {n*32*3584 if n < 16 else (n-16)*32768}")
            elif n < 16:
                g(f"s_xor_b32 {sSt}, {sRot3}, {n}\ns_mul_i32 {sSt}, {sSt}, {32*3584}\ns_add_u32 {sSt}, {sSt}, {sW3}")
            else:
                if n == 16:
                    d4_setup()
                g(f"s_lshl_b32 {sSt}, {sG4[n-16]}, 4\ns_add_u32 {sSt}, {sSt}, {sW4}")
        return ("set", n, fn)

    def st_dma(n, i):
        def fn():
            if i == 0 and n >= 4 and prev(n) is not None:
                g.wait(lg=f"sr{prev(n)}")
            if g.m0 != ("st", n):
                g(f"s_add_u32 m0, {sRx[0] if n in (26, 27) else sRing}, {slot(n)*4096}")
                g.m0 = ("st", n)
            g.vm(f"buffer_load_dwordx4 {d3[i]}, {R['w3' if n < 16 else 'w4']}, {sSt} offen offset:{i*1024} {o.pol_w} lds", f"sd{n}")
        return ("dma", n, fn)

    def st_rd(n, u, ft, e2):
        def fn():
            g.wait(vm=f"sd{n}")
            if n < 16:
                dst, off = w3r.r(16*n + 8*u + 4*ft + 2*e2, 2), e2 * 2048 + u * 1024
            else:
                dst, off = w4home(2*(n-16) + u, ft, e2), u * 2048 + e2 * 1024
            if not o.abl & 32:
                g.ds(f"ds_read_b64_tr_b16 {dst}, {(rx[0] if n in (26, 27) else ra)[ft]} offset:{slot(n)*4096 + off}", f"sr{n}")
        return ("rd0" if (u, ft, e2) == (0, 0, 0) else "rd", n, fn)
    allrd = lambda n: [st_rd(n, u, ft, e2) for u in range(2) for ft in range(2) for e2 in range(2)]
    alldma = lambda n: [st_setup(n)] + [st_dma(n, i) for i in range(4)]
    for n in range(25):
        rds = allrd(n - 3) if n >= 3 else []
        Bg.ops.append(st_setup(n))
        for i in range(4):
            Bg.ops.append(st_dma(n, i))
            Bg.ops += rds[4*i:4*i+4]
    for k, (buf, part) in enumerate((("w3", 0), ("w3", 1), ("w4", 0), ("w4", 1))):
        pos = o.tx34.split(":")[k] if o.tx34 else ""
        if pos:
            at = Bg.find("dma", int(pos) if pos.isdigit() else pos)
            Bg.ops[at:at] = [("dma", f"tx3{k}", lambda buf=buf, part=part: touchx(buf, 56, part, sSt))]
    if o.touch4 >= 0:
        at = Bg.find("dma", o.touch4)
        Bg.ops[at:at] = [("dma", "tch4", lambda: touch(14, ("w4",), sSt))]
    if o.t3 & 2:
        at = Bg.find("dma", o.t3_at)
        Bg.ops[at:at] = [("dma", "tch3", lambda: touch3(14, ("w4",), sSt))]
    Bg.ops += alldma(25) + alldma(26) + alldma(27)
    Bg.ops += allrd(22) + allrd(23)[:4] + alldma(28) + allrd(23)[4:] + allrd(24)[:4] + alldma(29) + allrd(24)[4:]
    for n in range(25, 30):
        Bg.ops += allrd(n)

    def wfrag(ks, T, first):
        if not first and o.pre2 and ks >= 8:
            return f"a[{128 + 16*(ks-8) + 4*T}:{128 + 16*(ks-8) + 4*T + 3}]"
        return wf.r(16*(ks % 3) + 4*T, 4)

    def wreads(ks, first):
        if not first and o.pre2 and ks >= 8:
            return
        for T in range(4):
            for e2 in range(2):
                if o.abl & 1024 and first and T >= 2:
                    continue
                ad, off = (wa[T], ks*4096 + e2*512) if first else (wa[2*T + e2], ks*4096)
                g.ds(f"ds_read_b64_tr_b16 {wf.r(16*(ks % 3) + 4*T + 2*e2, 2)}, {ad} offset:{off}", f"w{ks}")
            yield

    def gemm16(tok, first, vmtag=None, hook=None, pre=None):
        order = list(range(16))
        if not first and o.pre2:
            order = [k for i in range(8) for k in (i, i + 8)]
        slow = [k for k in order if first or not o.pre2 or k < 8]
        for pos, ks in enumerate(order):
            if pre:
                pre(ks)
            if first or not o.pre2:
                nxt = wreads(ks + 2, first) if ks < 14 else iter(())
            elif ks < 8:
                both = wreads(ks + 2, first) if ks < 6 else iter(())
                nxt = (next(both, None) if i % 2 else None for i in range(4))
            else:
                nxt = (next(both, None) if i % 2 else None for i in range(4))
            g.wait(vm=vmtag and f"{vmtag}{ks}", lg=f"w{ks}")
            for T in range(4):
                g(f"v_mfma_f32_16x16x32_bf16 {acc.r(4*T,4)}, {wfrag(ks, T, first)}, {tok.r(4*ks,4)}, {acc.r(4*T,4) if pos else 0}")
                next(nxt, None)
            if first:
                g(f"v_mfma_f32_16x16x32_bf16 {cs.r(0,4)}, {wf.r(16*(ks % 3), 4)}, {ones}, {cs.r(0,4) if ks else 0}")
            if hook:
                hook(pos)

    Bg.cap = Bg.find("dma", "w2")
    g.wait(vm="w1a")
    g("s_barrier")
    stamp("w1_in")
    run(wreads(0, True))
    run(wreads(1, True))
    ready_store()
    sLead.free()
    pd = Poll(R["dbg"], vP32, 0, 1)

    def pre1(ks):
        if ks in (0, 3, 6, 10, 13):
            mark(4, f"p_k{ks}")
        if ks == 6:
            g.wait(vm="w1b")
            g("s_barrier")
            mark(4, "p_w1b")

    def hook1(ks):
        if ks == o.dpoll_at:
            pd.issue()
        Bg.step()
    gemm16(xf, True, hook=hook1, pre=pre1)
    mark(4, "p_loop")
    ones.free(); R["w1"].free()
    g.ds(f"ds_write_b128 {vCs}, {cs.r(0,4)}", "csw")
    Bg.flush(Bg.find("dma", "par"))
    for r in (R["q"], R["k"], R["v"], R["shift_k"], R["ssm_D"], R["gate_w"], vQa, sKV, sKV2, sC2, vW2, vV, vK0, vSk, sK0, sSk):
        r.free()
    for i in range(4):
        g(f"v_fmac_f32 {acc[i]}, {st[1]}, {cs[i]}")
    g.wait(lg="csw")
    g("s_barrier")
    stamp("g1_mfma")
    for i in range(1, 4):
        g(f"v_xor_b32 {t0}, {64*i}, {vCs}")
        g.ds(f"ds_read_b128 {cs.r(4*i,4)}, {t0}", f"cs{i}")
    vCs.free()
    hp = V.alloc(8, at=128)
    Bg.cap = Bg.find("dma", "w2")
    pump_on()
    for i in range(1, 4):
        g.wait(lg=f"cs{i}")
        for e in range(4):
            g(f"v_fmac_f32 {acc[4*i+e]}, {st[1]}, {cs[4*i+e]}")
    st.free(); cs.free()

    def h_store(gg):
        if gg == 0 and o.dpoll_at == 16:
            pd.issue()
        g.vm(f"buffer_store_dwordx4 {hp.r(4*gg,4)}, {vL16}, {R['ws']}, {sHs[gg]} offen sc1", "hst")
    gelu_pk(acc, 16, gk1, hp, tmp, h_store)
    if o.touch & 2 and o.touch2 == "h":
        with g.hold():
            touch(14, ("w3", "w4"))
    gk1.free(); sHs.free(); acc.free()
    stamp("h_st")

    qp = V.alloc(8, at=120)
    g(f"v_lshrrev_b32 {t0}, 1, {vC}\nv_lshrrev_b32 {t2}, 1, {vKq}\nv_xor_b32 {t0}, {t0}, {t2}\nv_lshlrev_b32 {t0}, 4, {t0}")
    g(f"v_lshl_add_u32 {t0}, {vC}, 7, {t0}\nv_and_b32 {t2}, 1, {vKq}\nv_lshl_add_u32 {t0}, {t2}, 3, {t0}\nv_add_u32 {t0}, {sQ}, {t0}")
    Bg.cap = Bg.find("dma", o.bg_a)
    mark(2, "a_pre")
    g.wait(vm="par")
    mark(2, "a_par")
    g("s_barrier")
    mark(2, "a_bar")
    for T in range(4):
        g(f"v_xor_b32 {t2}, {32*T}, {t0}")
        g.ds(f"ds_read_b64 {qp.r(2*T,2)}, {t2}", "q")
    sQ.free()
    up = V.alloc(8, at=160)
    kk = xf

    def kv_reads(m0):
        g.ds(f"ds_read_b64_tr_b16 {kk.r(32 + m0//2, 2)}, {ka[2]} offset:{m0*512}", f"k{m0}")
        for m in range(m0, m0 + 4):
            g.ds(f"ds_read_b64_tr_b16 {kk.r(2*m, 2)}, {ka[m & 1]} offset:{(m >> 1)*1024}", f"k{m0}")
    def hflag():
        pd.check()
        R["dbg"].free()
        if o.local:
            g.vm(f"buffer_load_dword {vDum}, off, {R['ws']}, {sLp} sc1", "pf")
        g.wait(vm="hst")
        flag_set(F_H)
        if o.l2pf & 1:
            with g.hold():
                g(f"v_lshlrev_b32 {vOne}, 7, {vC}")
                g.vm(f"buffer_load_dword {vDum}, {vOne}, {R['ws']}, {sHo} offen sc1", "pf")
        hp.free()
    mark(2, "a_pd")
    kv_reads(0)
    kv_reads(4)
    for m0 in range(0, 16, 4):
        g.wait(lg=f"k{m0}")
        if m0 + 8 < 16:
            kv_reads(m0 + 8)
        for m in range(m0, m0 + (0 if o.abl & 2048 else 4)):
            g(f"v_dot2_f32_bf16 {kk[40+m]}, {kk[2*m]}, {shk[0]}, 0")
        for m in range(m0, m0 + (0 if o.abl & 2048 else 4)):
            g(f"v_dot2_f32_bf16 {kk[40+m]}, {kk[2*m+1]}, {shk[1]}, {kk[40+m]}")
        for i in range(2):
            g(f"v_lshlrev_b32 {tmp[2*i]}, 16, {kk[32 + m0//2 + i]}\nv_and_b32 {tmp[2*i+1]}, {sMask}, {kk[32 + m0//2 + i]}")
        for i in range(2):
            g(f"v_pk_mul_f32 {tmp.r(2*i,2)}, {tmp.r(2*i,2)}, {kk.r(40 + m0 + 2*i, 2)}")
        for i in range(2):
            g(f"v_cvt_pk_bf16_f32 {up[m0//2 + i]}, {tmp[2*i]}, {tmp[2*i+1]}")
        mark(2, f"a_kv{m0}")
        if m0 == o.hflag_m:
            hflag()
            mark(2, "a_hflag")
        if m0 == 4:
            g.ds(f"ds_write_b128 {ua[0]}, {up.r(0,4)}", "uw")
            g(f"v_xor_b32 {ua[0]}, 16, {ua[0]}")
    g.ds(f"ds_write_b128 {ua[0]}, {up.r(4,4)}", "uw")
    shk.free(); ka.free()

    sTr = S.alloc(1)
    g(f"s_lshl_b32 {sT[0]}, {sJ}, 18\ns_lshl_b32 {sT[1]}, {sW}, 16\ns_add_u32 {sTr}, {sT[0]}, {sT[1]}\ns_lshl_b32 {sT[0]}, {sP}, 7\ns_add_u32 {sTr}, {sTr}, {sT[0]}")
    g(f"s_add_u32 {sT[0]}, {sTr}, {UBUF}\ns_add_u32 {sT[1]}, {sTr}, {UBUF + 32768}")
    g.wait(lg="uw")
    g.ds(f"ds_read_b128 {up.r(0,4)}, {ua[1]}", "ur")
    g.ds(f"ds_read_b128 {up.r(4,4)}, {ua[1]} offset:1024", "ur")
    ua.free()
    if o.hflag_m >= 16:
        hflag()
    stamp("h_out")
    g.wait(lg="ur")
    for i in range(2):
        g.vm(f"buffer_store_dwordx4 {up.r(4*i,4)}, {vT4k}, {R['ws']}, {sT[i]} offen sc1", "ust")
    g(f"v_lshl_add_u32 {t0}, {vKq}, 2, {vR4}\nv_bfe_u32 {t2}, {t0}, 1, 2\nv_lshl_add_u32 {t0}, {t0}, 7, {vC8}")
    g(f"s_and_b32 {sT[0]}, {sW}, 1\ns_lshl_b32 {sT[0]}, {sT[0]}, 11\nv_lshl_add_u32 {t0}, {t2}, 5, {t0}\nv_add_u32 {wa[0]}, {sT[0]}, {t0}")
    for i in range(1, 8):
        g(f"v_xor_b32 {wa[i]}, {32*(i >> 1) + 2048*(i & 1)}, {wa[0]}")
    vP8 = V.alloc(1)
    g(f"s_lshl_b32 {sT[0]}, {sW}, 2\nv_lshl_add_u32 {vP8}, {vS8}, 4, {sT[0]}")
    ph = Poll(R["ws"], vP8, None, F_H, local=True)
    cA = xf
    pump_off()
    mark(2, "a_set")
    Bg.flush(Bg.find("dma", "w2"))
    mark(2, "a_w2iss")
    for r in (R["w2"], sM, sOff, sWo, wd):
        r.free()

    keys = ("vmq", "lgq", "vmt", "lgt", "clock", "mfree", "m0", "q", "lq", "last_done", "ta")

    def two_paths(body, before=None):
        lodd, ljoin = g.label("odd"), g.label("join")
        g(f"s_bitcmp1_b32 {sW}, 0\ns_cbranch_scc1 {lodd}")
        saved = (copy.deepcopy({k: getattr(g, k) for k in keys}), Bg.idx)
        ends = []
        for par in range(2):
            if par:
                g(f"{lodd}:")
                for k, v in copy.deepcopy(saved[0]).items():
                    setattr(g, k, v)
                Bg.idx = saved[1]
            extra = body(par)
            ends.append((Bg.idx, list(g.vmq), list(g.lgq), extra, g.clock))
            if not par:
                g(f"s_branch {ljoin}")
        g(f"{ljoin}:")
        assert ends[0][0] == ends[1][0]
        g.vmq = merge_queues(ends[0][1], ends[1][1])
        g.lgq = merge_queues(ends[0][2], ends[1][2])
        g.clock = max(ends[0][4], ends[1][4])
        g.m0 = None

    def conv_all(par, events, spare=None):
        tiles = TILES[par]
        top = max(tiles)
        seq = [(d, mp) for d in (0, 1, 2, 3) for mp in range(-1, 2 * top + 1)]

        def bread(i):
            d, mp = seq[i]
            for e2 in range(2):
                if not o.abl & 2:
                    g.ds(f"ds_read_b64 {cBr(i, 2*e2, 2)}, {aB[4*e2 + ((d + mp - 1) & 3)]} offset:{256*(mp+1)}", f"B{i}")
                yield
        for i in range(o.bdist):
            run(bread(i))
        started = set()
        cnt = 0
        ndma = sum(1 for x in Bg.ops[Bg.idx:Bg.cap] if x[0] == "dma")
        per = max(1, 138 // max(ndma, 1))
        done = [-per]
        for i, (d, mp) in enumerate(seq):
            rd = bread(i + o.bdist) if i + o.bdist < len(seq) else iter(())
            if i % 2 == 0:
                g.wait(lg=f"B{min(i + 1, len(seq) - 1)}")
            for ti, jb in enumerate(tiles):
                m = 2 * jb - mp
                if m < 0:
                    continue
                c = (pp, qq)[d & 1].r(6*ti + (d & 2), 4)
                first = d < 2 and (d, ti) not in started
                started.add((d, ti))
                if not o.abl & 1:
                    g(f"v_mfma_f32_16x16x32_bf16 {c}, {cA.r(4*m,4)}, {cBr(i, 0, 4)}, {0 if first else c}")
                cnt += 1
                next(rd, None)
                if cnt in events:
                    mark(5, f"c{cnt}a")
                    events[cnt]()
                    mark(5, f"c{cnt}b")
                if spare and cnt > 144 - 2 * len(spare) - 8 and cnt % 2:
                    spare.pop(0)()
                for _ in range(2):
                    if Bg.idx < Bg.cap and (Bg.ops[Bg.idx][0] != "dma" or cnt - done[0] >= per):
                        if Bg.ops[Bg.idx][0] == "dma":
                            done[0] = cnt
                        Bg.step(True)
                        if g.slack() < 4:
                            break
            run(rd)
        Bg.flush(Bg.cap)

    sCH, sCU, sUl, sFu = (S.alloc(1) for _ in range(4))
    g(f"s_lshr_b32 {sT[2]}, {sW}, 1\ns_and_b32 {sT[3]}, {sW}, 1")
    g(f"s_mul_i32 {sCH}, {sT[2]}, {HP}\ns_add_u32 {sCH}, {sCH}, {C_H}\ns_mul_i32 {sCU}, {sT[2]}, {4*UP}\ns_add_u32 {sCU}, {sCU}, {C_U}")
    g(f"s_lshl_b32 {sT[1]}, {sCh}, 12")
    Bg.flush(Bg.find("dma", o.bg_a))
    mark(2, "a_bga")
    if o.hpoll == 0:
        ph.issue()
    Bg.cap = Bg.find("dma", o.cap_p2)
    Bg.flush(Bg.find("dma", o.bg_b))
    mark(2, "a_bgb")
    g.wait(vm="w2")
    g("s_barrier")
    stamp("u_out")
    if o.hpoll == 1:
        ph.issue()
    g(f"s_add_u32 m0, {sCH}, 32\ns_nop 0")
    fl = (g.vm(f"buffer_load_dwordx4 {vL16}, {R['ssm_k']}, {sT[1]} offen offset:{i*1024} {o.nt_once} lds", "fin") for i in range(4))
    if o.hpoll < 2:
        next(fl)
        g.pump = lambda: next(fl, None) if g.ta - g.clock < 0 else None
    if o.pre2:
        assert o.cap_p2 <= 10
        for ks in range(8, 16):
            for T in range(4):
                for e2 in range(2):
                    b = 128 + 16*(ks-8) + 4*T + 2*e2
                    g.ds(f"ds_read_b64_tr_b16 a[{b}:{b+1}], {wa[2*T + e2]} offset:{ks*4096}", "wpre")
            if o.hpoll >= 2 and ks == 6 + o.hpoll:
                ph.issue()
                g.pump = lambda: next(fl, None) if g.ta - g.clock < 0 else None
    run(wreads(0, False))
    run(wreads(1, False))

    g.pump = None
    run(fl)
    R["ssm_k"].free()
    ph.check(then=lambda: flag_set(F_U))
    up.free(); vP8.free()
    stamp("h_flag")
    sHl2 = S.alloc(2)
    acc = V.alloc(16, at=240)

    def h1_load(pos):
        ks = (pos >> 1) + 8 * (pos & 1) if o.pre2 else pos
        so = sHl2[ks >> 3]
        if ks & 1 == 0:
            g(f"s_xor_b32 {so}, {sHo}, {ks << 10}")
        g.vm(f"buffer_load_dwordx4 {xf.r(4*ks,4)}, {vL16}, {R['ws']}, {so} offen offset:{(ks & 1)*1024} sc1", f"h{ks}")
    hl = (h1_load(ks) for ks in range(9))
    next(hl)
    g.pump = lambda: next(hl, None) if g.ta - g.clock < 30 else None
    gs = V.alloc(4)
    g(f"v_mov_b32 {gs[1]}, 0\nv_mov_b32 {gs[3]}, 0")
    g.wait(lg="q")
    for i in range(8):
        g(f"v_dot2c_f32_bf16 {gs[1]}, {qp[i]}, {gw[i]}")
    gw.free()
    g(f"s_lshl_b32 {sUl}, {sCh}, 12\ns_add_u32 {sUl}, {sUl}, {UBUF}")
    g(f"s_lshr_b32 {sT[0]}, {sP}, 3\ns_lshl_b32 {sT[0]}, {sT[0]}, 7\ns_lshl_b32 {sFu}, {sJ}, 9\ns_add_u32 {sFu}, {sFu}, {sT[0]}")
    aA = V.alloc(1)
    g(f"v_lshlrev_b32 {t0}, 6, {vKq}\nv_add_u32 {t0}, {t0}, {vC8}\nv_lshlrev_b32 {t2}, 3, {vR4}\nv_sub_u32 {t0}, {t0}, {t2}")
    g(f"s_add_u32 {sT[0]}, {sCH}, 32\nv_add_u32 {aA}, {sT[0]}, {t0}")
    sW4 = S.alloc(1)
    g(f"s_mul_i32 {sW4}, {sW}, {448*1024}\ns_add_u32 {sW4}, {sW4}, {sCol}")
    if o.fake & 2:
        g(f"s_mov_b32 {sW4}, {OOB}")
    if o.rot:
        sG4 += [S.alloc(1) for _ in range(14)]
        if o.rotp & 2:
            g(f"s_mul_i32 {sT[0]}, {sPP}, 7\ns_lshr_b32 {sT[0]}, {sT[0]}, 1\ns_lshl_b32 {sG4[0]}, {sT[0]}, 11")
        elif o.rotp & 8:
            g(f"s_mov_b32 {sG4[0]}, 0")
        elif o.rotj & 1:
            g(f"s_add_u32 {sT[0]}, {sX}, {sJ}\ns_and_b32 {sT[0]}, {sT[0]}, 7\ns_mul_i32 {sT[0]}, {sT[0]}, 7\ns_lshr_b32 {sT[0]}, {sT[0]}, 2\ns_lshl_b32 {sG4[0]}, {sT[0]}, 11")
        else:
            g(f"s_mul_i32 {sT[0]}, {sX}, 7\ns_lshr_b32 {sT[0]}, {sT[0]}, 2\ns_lshl_b32 {sG4[0]}, {sT[0]}, 11")
        for n in range(1, 14):
            g(f"s_add_u32 {sG4[n]}, {sG4[n-1]}, 2048\ns_cmp_eq_u32 {sG4[n]}, {14*2048}\ns_cselect_b32 {sG4[n]}, 0, {sG4[n]}")
    g(f"v_mov_b32 {tmp[0]}, 0\nv_mov_b32 {tmp[1]}, 0")
    g(f"v_lshl_add_u32 {t0}, v0, 3, {sCU}\nv_add_u32 {t2}, {sCH}, {vC8}")
    g.ds(f"ds_write_b64 {t0}, {tmp.r(0,2)}")
    g.ds(f"ds_write_b64 {t2}, {tmp.r(0,2)}")
    sX1s, sX1l, sSto, sSto2, sStw, sY, sXo, sH2, sHst, sFy = (S.alloc(1) for _ in range(10))
    aN, aY, vSt, vSw, vXs, vN0 = (V.alloc(1) for _ in range(6))
    g(f"s_lshr_b32 {sT[0]}, {sW}, 1\ns_mul_i32 {sT[1]}, {sT[0]}, {NP}\ns_add_u32 {sT[1]}, {sT[1]}, {A_N}\nv_mov_b32 {vN0}, {sT[1]}")
    g.ds(f"ds_write2st64_b32 {vN0}, {tmp[0]}, {tmp[0]} offset0:0 offset1:9")
    g.ds(f"ds_write_b32 {vN0}, {tmp[0]} offset:{18*256}")
    g(f"v_lshl_add_u32 {t0}, {vC}, 2, {vKq}\nv_lshl_add_u32 {aN}, {t0}, 2, {sT[1]}")
    g(f"v_lshrrev_b32 {t0}, 2, {vC}\nv_lshlrev_b32 {t0}, 7, {t0}")
    g(f"v_lshl_add_u32 {t0}, {vKq}, 5, {t0}\nv_add_u32 {aY}, {t0}, {vC8}")
    g(f"s_lshl_b32 {sT[3]}, {sP}, 16\ns_add_u32 {sT[3]}, {sT[3]}, {X1BUF}")
    g(f"s_lshl_b32 {sT[0]}, {sT[0]}, 15\ns_and_b32 {sT[1]}, {sW}, 1\ns_lshl_b32 {sT[2]}, {sT[1]}, 8\ns_add_u32 {sT[0]}, {sT[0]}, {sT[2]}")
    g(f"s_lshl_b32 {sT[2]}, {sJ}, 12\ns_add_u32 {sT[0]}, {sT[0]}, {sT[2]}\ns_add_u32 {sX1s}, {sT[0]}, {sT[3]}")
    if o.rot:
        g(f"s_lshl_b32 {sX1l}, {sW}, 2\ns_xor_b32 {sX1l}, {sX1l}, {sRot3}\ns_lshl_b32 {sX1l}, {sX1l}, 11\ns_add_u32 {sX1l}, {sX1l}, {sT[3]}")
    else:
        g(f"s_lshl_b32 {sX1l}, {sW}, 13\ns_add_u32 {sX1l}, {sX1l}, {sT[3]}")
    g(f"s_lshl_b32 {sSto}, {sP}, 13\ns_add_u32 {sSto}, {sSto}, {STATS}\ns_add_u32 {sSto2}, {sSto}, 4096")
    g(f"s_lshl_b32 {sT[0]}, {sJ}, 10\ns_lshl_b32 {sT[2]}, {sW}, 8\ns_add_u32 {sT[0]}, {sT[0]}, {sT[2]}\ns_add_u32 {sStw}, {sT[0]}, {sSto}")
    g(f"s_lshl_b32 {sY}, {sCh}, 12\ns_add_u32 {sY}, {sY}, {YBUF}")
    g(f"v_lshlrev_b32 {t0}, 9, {vKq}\nv_lshl_add_u32 {vXs}, {vC}, 4, {t0}")
    g(f"v_lshrrev_b32 {t2}, 5, v0\nv_and_b32 {t3}, 1, {vKq}")
    g(f"v_lshlrev_b32 {t0}, 10, {t2}\nv_lshl_add_u32 {t0}, {t3}, 8, {t0}\nv_lshl_add_u32 {vSt}, {vC}, 3, {t0}")
    g(f"v_lshlrev_b32 {t0}, 2, {t2}\nv_lshl_add_u32 {t0}, {vC}, 3, {t0}")
    g(f"v_lshlrev_b32 {t2}, 6, {t2}\nv_lshl_add_u32 {t2}, {vC}, 2, {t2}\nv_add_u32 {t2}, 128, {t2}")
    g(f"v_cmp_eq_u32 vcc, 0, {t3}\ns_nop 1\nv_cndmask_b32 {vSw}, {t2}, {t0}, vcc")
    g(f"s_mul_i32 {sH2}, {sP}, 229376\ns_add_u32 {sH2}, {sH2}, {H2BUF}")
    g(f"s_lshl_b32 {sHst}, {sL}, 12\ns_add_u32 {sHst}, {sHst}, {sH2}\ns_add_u32 {sHst}, {sHst}, {sIdle}")
    g(f"s_lshr_b32 {sT[0]}, {sP}, 2\ns_lshr_b32 {sT[1]}, 0x3b, {sT[0]}\ns_and_b32 {sT[1]}, {sT[1]}, 1\ns_lshl_b32 {sT[1]}, {sT[1]}, 7")
    g(f"s_lshl_b32 {sT[0]}, {sW}, 15\ns_add_u32 {sT[1]}, {sT[1]}, {sT[0]}\ns_lshl_b32 {sT[0]}, {sJ}, 9\ns_add_u32 {sFy}, {sT[1]}, {sT[0]}")
    g(f"v_mov_b32 {gs[0]}, 0\nv_mov_b32 {gs[2]}, 0")
    vPu = V.alloc(1)
    pu = Poll(R["ws"], vPu, sFu, F_U)
    g(f"v_lshlrev_b32 {vPu}, 10, {vP32}")
    for r in (sL, sIdle, sCh, sCH):
        r.free()
    mark(2, "b_set")
    g.pump = None
    run(hl)
    mark(2, "b_iss")

    def u_load(i):
        if i == 0:
            pu.check()
        if g.m0 != "u":
            g(f"s_add_u32 m0, {sCU}, 512\ns_nop 0")
            g.m0 = "u"
        g.vm(f"buffer_load_dwordx4 {vL16}, {R['ws']}, {sUl} offen offset:{1024*i} sc1 {o.pol_u} lds", "cin")

    def hook2(ks):
        if ks in (0, 4, 8, 12):
            mark(2, f"b_k{ks}")
        if ks == o.upoll_at:
            pu.issue()
        if ks + 9 < 16:
            h1_load(ks + 9)
        elif ks >= o.ucheck_at:
            u_load(ks - o.ucheck_at)
        else:
            Bg.step()
            Bg.step()
    gemm16(xf, False, vmtag="h", hook=hook2)
    sHl2.free(); sHo.free()
    stamp("g2_mfma")
    wa.free(); wf.free()
    g.wait(vm="fin")
    areads = [f"ds_read_b64_tr_b16 {xf.r(4*m + 2*e2, 2)}, {aA} offset:{256*m + 32 - 32*e2}" for m in range(15, -1, -1) for e2 in range(2)]
    g.pump = lambda: g.ds(areads.pop(0), "A") if areads else None
    x1p = V.alloc(8, at=128)
    for T in range(0, 4, 2):
        for i in range(4):
            g(f"v_dot2_f32_bf16 {tmp[2*i]}, {qp[2*T+i]}, {sLo1}, {acc[4*T+2*i]}")
            g(f"v_dot2_f32_bf16 {tmp[2*i+1]}, {qp[2*T+i]}, {sHi1}, {acc[4*T+2*i+1]}")
        for i in range(4):
            g(f"v_cvt_pk_bf16_f32 {x1p[2*T+i]}, {tmp[2*i]}, {tmp[2*i+1]}")
        g.vm(f"buffer_store_dwordx4 {x1p.r(2*T,4)}, {vXs}, {R['ws']}, {sX1s} offen offset:{T*1024} sc1", "xst")
    acc.free(); vXs.free()
    with g.hold():
        for i in range(max(0, 16 - o.ucheck_at), 4):
            u_load(i)
        sUl.free(); sFu.free(); vPu.free()

    for i in range(8):
        g(f"v_dot2c_f32_bf16 {gs[0]}, {sOnes}, {x1p[i]}")
        g(f"v_dot2c_f32_bf16 {gs[2]}, {x1p[i]}, {x1p[i]}")
    g(f"v_permlane32_swap_b32 {gs[0]}, {gs[2]}\nv_permlane32_swap_b32 {gs[1]}, {gs[3]}")
    g(f"v_add_f32 {gs[0]}, {gs[0]}, {gs[2]}\nv_add_f32 {gs[1]}, {gs[1]}, {gs[3]}")
    g(f"v_permlane16_swap_b32 {gs[0]}, {gs[1]}\nv_add_f32 {gs[0]}, {gs[0]}, {gs[1]}")
    g.vm(f"buffer_store_dword {gs[0]}, {vSw}, {R['ws']}, {sStw} offen sc1", "xst")
    sStw.free(); vSw.free()
    stamp("x1_st")

    pp = V.alloc(30, at=160)
    qq = V.alloc(30, at=190)
    uu = V.alloc(20, at=220)
    cB, cB2 = V.alloc(16, at=240), V.alloc(16, at=136)
    cBr = lambda i, k, n: (cB, cB2)[(i >> 2) & 1].r(4*(i & 3) + k, n)
    for ti in range(5):
        g(f"v_mov_b32 {qq[6*ti + 4]}, 0\nv_mov_b32 {qq[6*ti + 5]}, 0\nv_mov_b32 {pp[6*ti + 4]}, 0\nv_mov_b32 {pp[6*ti + 5]}, 0")
    aB = tmp
    aU = V.alloc(4)
    for e2 in range(2):
        g(f"v_lshlrev_b32 {t0}, 1, {vKq}\nv_sub_u32 {t0}, {vC}, {t0}\nv_add_u32 {t0}, {7 + e2}, {t0}")
        g(f"v_lshrrev_b32 {t2}, 2, {t0}\nv_lshl_add_u32 {t2}, {t2}, 7, {sCU}\nv_and_b32 {t3}, 3, {t0}\nv_lshl_add_u32 {t2}, {t3}, 3, {t2}\nv_lshrrev_b32 {t0}, 3, {t0}")
        for t in range(4):
            g(f"v_add_u32 {t3}, {t}, {t0}\nv_and_b32 {t3}, 3, {t3}\nv_lshl_add_u32 {aB[4*e2 + t]}, {t3}, 5, {t2}")
    g(f"v_lshrrev_b32 {t2}, 2, {vC}\nv_lshl_add_u32 {t2}, {t2}, 7, {sCU}\nv_add_u32 {t2}, {t2}, {vC8}\nv_lshl_add_u32 {t2}, {vKq}, 1, {t2}")
    g(f"v_add_u32 {t2}, 512, {t2}\nv_lshrrev_b32 {t0}, 3, {vC}")
    for t in range(4):
        g(f"v_add_u32 {t3}, {t}, {t0}\nv_and_b32 {t3}, 3, {t3}\nv_lshl_add_u32 {aU[t]}, {t3}, 5, {t2}")
    sCU.free()
    pump_off()
    while areads:
        g.ds(areads.pop(0), "A")
    px = Poll(R["ws"], vP32, None, F_X1, local=True)
    sv = [Reg(V, 152, 8), Reg(V, 248, 8)]
    gate = V.alloc(2)
    nb = [Reg(V, xf.base + 32, 32), Reg(V, xf.base, 32)]

    def st_loads(th):
        for i in range(4):
            g.vm(f"buffer_load_dwordx2 {sv[th].r(2*i, 2)}, {vSt}, {R['ws']}, {(sSto, sSto2)[i >> 1]} offen offset:{(i & 1)*2048 + th*512} sc1", f"s{th}")
            yield

    def x1_loads(th):
        for i in range(7, -1, -1):
            if i & 1:
                g(f"s_xor_b32 {sXo}, {sX1l}, {(i >> 1) << 11 | th << 15}")
            g.vm(f"buffer_load_dwordx4 {nb[th].r(4*i, 4)}, {vL16}, {R['ws']}, {sXo} offen offset:{(i & 1)*1024} sc1", f"n{th}_{i}")
            yield

    def fold(r, t):
        for sw in ("32", "16"):
            g(f"v_mov_b32 {t}, {r}\ns_nop 1\nv_permlane{sw}_swap_b32 {r}, {t}")
            yield
            g(f"v_add_f32 {r}, {r}, {t}")
            yield

    def gate_calc():
        g.wait(vm="gl")
        g(f"v_add_f32 {gate[0]}, {gate[0]}, {gate[1]}")
        yield
        yield from fold(gate[0], gate[1])
        yield from round_bf16(gate[0])
        for t in (f"v_mul_f32 {gate[0]}, {fbits(-LOG2E)}, {gate[0]}", f"v_exp_f32 {gate[0]}, {gate[0]}\ns_nop 0", f"v_add_f32 {gate[0]}, 1.0, {gate[0]}",
                  f"v_rcp_f32 {gate[0]}, {gate[0]}\ns_nop 0"):
            g(t)
            yield
        yield from round_bf16(gate[0])
        g(f"v_sub_f32 {gate[1]}, 1.0, {gate[0]}")
        yield
        yield from round_bf16(gate[1])

    def xflag():
        g.wait(vm="xst")
        flag_set(F_X1)
        if o.l2pf & 2:
            g(f"v_lshrrev_b32 {vOne}, 1, {vC}\nv_lshlrev_b32 {vOne}, 9, {vOne}\nv_and_b32 {t2}, 1, v0\nv_lshl_add_u32 {vOne}, {t2}, 7, {vOne}")
            g.vm(f"buffer_load_dword {vDum}, {vOne}, {R['ws']}, {sX1s} offen sc1", "pf")

    Bg.flush(Bg.find("dma", o.bg_u))
    Bg.cap = Bg.find("dma", o.cap2)

    def half2(par):
        tiles = TILES[par]
        ur = [lambda ti=ti, jb=jb, m=m: g.ds(f"ds_read_u16_d16_hi {uu[4*ti + m]}, {aU[(m + 2*jb) & 3]} offset:{512*jb}", f"U{ti}")
              for ti, jb in enumerate(tiles) for m in range(4)]
        g.wait(vm="cin")
        stamp("u_in"); idle("u_in")
        l0 = chain(st_loads(0), x1_loads(0))
        ev = {o.xflag_at: xflag, o.xpoll_at: px.issue, o.xcheck_at: lambda: px.check(free=par)}
        for i in range(4):
            ev[o.xcheck_at + 1 + 2*i] = lambda: next(l0)
        conv_all(par, ev, ur)
        if o.fine:
            stamp("cv_mfma")
        next(l0)
        g.pump = lambda: next(l0, None) if g.ta - g.clock < 30 else None
        for f in ur:
            f()
        g(f"v_add_u32 {vN0}, 4, {aN}")
        for ti, jb in enumerate(tiles):
            b = 6 * ti
            g(f"v_add_f32 {pp[b+4]}, {pp[b+4]}, {qq[b+3]}\nv_add_f32 {pp[b+5]}, {pp[b+5]}, {qq[b+4]}")
            g.ds(f"ds_write2st64_b32 {vN0}, {pp[b+4]}, {pp[b+5]} offset0:{jb} offset1:{jb + 9}", "Nw")
            g.ds(f"ds_write_b32 {vN0}, {qq[b+5]} offset:{(jb + 18)*256}", "Nw")
        for ti, jb in enumerate(tiles):
            b = 6 * ti
            g(f"v_add_f32 {pp[b+1]}, {pp[b+1]}, {qq[b]}\nv_add_f32 {pp[b+2]}, {pp[b+2]}, {qq[b+1]}\nv_add_f32 {pp[b+3]}, {pp[b+3]}, {qq[b+2]}")
        mark(5, "c_add")
        g.wait(lg="Nw")
        g("s_barrier")
        mark(5, "c_bar")
        for ti, jb in enumerate(tiles):
            g.ds(f"ds_read2st64_b32 {qq.r(6*ti,2)}, {aN} offset0:{jb} offset1:{jb + 9}", f"N{ti}")
            g.ds(f"ds_read_b32 {qq[6*ti+2]}, {aN} offset:{(jb + 18)*256}", f"N{ti}")
        for ti, jb in enumerate(tiles):
            for m in range(4):
                g(f"v_fmac_f32 {pp[6*ti+m]}, {vD}, {uu[4*ti + m]}")
        for ti, jb in enumerate(tiles):
            b = 6 * ti
            g.wait(lg=f"N{ti}")
            for m in range(3):
                g(f"v_add_f32 {pp[b+m]}, {pp[b+m]}, {qq[b+m]}")
            g(f"v_cvt_pk_bf16_f32 {pp[b]}, {pp[b]}, {pp[b+1]}\nv_cvt_pk_bf16_f32 {pp[b+1]}, {pp[b+2]}, {pp[b+3]}")
        mark(5, "c_cvt")
        g.pump = None
        run(l0)
        mark(5, "c_l0")
        for ti, jb in enumerate(tiles):
            g.vm(f"buffer_store_dwordx2 {pp.r(6*ti,2)}, {aY}, {R['ws']}, {sY} offen offset:{512*jb} sc1", "yst")
        return len(tiles)
    two_paths(half2)
    for r in (aA, aN, aU, aY, vD, gs, vN0, sY, pp, qq, uu, cB, cB2, sX1s):
        r.free()
    w4v = V.alloc(96, at=160)
    stamp("conv2")

    gk3 = [V.alloc(4), V.alloc(4)]
    vXw = V.alloc(1)
    g(f"s_lshl_b32 {sT[0]}, {sW}, 13\nv_add_u32 {vXw}, {sT[0]}, {vL16}")

    def norm(th, center):
        g.wait(vm=f"s{th}")
        r = sv[th]
        for d, s_ in ((0, 2), (1, 3), (4, 6), (5, 7), (0, 4), (1, 5)):
            g(f"v_add_f32 {r[d]}, {r[d]}, {r[s_]}")
            yield
        g(f"s_nop 1\nv_permlane32_swap_b32 {r[0]}, {r[1]}")
        yield
        g(f"v_add_f32 {r[0]}, {r[0]}, {r[1]}\nv_mov_b32 {r[1]}, {r[0]}")
        yield
        g(f"s_nop 1\nv_permlane32_swap_b32 {r[0]}, {r[1]}")
        yield
        yield from ln_mean(r[0], r[2])
        for i in range(7, -1, -1):
            g.wait(vm=f"n{th}_{i}")
            if th == 0 and i % 4 == 3:
                mark(3, f"n_{i}")
            if not ((o.abl & 8 and th) or (o.abl & 4096 and not th)):
                yield from center([nb[th][4*i + q] for q in range(4)], r[2], tmp)
            g.ds(f"ds_write_b128 {vXw}, {nb[th].r(4*i, 4)} offset:{LA + th*32768 + i*1024}", f"xw{th}")
            yield

    def gate_loads():
        g(f"v_lshlrev_b32 {t0}, 11, {vKq}\nv_lshl_add_u32 {t0}, {vC}, 2, {t0}\ns_lshl_b32 {sT[0]}, {sW}, 8\ns_add_u32 {sT[0]}, {sT[0]}, {sSto}")
        for i in range(2):
            g.vm(f"buffer_load_dword {gate[i]}, {t0}, {R['ws']}, {sT[0]} offen offset:{128 + i*1024} sc1", "gl")
            yield
    l1 = chain(st_loads(1), x1_loads(1), gate_loads())
    cnt1 = [0]

    def pump1():
        if g.ta - g.clock < 0 and cnt1[0] < o.l1_early:
            cnt1[0] += 1
            next(l1, None)
    g.pump = pump1
    run(norm(0, center_dot))
    g.pump = None
    Bg.cap = Bg.idx
    g.wait(lg="xw0")
    g("s_barrier")
    stamp("xn0"); idle("xn0")
    accs = [nb[0], nb[1]]
    tf = V.alloc(16, at=136)
    hq = V.alloc(8, at=152)

    def h_store2(th):
        def fn(f):
            if f == 0 and th:
                g(f"s_add_u32 {sHst}, {sHst}, {112*1024}")
            g.vm(f"buffer_store_dwordx4 {hq.r(4*(f & 1),4)}, {vL16}, {R['ws']}, {sHst} offen offset:{f*1024} {o.pol_st} sc1", f"Hst{th}")
        return fn

    def g3_pass(th, fillers, over, hook=None):
        def tread(ks):
            g.ds(f"ds_read_b128 {tf.r(4*(ks & 3), 4)}, {vL16} offset:{LA + th*32768 + ks*1024}", f"t{ks}")
        for ks in range(3):
            tread(ks)
        for ks in range(32):
            if th == 0 and ks % 2 == 0:
                Bg.flush(Bg.find("rd", ks // 2))
                g.wait(lg=f"sr{ks//2}")
            g.wait(lg=f"t{ks}")
            for ft in range(2):
                c = accs[th].r(16*ft, 16)
                if not (o.abl & 64 and ft):
                    g(f"v_mfma_f32_32x32x16_bf16 {c}, {w3r.r(8*ks + 4*ft, 4)}, {tf.r(4*(ks & 3), 4)}, {c if ks else 0}")
                if ft == 1 and ks + 3 < 32:
                    tread(ks + 3)
                if ft == 0 and ks % 4 == 0 and ks:
                    mark(3, f"g{th}_k{ks}")
                if hook:
                    hook(2*ks + ft)
                fill(fillers, over, reserve=4 * ft)
        mark(3, f"g{th}_loop")
        drain(fillers)
        mark(3, f"g{th}_drain")

    def scale(th):
        yield from ln_std(sv[th][0], sv[th][1], gk3[th][2])
        yield from ln_scale(gk3[th])
    f0 = [scale(0)]

    def hook0(i):
        if i % 2 == 0 and next(l1, 1) is not None:
            Bg.cap = Bg.find("dma", o.cap_a)
        if i == o.norm1_at:
            f0.append(chain(norm(1, center_plain), scale(1)))
        if i == o.yflag_at:
            g.wait(vm="yst")
            flag_set(F_Y)
    g3_pass(0, f0, o.q3a, hook0)
    for r in (sXo, sX1l, vSt, sSto2):
        r.free()
    g.wait(lg="xw1")
    g("s_barrier")
    stamp("g3a"); idle("g3a")
    Bg.cap = Bg.find("dma", o.cap_b)
    vP16, vP7 = V.alloc(1), V.alloc(1)
    py = Poll(R["ws"], vP16, sFy, F_Y)

    def hook3(i):
        if i == 2:
            g(f"v_lshrrev_b32 {vP16}, 1, {vC}\nv_lshlrev_b32 {vP16}, 12, {vP16}\nv_and_b32 {vP7}, 1, v0\nv_lshl_add_u32 {vP16}, {vP7}, 8, {vP16}")
        if i == 3:
            g(f"v_min_u32 {vP7}, 6, v0\ns_lshl_b32 {sT[0]}, {sW}, 5\nv_lshl_add_u32 {vP7}, {vP7}, 2, {sT[0]}")
            py.issue()
        if i == 24:
            py.check()
            g(f"s_add_u32 {sT[0]}, {sTr}, {YBUF}\ns_add_u32 {sT[1]}, {sTr}, {YBUF + 32768 - 1024}\ns_lshl_b32 {sT[2]}, {sW}, 11\ns_add_u32 m0, {sT[2]}, {C_Y}")
        if i == 25:
            g.vm(f"buffer_load_dwordx4 {vT4k}, {R['ws']}, {sT[0]} offen sc1 {o.pol_y} lds", "y")
            g.vm(f"buffer_load_dwordx4 {vT4k}, {R['ws']}, {sT[1]} offen offset:1024 sc1 {o.pol_y} lds", "y")

    nd = [sum(1 for x in Bg.ops[Bg.idx:Bg.cap] if x[0] == "dma"), 0]

    def hook3h(i):
        hook3(i)
        if i not in (24, 25) and nd[1] < nd[0] * i // 58 and Bg.idx < Bg.cap:
            nd[1] += Bg.ops[Bg.idx][0] == "dma"
            Bg.step(True)
        if i == 24:
            Bg.saved_cap, Bg.cap = Bg.cap, 0
        if i == 25:
            Bg.cap = Bg.saved_cap
    g3_pass(1, [Ops(x) for x in gelu_plain(accs[0], 32, gk3[0], hq, tmp, h_store2(0))], o.q3b, hook3h)
    vP16.free()
    stamp("g3b"); idle("g3b")
    if o.tail_bg == 2:
        Bg.cap = Bg.find("dma", 27)
        Bg.thresh = 400
    else:
        Bg.cap = Bg.find("dma", 29)
        Bg.flush(Bg.find("dma", 27))
    pa = Poll(R["ws"], vP7, None, F_HA, local=True)
    pb = Poll(R["ws"], vP7, None, F_HB, local=True)
    if o.tail_bg:
        pump_on()
    st1 = h_store2(1)

    def done1(f):
        if f == o.haflag_at:
            g.wait(vm="Hst0")
            flag_set(F_HA)
            if o.l2pf & 4:
                with g.hold():
                    g(f"v_lshlrev_b32 {vOne}, 5, {vP32}\ns_sub_u32 {sT[0]}, {sHst}, {112*1024 if f else 0}")
                    g.vm(f"buffer_load_dword {vDum}, {vOne}, {R['ws']}, {sT[0]} offen sc1", "pf")
        if o.apoll_at == 6:
            if f < 2:
                st1(f)
            if f == 3:
                pa.issue()
                st1(2)
                st1(3)
        else:
            st1(f)
        if f == o.apoll_at:
            pa.issue()
        mark(3, f"H_f{f}")
    gelu_pk(accs[1], 32, gk3[1], hq, tmp, done1)
    stamp("H_st")
    tf.free(); vXw.free()
    for r in gk3:
        r.free()
    sv = V.alloc(16, at=136)
    g.wait(vm="y")
    g("s_barrier")
    if o.apoll_at == 4:
        pa.issue()

    g(f"v_lshl_add_u32 {t0}, {vKq}, 2, {vR4}\nv_lshlrev_b32 {t0}, 7, {t0}\nv_lshl_add_u32 {t0}, {vC8}, 2, {t0}\ns_lshl_b32 {sT[0]}, {sW}, 3\ns_add_u32 {sT[0]}, {sT[0]}, {C_Y}\nv_add_u32 {t0}, {sT[0]}, {t0}")
    for T in range(4):
        g.ds(f"ds_read_b64_tr_b16 {sv.r(8 + 2*T, 2)}, {t0} offset:{T*2048}", f"y{T}")
    vHl = V.alloc(1)
    hb = Reg(A, 128, 128)
    sSt2 = S.alloc(1)

    def h_load(m):
        th, n = divmod(m, 28)
        if o.rot:
            if m == 28:
                g(f"v_add_u32 {vHl}, {112*1024}, {vHl}")
            so, off = sG4[n >> 1], (n & 1) * 1024
        else:
            if n % 4 == 0:
                g(f"s_mov_b32 {sSt2}, {th*112*1024 + n*1024}")
            so, off = sSt2, (n & 3) * 1024
        g.vm(f"buffer_load_dwordx4 {hb.r(4*(m & 31), 4)}, {vHl}, {R['ws']}, {so} offen offset:{off} sc1 {o.pol_H}", f"H{m}")

    g(f"s_mul_i32 {sT[0]}, {sW}, {28*1024}\ns_add_u32 {sT[0]}, {sT[0]}, {sH2}\nv_add_u32 {vHl}, {sT[0]}, {vL16}")
    if o.fake & 4:
        g(f"v_mov_b32 {vHl}, {OOB}")
    pump_off()
    Bg.flush(Bg.find("dma", 28))
    if o.apoll_at == 5:
        pa.issue()
    Bg.flush(max(Bg.find("dma", 29), Bg.find("rd", o.rd_ha)))
    def hbflag():
        g.wait(vm="Hst1")
        flag_set(F_HB)
        if o.l2pf & 8:
            g(f"v_lshlrev_b32 {vOne}, 5, {vP32}")
            g.vm(f"buffer_load_dword {vDum}, {vOne}, {R['ws']}, {sHst} offen sc1", "pf")
    pa.check(then=hbflag if o.hbflag_at < 0 else None)
    stamp("HA_flag")
    nxt = o.ahead
    hl = (h_load(m) for m in range(nxt))
    next(hl)
    g.pump = lambda: next(hl, None) if g.ta - g.clock < 30 else None
    run(gate_calc())
    g(f"s_lshl_b32 {sT[0]}, {sW}, 6\ns_add_u32 {sT[0]}, {sT[0]}, {C_OMG}\nv_lshl_add_u32 {t2}, {vC}, 2, {sT[0]}")
    g.ds(f"ds_write_b32 {t2}, {gate[1]}")
    g(f"v_xor_b32 {t0}, {vKq}, {vC}\nv_lshlrev_b32 {t0}, 4, {t0}\nv_lshl_add_u32 {t0}, {vC}, 8, {t0}\ns_lshl_b32 {sT[0]}, {sW}, 12\ns_add_u32 {sT[0]}, {sT[0]}, {C_BASE}\nv_add_u32 {t0}, {sT[0]}, {t0}")
    bq = Reg(V, accs[1].base, 32)
    for T in range(4):
        g.wait(lg=f"y{T}")
        for i in range(0 if o.abl & 8192 else 2):
            for src, d in ((sv[8 + 2*T + i], 0), (qp[2*T + i], 4), (x1p[2*T + i], 8)):
                g(f"v_lshlrev_b32 {bq[d + 2*i]}, 16, {src}\nv_and_b32 {bq[d + 2*i + 1]}, {sMask}, {src}")
        for i in (0, 2):
            g(f"v_pk_mul_f32 {bq.r(i,2)}, {bq.r(i,2)}, {bq.r(4+i,2)}")
            g(f"v_pk_mul_f32 {bq.r(8+i,2)}, {bq.r(8+i,2)}, {gate} op_sel:[0,1] op_sel_hi:[1,1]")
        for i in (0, 2):
            g(f"v_pk_fma_f32 {bq.r(12 + 4*T + i, 2)}, {bq.r(i,2)}, {gate}, {bq.r(8+i,2)} op_sel_hi:[1,0,1]")
        g(f"v_xor_b32 {t2}, {64*T}, {t0}")
        g.ds(f"ds_write_b128 {t2}, {bq.r(12 + 4*T, 4)}", "bw")
    qp.free(); x1p.free(); hq.free()
    vPw, vPr, vOut, vOm = (V.alloc(1) for _ in range(4))
    stamp("base")
    class Fin:
        @staticmethod
        def r(i, n=1):
            return accs[0].r(i, n) if i < 32 else tmp.r(i - 32, n)

        def __getitem__(self, i):
            return self.r(i)
    fin = Fin()

    def partial_out(th):
        for ft in range(2):
            for q in range(4):
                if o.fast_end:
                    g.ds(f"ds_write_b128 {pwa[4*ft + q]}, {accs[th].r(16*ft + 4*q, 4)} offset:{LA + th*32768}", f"pw{th}")
                else:
                    g(f"v_xor_b32 {t2}, {128*ft + 32*q}, {vPw}")
                    g.ds(f"ds_write_b128 {t2}, {accs[th].r(16*ft + 4*q, 4)} offset:{LA + th*32768}", f"pw{th}")
                yield

    def final_head(th):
        g(f"v_xor_b32 {t0}, 16, {vPr}")
        g(f"v_add_u32 {t2}, {C_BASE + th*8192}, {vPr}\nv_add_u32 {t3}, {C_BASE + th*8192}, {t0}")
        g.ds(f"ds_read_b128 {fin.r(32,4)}, {t2}", "fb")
        g.ds(f"ds_read_b128 {fin.r(36,4)}, {t3}", "fb")
        g(f"v_add_u32 {t2}, {C_OMG + th*128}, {vOm}")
        g.ds(f"ds_read_b32 {sv[0]}, {t2}", "fb")
        g(f"s_add_u32 {sT[0]}, {sPan}, {th*32768}")

    def final(th, packed, head=True):
        if head:
            g(f"v_xor_b32 {t0}, 16, {vPr}")
        for x, ad in enumerate((vPr, t0)):
            for w in range(4):
                g.ds(f"ds_read_b128 {fin.r(16*x + 4*w, 4)}, {ad} offset:{LA + th*32768 + w*8192}", f"f{x}")
                yield
        if head:
            g(f"v_add_u32 {t2}, {C_BASE + th*8192}, {vPr}\nv_add_u32 {t3}, {C_BASE + th*8192}, {t0}")
            yield
            g.ds(f"ds_read_b128 {fin.r(32,4)}, {t2}", "fb")
            g.ds(f"ds_read_b128 {fin.r(36,4)}, {t3}", "fb")
            yield
            g(f"v_add_u32 {t2}, {C_OMG + th*128}, {vOm}")
            g.ds(f"ds_read_b32 {sv[0]}, {t2}", "fb")
            yield
        for x in range(2):
            g.wait(lg=f"f{x}")
            b = 16 * x
            for d, s in ((0, 4), (8, 12), (0, 8)):
                if packed:
                    for i in (0, 2):
                        g(f"v_pk_add_f32 {fin.r(b+d+i,2)}, {fin.r(b+d+i,2)}, {fin.r(b+s+i,2)}")
                else:
                    for i in range(4):
                        g(f"v_add_f32 {fin[b+d+i]}, {fin[b+d+i]}, {fin[b+s+i]}")
                        yield
        g.wait(lg="fb")
        for x in range(2):
            if packed:
                for i in (0, 2):
                    g(f"v_pk_fma_f32 {fin.r(16*x+i,2)}, {fin.r(16*x+i,2)}, {sv.r(0,2)}, {fin.r(32+4*x+i,2)} op_sel_hi:[1,0,1]")
                continue
            for i in range(4):
                g(f"v_fma_f32 {fin[16*x+i]}, {fin[16*x+i]}, {sv[0]}, {fin[32+4*x+i]}")
                yield
        for x in range(2):
            for i in range(2):
                g(f"v_cvt_pk_bf16_f32 {fin[4 + 2*x + i]}, {fin[16*x + 2*i]}, {fin[16*x + 2*i + 1]}")
                yield
        if head:
            g(f"s_add_u32 {sT[0]}, {sPan}, {th*32768}")
        g.vm(f"buffer_store_dwordx4 {fin.r(4,4)}, {vOut}, {R['out']}, {sT[0]} offen {o.out_pol}", "out")
        yield

    def barrier_after(tag):
        g.wait(lg=tag)
        g("s_barrier")
        yield

    Bg.cap = len(Bg.ops)
    g.pump = None
    run(hl)
    setup_ops = [f"v_and_b32 {t0}, 31, v0", f"v_lshrrev_b32 {t2}, 5, v0", f"v_xor_b32 {t2}, {t2}, {vC}", f"v_lshlrev_b32 {t2}, 4, {t2}", f"v_lshl_add_u32 {t0}, {t0}, 8, {t2}", f"s_lshl_b32 {sT[0]}, {sW}, 13", f"v_add_u32 {vPw}, {sT[0]}, {t0}", f"v_lshrrev_b32 {t0}, 3, v0", f"s_lshl_b32 {sT[0]}, {sW}, 3", f"v_add_u32 {t0}, {sT[0]}, {t0}", f"v_lshlrev_b32 {t3}, 4, {vS8}", f"v_lshl_add_u32 {vOut}, {t0}, 10, {t3}", f"v_lshlrev_b32 {t2}, 1, {vS8}", f"v_and_b32 {t3}, 15, {t0}", f"v_xor_b32 {t2}, {t2}, {t3}", f"v_lshlrev_b32 {t2}, 4, {t2}", f"v_lshl_add_u32 {vPr}, {t0}, 8, {t2}", f"v_lshlrev_b32 {vOm}, 2, {t0}"]
    pwa = V.alloc(8, at=152)
    if o.fast_end:
        setup_ops += [f"v_xor_b32 {pwa[i]}, {32*i}, {vPw}" for i in range(8)]
    fillers = [Ops(setup_ops)]
    for m in range(56):
        th, n = divmod(m, 28)
        if n % 2 == 0 and th == 0:
            Bg.flush(Bg.find("rd", 16 + n // 2))
            g.wait(lg=f"sr{16 + n//2}")
        if m == 28:
            stamp("g4_0"); idle("g4_0")
            drain(fillers)
            po = partial_out(0)
        if 29 <= m < 37:
            next(po)
        if m == o.bar_at:
            drain(fillers)
            fillers = [barrier_after("pw0"), final(0, False)]
        if m == o.hbflag_at:
            hbflag()
        if m % 7 == 0:
            mark(3, f"m{m}")
        if o.fast_end and m == 54:
            assert o.bar_at < 56
            drain(fillers)
            final_head(1)
            g.wait(vm="H55")
            po = partial_out(1)
            for ft in range(2):
                for mm in (54, 55):
                    c = accs[1].r(16*ft, 16)
                    g(f"v_mfma_f32_32x32x16_bf16 {c}, {w4home(mm - 28, ft)}, {hb.r(4*(mm & 31), 4)}, {c}")
            for _ in range(8):
                next(po)
            break
        g.wait(vm=f"H{m}")
        for ft in range(2):
            c = accs[th].r(16*ft, 16)
            if not (o.abl & 128 and ft):
                g(f"v_mfma_f32_32x32x16_bf16 {c}, {w4home(n, ft)}, {hb.r(4*(m & 31), 4)}, {c if n else 0}")
            if ft == 0:
                if m == o.bpoll_at:
                    pb.issue()
                if nxt == 28:
                    pb.check()
                if nxt < 56:
                    h_load(nxt)
                    nxt += 1
            if not (m == 28 and ft == 0):
                fill(fillers, 0, reserve=4 * ft)
    drain(fillers)
    stamp("g4_1")
    if not o.fast_end:
        run(partial_out(1))
    run(barrier_after("pw1"))
    if o.bar_at >= 56:
        run(final(0, True))
    run(final(1, True, head=not o.fast_end))
    stamp("end")
    stamp("end_real", real=True)
    if o.stamps:
        g(f"s_lshl_b32 {sT[0]}, s2, 2\ns_add_u32 {sT[0]}, {sT[0]}, {sW}\ns_lshl_b32 {sT[0]}, {sT[0]}, 8\ns_add_u32 {sT[0]}, {sT[0]}, {STAMPS}")
        g(f"buffer_store_dword {vStamp}, {vL4}, {R['ws']}, {sT[0]} offen")
    if amp:
        g(f"s_cmp_lg_u32 s2, {amp[3] if len(amp) > 3 else 77}\ns_cbranch_scc1 L_end")
        g(f"v_readlane_b32 {sT[0]}, {vStamp}, 62\nv_readlane_b32 {sT[2]}, {vStamp}, 63\ns_nop 3")
        g(f"s_sub_u32 {sT[2]}, {sT[2]}, {sT[0]}\ns_mul_i32 {sT[2]}, {sT[2]}, {amp[2]}\ns_min_u32 {sT[2]}, {sT[2]}, 100000")
        g(f"s_memrealtime {sT.r(0,2)}\ns_waitcnt lgkmcnt(0)")
        g(f"L_amp:\ns_memrealtime {sStamp}\ns_waitcnt lgkmcnt(0)\ns_sub_u32 {sStamp[0]}, {sStamp[0]}, {sT[0]}")
        g(f"s_cmp_lt_u32 {sStamp[0]}, {sT[2]}\ns_cbranch_scc1 L_amp")
    g("s_endpgm")
    for t in tail:
        g(t)
    g("L_end:\ns_endpgm")
    body = g.text(o.align)
    info = dict(nops=g.nops, vhigh=V.high, shigh=S.high, stamps=stamp_names, lines=len(g.lines), clock=g.clock, model=model, bgat=bgat)
    return file_text([(KNAME, 256, 256, LDS_BYTES)], [(KNAME, body, 512, 256, 102)]), info


REF = "gated_mix__ssm_conv_h3__mixer_s_mlp__prompt.s.ref"
HEADER = open(REF).read().split("; Override launch")[0] if os.path.exists(REF) else ""


def set_opts(args):
    for kv in args:
        k, v = kv.split("=")
        cur = getattr(Opt, k)
        setattr(Opt, k, type(cur)(int(v)) if isinstance(cur, (bool, int)) else v)


if __name__ == "__main__":
    out = sys.argv[1] if len(sys.argv) > 1 else "k.s"
    set_opts(sys.argv[2:])
    text, info = build(Opt)
    open(out, "w").write(HEADER + text)
    print(info)
```

```python
import copy
import os
import struct
import sys
from asmlib import ARG, NBYTES, KNAME, file_text
from kgen import Gen, Reg, merge_queues

F_H, F_U, F_X1, F_Y, F_HA, F_HB = 1, 2, 3, 4, 5, 6
LFLAG = 0x20000
STATS = 0x40000
HBUF, X1BUF, UBUF, YBUF, H2BUF = 0x100000, 0x300000, 0x500000, 0x700000, 0x900000
STAMPS = 0x2000000
OOB = 0x40000000

LA, LB, LC = 0, 65536, 131072
C_K, C_V, C_Q, C_CS = LC, LC + 9216, LC + 17920, LC + 26112
C_H, C_U = LC, LC + 8448
HP, UP = 4224, 1152
C_Y, C_BASE, C_OMG, C_STD = LC, LC + 8192, LC + 24576, LC + 26624
A_N = LC + 17920
NP = 6912
LDS_BYTES = 163840

GELU_C0 = -2.302208198144325
GELU_C1 = GELU_C0 * 0.044715
LOG2E = 1.4426950408889634

TILES = ([7, 6, 2], [5, 4, 3, 1, 0])


def fbits(x):
    return "0x%08x" % struct.unpack("<I", struct.pack("<f", x))[0]


class Opt:
    stamps = 0
    fine = 0
    amp = ""
    nt_once = "nt"
    out_pol = "sc1"
    code_pf = True
    code_bytes = 40960
    align = True
    nap = 0
    period = 85
    lat = 700
    thresh = 100
    thresh1 = 500
    fake = 0
    t3 = 3
    fast_end = True
    noglobal = 0
    abl = 0
    tail_bg = 2
    pol_w = ""
    pol_y = ""
    pol_u = ""
    pol_q = ""
    pol_H = ""
    pol_st = ""
    hpoll = 2
    idle = ""
    touch4 = 6
    rotj = 0
    rotp = 0
    tx1 = ""
    tx2 = ""
    tx34 = ""
    t3_at = 10
    cap0 = "x3"
    t3_first = "x0"
    touch1 = "x0"
    bg_u = 4
    rd_ha = 24
    touch = 3
    touch2 = "w1b"
    pre2 = True
    local = True
    dpoll_at = 16
    bg_a = 0
    bg_b = 1
    cap_p2 = 6
    l2pf = 0
    cap2 = 14
    upoll_at = 11
    ucheck_at = 16
    bdist = 6
    hflag_m = 8
    bar_at = 46
    yflag_at = 10
    rot = False
    xflag_at = 24
    xpoll_at = 104
    xcheck_at = 126
    norm1_at = 10
    cap_a = 21
    l1_early = 8
    cap_b = 25
    q3a = 0
    q3b = 0
    haflag_at = 1
    hbflag_at = -1
    apoll_at = 4
    bpoll_at = 10
    ahead = 9


def build(o=Opt):
    g = Gen()
    g.vm_cost, g.vm_lat, g.vm_win = o.period, o.lat, 8 * o.period
    V, A, S = g.V, g.A, g.S
    names = ["q", "ws", "w1", "w2", "dbg", "k", "v", "shift_k", "ssm_D", "gate_w", "w3", "w4", "ssm_k", "out"]
    R = {n: S.alloc(4, align=4) for n in names}
    sW, sJ, sP, sPP, sX = (S.alloc(1) for _ in range(5))
    sT = S.alloc(4, align=2)
    sOnes, sLo1, sHi1, sMask, sTmo = (S.alloc(1) for _ in range(5))
    sStamp = S.alloc(2, align=2) if (o.stamps or o.amp) else None
    vStamp = V.alloc(1)
    stamp_names = []
    amp = o.amp.split(",") if o.amp else None
    tail = []

    model, bgat = {}, {}

    def stamp(name, real=False):
        model[name] = g.clock
        bgat[name] = "%s%s" % Bg.ops[Bg.idx][:2] if Bg.idx < len(Bg.ops) else "end"
        with g.hold():
            if amp and name in amp[:2]:
                g(f"s_memrealtime {sStamp}")
                g.smem = True
                g.wait(lg="*")
                g(f"v_writelane_b32 {vStamp}, {sStamp[0]}, {62 + amp.index(name)}")
            if o.stamps in (1, 3) or (o.stamps == 2 and real):
                g(f"s_mem{'real' if real or o.stamps == 3 else ''}time {sStamp}")
                g.smem = True
                g.wait(lg="*")
                if name not in stamp_names:
                    stamp_names.append(name)
                g(f"v_writelane_b32 {vStamp}, {sStamp[0]}, {stamp_names.index(name)}")

    def idle(name):
        if name in o.idle.split(":"):
            g("s_sleep 16")

    def mark(level, name):
        if o.fine == level:
            stamp(name)

    def flag_set(val):
        with g.hold():
            g(f"s_mov_b64 exec, 1\nv_mov_b32 {vOne}, {val}")
            if o.local and val not in (F_U, F_Y):
                g.vm(f"buffer_store_dword {vOne}, off, {R['ws']}, {sLf}", "flag")
            if not (o.noglobal and val not in (F_U, F_Y)):
                g.vm(f"buffer_store_dword {vOne}, off, {R['ws']}, {sFl} sc1", "flag")
            g("s_mov_b64 exec, -1")

    class Poll:
        def __init__(self, srd, vaddr, soff, need, local=False):
            self.t = V.alloc(1)
            self.tag = g.label("poll")
            self.cmp = f"v_cmp_gt_u32 vcc, {need}, {self.t}"
            self.ld = f"buffer_load_dword {self.t}, {vaddr}, {srd}, {soff} offen sc1"
            self.first = self.ld
            self.pre = ""
            if local:
                self.ld = f"v_lshlrev_b32 {self.t}, 5, {vaddr}\nbuffer_load_dword {self.t}, {self.t}, {srd}, {sFp} offen sc1"
                self.first = self.ld
                if o.local:
                    self.first = f"buffer_load_dword {self.t}, {vaddr}, {srd}, {sLp} offen sc1"
                    self.pre = self.first

        def issue(self):
            with g.hold():
                g.vm(self.first, self.tag)

        def check(self, free=True, then=None):
            n = g.label("chk")
            with g.hold():
                g.wait(vm=self.tag)
                if then:
                    then()
                g(f"{self.cmp}\ns_cbranch_vccnz {n}_slow\n{n}_ok:")
                if o.stamps == 4:
                    if self.tag not in stamp_names:
                        stamp_names.append(self.tag)
                    g(f"v_writelane_b32 {vStamp}, {sTmo}, {stamp_names.index(self.tag)}")
            nap = f"s_sleep {o.nap}\n" if o.nap else ""
            for _ in range(3 if self.pre else 0):
                nap += (f"s_sub_u32 {sTmo}, {sTmo}, 1\n" if o.stamps == 4 else "") + f"{self.pre}\ns_waitcnt vmcnt(0)\n{self.cmp}\ns_cbranch_vccz {n}_ok\n"
            tail.append(f"{n}_slow:\ns_sub_u32 {sTmo}, {sTmo}, 1\ns_cbranch_scc1 {n}_out\n{nap}{self.ld}\ns_waitcnt vmcnt(0)\n"
                        f"{self.cmp}\ns_cbranch_vccnz {n}_slow\ns_branch {n}_ok\n"
                        f"{n}_out:\ns_mov_b32 {sTmo}, 0\ns_branch {n}_ok")
            if free:
                self.t.free()

    def round_bf16(r):
        g(f"v_cvt_pk_bf16_f32 {r}, {r}, {r}")
        yield
        g(f"v_and_b32 {r}, {sMask}, {r}")
        yield

    def ln_mean(s1, negmu):
        g(f"v_mul_f32 {negmu}, {fbits(-1.0/512)}, {s1}")
        yield
        yield from round_bf16(negmu)

    def ln_std(s1, s2, std):
        for t in (f"v_mul_f32 {s1}, {fbits(1.0/512)}, {s1}", f"v_mul_f32 {s2}, {fbits(1.0/512)}, {s2}",
                  f"v_fma_f32 {s2}, -{s1}, {s1}, {s2}", f"v_max_f32 {s2}, 0, {s2}"):
            g(t)
            yield
        yield from round_bf16(s2)
        g(f"v_add_f32 {s2}, {fbits(1e-5)}, {s2}")
        yield
        yield from round_bf16(s2)
        g(f"v_sqrt_f32 {std}, {s2}\ns_nop 0")
        yield
        yield from round_bf16(std)

    def ln_scale(gk):
        g(f"v_rcp_f32 {gk[3]}, {gk[2]}\ns_nop 0")
        yield
        for t in (f"v_mul_f32 {gk[1]}, {fbits(GELU_C0)}, {gk[3]}", f"v_mul_f32 {gk[0]}, {gk[3]}, {gk[3]}",
                  f"v_mul_f32 {gk[0]}, {gk[0]}, {gk[3]}", f"v_mul_f32 {gk[0]}, {fbits(GELU_C1)}, {gk[0]}"):
            g(t)
            yield

    def ln_stats(s1, s2, negmu, gk):
        for t in (f"v_mul_f32 {negmu}, {fbits(-1.0/512)}, {s1}", f"v_mul_f32 {s2}, {fbits(1.0/512)}, {s2}",
                  f"v_fma_f32 {s2}, -{negmu}, {negmu}, {s2}", f"v_max_f32 {s2}, 0, {s2}"):
            g(t)
            yield
        yield from round_bf16(s2)
        g(f"v_add_f32 {s2}, {fbits(1e-5)}, {s2}")
        yield
        yield from round_bf16(s2)
        g(f"v_sqrt_f32 {gk[2]}, {s2}")
        yield
        yield from round_bf16(negmu)
        yield from round_bf16(gk[2])
        g(f"v_rcp_f32 {s2}, {gk[2]}\ns_nop 0")
        yield
        for t in (f"v_mul_f32 {gk[1]}, {fbits(GELU_C0)}, {s2}", f"v_mul_f32 {gk[0]}, {s2}, {s2}",
                  f"v_mul_f32 {gk[0]}, {gk[0]}, {s2}", f"v_mul_f32 {gk[0]}, {fbits(GELU_C1)}, {gk[0]}"):
            g(t)
            yield

    def center_dot(regs, negmu, tmp):
        for b in range(0, len(regs), 4):
            for i in range(4):
                g(f"v_dot2_f32_bf16 {tmp[2*i]}, {regs[b+i]}, {sLo1}, {negmu}")
                g(f"v_dot2_f32_bf16 {tmp[2*i+1]}, {regs[b+i]}, {sHi1}, {negmu}")
            for i in range(4):
                g(f"v_cvt_pk_bf16_f32 {regs[b+i]}, {tmp[2*i]}, {tmp[2*i+1]}")
            yield

    def center_plain(regs, negmu, tmp):
        for i, r in enumerate(regs):
            a, b = tmp[2*(i & 1)], tmp[2*(i & 1) + 1]
            for t in (f"v_lshlrev_b32 {a}, 16, {r}", f"v_and_b32 {b}, {sMask}, {r}", f"v_add_f32 {a}, {a}, {negmu}",
                      f"v_add_f32 {b}, {b}, {negmu}", f"v_cvt_pk_bf16_f32 {r}, {a}, {b}"):
                g(t)
                yield

    def gelu_pk(acc, n, gk, out, tmp, done=None):
        kk, ss = gk.r(0, 2), gk.r(2, 2)
        for b in range(0, n, 8):
            P = range(0, 8, 2)
            if (o.abl & 256 and n == 16) or (o.abl & 512 and n == 32):
                for i in P:
                    g(f"v_cvt_pk_bf16_f32 {out[(b+i)//2 % out.n]}, {acc[b+i]}, {acc[b+i+1]}")
                if done:
                    done(b // 8)
                continue
            for i in P:
                g(f"v_pk_mul_f32 {tmp.r(i,2)}, {acc.r(b+i,2)}, {acc.r(b+i,2)}")
            for i in P:
                g(f"v_pk_fma_f32 {tmp.r(i,2)}, {tmp.r(i,2)}, {kk}, {kk} op_sel:[0,0,1] op_sel_hi:[1,0,1]")
            for i in P:
                g(f"v_pk_mul_f32 {tmp.r(i,2)}, {tmp.r(i,2)}, {acc.r(b+i,2)}")
            for i in range(8):
                g(f"v_exp_f32 {tmp[i]}, {tmp[i]}")
            for i in P:
                g(f"v_pk_fma_f32 {tmp.r(i,2)}, {tmp.r(i,2)}, {ss}, {ss} op_sel_hi:[1,0,0]")
            for i in range(8):
                g(f"v_rcp_f32 {tmp[i]}, {tmp[i]}")
            for i in P:
                g(f"v_pk_mul_f32 {tmp.r(i,2)}, {tmp.r(i,2)}, {acc.r(b+i,2)}")
            for i in P:
                g(f"v_cvt_pk_bf16_f32 {out[(b+i)//2 % out.n]}, {tmp[i]}, {tmp[i+1]}")
            if done:
                done(b // 8)

    def gelu_plain(acc, n, gk, out, tmp, done):
        streams = [[], []]
        left = {}
        for b in range(0, n, 4):
            h = (b // 4) & 1
            T = [tmp[4*h + i] for i in range(4)]
            Q = range(4)
            ops = [f"v_mul_f32 {T[i]}, {acc[b+i]}, {acc[b+i]}" for i in Q]
            ops += [f"v_fma_f32 {T[i]}, {T[i]}, {gk[0]}, {gk[1]}" for i in Q]
            ops += [f"v_mul_f32 {T[i]}, {T[i]}, {acc[b+i]}" for i in Q]
            ops += [f"v_exp_f32 {T[i]}, {T[i]}" for i in Q]
            ops += [f"v_fma_f32 {T[i]}, {T[i]}, {gk[2]}, {gk[2]}" for i in Q]
            ops += [f"v_rcp_f32 {T[i]}, {T[i]}" for i in Q]
            ops += [f"v_mul_f32 {T[i]}, {T[i]}, {acc[b+i]}" for i in Q]
            f = b // 8
            left[f] = 2

            def guard(f=f):
                assert left.get(f - 2, 0) == 0
            ops += [(0, guard)] + [f"v_cvt_pk_bf16_f32 {out[(b+i)//2 % out.n]}, {T[i]}, {T[i+1]}" for i in (0, 2)]

            def fin(f=f):
                left[f] -= 1
                if left[f] == 0:
                    done(f)
            streams[h] += (ops[-3:] if o.abl & 4 else ops) + [(4, fin)]
        streams[1] = [(0, lambda: None)] * 12 + streams[1]
        return streams

    def run(it):
        for _ in it:
            pass

    def chain(*its):
        for it in its:
            yield from it

    class Bg:
        ops, idx, cap = [], 0, 0
        dma_on = True
        last, gap = 0, 0
        thresh = o.thresh

        @classmethod
        def ready(cls, force=False):
            if cls.idx >= min(cls.cap, len(cls.ops)):
                return False
            kind, key, _ = cls.ops[cls.idx]
            if force:
                return True
            if kind == "dma":
                return cls.dma_on and g.backlog() < cls.thresh and g.ta - g.clock < 30 and g.clock >= cls.last + cls.gap
            if kind == "rd0":
                return g.clock >= g.vmt[f"sd{key}"]
            return True

        @classmethod
        def step(cls, force=False):
            if not cls.ready(force):
                return False
            kind, key, fn = cls.ops[cls.idx]
            cls.idx += 1
            with g.hold():
                fn()
            if kind == "dma":
                cls.last = g.clock
            return True

        @classmethod
        def find(cls, kind, key):
            return max(i for i, (k, y, _) in enumerate(cls.ops) if y == key and k.startswith(kind)) + 1

        @classmethod
        def flush(cls, idx):
            cap, cls.cap = cls.cap, max(cls.cap, idx)
            while cls.idx < idx:
                cls.step(True)
            cls.cap = cap

        @classmethod
        def burst(cls, n):
            while n > 0 and cls.idx < min(cls.cap, len(cls.ops)):
                kind = cls.ops[cls.idx][0]
                if kind == "rd0" and not cls.ready():
                    break
                cls.step(True)
                n -= kind == "dma"

    def pump_on():
        g.pump = Bg.step

    def pump_off():
        g.pump = None

    class Ops:
        def __init__(self, items):
            self.items = list(items)

        def cost(self):
            it = self.items[0]
            return it[0] if isinstance(it, tuple) else 8 if it.startswith(("v_exp", "v_rcp", "v_sqrt")) else 4

        def emit(self):
            it = self.items.pop(0)
            it[1]() if isinstance(it, tuple) else g(it)

        def drain(self):
            while self.items:
                self.emit()

    def fill(fillers, over=0, reserve=0):
        while True:
            room = g.slack() - reserve + over
            if room >= 4 and Bg.step():
                continue
            live = [f for f in fillers if (f.items if isinstance(f, Ops) else True)]
            fillers[:] = live
            pick = None
            for f in live:
                if not isinstance(f, Ops):
                    pick = f if room >= 4 else None
                    break
                if f.cost() <= room and (pick is None or len(f.items) > len(pick.items)):
                    pick = f
            if pick is None:
                return
            if isinstance(pick, Ops):
                pick.emit()
            elif next(pick, 1) is not None:
                fillers.remove(pick)

    def drain(fillers):
        while fillers:
            f = fillers[0]
            if isinstance(f, Ops):
                others = [x for x in fillers if isinstance(x, Ops) and x.items]
                while others:
                    for x in others:
                        x.emit()
                    others = [x for x in others if x.items]
                fillers[:] = [x for x in fillers if not isinstance(x, Ops)]
            else:
                run(f)
                fillers.pop(0)

    g("s_cmp_ge_u32 s2, 256\ns_cbranch_scc1 L_end")
    for n in names:
        g(f"s_load_dwordx2 {R[n].r(0,2)}, s[0:1], {ARG[n]}")
    g.smem = True
    vOne, vL16, vL4, vDum = (V.alloc(1) for _ in range(4))
    t0, t2, t3 = (V.alloc(1) for _ in range(3))
    if o.code_pf:
        pc = V.alloc(2)
        per = o.code_bytes // 32
        assert per <= 2048
        g(f"s_getpc_b64 {sT.r(0,2)}")
        g(f"s_lshr_b32 {sT[2]}, s2, 3\ns_mul_i32 {sT[2]}, {sT[2]}, {per}")
        g(f"v_lshl_add_u32 {t0}, v0, 3, {sT[2]}")
        g(f"v_min_u32 {t0}, L_end-L_pc, {t0}")
        g("L_pc:")
        g(f"v_mov_b32 {pc[1]}, {sT[1]}")
        g(f"v_add_co_u32 {pc[0]}, vcc, {sT[0]}, {t0}")
        g(f"s_nop 1\nv_addc_co_u32 {pc[1]}, vcc, 0, {pc[1]}, vcc")
        g.vm(f"global_load_dword {vDum}, {pc}, off", "pf")
        pc.free()
    g(f"v_lshrrev_b32 {t0}, 6, v0\nv_and_b32 v0, 63, v0\nv_readfirstlane_b32 {sW}, {t0}")
    g(f"s_and_b32 {sX}, s2, 7\ns_lshr_b32 {sT[0]}, s2, 3\ns_and_b32 {sJ}, {sT[0]}, 7\ns_lshr_b32 {sPP}, {sT[0]}, 3")
    g(f"s_lshl_b32 {sP}, {sX}, 2\ns_add_u32 {sP}, {sP}, {sPP}")

    def srd_words(ns):
        for n in ns:
            g(f"s_mov_b32 {R[n][2]}, {NBYTES[n]}\ns_mov_b32 {R[n][3]}, 0x00020000")
    srd_words(names[:4])
    vC, vKq, vR8, vS8 = (V.alloc(1) for _ in range(4))
    g(f"v_and_b32 {vC}, 15, v0\nv_lshrrev_b32 {vKq}, 4, v0\nv_lshrrev_b32 {vR8}, 3, v0\nv_lshlrev_b32 {vR8}, 10, {vR8}\nv_and_b32 {vS8}, 7, v0")
    sLdsW, sCol, sPan, sKV, sKV2, sC2 = (S.alloc(1) for _ in range(6))
    g(f"s_lshl_b32 {sLdsW}, {sW}, 14\ns_lshl_b32 {sCol}, {sJ}, 7\ns_lshl_b32 {sPan}, {sP}, 16\ns_add_u32 {sPan}, {sPan}, {sCol}")
    g(f"s_add_u32 {sKV}, {sLdsW}, {sPan}\ns_lshl_b32 {sC2}, {sW}, 11\ns_add_u32 {sKV2}, {sKV}, 7168")
    if o.stamps:
        g(f"v_mov_b32 {vStamp}, 0")
    g(f"s_lshr_b32 {sT[0]}, {sJ}, 2\ns_add_u32 {sT[0]}, {sT[0]}, 1\ns_sub_u32 {sT[1]}, 0, {sT[0]}")
    g(f"s_bitcmp1_b32 {sJ}, 1\ns_cselect_b32 {sT[0]}, {sT[0]}, {sT[1]}\ns_lshl_b32 {sT[0]}, {sT[0]}, 10")
    g(f"s_sub_u32 {sT[1]}, {sKV}, {sCol}\ns_add_u32 {sT[0]}, {sT[0]}, {sT[1]}")
    vQa, xd = V.alloc(2), V.alloc(2)
    g(f"v_xor_b32 {t0}, {vS8}, {vKq}\nv_lshl_add_u32 {vQa[0]}, {t0}, 4, {vR8}\nv_xor_b32 {vQa[1]}, 64, {vQa[0]}\nv_add_u32 {vQa[1]}, 7168, {vQa[1]}")
    g(f"v_add_u32 {xd[0]}, {sT[0]}, {vQa[0]}\nv_add_u32 {xd[1]}, {sT[0]}, {vQa[1]}")
    g.wait(lg="*")
    stamp("start_real", real=True)
    stamp("start")
    sM, sOff, sWo = S.alloc(1), S.alloc(1), S.alloc(1)
    wd = V.alloc(4, at=152)

    def x_dma(n, hh):
        if g.m0 != ("x", n):
            g(f"s_add_u32 m0, {sLdsW}, {LA + n*2048}\ns_xor_b32 {sWo}, {sCol}, {n << 7}")
            g.m0 = ("x", n)
        g.vm(f"buffer_load_dwordx4 {xd[hh]}, {R['q']}, {sWo} offen offset:{hh*1024} lds", f"x{n}")

    def w_dma(name, base, n, i):
        key = (name, n)
        sh = 2 if name == "w1" else 0
        if g.m0 != key:
            g(f"s_xor_b32 m0, {sM}, {base + (n << (12 + sh))}\ns_xor_b32 {sWo}, {sOff}, {n << (15 + sh)}")
            g.m0 = key
        g.vm(f"buffer_load_dwordx4 {wd[i]}, {R[name]}, {sWo} offen offset:{i*1024} lds", name + ("ab"[n >> 1] if sh else ""))

    for n in range(8):
        for hh in range(2):
            Bg.ops.append(("dma", f"x{n}", lambda n=n, hh=hh: x_dma(n, hh)))
    for n in range(4):
        for i in range(4):
            Bg.ops.append(("dma", "w1" + "ab"[n >> 1], lambda n=n, i=i: w_dma("w1", LB, n, i)))
    g.vm_lat = 1500

    def touch(n, bufs, sWo=sWo):
        g(f"s_lshl_b32 {sWo}, s2, 2\ns_add_u32 {sWo}, {sWo}, {sW}\ns_mul_i32 {sWo}, {sWo}, {n*128}\nv_min_u32 {vOne}, {n-1}, v0\nv_lshlrev_b32 {vOne}, 7, {vOne}")
        for b in bufs:
            g.vm(f"buffer_load_dword {vDum}, {vOne}, {R[b]}, {sWo} offen", "pf")
        g.m0 = None

    def touch3(n, bufs, sreg):
        g(f"s_lshr_b32 {sreg}, s2, 3\ns_lshl_b32 {sreg}, {sreg}, 2\ns_add_u32 {sreg}, {sreg}, {sW}\ns_mul_i32 {sreg}, {sreg}, {n*1024}")
        g(f"v_min_u32 {vOne}, {n-1}, v0\nv_lshlrev_b32 {vOne}, 10, {vOne}")
        for b in bufs:
            g.vm(f"buffer_load_dword {vDum}, {vOne}, {R[b]}, {sreg} offen offset:384", "pf")
        g.m0 = None
    if o.touch & 1:
        at = Bg.find("dma", o.touch1)
        Bg.ops[at:at] = [("dma", "tch0", lambda: touch(4, ("w1", "w2")))]

    def touchx(buf, n, part, sreg):
        g(f"s_lshr_b32 {sreg}, s2, 3\ns_lshl_b32 {sreg}, {sreg}, 2\ns_add_u32 {sreg}, {sreg}, {sW}\ns_mul_i32 {sreg}, {sreg}, {n*128}")
        if part:
            g(f"s_add_u32 {sreg}, {sreg}, {part*n*128*128}")
        g(f"v_min_u32 {vOne}, {n-1}, v0\nv_lshlrev_b32 {vOne}, 7, {vOne}")
        g.vm(f"buffer_load_dword {vDum}, {vOne}, {R[buf]}, {sreg} offen", "pf")
        g.m0 = None
    if o.tx1:
        at = Bg.find("dma", o.tx1) if o.tx1 != "0" else 0
        Bg.ops[at:at] = [("dma", "tx1", lambda: touchx("w1", 32, 0, sWo))]
    if o.tx2:
        at = Bg.find("dma", o.tx2)
        Bg.ops[at:at] = [("dma", "tx2", lambda: touchx("w2", 32, 0, sWo))]
    if o.t3 & 1:
        at = Bg.find("dma", o.t3_first)
        Bg.ops[at:at] = [("dma", "tch1", lambda: touch3(4, ("w1", "w2"), sWo))]
    Bg.flush(1)
    g.vm_lat = o.lat
    Bg.flush(Bg.find("dma", "x1"))
    sFp, sFl, sLp, sLf, sLead = (S.alloc(1) for _ in range(5))
    vP32 = V.alloc(1)
    z = V.alloc(4, at=160)
    g(f"v_and_b32 {vP32}, 31, v0\nv_lshlrev_b32 {vP32}, 2, {vP32}\ns_lshl_b32 {sFp}, {sP}, 12\nv_lshlrev_b32 {vL16}, 4, v0")
    g(f"v_mov_b32 {z[0]}, 0\nv_mov_b32 {z[1]}, 0\nv_mov_b32 {z[2]}, 0\nv_mov_b32 {z[3]}, 0\nv_lshlrev_b32 {t0}, 4, {vS8}")
    g(f"s_lshl_b32 {sLp}, {sP}, 7\ns_add_u32 {sLp}, {sLp}, {LFLAG}")
    g(f"s_lshl_b32 {sT[0]}, {sJ}, 2\ns_add_u32 {sT[0]}, {sT[0]}, {sW}\ns_lshl_b32 {sFl}, {sT[0]}, 7\ns_add_u32 {sFl}, {sFl}, {sFp}")
    g(f"s_lshl_b32 {sLf}, {sT[0]}, 2\ns_add_u32 {sLf}, {sLf}, {sLp}")
    g(f"s_lshl_b32 {sT[1]}, {sP}, 2\ns_cmp_eq_u32 {sT[0]}, 0\ns_cselect_b32 {sLead}, {sT[1]}, {OOB}\ns_cselect_b32 {sT[2]}, {sLp}, {OOB}")
    g(f"s_lshl_b32 {sT[1]}, {sW}, 10\ns_add_u32 {sT[1]}, {sT[1]}, {sFp}\ns_cmp_eq_u32 {sJ}, 0\ns_cselect_b32 {sT[3]}, {sT[1]}, {OOB}")
    g.vm(f"buffer_store_dwordx4 {z}, {vL16}, {R['ws']}, {sT[3]} offen sc1", "clr", cost=30)
    g.vm(f"buffer_store_dwordx4 {z}, {t0}, {R['ws']}, {sT[2]} offen sc1", "clr", cost=30)
    z.free()
    Bg.cap = Bg.find("dma", o.cap0)
    Bg.thresh = o.thresh1
    pump_on()
    srd_words(names[4:])
    g(f"v_and_b32 {t0}, 1, {vKq}\nv_lshlrev_b32 {t0}, 1, {t0}\nv_xor_b32 {t0}, {t0}, {vS8}\nv_lshl_add_u32 {wd[0]}, {t0}, 4, {vR8}")
    g(f"v_xor_b32 {t0}, 64, {wd[0]}\nv_add_u32 {wd[1]}, 7168, {t0}\nv_add_u32 {wd[2]}, 14336, {wd[0]}\nv_add_u32 {wd[3]}, 21504, {t0}")
    g(f"s_and_b32 {sT[0]}, {sPP}, 1\ns_lshl_b32 {sT[0]}, {sT[0]}, 2\ns_add_u32 {sT[0]}, {sT[0]}, {sW}\ns_lshl_b32 {sM}, {sT[0]}, 12")
    g(f"s_lshl_b32 {sT[1]}, {sJ}, 1\ns_xor_b32 {sT[0]}, {sT[0]}, {sT[1]}\ns_lshl_b32 {sOff}, {sT[0]}, 15\ns_add_u32 {sOff}, {sOff}, {sCol}")
    vW2, vV, vK0, vSk = V.alloc(1), V.alloc(2), V.alloc(1), V.alloc(1)
    sK0, sSk = S.alloc(1), S.alloc(1)
    g(f"v_lshlrev_b32 {t0}, 1, {vKq}\nv_xor_b32 {t0}, {t0}, {vS8}\nv_lshl_add_u32 {vW2}, {t0}, 4, {vR8}")
    g(f"v_lshrrev_b32 {t2}, 5, v0\nv_lshlrev_b32 {t2}, 1, {t2}\nv_xor_b32 {t2}, {t2}, {vS8}\nv_lshl_add_u32 {vV[0]}, {t2}, 4, {vR8}\nv_xor_b32 {vV[1]}, 64, {vV[0]}")
    g(f"s_sub_u32 {sT[0]}, {sPan}, 8192\ns_add_u32 {sT[1]}, {sC2}, {C_Q}\ns_cmp_eq_u32 {sW}, 0\n"
      f"s_cselect_b32 {sT[0]}, {sT[0]}, {OOB}\ns_cselect_b32 {sK0}, {C_K}, {sT[1]}\nv_add_u32 {vK0}, {sT[0]}, {vW2}")
    g(f"v_lshlrev_b32 {vSk}, 3, {vC}\ns_lshl_b32 {sT[2]}, {sJ}, 9\ns_lshl_b32 {sT[3]}, {sW}, 7\ns_add_u32 {sSk}, {sT[2]}, {sT[3]}")
    vR8.free()
    g(f"s_mov_b32 {sOnes}, 0x3f803f80\ns_mov_b32 {sLo1}, 0x00003f80\ns_mov_b32 {sHi1}, 0x3f800000")
    g(f"s_mov_b32 {sMask}, 0xffff0000\ns_mov_b32 {sTmo}, 0x40000")
    g(f"v_lshlrev_b32 {vL4}, 2, v0")

    vR4, vC8 = V.alloc(1), V.alloc(1)
    g(f"v_bfe_u32 {vR4}, v0, 2, 2\nv_and_b32 {vC8}, 3, v0\nv_lshlrev_b32 {vC8}, 3, {vC8}")
    ka = V.alloc(3)
    for m in range(2):
        g(f"v_sub_u32 {t0}, {vKq}, {vR4}\nv_add_u32 {t0}, {8 + 4*m}, {t0}\nv_bfe_u32 {t2}, {t0}, 1, 2\nv_xor_b32 {t2}, {sW}, {t2}")
        g(f"v_lshl_add_u32 {t2}, {t2}, 5, {vC8}\nv_lshl_add_u32 {t2}, {t0}, 7, {t2}\nv_add_u32 {ka[m]}, {C_K}, {t2}")
    g(f"v_lshl_add_u32 {t0}, {vR4}, 2, {vKq}\nv_xor_b32 {t2}, {sW}, {vR4}\nv_lshl_add_u32 {t2}, {t2}, 5, {vC8}")
    g(f"v_lshl_add_u32 {t2}, {t0}, 7, {t2}\nv_add_u32 {ka[2]}, {C_V}, {t2}")
    sQ = S.alloc(1)
    ua = V.alloc(2)
    g(f"s_add_u32 {sQ}, {sC2}, {C_Q}")
    g(f"s_lshr_b32 {sT[0]}, {sP}, 1\nv_add_u32 {t2}, {sT[0]}, {vKq}\nv_and_b32 {t2}, 3, {t2}\nv_lshlrev_b32 {t2}, 1, {t2}")
    g(f"v_and_b32 {t0}, 7, {vC}\nv_xor_b32 {t0}, {t0}, {t2}\nv_lshlrev_b32 {t0}, 4, {t0}")
    g(f"v_lshl_add_u32 {t0}, {vC}, 7, {t0}\nv_add_u32 {ua[0]}, {sQ}, {t0}")
    g(f"v_lshrrev_b32 {t0}, 3, v0\nv_xor_b32 {t2}, {t0}, {vS8}\nv_lshlrev_b32 {t2}, 4, {t2}")
    g(f"v_lshl_add_u32 {t2}, {t0}, 7, {t2}\nv_add_u32 {ua[1]}, {sQ}, {t2}")
    vT4k = V.alloc(1)
    g(f"v_lshlrev_b32 {t3}, 4, {vS8}\nv_lshl_add_u32 {vT4k}, {t0}, 12, {t3}")
    xa = V.alloc(2)
    g(f"v_lshrrev_b32 {t0}, 1, {vC}\nv_xor_b32 {t0}, {t0}, {vKq}\nv_lshlrev_b32 {t0}, 4, {t0}\nv_lshl_add_u32 {t0}, {vC}, 7, {t0}")
    g(f"v_add_u32 {xa[0]}, {sLdsW}, {t0}\nv_xor_b32 {xa[1]}, 64, {xa[0]}")
    wa = V.alloc(8, at=144)
    g(f"v_lshl_add_u32 {t0}, {vKq}, 3, {vR4}\nv_lshl_add_u32 {t0}, {t0}, 7, {vC8}")
    g(f"v_lshrrev_b32 {t2}, 1, {vR4}\nv_and_b32 {t3}, 1, {vKq}\nv_lshl_or_b32 {t2}, {t3}, 1, {t2}")
    g(f"v_xor_b32 {t2}, {sW}, {t2}\nv_lshl_add_u32 {t0}, {t2}, 5, {t0}\nv_add_u32 {wa[0]}, {LB}, {t0}")
    for T in range(1, 4):
        g(f"v_xor_b32 {wa[T]}, {32*T}, {wa[0]}")
    sCh, sHo = S.alloc(1), S.alloc(1)
    sHs = S.alloc(2)
    g(f"s_lshr_b32 {sT[2]}, {sW}, 1\ns_and_b32 {sT[3]}, {sW}, 1")
    g(f"s_lshl_b32 {sCh}, {sJ}, 5\ns_add_u32 {sCh}, {sCh}, {sP}\ns_lshl_b32 {sCh}, {sCh}, 1\ns_add_u32 {sCh}, {sCh}, {sT[2]}")
    g(f"s_sub_u32 {sHo}, {sKV}, {sCol}\ns_lshl_b32 {sT[0]}, {sJ}, 11\ns_add_u32 {sHo}, {sHo}, {sT[0]}\ns_add_u32 {sHo}, {sHo}, {HBUF}")
    g(f"s_lshl_b32 {sT[0]}, {sT[2]}, 10\ns_add_u32 {sHs[0]}, {sHo}, {sT[0]}\ns_xor_b32 {sHs[1]}, {sHs[0]}, 1024")
    sL, sW3, sRot3, sIdle, sRing, sSt = (S.alloc(1) for _ in range(6))
    g(f"s_lshr_b32 {sT[0]}, {sJ}, 1\ns_mul_i32 {sL}, {sT[0]}, 7\ns_and_b32 {sT[1]}, {sJ}, 1\ns_lshl_b32 {sT[2]}, {sT[1]}, 2")
    g(f"s_add_u32 {sT[2]}, {sT[2]}, {sW}\ns_add_u32 {sL}, {sL}, {sT[2]}")
    g(f"s_cmp_eq_u32 {sT[2]}, 7\ns_cselect_b32 {sIdle}, {OOB}, 0")
    g(f"s_lshl_b32 {sW3}, {sL}, 7\ns_add_u32 {sW3}, {sW3}, {sIdle}")
    if o.rot:
        g(f"s_lshl_b32 {sRot3}, {sX}, 1")
        if o.rotp & 1:
            g(f"s_lshl_b32 {sRot3}, {sPP}, 2")
        if o.rotp & 4:
            g(f"s_mov_b32 {sRot3}, 0")
        if o.rotj & 2:
            g(f"s_lshl_b32 {sT[0]}, {sJ}, 1\ns_xor_b32 {sRot3}, {sRot3}, {sT[0]}")
    g(f"s_add_u32 {sRing}, {sLdsW}, {LB}")
    if o.fake & 1:
        g(f"s_mov_b32 {sW3}, {OOB}")
    d3, ra = V.alloc(4), V.alloc(2)
    g(f"v_lshrrev_b32 {t0}, 3, v0\nv_and_b32 {t2}, 1, {vKq}\nv_lshlrev_b32 {t2}, 2, {t2}")
    g(f"v_xor_b32 {t3}, {t2}, {vS8}\nv_lshlrev_b32 {t3}, 4, {t3}")
    g(f"v_mul_u32_u24 {d3[0]}, 3584, {t0}\nv_add_u32 {d3[0]}, {d3[0]}, {t3}")
    for i in range(1, 4):
        g(f"v_add_u32 {d3[i]}, {i*(8*3584-1024)}, {d3[0]}")
    g(f"v_lshrrev_b32 {t0}, 5, v0\nv_lshl_add_u32 {t0}, {t0}, 2, {vR4}\nv_lshl_add_u32 {t0}, {t0}, 7, {vC8}")
    g(f"v_and_b32 {t2}, 1, {vKq}\nv_lshl_add_u32 {t0}, {t2}, 5, {t0}\nv_lshrrev_b32 {t2}, 1, {vR4}\nv_lshl_add_u32 {t0}, {t2}, 6, {t0}")
    g(f"v_add_u32 {ra[0]}, {sRing}, {t0}\nv_xor_b32 {ra[1]}, 64, {ra[0]}")
    xf = V.alloc(64, at=48)
    tmp = V.alloc(8, at=112)
    st, gk1 = V.alloc(4, at=120), V.alloc(4, at=124)
    cs, ones = V.alloc(16, at=160), V.alloc(4, at=176)
    wf, acc = V.alloc(48, at=192), V.alloc(16, at=240)
    vCs = V.alloc(1)
    for i in range(4):
        g(f"v_mov_b32 {st[i]}, 0\nv_mov_b32 {ones[i]}, {sOnes}")
    g(f"s_lshl_b32 {sT[0]}, {sW}, 6\ns_add_u32 {sT[0]}, {sT[0]}, {C_CS}\nv_lshl_add_u32 {vCs}, {vKq}, 4, {sT[0]}")
    pump_off()
    Bg.flush(Bg.cap)
    stamp("setup")

    def x_reads(n):
        Bg.flush(Bg.find("dma", f"x{n}"))
        g.wait(vm=f"x{n}")
        for b in range(2):
            g.ds(f"ds_read_b128 {xf.r(8*n + 4*b, 4)}, {xa[b]} offset:{LA + n*2048}", f"x{n}")

    def stats(n):
        g.wait(lg=f"x{n}")
        for i in range(0 if o.abl & 16 else 8):
            g(f"v_dot2c_f32_bf16 {st[i & 1]}, {sOnes}, {xf[8*n+i]}")
            g(f"v_dot2c_f32_bf16 {st[2 + (i & 1)]}, {xf[8*n+i]}, {xf[8*n+i]}")

    def ready_store():
        g.wait(vm="clr")
        g(f"s_mov_b64 exec, 1\nv_mov_b32 {vOne}, 1")
        g.vm(f"buffer_store_dword {vOne}, off, {R['dbg']}, {sLead} sc1", "clr")
        g("s_mov_b64 exec, -1")

    if o.touch & 2 and o.touch2 not in ("par", "w2", "h"):
        at = Bg.find("dma", o.touch2)
        Bg.ops[at:at] = [("dma", "tch", lambda: touch(14, ("w3", "w4") if o.touch4 < 0 else ("w3",)))]
    Bg.cap = len(Bg.ops)
    pump_on()
    x_reads(0)
    for n in range(1, 8):
        x_reads(n)
        mark(4, f"p_x{n}")
        stats(n - 1)
    stats(7)
    xa.free(); xd.free()
    stamp("x_in")
    g(f"v_add_f32 {st[0]}, {st[0]}, {st[1]}\nv_add_f32 {st[2]}, {st[2]}, {st[3]}")
    for sw in ("32", "16"):
        g(f"v_mov_b32 {st[1]}, {st[0]}\nv_mov_b32 {st[3]}, {st[2]}")
        g(f"v_permlane{sw}_swap_b32 {st[0]}, {st[1]}\nv_permlane{sw}_swap_b32 {st[2]}, {st[3]}")
        g(f"v_add_f32 {st[0]}, {st[0]}, {st[1]}\nv_add_f32 {st[2]}, {st[2]}, {st[3]}")
    run(ln_stats(st[0], st[2], st[1], gk1))
    pump_off()
    mark(4, "p_ln")
    Bg.flush(len(Bg.ops))
    mark(4, "p_w1iss")
    Bg.thresh = o.thresh

    gw, vD, shk = V.alloc(8, at=136), V.alloc(1), V.alloc(2)
    for i in range(4):
        g(f"v_add_u32 {wd[i]}, {i*7168}, {vW2}")
    g(f"s_lshl_b32 {sT[0]}, {sW}, 2\ns_xor_b32 {sT[0]}, {sT[0]}, {sPP}\ns_lshl_b32 {sM}, {sT[0]}, 12")
    g(f"s_lshl_b32 {sT[1]}, {sJ}, 1\ns_xor_b32 {sT[0]}, {sT[0]}, {sT[1]}\ns_lshl_b32 {sOff}, {sT[0]}, 15\ns_add_u32 {sOff}, {sOff}, {sCol}")
    g(f"s_lshl_b32 {sT[3]}, {sCh}, 1\nv_lshlrev_b32 {t3}, 3, {vKq}\nv_mov_b32 {vD}, 0")

    def one_dma(key, m0, text, tag):
        def fn():
            if g.m0 != key:
                g(m0)
                g.m0 = key
            g.vm(text, tag)
        return ("dma", tag, fn)
    Bg.ops.append(one_dma("k0", f"s_mov_b32 m0, {sK0}", f"buffer_load_dwordx4 {vK0}, {R['k']}, 0 offen {o.nt_once} lds", "par"))
    for i in range(2):
        Bg.ops.append(one_dma("k", f"s_add_u32 m0, {sC2}, {C_K + 1024}", f"buffer_load_dwordx4 {vW2}, {R['k']}, {(sKV, sKV2)[i]} offen offset:{i*1024} {o.nt_once} lds", "par"))
    for i in range(2):
        Bg.ops.append(one_dma("v", f"s_add_u32 m0, {sC2}, {C_V}", f"buffer_load_dwordx4 {vV[i]}, {R['v']}, {(sKV, sKV2)[i]} offen offset:{i*1024} {o.nt_once} lds", "par"))
    Bg.ops.append(("dma", "par", lambda: g.vm(f"buffer_load_dwordx2 {shk}, {vSk}, {R['shift_k']}, {sSk} offen", "par")))
    for i in range(2):
        Bg.ops.append(one_dma("q", f"s_mov_b32 m0, {sQ}", f"buffer_load_dwordx4 {vQa[i]}, {R['q']}, {sKV} offen offset:{i*1024} {o.pol_q} lds", "par"))
    for T in range(4):
        Bg.ops.append(("dma", "par", lambda T=T: g.vm(f"buffer_load_dwordx2 {gw.r(2*T,2)}, {t3}, {R['gate_w']}, {sCol} offen offset:{32*T}", "par")))
    Bg.ops.append(("dma", "par", lambda: g.vm(f"buffer_load_short_d16_hi {vD}, off, {R['ssm_D']}, {sT[3]}", "par")))
    for n in range(4):
        for i in range(4):
            Bg.ops.append(("dma", "w2", lambda n=n, i=i: w_dma("w2", LA, n, i)))
    if o.touch & 2 and o.touch2 in ("par", "w2"):
        at = Bg.find("dma", o.touch2)
        Bg.ops[at:at] = [("dma", "w2" if o.touch2 == "w2" else "tch", lambda: touch(14, ("w3", "w4")))]
    w3r = A.alloc(256)
    sG4 = []
    d4 = Reg(V, d3.base, 4)

    def w4home(n, ft, e2=None):
        k, b = ("v", 160 + 8*n + 4*ft) if n < 12 else ("a", 8*(n-12) + 4*ft)
        return f"{k}[{b}:{b+3}]" if e2 is None else f"{k}[{b+2*e2}:{b+2*e2+1}]"

    rx, sRx = [], []
    prev = lambda n: n - 4 if n < 26 else None if n < 28 else n - 6
    slot = lambda n: (n & 3) if n < 26 else n - 26

    def d4_setup():
        g(f"v_and_b32 {d4[1]}, 127, {d3[0]}\nv_lshrrev_b32 {d4[0]}, 3, v0\nv_lshl_add_u32 {d4[0]}, {d4[0]}, 10, {d4[1]}")
        for i in range(1, 4):
            g(f"v_add_u32 {d4[i]}, {i*7168}, {d4[0]}")

    def st_setup(n):
        def fn():
            if n == 26:
                rx.append(V.alloc(2))
                sRx.append(S.alloc(1))
                g(f"s_lshl_b32 {sRx[0]}, {sW}, 13\ns_sub_u32 {sSt}, {sRx[0]}, {sRing}\nv_add_u32 {rx[0][0]}, {sSt}, {ra[0]}\nv_add_u32 {rx[0][1]}, {sSt}, {ra[1]}")
            if not o.rot:
                if n == 16:
                    d4_setup()
                g(f"s_add_u32 {sSt}, {sW3 if n < 16 else sW4}, {n*32*3584 if n < 16 else (n-16)*32768}")
            elif n < 16:
                g(f"s_xor_b32 {sSt}, {sRot3}, {n}\ns_mul_i32 {sSt}, {sSt}, {32*3584}\ns_add_u32 {sSt}, {sSt}, {sW3}")
            else:
                if n == 16:
                    d4_setup()
                g(f"s_lshl_b32 {sSt}, {sG4[n-16]}, 4\ns_add_u32 {sSt}, {sSt}, {sW4}")
        return ("set", n, fn)

    def st_dma(n, i):
        def fn():
            if i == 0 and n >= 4 and prev(n) is not None:
                g.wait(lg=f"sr{prev(n)}")
            if g.m0 != ("st", n):
                g(f"s_add_u32 m0, {sRx[0] if n in (26, 27) else sRing}, {slot(n)*4096}")
                g.m0 = ("st", n)
            g.vm(f"buffer_load_dwordx4 {d3[i]}, {R['w3' if n < 16 else 'w4']}, {sSt} offen offset:{i*1024} {o.pol_w} lds", f"sd{n}")
        return ("dma", n, fn)

    def st_rd(n, u, ft, e2):
        def fn():
            g.wait(vm=f"sd{n}")
            if n < 16:
                dst, off = w3r.r(16*n + 8*u + 4*ft + 2*e2, 2), e2 * 2048 + u * 1024
            else:
                dst, off = w4home(2*(n-16) + u, ft, e2), u * 2048 + e2 * 1024
            if not o.abl & 32:
                g.ds(f"ds_read_b64_tr_b16 {dst}, {(rx[0] if n in (26, 27) else ra)[ft]} offset:{slot(n)*4096 + off}", f"sr{n}")
        return ("rd0" if (u, ft, e2) == (0, 0, 0) else "rd", n, fn)
    allrd = lambda n: [st_rd(n, u, ft, e2) for u in range(2) for ft in range(2) for e2 in range(2)]
    alldma = lambda n: [st_setup(n)] + [st_dma(n, i) for i in range(4)]
    for n in range(25):
        rds = allrd(n - 3) if n >= 3 else []
        Bg.ops.append(st_setup(n))
        for i in range(4):
            Bg.ops.append(st_dma(n, i))
            Bg.ops += rds[4*i:4*i+4]
    for k, (buf, part) in enumerate((("w3", 0), ("w3", 1), ("w4", 0), ("w4", 1))):
        pos = o.tx34.split(":")[k] if o.tx34 else ""
        if pos:
            at = Bg.find("dma", int(pos) if pos.isdigit() else pos)
            Bg.ops[at:at] = [("dma", f"tx3{k}", lambda buf=buf, part=part: touchx(buf, 56, part, sSt))]
    if o.touch4 >= 0:
        at = Bg.find("dma", o.touch4)
        Bg.ops[at:at] = [("dma", "tch4", lambda: touch(14, ("w4",), sSt))]
    if o.t3 & 2:
        at = Bg.find("dma", o.t3_at)
        Bg.ops[at:at] = [("dma", "tch3", lambda: touch3(14, ("w4",), sSt))]
    Bg.ops += alldma(25) + alldma(26) + alldma(27)
    Bg.ops += allrd(22) + allrd(23)[:4] + alldma(28) + allrd(23)[4:] + allrd(24)[:4] + alldma(29) + allrd(24)[4:]
    for n in range(25, 30):
        Bg.ops += allrd(n)

    def wfrag(ks, T, first):
        if not first and o.pre2 and ks >= 8:
            return f"a[{128 + 16*(ks-8) + 4*T}:{128 + 16*(ks-8) + 4*T + 3}]"
        return wf.r(16*(ks % 3) + 4*T, 4)

    def wreads(ks, first):
        if not first and o.pre2 and ks >= 8:
            return
        for T in range(4):
            for e2 in range(2):
                if o.abl & 1024 and first and T >= 2:
                    continue
                ad, off = (wa[T], ks*4096 + e2*512) if first else (wa[2*T + e2], ks*4096)
                g.ds(f"ds_read_b64_tr_b16 {wf.r(16*(ks % 3) + 4*T + 2*e2, 2)}, {ad} offset:{off}", f"w{ks}")
            yield

    def gemm16(tok, first, vmtag=None, hook=None, pre=None):
        order = list(range(16))
        if not first and o.pre2:
            order = [k for i in range(8) for k in (i, i + 8)]
        slow = [k for k in order if first or not o.pre2 or k < 8]
        for pos, ks in enumerate(order):
            if pre:
                pre(ks)
            if first or not o.pre2:
                nxt = wreads(ks + 2, first) if ks < 14 else iter(())
            elif ks < 8:
                both = wreads(ks + 2, first) if ks < 6 else iter(())
                nxt = (next(both, None) if i % 2 else None for i in range(4))
            else:
                nxt = (next(both, None) if i % 2 else None for i in range(4))
            g.wait(vm=vmtag and f"{vmtag}{ks}", lg=f"w{ks}")
            for T in range(4):
                g(f"v_mfma_f32_16x16x32_bf16 {acc.r(4*T,4)}, {wfrag(ks, T, first)}, {tok.r(4*ks,4)}, {acc.r(4*T,4) if pos else 0}")
                next(nxt, None)
            if first:
                g(f"v_mfma_f32_16x16x32_bf16 {cs.r(0,4)}, {wf.r(16*(ks % 3), 4)}, {ones}, {cs.r(0,4) if ks else 0}")
            if hook:
                hook(pos)

    Bg.cap = Bg.find("dma", "w2")
    g.wait(vm="w1a")
    g("s_barrier")
    stamp("w1_in")
    run(wreads(0, True))
    run(wreads(1, True))
    ready_store()
    sLead.free()
    pd = Poll(R["dbg"], vP32, 0, 1)

    def pre1(ks):
        if ks in (0, 3, 6, 10, 13):
            mark(4, f"p_k{ks}")
        if ks == 6:
            g.wait(vm="w1b")
            g("s_barrier")
            mark(4, "p_w1b")

    def hook1(ks):
        if ks == o.dpoll_at:
            pd.issue()
        Bg.step()
    gemm16(xf, True, hook=hook1, pre=pre1)
    mark(4, "p_loop")
    ones.free(); R["w1"].free()
    g.ds(f"ds_write_b128 {vCs}, {cs.r(0,4)}", "csw")
    Bg.flush(Bg.find("dma", "par"))
    for r in (R["q"], R["k"], R["v"], R["shift_k"], R["ssm_D"], R["gate_w"], vQa, sKV, sKV2, sC2, vW2, vV, vK0, vSk, sK0, sSk):
        r.free()
    for i in range(4):
        g(f"v_fmac_f32 {acc[i]}, {st[1]}, {cs[i]}")
    g.wait(lg="csw")
    g("s_barrier")
    stamp("g1_mfma")
    for i in range(1, 4):
        g(f"v_xor_b32 {t0}, {64*i}, {vCs}")
        g.ds(f"ds_read_b128 {cs.r(4*i,4)}, {t0}", f"cs{i}")
    vCs.free()
    hp = V.alloc(8, at=128)
    Bg.cap = Bg.find("dma", "w2")
    pump_on()
    for i in range(1, 4):
        g.wait(lg=f"cs{i}")
        for e in range(4):
            g(f"v_fmac_f32 {acc[4*i+e]}, {st[1]}, {cs[4*i+e]}")
    st.free(); cs.free()

    def h_store(gg):
        if gg == 0 and o.dpoll_at == 16:
            pd.issue()
        g.vm(f"buffer_store_dwordx4 {hp.r(4*gg,4)}, {vL16}, {R['ws']}, {sHs[gg]} offen sc1", "hst")
    gelu_pk(acc, 16, gk1, hp, tmp, h_store)
    if o.touch & 2 and o.touch2 == "h":
        with g.hold():
            touch(14, ("w3", "w4"))
    gk1.free(); sHs.free(); acc.free()
    stamp("h_st")

    qp = V.alloc(8, at=120)
    g(f"v_lshrrev_b32 {t0}, 1, {vC}\nv_lshrrev_b32 {t2}, 1, {vKq}\nv_xor_b32 {t0}, {t0}, {t2}\nv_lshlrev_b32 {t0}, 4, {t0}")
    g(f"v_lshl_add_u32 {t0}, {vC}, 7, {t0}\nv_and_b32 {t2}, 1, {vKq}\nv_lshl_add_u32 {t0}, {t2}, 3, {t0}\nv_add_u32 {t0}, {sQ}, {t0}")
    Bg.cap = Bg.find("dma", o.bg_a)
    mark(2, "a_pre")
    g.wait(vm="par")
    mark(2, "a_par")
    g("s_barrier")
    mark(2, "a_bar")
    for T in range(4):
        g(f"v_xor_b32 {t2}, {32*T}, {t0}")
        g.ds(f"ds_read_b64 {qp.r(2*T,2)}, {t2}", "q")
    sQ.free()
    up = V.alloc(8, at=160)
    kk = xf

    def kv_reads(m0):
        g.ds(f"ds_read_b64_tr_b16 {kk.r(32 + m0//2, 2)}, {ka[2]} offset:{m0*512}", f"k{m0}")
        for m in range(m0, m0 + 4):
            g.ds(f"ds_read_b64_tr_b16 {kk.r(2*m, 2)}, {ka[m & 1]} offset:{(m >> 1)*1024}", f"k{m0}")
    def hflag():
        pd.check()
        R["dbg"].free()
        if o.local:
            g.vm(f"buffer_load_dword {vDum}, off, {R['ws']}, {sLp} sc1", "pf")
        g.wait(vm="hst")
        flag_set(F_H)
        if o.l2pf & 1:
            with g.hold():
                g(f"v_lshlrev_b32 {vOne}, 7, {vC}")
                g.vm(f"buffer_load_dword {vDum}, {vOne}, {R['ws']}, {sHo} offen sc1", "pf")
        hp.free()
    mark(2, "a_pd")
    kv_reads(0)
    kv_reads(4)
    for m0 in range(0, 16, 4):
        g.wait(lg=f"k{m0}")
        if m0 + 8 < 16:
            kv_reads(m0 + 8)
        for m in range(m0, m0 + (0 if o.abl & 2048 else 4)):
            g(f"v_dot2_f32_bf16 {kk[40+m]}, {kk[2*m]}, {shk[0]}, 0")
        for m in range(m0, m0 + (0 if o.abl & 2048 else 4)):
            g(f"v_dot2_f32_bf16 {kk[40+m]}, {kk[2*m+1]}, {shk[1]}, {kk[40+m]}")
        for i in range(2):
            g(f"v_lshlrev_b32 {tmp[2*i]}, 16, {kk[32 + m0//2 + i]}\nv_and_b32 {tmp[2*i+1]}, {sMask}, {kk[32 + m0//2 + i]}")
        for i in range(2):
            g(f"v_pk_mul_f32 {tmp.r(2*i,2)}, {tmp.r(2*i,2)}, {kk.r(40 + m0 + 2*i, 2)}")
        for i in range(2):
            g(f"v_cvt_pk_bf16_f32 {up[m0//2 + i]}, {tmp[2*i]}, {tmp[2*i+1]}")
        mark(2, f"a_kv{m0}")
        if m0 == o.hflag_m:
            hflag()
            mark(2, "a_hflag")
        if m0 == 4:
            g.ds(f"ds_write_b128 {ua[0]}, {up.r(0,4)}", "uw")
            g(f"v_xor_b32 {ua[0]}, 16, {ua[0]}")
    g.ds(f"ds_write_b128 {ua[0]}, {up.r(4,4)}", "uw")
    shk.free(); ka.free()

    sTr = S.alloc(1)
    g(f"s_lshl_b32 {sT[0]}, {sJ}, 18\ns_lshl_b32 {sT[1]}, {sW}, 16\ns_add_u32 {sTr}, {sT[0]}, {sT[1]}\ns_lshl_b32 {sT[0]}, {sP}, 7\ns_add_u32 {sTr}, {sTr}, {sT[0]}")
    g(f"s_add_u32 {sT[0]}, {sTr}, {UBUF}\ns_add_u32 {sT[1]}, {sTr}, {UBUF + 32768}")
    g.wait(lg="uw")
    g.ds(f"ds_read_b128 {up.r(0,4)}, {ua[1]}", "ur")
    g.ds(f"ds_read_b128 {up.r(4,4)}, {ua[1]} offset:1024", "ur")
    ua.free()
    if o.hflag_m >= 16:
        hflag()
    stamp("h_out")
    g.wait(lg="ur")
    for i in range(2):
        g.vm(f"buffer_store_dwordx4 {up.r(4*i,4)}, {vT4k}, {R['ws']}, {sT[i]} offen sc1", "ust")
    g(f"v_lshl_add_u32 {t0}, {vKq}, 2, {vR4}\nv_bfe_u32 {t2}, {t0}, 1, 2\nv_lshl_add_u32 {t0}, {t0}, 7, {vC8}")
    g(f"s_and_b32 {sT[0]}, {sW}, 1\ns_lshl_b32 {sT[0]}, {sT[0]}, 11\nv_lshl_add_u32 {t0}, {t2}, 5, {t0}\nv_add_u32 {wa[0]}, {sT[0]}, {t0}")
    for i in range(1, 8):
        g(f"v_xor_b32 {wa[i]}, {32*(i >> 1) + 2048*(i & 1)}, {wa[0]}")
    vP8 = V.alloc(1)
    g(f"s_lshl_b32 {sT[0]}, {sW}, 2\nv_lshl_add_u32 {vP8}, {vS8}, 4, {sT[0]}")
    ph = Poll(R["ws"], vP8, None, F_H, local=True)
    cA = xf
    pump_off()
    mark(2, "a_set")
    Bg.flush(Bg.find("dma", "w2"))
    mark(2, "a_w2iss")
    for r in (R["w2"], sM, sOff, sWo, wd):
        r.free()

    keys = ("vmq", "lgq", "vmt", "lgt", "clock", "mfree", "m0", "q", "lq", "last_done", "ta")

    def two_paths(body, before=None):
        lodd, ljoin = g.label("odd"), g.label("join")
        g(f"s_bitcmp1_b32 {sW}, 0\ns_cbranch_scc1 {lodd}")
        saved = (copy.deepcopy({k: getattr(g, k) for k in keys}), Bg.idx)
        ends = []
        for par in range(2):
            if par:
                g(f"{lodd}:")
                for k, v in copy.deepcopy(saved[0]).items():
                    setattr(g, k, v)
                Bg.idx = saved[1]
            extra = body(par)
            ends.append((Bg.idx, list(g.vmq), list(g.lgq), extra, g.clock))
            if not par:
                g(f"s_branch {ljoin}")
        g(f"{ljoin}:")
        assert ends[0][0] == ends[1][0]
        g.vmq = merge_queues(ends[0][1], ends[1][1])
        g.lgq = merge_queues(ends[0][2], ends[1][2])
        g.clock = max(ends[0][4], ends[1][4])
        g.m0 = None

    def conv_all(par, events, spare=None):
        tiles = TILES[par]
        top = max(tiles)
        seq = [(d, mp) for d in (0, 1, 2, 3) for mp in range(-1, 2 * top + 1)]

        def bread(i):
            d, mp = seq[i]
            for e2 in range(2):
                if not o.abl & 2:
                    g.ds(f"ds_read_b64 {cBr(i, 2*e2, 2)}, {aB[4*e2 + ((d + mp - 1) & 3)]} offset:{256*(mp+1)}", f"B{i}")
                yield
        for i in range(o.bdist):
            run(bread(i))
        started = set()
        cnt = 0
        ndma = sum(1 for x in Bg.ops[Bg.idx:Bg.cap] if x[0] == "dma")
        per = max(1, 138 // max(ndma, 1))
        done = [-per]
        for i, (d, mp) in enumerate(seq):
            rd = bread(i + o.bdist) if i + o.bdist < len(seq) else iter(())
            if i % 2 == 0:
                g.wait(lg=f"B{min(i + 1, len(seq) - 1)}")
            for ti, jb in enumerate(tiles):
                m = 2 * jb - mp
                if m < 0:
                    continue
                c = (pp, qq)[d & 1].r(6*ti + (d & 2), 4)
                first = d < 2 and (d, ti) not in started
                started.add((d, ti))
                if not o.abl & 1:
                    g(f"v_mfma_f32_16x16x32_bf16 {c}, {cA.r(4*m,4)}, {cBr(i, 0, 4)}, {0 if first else c}")
                cnt += 1
                next(rd, None)
                if cnt in events:
                    mark(5, f"c{cnt}a")
                    events[cnt]()
                    mark(5, f"c{cnt}b")
                if spare and cnt > 144 - 2 * len(spare) - 8 and cnt % 2:
                    spare.pop(0)()
                for _ in range(2):
                    if Bg.idx < Bg.cap and (Bg.ops[Bg.idx][0] != "dma" or cnt - done[0] >= per):
                        if Bg.ops[Bg.idx][0] == "dma":
                            done[0] = cnt
                        Bg.step(True)
                        if g.slack() < 4:
                            break
            run(rd)
        Bg.flush(Bg.cap)

    sCH, sCU, sUl, sFu = (S.alloc(1) for _ in range(4))
    g(f"s_lshr_b32 {sT[2]}, {sW}, 1\ns_and_b32 {sT[3]}, {sW}, 1")
    g(f"s_mul_i32 {sCH}, {sT[2]}, {HP}\ns_add_u32 {sCH}, {sCH}, {C_H}\ns_mul_i32 {sCU}, {sT[2]}, {4*UP}\ns_add_u32 {sCU}, {sCU}, {C_U}")
    g(f"s_lshl_b32 {sT[1]}, {sCh}, 12")
    Bg.flush(Bg.find("dma", o.bg_a))
    mark(2, "a_bga")
    if o.hpoll == 0:
        ph.issue()
    Bg.cap = Bg.find("dma", o.cap_p2)
    Bg.flush(Bg.find("dma", o.bg_b))
    mark(2, "a_bgb")
    g.wait(vm="w2")
    g("s_barrier")
    stamp("u_out")
    if o.hpoll == 1:
        ph.issue()
    g(f"s_add_u32 m0, {sCH}, 32\ns_nop 0")
    fl = (g.vm(f"buffer_load_dwordx4 {vL16}, {R['ssm_k']}, {sT[1]} offen offset:{i*1024} {o.nt_once} lds", "fin") for i in range(4))
    if o.hpoll < 2:
        next(fl)
        g.pump = lambda: next(fl, None) if g.ta - g.clock < 0 else None
    if o.pre2:
        assert o.cap_p2 <= 10
        for ks in range(8, 16):
            for T in range(4):
                for e2 in range(2):
                    b = 128 + 16*(ks-8) + 4*T + 2*e2
                    g.ds(f"ds_read_b64_tr_b16 a[{b}:{b+1}], {wa[2*T + e2]} offset:{ks*4096}", "wpre")
            if o.hpoll >= 2 and ks == 6 + o.hpoll:
                ph.issue()
                g.pump = lambda: next(fl, None) if g.ta - g.clock < 0 else None
    run(wreads(0, False))
    run(wreads(1, False))

    g.pump = None
    run(fl)
    R["ssm_k"].free()
    ph.check(then=lambda: flag_set(F_U))
    up.free(); vP8.free()
    stamp("h_flag")
    sHl2 = S.alloc(2)
    acc = V.alloc(16, at=240)

    def h1_load(pos):
        ks = (pos >> 1) + 8 * (pos & 1) if o.pre2 else pos
        so = sHl2[ks >> 3]
        if ks & 1 == 0:
            g(f"s_xor_b32 {so}, {sHo}, {ks << 10}")
        g.vm(f"buffer_load_dwordx4 {xf.r(4*ks,4)}, {vL16}, {R['ws']}, {so} offen offset:{(ks & 1)*1024} sc1", f"h{ks}")
    hl = (h1_load(ks) for ks in range(9))
    next(hl)
    g.pump = lambda: next(hl, None) if g.ta - g.clock < 30 else None
    gs = V.alloc(4)
    g(f"v_mov_b32 {gs[1]}, 0\nv_mov_b32 {gs[3]}, 0")
    g.wait(lg="q")
    for i in range(8):
        g(f"v_dot2c_f32_bf16 {gs[1]}, {qp[i]}, {gw[i]}")
    gw.free()
    g(f"s_lshl_b32 {sUl}, {sCh}, 12\ns_add_u32 {sUl}, {sUl}, {UBUF}")
    g(f"s_lshr_b32 {sT[0]}, {sP}, 3\ns_lshl_b32 {sT[0]}, {sT[0]}, 7\ns_lshl_b32 {sFu}, {sJ}, 9\ns_add_u32 {sFu}, {sFu}, {sT[0]}")
    aA = V.alloc(1)
    g(f"v_lshlrev_b32 {t0}, 6, {vKq}\nv_add_u32 {t0}, {t0}, {vC8}\nv_lshlrev_b32 {t2}, 3, {vR4}\nv_sub_u32 {t0}, {t0}, {t2}")
    g(f"s_add_u32 {sT[0]}, {sCH}, 32\nv_add_u32 {aA}, {sT[0]}, {t0}")
    sW4 = S.alloc(1)
    g(f"s_mul_i32 {sW4}, {sW}, {448*1024}\ns_add_u32 {sW4}, {sW4}, {sCol}")
    if o.fake & 2:
        g(f"s_mov_b32 {sW4}, {OOB}")
    if o.rot:
        sG4 += [S.alloc(1) for _ in range(14)]
        if o.rotp & 2:
            g(f"s_mul_i32 {sT[0]}, {sPP}, 7\ns_lshr_b32 {sT[0]}, {sT[0]}, 1\ns_lshl_b32 {sG4[0]}, {sT[0]}, 11")
        elif o.rotp & 8:
            g(f"s_mov_b32 {sG4[0]}, 0")
        elif o.rotj & 1:
            g(f"s_add_u32 {sT[0]}, {sX}, {sJ}\ns_and_b32 {sT[0]}, {sT[0]}, 7\ns_mul_i32 {sT[0]}, {sT[0]}, 7\ns_lshr_b32 {sT[0]}, {sT[0]}, 2\ns_lshl_b32 {sG4[0]}, {sT[0]}, 11")
        else:
            g(f"s_mul_i32 {sT[0]}, {sX}, 7\ns_lshr_b32 {sT[0]}, {sT[0]}, 2\ns_lshl_b32 {sG4[0]}, {sT[0]}, 11")
        for n in range(1, 14):
            g(f"s_add_u32 {sG4[n]}, {sG4[n-1]}, 2048\ns_cmp_eq_u32 {sG4[n]}, {14*2048}\ns_cselect_b32 {sG4[n]}, 0, {sG4[n]}")
    g(f"v_mov_b32 {tmp[0]}, 0\nv_mov_b32 {tmp[1]}, 0")
    g(f"v_lshl_add_u32 {t0}, v0, 3, {sCU}\nv_add_u32 {t2}, {sCH}, {vC8}")
    g.ds(f"ds_write_b64 {t0}, {tmp.r(0,2)}")
    g.ds(f"ds_write_b64 {t2}, {tmp.r(0,2)}")
    sX1s, sX1l, sSto, sSto2, sStw, sY, sXo, sH2, sHst, sFy = (S.alloc(1) for _ in range(10))
    aN, aY, vSt, vSw, vXs, vN0 = (V.alloc(1) for _ in range(6))
    g(f"s_lshr_b32 {sT[0]}, {sW}, 1\ns_mul_i32 {sT[1]}, {sT[0]}, {NP}\ns_add_u32 {sT[1]}, {sT[1]}, {A_N}\nv_mov_b32 {vN0}, {sT[1]}")
    g.ds(f"ds_write2st64_b32 {vN0}, {tmp[0]}, {tmp[0]} offset0:0 offset1:9")
    g.ds(f"ds_write_b32 {vN0}, {tmp[0]} offset:{18*256}")
    g(f"v_lshl_add_u32 {t0}, {vC}, 2, {vKq}\nv_lshl_add_u32 {aN}, {t0}, 2, {sT[1]}")
    g(f"v_lshrrev_b32 {t0}, 2, {vC}\nv_lshlrev_b32 {t0}, 7, {t0}")
    g(f"v_lshl_add_u32 {t0}, {vKq}, 5, {t0}\nv_add_u32 {aY}, {t0}, {vC8}")
    g(f"s_lshl_b32 {sT[3]}, {sP}, 16\ns_add_u32 {sT[3]}, {sT[3]}, {X1BUF}")
    g(f"s_lshl_b32 {sT[0]}, {sT[0]}, 15\ns_and_b32 {sT[1]}, {sW}, 1\ns_lshl_b32 {sT[2]}, {sT[1]}, 8\ns_add_u32 {sT[0]}, {sT[0]}, {sT[2]}")
    g(f"s_lshl_b32 {sT[2]}, {sJ}, 12\ns_add_u32 {sT[0]}, {sT[0]}, {sT[2]}\ns_add_u32 {sX1s}, {sT[0]}, {sT[3]}")
    if o.rot:
        g(f"s_lshl_b32 {sX1l}, {sW}, 2\ns_xor_b32 {sX1l}, {sX1l}, {sRot3}\ns_lshl_b32 {sX1l}, {sX1l}, 11\ns_add_u32 {sX1l}, {sX1l}, {sT[3]}")
    else:
        g(f"s_lshl_b32 {sX1l}, {sW}, 13\ns_add_u32 {sX1l}, {sX1l}, {sT[3]}")
    g(f"s_lshl_b32 {sSto}, {sP}, 13\ns_add_u32 {sSto}, {sSto}, {STATS}\ns_add_u32 {sSto2}, {sSto}, 4096")
    g(f"s_lshl_b32 {sT[0]}, {sJ}, 10\ns_lshl_b32 {sT[2]}, {sW}, 8\ns_add_u32 {sT[0]}, {sT[0]}, {sT[2]}\ns_add_u32 {sStw}, {sT[0]}, {sSto}")
    g(f"s_lshl_b32 {sY}, {sCh}, 12\ns_add_u32 {sY}, {sY}, {YBUF}")
    g(f"v_lshlrev_b32 {t0}, 9, {vKq}\nv_lshl_add_u32 {vXs}, {vC}, 4, {t0}")
    g(f"v_lshrrev_b32 {t2}, 5, v0\nv_and_b32 {t3}, 1, {vKq}")
    g(f"v_lshlrev_b32 {t0}, 10, {t2}\nv_lshl_add_u32 {t0}, {t3}, 8, {t0}\nv_lshl_add_u32 {vSt}, {vC}, 3, {t0}")
    g(f"v_lshlrev_b32 {t0}, 2, {t2}\nv_lshl_add_u32 {t0}, {vC}, 3, {t0}")
    g(f"v_lshlrev_b32 {t2}, 6, {t2}\nv_lshl_add_u32 {t2}, {vC}, 2, {t2}\nv_add_u32 {t2}, 128, {t2}")
    g(f"v_cmp_eq_u32 vcc, 0, {t3}\ns_nop 1\nv_cndmask_b32 {vSw}, {t2}, {t0}, vcc")
    g(f"s_mul_i32 {sH2}, {sP}, 229376\ns_add_u32 {sH2}, {sH2}, {H2BUF}")
    g(f"s_lshl_b32 {sHst}, {sL}, 12\ns_add_u32 {sHst}, {sHst}, {sH2}\ns_add_u32 {sHst}, {sHst}, {sIdle}")
    g(f"s_lshr_b32 {sT[0]}, {sP}, 2\ns_lshr_b32 {sT[1]}, 0x3b, {sT[0]}\ns_and_b32 {sT[1]}, {sT[1]}, 1\ns_lshl_b32 {sT[1]}, {sT[1]}, 7")
    g(f"s_lshl_b32 {sT[0]}, {sW}, 15\ns_add_u32 {sT[1]}, {sT[1]}, {sT[0]}\ns_lshl_b32 {sT[0]}, {sJ}, 9\ns_add_u32 {sFy}, {sT[1]}, {sT[0]}")
    g(f"v_mov_b32 {gs[0]}, 0\nv_mov_b32 {gs[2]}, 0")
    vPu = V.alloc(1)
    pu = Poll(R["ws"], vPu, sFu, F_U)
    g(f"v_lshlrev_b32 {vPu}, 10, {vP32}")
    for r in (sL, sIdle, sCh, sCH):
        r.free()
    mark(2, "b_set")
    g.pump = None
    run(hl)
    mark(2, "b_iss")

    def u_load(i):
        if i == 0:
            pu.check()
        if g.m0 != "u":
            g(f"s_add_u32 m0, {sCU}, 512\ns_nop 0")
            g.m0 = "u"
        g.vm(f"buffer_load_dwordx4 {vL16}, {R['ws']}, {sUl} offen offset:{1024*i} sc1 {o.pol_u} lds", "cin")

    def hook2(ks):
        if ks in (0, 4, 8, 12):
            mark(2, f"b_k{ks}")
        if ks == o.upoll_at:
            pu.issue()
        if ks + 9 < 16:
            h1_load(ks + 9)
        elif ks >= o.ucheck_at:
            u_load(ks - o.ucheck_at)
        else:
            Bg.step()
            Bg.step()
    gemm16(xf, False, vmtag="h", hook=hook2)
    sHl2.free(); sHo.free()
    stamp("g2_mfma")
    wa.free(); wf.free()
    g.wait(vm="fin")
    areads = [f"ds_read_b64_tr_b16 {xf.r(4*m + 2*e2, 2)}, {aA} offset:{256*m + 32 - 32*e2}" for m in range(15, -1, -1) for e2 in range(2)]
    g.pump = lambda: g.ds(areads.pop(0), "A") if areads else None
    x1p = V.alloc(8, at=128)
    for T in range(0, 4, 2):
        for i in range(4):
            g(f"v_dot2_f32_bf16 {tmp[2*i]}, {qp[2*T+i]}, {sLo1}, {acc[4*T+2*i]}")
            g(f"v_dot2_f32_bf16 {tmp[2*i+1]}, {qp[2*T+i]}, {sHi1}, {acc[4*T+2*i+1]}")
        for i in range(4):
            g(f"v_cvt_pk_bf16_f32 {x1p[2*T+i]}, {tmp[2*i]}, {tmp[2*i+1]}")
        g.vm(f"buffer_store_dwordx4 {x1p.r(2*T,4)}, {vXs}, {R['ws']}, {sX1s} offen offset:{T*1024} sc1", "xst")
    acc.free(); vXs.free()
    with g.hold():
        for i in range(max(0, 16 - o.ucheck_at), 4):
            u_load(i)
        sUl.free(); sFu.free(); vPu.free()

    for i in range(8):
        g(f"v_dot2c_f32_bf16 {gs[0]}, {sOnes}, {x1p[i]}")
        g(f"v_dot2c_f32_bf16 {gs[2]}, {x1p[i]}, {x1p[i]}")
    g(f"v_permlane32_swap_b32 {gs[0]}, {gs[2]}\nv_permlane32_swap_b32 {gs[1]}, {gs[3]}")
    g(f"v_add_f32 {gs[0]}, {gs[0]}, {gs[2]}\nv_add_f32 {gs[1]}, {gs[1]}, {gs[3]}")
    g(f"v_permlane16_swap_b32 {gs[0]}, {gs[1]}\nv_add_f32 {gs[0]}, {gs[0]}, {gs[1]}")
    g.vm(f"buffer_store_dword {gs[0]}, {vSw}, {R['ws']}, {sStw} offen sc1", "xst")
    sStw.free(); vSw.free()
    stamp("x1_st")

    pp = V.alloc(30, at=160)
    qq = V.alloc(30, at=190)
    uu = V.alloc(20, at=220)
    cB, cB2 = V.alloc(16, at=240), V.alloc(16, at=136)
    cBr = lambda i, k, n: (cB, cB2)[(i >> 2) & 1].r(4*(i & 3) + k, n)
    for ti in range(5):
        g(f"v_mov_b32 {qq[6*ti + 4]}, 0\nv_mov_b32 {qq[6*ti + 5]}, 0\nv_mov_b32 {pp[6*ti + 4]}, 0\nv_mov_b32 {pp[6*ti + 5]}, 0")
    aB = tmp
    aU = V.alloc(4)
    for e2 in range(2):
        g(f"v_lshlrev_b32 {t0}, 1, {vKq}\nv_sub_u32 {t0}, {vC}, {t0}\nv_add_u32 {t0}, {7 + e2}, {t0}")
        g(f"v_lshrrev_b32 {t2}, 2, {t0}\nv_lshl_add_u32 {t2}, {t2}, 7, {sCU}\nv_and_b32 {t3}, 3, {t0}\nv_lshl_add_u32 {t2}, {t3}, 3, {t2}\nv_lshrrev_b32 {t0}, 3, {t0}")
        for t in range(4):
            g(f"v_add_u32 {t3}, {t}, {t0}\nv_and_b32 {t3}, 3, {t3}\nv_lshl_add_u32 {aB[4*e2 + t]}, {t3}, 5, {t2}")
    g(f"v_lshrrev_b32 {t2}, 2, {vC}\nv_lshl_add_u32 {t2}, {t2}, 7, {sCU}\nv_add_u32 {t2}, {t2}, {vC8}\nv_lshl_add_u32 {t2}, {vKq}, 1, {t2}")
    g(f"v_add_u32 {t2}, 512, {t2}\nv_lshrrev_b32 {t0}, 3, {vC}")
    for t in range(4):
        g(f"v_add_u32 {t3}, {t}, {t0}\nv_and_b32 {t3}, 3, {t3}\nv_lshl_add_u32 {aU[t]}, {t3}, 5, {t2}")
    sCU.free()
    pump_off()
    while areads:
        g.ds(areads.pop(0), "A")
    px = Poll(R["ws"], vP32, None, F_X1, local=True)
    sv = [Reg(V, 152, 8), Reg(V, 248, 8)]
    gate = V.alloc(2)
    nb = [Reg(V, xf.base + 32, 32), Reg(V, xf.base, 32)]

    def st_loads(th):
        for i in range(4):
            g.vm(f"buffer_load_dwordx2 {sv[th].r(2*i, 2)}, {vSt}, {R['ws']}, {(sSto, sSto2)[i >> 1]} offen offset:{(i & 1)*2048 + th*512} sc1", f"s{th}")
            yield

    def x1_loads(th):
        for i in range(7, -1, -1):
            if i & 1:
                g(f"s_xor_b32 {sXo}, {sX1l}, {(i >> 1) << 11 | th << 15}")
            g.vm(f"buffer_load_dwordx4 {nb[th].r(4*i, 4)}, {vL16}, {R['ws']}, {sXo} offen offset:{(i & 1)*1024} sc1", f"n{th}_{i}")
            yield

    def fold(r, t):
        for sw in ("32", "16"):
            g(f"v_mov_b32 {t}, {r}\ns_nop 1\nv_permlane{sw}_swap_b32 {r}, {t}")
            yield
            g(f"v_add_f32 {r}, {r}, {t}")
            yield

    def gate_calc():
        g.wait(vm="gl")
        g(f"v_add_f32 {gate[0]}, {gate[0]}, {gate[1]}")
        yield
        yield from fold(gate[0], gate[1])
        yield from round_bf16(gate[0])
        for t in (f"v_mul_f32 {gate[0]}, {fbits(-LOG2E)}, {gate[0]}", f"v_exp_f32 {gate[0]}, {gate[0]}\ns_nop 0", f"v_add_f32 {gate[0]}, 1.0, {gate[0]}",
                  f"v_rcp_f32 {gate[0]}, {gate[0]}\ns_nop 0"):
            g(t)
            yield
        yield from round_bf16(gate[0])
        g(f"v_sub_f32 {gate[1]}, 1.0, {gate[0]}")
        yield
        yield from round_bf16(gate[1])

    def xflag():
        g.wait(vm="xst")
        flag_set(F_X1)
        if o.l2pf & 2:
            g(f"v_lshrrev_b32 {vOne}, 1, {vC}\nv_lshlrev_b32 {vOne}, 9, {vOne}\nv_and_b32 {t2}, 1, v0\nv_lshl_add_u32 {vOne}, {t2}, 7, {vOne}")
            g.vm(f"buffer_load_dword {vDum}, {vOne}, {R['ws']}, {sX1s} offen sc1", "pf")

    Bg.flush(Bg.find("dma", o.bg_u))
    Bg.cap = Bg.find("dma", o.cap2)

    def half2(par):
        tiles = TILES[par]
        ur = [lambda ti=ti, jb=jb, m=m: g.ds(f"ds_read_u16_d16_hi {uu[4*ti + m]}, {aU[(m + 2*jb) & 3]} offset:{512*jb}", f"U{ti}")
              for ti, jb in enumerate(tiles) for m in range(4)]
        g.wait(vm="cin")
        stamp("u_in"); idle("u_in")
        l0 = chain(st_loads(0), x1_loads(0))
        ev = {o.xflag_at: xflag, o.xpoll_at: px.issue, o.xcheck_at: lambda: px.check(free=par)}
        for i in range(4):
            ev[o.xcheck_at + 1 + 2*i] = lambda: next(l0)
        conv_all(par, ev, ur)
        if o.fine:
            stamp("cv_mfma")
        next(l0)
        g.pump = lambda: next(l0, None) if g.ta - g.clock < 30 else None
        for f in ur:
            f()
        g(f"v_add_u32 {vN0}, 4, {aN}")
        for ti, jb in enumerate(tiles):
            b = 6 * ti
            g(f"v_add_f32 {pp[b+4]}, {pp[b+4]}, {qq[b+3]}\nv_add_f32 {pp[b+5]}, {pp[b+5]}, {qq[b+4]}")
            g.ds(f"ds_write2st64_b32 {vN0}, {pp[b+4]}, {pp[b+5]} offset0:{jb} offset1:{jb + 9}", "Nw")
            g.ds(f"ds_write_b32 {vN0}, {qq[b+5]} offset:{(jb + 18)*256}", "Nw")
        for ti, jb in enumerate(tiles):
            b = 6 * ti
            g(f"v_add_f32 {pp[b+1]}, {pp[b+1]}, {qq[b]}\nv_add_f32 {pp[b+2]}, {pp[b+2]}, {qq[b+1]}\nv_add_f32 {pp[b+3]}, {pp[b+3]}, {qq[b+2]}")
        mark(5, "c_add")
        g.wait(lg="Nw")
        g("s_barrier")
        mark(5, "c_bar")
        for ti, jb in enumerate(tiles):
            g.ds(f"ds_read2st64_b32 {qq.r(6*ti,2)}, {aN} offset0:{jb} offset1:{jb + 9}", f"N{ti}")
            g.ds(f"ds_read_b32 {qq[6*ti+2]}, {aN} offset:{(jb + 18)*256}", f"N{ti}")
        for ti, jb in enumerate(tiles):
            for m in range(4):
                g(f"v_fmac_f32 {pp[6*ti+m]}, {vD}, {uu[4*ti + m]}")
        for ti, jb in enumerate(tiles):
            b = 6 * ti
            g.wait(lg=f"N{ti}")
            for m in range(3):
                g(f"v_add_f32 {pp[b+m]}, {pp[b+m]}, {qq[b+m]}")
            g(f"v_cvt_pk_bf16_f32 {pp[b]}, {pp[b]}, {pp[b+1]}\nv_cvt_pk_bf16_f32 {pp[b+1]}, {pp[b+2]}, {pp[b+3]}")
        mark(5, "c_cvt")
        g.pump = None
        run(l0)
        mark(5, "c_l0")
        for ti, jb in enumerate(tiles):
            g.vm(f"buffer_store_dwordx2 {pp.r(6*ti,2)}, {aY}, {R['ws']}, {sY} offen offset:{512*jb} sc1", "yst")
        return len(tiles)
    two_paths(half2)
    for r in (aA, aN, aU, aY, vD, gs, vN0, sY, pp, qq, uu, cB, cB2, sX1s):
        r.free()
    w4v = V.alloc(96, at=160)
    stamp("conv2")

    gk3 = [V.alloc(4), V.alloc(4)]
    vXw = V.alloc(1)
    g(f"s_lshl_b32 {sT[0]}, {sW}, 13\nv_add_u32 {vXw}, {sT[0]}, {vL16}")

    def norm(th, center):
        g.wait(vm=f"s{th}")
        r = sv[th]
        for d, s_ in ((0, 2), (1, 3), (4, 6), (5, 7), (0, 4), (1, 5)):
            g(f"v_add_f32 {r[d]}, {r[d]}, {r[s_]}")
            yield
        g(f"s_nop 1\nv_permlane32_swap_b32 {r[0]}, {r[1]}")
        yield
        g(f"v_add_f32 {r[0]}, {r[0]}, {r[1]}\nv_mov_b32 {r[1]}, {r[0]}")
        yield
        g(f"s_nop 1\nv_permlane32_swap_b32 {r[0]}, {r[1]}")
        yield
        yield from ln_mean(r[0], r[2])
        for i in range(7, -1, -1):
            g.wait(vm=f"n{th}_{i}")
            if th == 0 and i % 4 == 3:
                mark(3, f"n_{i}")
            if not ((o.abl & 8 and th) or (o.abl & 4096 and not th)):
                yield from center([nb[th][4*i + q] for q in range(4)], r[2], tmp)
            g.ds(f"ds_write_b128 {vXw}, {nb[th].r(4*i, 4)} offset:{LA + th*32768 + i*1024}", f"xw{th}")
            yield

    def gate_loads():
        g(f"v_lshlrev_b32 {t0}, 11, {vKq}\nv_lshl_add_u32 {t0}, {vC}, 2, {t0}\ns_lshl_b32 {sT[0]}, {sW}, 8\ns_add_u32 {sT[0]}, {sT[0]}, {sSto}")
        for i in range(2):
            g.vm(f"buffer_load_dword {gate[i]}, {t0}, {R['ws']}, {sT[0]} offen offset:{128 + i*1024} sc1", "gl")
            yield
    l1 = chain(st_loads(1), x1_loads(1), gate_loads())
    cnt1 = [0]

    def pump1():
        if g.ta - g.clock < 0 and cnt1[0] < o.l1_early:
            cnt1[0] += 1
            next(l1, None)
    g.pump = pump1
    run(norm(0, center_dot))
    g.pump = None
    Bg.cap = Bg.idx
    g.wait(lg="xw0")
    g("s_barrier")
    stamp("xn0"); idle("xn0")
    accs = [nb[0], nb[1]]
    tf = V.alloc(16, at=136)
    hq = V.alloc(8, at=152)

    def h_store2(th):
        def fn(f):
            if f == 0 and th:
                g(f"s_add_u32 {sHst}, {sHst}, {112*1024}")
            g.vm(f"buffer_store_dwordx4 {hq.r(4*(f & 1),4)}, {vL16}, {R['ws']}, {sHst} offen offset:{f*1024} {o.pol_st} sc1", f"Hst{th}")
        return fn

    def g3_pass(th, fillers, over, hook=None):
        def tread(ks):
            g.ds(f"ds_read_b128 {tf.r(4*(ks & 3), 4)}, {vL16} offset:{LA + th*32768 + ks*1024}", f"t{ks}")
        for ks in range(3):
            tread(ks)
        for ks in range(32):
            if th == 0 and ks % 2 == 0:
                Bg.flush(Bg.find("rd", ks // 2))
                g.wait(lg=f"sr{ks//2}")
            g.wait(lg=f"t{ks}")
            for ft in range(2):
                c = accs[th].r(16*ft, 16)
                if not (o.abl & 64 and ft):
                    g(f"v_mfma_f32_32x32x16_bf16 {c}, {w3r.r(8*ks + 4*ft, 4)}, {tf.r(4*(ks & 3), 4)}, {c if ks else 0}")
                if ft == 1 and ks + 3 < 32:
                    tread(ks + 3)
                if ft == 0 and ks % 4 == 0 and ks:
                    mark(3, f"g{th}_k{ks}")
                if hook:
                    hook(2*ks + ft)
                fill(fillers, over, reserve=4 * ft)
        mark(3, f"g{th}_loop")
        drain(fillers)
        mark(3, f"g{th}_drain")

    def scale(th):
        yield from ln_std(sv[th][0], sv[th][1], gk3[th][2])
        yield from ln_scale(gk3[th])
    f0 = [scale(0)]

    def hook0(i):
        if i % 2 == 0 and next(l1, 1) is not None:
            Bg.cap = Bg.find("dma", o.cap_a)
        if i == o.norm1_at:
            f0.append(chain(norm(1, center_plain), scale(1)))
        if i == o.yflag_at:
            g.wait(vm="yst")
            flag_set(F_Y)
    g3_pass(0, f0, o.q3a, hook0)
    for r in (sXo, sX1l, vSt, sSto2):
        r.free()
    g.wait(lg="xw1")
    g("s_barrier")
    stamp("g3a"); idle("g3a")
    Bg.cap = Bg.find("dma", o.cap_b)
    vP16, vP7 = V.alloc(1), V.alloc(1)
    py = Poll(R["ws"], vP16, sFy, F_Y)

    def hook3(i):
        if i == 2:
            g(f"v_lshrrev_b32 {vP16}, 1, {vC}\nv_lshlrev_b32 {vP16}, 12, {vP16}\nv_and_b32 {vP7}, 1, v0\nv_lshl_add_u32 {vP16}, {vP7}, 8, {vP16}")
        if i == 3:
            g(f"v_min_u32 {vP7}, 6, v0\ns_lshl_b32 {sT[0]}, {sW}, 5\nv_lshl_add_u32 {vP7}, {vP7}, 2, {sT[0]}")
            py.issue()
        if i == 24:
            py.check()
            g(f"s_add_u32 {sT[0]}, {sTr}, {YBUF}\ns_add_u32 {sT[1]}, {sTr}, {YBUF + 32768 - 1024}\ns_lshl_b32 {sT[2]}, {sW}, 11\ns_add_u32 m0, {sT[2]}, {C_Y}")
        if i == 25:
            g.vm(f"buffer_load_dwordx4 {vT4k}, {R['ws']}, {sT[0]} offen sc1 {o.pol_y} lds", "y")
            g.vm(f"buffer_load_dwordx4 {vT4k}, {R['ws']}, {sT[1]} offen offset:1024 sc1 {o.pol_y} lds", "y")

    nd = [sum(1 for x in Bg.ops[Bg.idx:Bg.cap] if x[0] == "dma"), 0]

    def hook3h(i):
        hook3(i)
        if i not in (24, 25) and nd[1] < nd[0] * i // 58 and Bg.idx < Bg.cap:
            nd[1] += Bg.ops[Bg.idx][0] == "dma"
            Bg.step(True)
        if i == 24:
            Bg.saved_cap, Bg.cap = Bg.cap, 0
        if i == 25:
            Bg.cap = Bg.saved_cap
    g3_pass(1, [Ops(x) for x in gelu_plain(accs[0], 32, gk3[0], hq, tmp, h_store2(0))], o.q3b, hook3h)
    vP16.free()
    stamp("g3b"); idle("g3b")
    if o.tail_bg == 2:
        Bg.cap = Bg.find("dma", 27)
        Bg.thresh = 400
    else:
        Bg.cap = Bg.find("dma", 29)
        Bg.flush(Bg.find("dma", 27))
    pa = Poll(R["ws"], vP7, None, F_HA, local=True)
    pb = Poll(R["ws"], vP7, None, F_HB, local=True)
    if o.tail_bg:
        pump_on()
    st1 = h_store2(1)

    def done1(f):
        if f == o.haflag_at:
            g.wait(vm="Hst0")
            flag_set(F_HA)
            if o.l2pf & 4:
                with g.hold():
                    g(f"v_lshlrev_b32 {vOne}, 5, {vP32}\ns_sub_u32 {sT[0]}, {sHst}, {112*1024 if f else 0}")
                    g.vm(f"buffer_load_dword {vDum}, {vOne}, {R['ws']}, {sT[0]} offen sc1", "pf")
        if o.apoll_at == 6:
            if f < 2:
                st1(f)
            if f == 3:
                pa.issue()
                st1(2)
                st1(3)
        else:
            st1(f)
        if f == o.apoll_at:
            pa.issue()
        mark(3, f"H_f{f}")
    gelu_pk(accs[1], 32, gk3[1], hq, tmp, done1)
    stamp("H_st")
    tf.free(); vXw.free()
    for r in gk3:
        r.free()
    sv = V.alloc(16, at=136)
    g.wait(vm="y")
    g("s_barrier")
    if o.apoll_at == 4:
        pa.issue()

    g(f"v_lshl_add_u32 {t0}, {vKq}, 2, {vR4}\nv_lshlrev_b32 {t0}, 7, {t0}\nv_lshl_add_u32 {t0}, {vC8}, 2, {t0}\ns_lshl_b32 {sT[0]}, {sW}, 3\ns_add_u32 {sT[0]}, {sT[0]}, {C_Y}\nv_add_u32 {t0}, {sT[0]}, {t0}")
    for T in range(4):
        g.ds(f"ds_read_b64_tr_b16 {sv.r(8 + 2*T, 2)}, {t0} offset:{T*2048}", f"y{T}")
    vHl = V.alloc(1)
    hb = Reg(A, 128, 128)
    sSt2 = S.alloc(1)

    def h_load(m):
        th, n = divmod(m, 28)
        if o.rot:
            if m == 28:
                g(f"v_add_u32 {vHl}, {112*1024}, {vHl}")
            so, off = sG4[n >> 1], (n & 1) * 1024
        else:
            if n % 4 == 0:
                g(f"s_mov_b32 {sSt2}, {th*112*1024 + n*1024}")
            so, off = sSt2, (n & 3) * 1024
        g.vm(f"buffer_load_dwordx4 {hb.r(4*(m & 31), 4)}, {vHl}, {R['ws']}, {so} offen offset:{off} sc1 {o.pol_H}", f"H{m}")

    g(f"s_mul_i32 {sT[0]}, {sW}, {28*1024}\ns_add_u32 {sT[0]}, {sT[0]}, {sH2}\nv_add_u32 {vHl}, {sT[0]}, {vL16}")
    if o.fake & 4:
        g(f"v_mov_b32 {vHl}, {OOB}")
    pump_off()
    Bg.flush(Bg.find("dma", 28))
    if o.apoll_at == 5:
        pa.issue()
    Bg.flush(max(Bg.find("dma", 29), Bg.find("rd", o.rd_ha)))
    def hbflag():
        g.wait(vm="Hst1")
        flag_set(F_HB)
        if o.l2pf & 8:
            g(f"v_lshlrev_b32 {vOne}, 5, {vP32}")
            g.vm(f"buffer_load_dword {vDum}, {vOne}, {R['ws']}, {sHst} offen sc1", "pf")
    pa.check(then=hbflag if o.hbflag_at < 0 else None)
    stamp("HA_flag")
    nxt = o.ahead
    hl = (h_load(m) for m in range(nxt))
    next(hl)
    g.pump = lambda: next(hl, None) if g.ta - g.clock < 30 else None
    run(gate_calc())
    g(f"s_lshl_b32 {sT[0]}, {sW}, 6\ns_add_u32 {sT[0]}, {sT[0]}, {C_OMG}\nv_lshl_add_u32 {t2}, {vC}, 2, {sT[0]}")
    g.ds(f"ds_write_b32 {t2}, {gate[1]}")
    g(f"v_xor_b32 {t0}, {vKq}, {vC}\nv_lshlrev_b32 {t0}, 4, {t0}\nv_lshl_add_u32 {t0}, {vC}, 8, {t0}\ns_lshl_b32 {sT[0]}, {sW}, 12\ns_add_u32 {sT[0]}, {sT[0]}, {C_BASE}\nv_add_u32 {t0}, {sT[0]}, {t0}")
    bq = Reg(V, accs[1].base, 32)
    for T in range(4):
        g.wait(lg=f"y{T}")
        for i in range(0 if o.abl & 8192 else 2):
            for src, d in ((sv[8 + 2*T + i], 0), (qp[2*T + i], 4), (x1p[2*T + i], 8)):
                g(f"v_lshlrev_b32 {bq[d + 2*i]}, 16, {src}\nv_and_b32 {bq[d + 2*i + 1]}, {sMask}, {src}")
        for i in (0, 2):
            g(f"v_pk_mul_f32 {bq.r(i,2)}, {bq.r(i,2)}, {bq.r(4+i,2)}")
            g(f"v_pk_mul_f32 {bq.r(8+i,2)}, {bq.r(8+i,2)}, {gate} op_sel:[0,1] op_sel_hi:[1,1]")
        for i in (0, 2):
            g(f"v_pk_fma_f32 {bq.r(12 + 4*T + i, 2)}, {bq.r(i,2)}, {gate}, {bq.r(8+i,2)} op_sel_hi:[1,0,1]")
        g(f"v_xor_b32 {t2}, {64*T}, {t0}")
        g.ds(f"ds_write_b128 {t2}, {bq.r(12 + 4*T, 4)}", "bw")
    qp.free(); x1p.free(); hq.free()
    vPw, vPr, vOut, vOm = (V.alloc(1) for _ in range(4))
    stamp("base")
    class Fin:
        @staticmethod
        def r(i, n=1):
            return accs[0].r(i, n) if i < 32 else tmp.r(i - 32, n)

        def __getitem__(self, i):
            return self.r(i)
    fin = Fin()

    def partial_out(th):
        for ft in range(2):
            for q in range(4):
                if o.fast_end:
                    g.ds(f"ds_write_b128 {pwa[4*ft + q]}, {accs[th].r(16*ft + 4*q, 4)} offset:{LA + th*32768}", f"pw{th}")
                else:
                    g(f"v_xor_b32 {t2}, {128*ft + 32*q}, {vPw}")
                    g.ds(f"ds_write_b128 {t2}, {accs[th].r(16*ft + 4*q, 4)} offset:{LA + th*32768}", f"pw{th}")
                yield

    def final_head(th):
        g(f"v_xor_b32 {t0}, 16, {vPr}")
        g(f"v_add_u32 {t2}, {C_BASE + th*8192}, {vPr}\nv_add_u32 {t3}, {C_BASE + th*8192}, {t0}")
        g.ds(f"ds_read_b128 {fin.r(32,4)}, {t2}", "fb")
        g.ds(f"ds_read_b128 {fin.r(36,4)}, {t3}", "fb")
        g(f"v_add_u32 {t2}, {C_OMG + th*128}, {vOm}")
        g.ds(f"ds_read_b32 {sv[0]}, {t2}", "fb")
        g(f"s_add_u32 {sT[0]}, {sPan}, {th*32768}")

    def final(th, packed, head=True):
        if head:
            g(f"v_xor_b32 {t0}, 16, {vPr}")
        for x, ad in enumerate((vPr, t0)):
            for w in range(4):
                g.ds(f"ds_read_b128 {fin.r(16*x + 4*w, 4)}, {ad} offset:{LA + th*32768 + w*8192}", f"f{x}")
                yield
        if head:
            g(f"v_add_u32 {t2}, {C_BASE + th*8192}, {vPr}\nv_add_u32 {t3}, {C_BASE + th*8192}, {t0}")
            yield
            g.ds(f"ds_read_b128 {fin.r(32,4)}, {t2}", "fb")
            g.ds(f"ds_read_b128 {fin.r(36,4)}, {t3}", "fb")
            yield
            g(f"v_add_u32 {t2}, {C_OMG + th*128}, {vOm}")
            g.ds(f"ds_read_b32 {sv[0]}, {t2}", "fb")
            yield
        for x in range(2):
            g.wait(lg=f"f{x}")
            b = 16 * x
            for d, s in ((0, 4), (8, 12), (0, 8)):
                if packed:
                    for i in (0, 2):
                        g(f"v_pk_add_f32 {fin.r(b+d+i,2)}, {fin.r(b+d+i,2)}, {fin.r(b+s+i,2)}")
                else:
                    for i in range(4):
                        g(f"v_add_f32 {fin[b+d+i]}, {fin[b+d+i]}, {fin[b+s+i]}")
                        yield
        g.wait(lg="fb")
        for x in range(2):
            if packed:
                for i in (0, 2):
                    g(f"v_pk_fma_f32 {fin.r(16*x+i,2)}, {fin.r(16*x+i,2)}, {sv.r(0,2)}, {fin.r(32+4*x+i,2)} op_sel_hi:[1,0,1]")
                continue
            for i in range(4):
                g(f"v_fma_f32 {fin[16*x+i]}, {fin[16*x+i]}, {sv[0]}, {fin[32+4*x+i]}")
                yield
        for x in range(2):
            for i in range(2):
                g(f"v_cvt_pk_bf16_f32 {fin[4 + 2*x + i]}, {fin[16*x + 2*i]}, {fin[16*x + 2*i + 1]}")
                yield
        if head:
            g(f"s_add_u32 {sT[0]}, {sPan}, {th*32768}")
        g.vm(f"buffer_store_dwordx4 {fin.r(4,4)}, {vOut}, {R['out']}, {sT[0]} offen {o.out_pol}", "out")
        yield

    def barrier_after(tag):
        g.wait(lg=tag)
        g("s_barrier")
        yield

    Bg.cap = len(Bg.ops)
    g.pump = None
    run(hl)
    setup_ops = [f"v_and_b32 {t0}, 31, v0", f"v_lshrrev_b32 {t2}, 5, v0", f"v_xor_b32 {t2}, {t2}, {vC}", f"v_lshlrev_b32 {t2}, 4, {t2}", f"v_lshl_add_u32 {t0}, {t0}, 8, {t2}", f"s_lshl_b32 {sT[0]}, {sW}, 13", f"v_add_u32 {vPw}, {sT[0]}, {t0}", f"v_lshrrev_b32 {t0}, 3, v0", f"s_lshl_b32 {sT[0]}, {sW}, 3", f"v_add_u32 {t0}, {sT[0]}, {t0}", f"v_lshlrev_b32 {t3}, 4, {vS8}", f"v_lshl_add_u32 {vOut}, {t0}, 10, {t3}", f"v_lshlrev_b32 {t2}, 1, {vS8}", f"v_and_b32 {t3}, 15, {t0}", f"v_xor_b32 {t2}, {t2}, {t3}", f"v_lshlrev_b32 {t2}, 4, {t2}", f"v_lshl_add_u32 {vPr}, {t0}, 8, {t2}", f"v_lshlrev_b32 {vOm}, 2, {t0}"]
    pwa = V.alloc(8, at=152)
    if o.fast_end:
        setup_ops += [f"v_xor_b32 {pwa[i]}, {32*i}, {vPw}" for i in range(8)]
    fillers = [Ops(setup_ops)]
    for m in range(56):
        th, n = divmod(m, 28)
        if n % 2 == 0 and th == 0:
            Bg.flush(Bg.find("rd", 16 + n // 2))
            g.wait(lg=f"sr{16 + n//2}")
        if m == 28:
            stamp("g4_0"); idle("g4_0")
            drain(fillers)
            po = partial_out(0)
        if 29 <= m < 37:
            next(po)
        if m == o.bar_at:
            drain(fillers)
            fillers = [barrier_after("pw0"), final(0, False)]
        if m == o.hbflag_at:
            hbflag()
        if m % 7 == 0:
            mark(3, f"m{m}")
        if o.fast_end and m == 54:
            assert o.bar_at < 56
            drain(fillers)
            final_head(1)
            g.wait(vm="H55")
            po = partial_out(1)
            for ft in range(2):
                for mm in (54, 55):
                    c = accs[1].r(16*ft, 16)
                    g(f"v_mfma_f32_32x32x16_bf16 {c}, {w4home(mm - 28, ft)}, {hb.r(4*(mm & 31), 4)}, {c}")
            for _ in range(8):
                next(po)
            break
        g.wait(vm=f"H{m}")
        for ft in range(2):
            c = accs[th].r(16*ft, 16)
            if not (o.abl & 128 and ft):
                g(f"v_mfma_f32_32x32x16_bf16 {c}, {w4home(n, ft)}, {hb.r(4*(m & 31), 4)}, {c if n else 0}")
            if ft == 0:
                if m == o.bpoll_at:
                    pb.issue()
                if nxt == 28:
                    pb.check()
                if nxt < 56:
                    h_load(nxt)
                    nxt += 1
            if not (m == 28 and ft == 0):
                fill(fillers, 0, reserve=4 * ft)
    drain(fillers)
    stamp("g4_1")
    if not o.fast_end:
        run(partial_out(1))
    run(barrier_after("pw1"))
    if o.bar_at >= 56:
        run(final(0, True))
    run(final(1, True, head=not o.fast_end))
    stamp("end")
    stamp("end_real", real=True)
    if o.stamps:
        g(f"s_lshl_b32 {sT[0]}, s2, 2\ns_add_u32 {sT[0]}, {sT[0]}, {sW}\ns_lshl_b32 {sT[0]}, {sT[0]}, 8\ns_add_u32 {sT[0]}, {sT[0]}, {STAMPS}")
        g(f"buffer_store_dword {vStamp}, {vL4}, {R['ws']}, {sT[0]} offen")
    if amp:
        g(f"s_cmp_lg_u32 s2, {amp[3] if len(amp) > 3 else 77}\ns_cbranch_scc1 L_end")
        g(f"v_readlane_b32 {sT[0]}, {vStamp}, 62\nv_readlane_b32 {sT[2]}, {vStamp}, 63\ns_nop 3")
        g(f"s_sub_u32 {sT[2]}, {sT[2]}, {sT[0]}\ns_mul_i32 {sT[2]}, {sT[2]}, {amp[2]}\ns_min_u32 {sT[2]}, {sT[2]}, 100000")
        g(f"s_memrealtime {sT.r(0,2)}\ns_waitcnt lgkmcnt(0)")
        g(f"L_amp:\ns_memrealtime {sStamp}\ns_waitcnt lgkmcnt(0)\ns_sub_u32 {sStamp[0]}, {sStamp[0]}, {sT[0]}")
        g(f"s_cmp_lt_u32 {sStamp[0]}, {sT[2]}\ns_cbranch_scc1 L_amp")
    g("s_endpgm")
    for t in tail:
        g(t)
    g("L_end:\ns_endpgm")
    body = g.text(o.align)
    info = dict(nops=g.nops, vhigh=V.high, shigh=S.high, stamps=stamp_names, lines=len(g.lines), clock=g.clock, model=model, bgat=bgat)
    return file_text([(KNAME, 256, 256, LDS_BYTES)], [(KNAME, body, 512, 256, 102)]), info


REF = "gated_mix__ssm_conv_h3__mixer_s_mlp__prompt.s.ref"
HEADER = open(REF).read().split("; Override launch")[0] if os.path.exists(REF) else ""


DOC = """;
; One persistent launch: 256 workgroups x 4 waves, one workgroup per CU; generated by work/gen14.py.
;   P1   h  = gelu(LN(x)[rows shifted per slice] @ w1[:, slice]); the mean enters through column sums of w1
;   P2   x1 = x + h @ w2[:, slice], partial row statistics and gate sums
;   P3   H  = gelu(LN(x1) @ w3[:, 64 features per wave]); w3 lives in accumulator registers
;   P4   out = g*q*y + (1-g)*(x1 + H @ w4[:, slice]); K is split over the waves and summed through LDS
; Hand-offs go through d_ws: data is stored with sc1 and drained, then the wave raises its progress word, once on
; a line of its own (sc1, valid for any placement) and once in a per-panel line (plain store, a hint that is read
; first). The lines are cleared inside the launch; d_debug tells when. Every retry loop is bounded.
"""


def set_opts(args):
    for kv in args:
        k, v = kv.split("=")
        cur = getattr(Opt, k)
        setattr(Opt, k, type(cur)(int(v)) if isinstance(cur, (bool, int)) else v)


if __name__ == "__main__":
    out = sys.argv[1] if len(sys.argv) > 1 else "k.s"
    set_opts(sys.argv[2:])
    text, info = build(Opt)
    open(out, "w").write(HEADER + DOC + text)
    print(info)
```
